```python
import torch

def _softmax(x, axis=-1):
    return torch.softmax(x, dim=axis)
def _gelu(x):
    return torch.nn.functional.gelu(x, approximate="tanh")
def _silu(x):
    return torch.nn.functional.silu(x)
def _sigmoid(x):
    return torch.sigmoid(x)
def _layernorm(x, axis=-1, eps=1e-5):
    m = x.mean(dim=axis, keepdim=True)
    v = x.var(dim=axis, keepdim=True, unbiased=False)
    return (x - m) / torch.sqrt(v + eps)
def _scatter_add(tgt, idx, src, axis=0):
    return tgt.clone().index_add_(axis, idx, src)
def _segment_sum(src, seg, n):
    out = torch.zeros((n,) + src.shape[1:], dtype=src.dtype)
    return out.index_add_(0, seg, src)
def _pad(x, pw):
    flat = tuple(v for pair in reversed(pw) for v in pair)
    return torch.nn.functional.pad(x, flat)

kernel_name = 'concat_heads__sliding_block__softmax_full_mha__prompt'

def setup_inputs():

    _w = (lambda a: (lambda t: t.to(torch.bfloat16) if t.is_floating_point() else t)(torch.as_tensor(a)))
    def _A_setup():
        B, S, D = 1, 2048, 448
        return {
            "x": _w((lambda *s: torch.randn(*s, dtype=torch.bfloat16) * 0.2)(B, S, D)),
            "wqkv": _w((lambda *s: torch.randn(*s, dtype=torch.bfloat16) * 0.8)(D, 3 * D)),
            "wo": _w((lambda *s: torch.randn(*s, dtype=torch.bfloat16) * 3.2)(D, D)),
        }
    _A_in = _A_setup()

    def _B_setup():
        B, S, D = 1, 2048, 448
        return {
            "x": _w((lambda *s: torch.randn(*s, dtype=torch.bfloat16) * 0.2)(B, S, D)),
            "wqkv": _w((lambda *s: torch.randn(*s, dtype=torch.bfloat16) * 0.8)(D, 3 * D)),
            "wo": _w((lambda *s: torch.randn(*s, dtype=torch.bfloat16) * 3.2)(D, D)),
        }
    _B_in = _B_setup()

    return {
        "A_x": _A_in["x"],
        "A_wqkv": _A_in["wqkv"],
        "A_wo": _A_in["wo"],
        "B_x": _B_in["x"],
        "B_wqkv": _B_in["wqkv"],
        "B_wo": _B_in["wo"],
    }

def reference(A_x, A_wqkv, A_wo, B_x, B_wqkv, B_wo):
    def _A_ref(x, wqkv, wo):
        B, S, D = x.shape
        H = 16; Dh = D // H; W = 256
        qkv = (lambda x, *d: x.permute(*d))((x @ wqkv).reshape(B, S, 3, H, Dh), 2, 0, 3, 1, 4)
        q, k, v = qkv[0], qkv[1], qkv[2]
        scores = torch.einsum("bhqd,bhkd->bhqk", q, k) * (Dh ** -0.5)
        idx = torch.arange(S)
        mask = (idx[:, None] - idx[None, :] >= 0) & (idx[:, None] - idx[None, :] < W)
        scores = torch.where(mask[None, None], scores, -1e9)
        p = _softmax(scores, axis=-1)
        o = torch.einsum("bhqk,bhkd->bhqd", p, v)
        return (lambda x, *d: x.permute(*d))(o, 0, 2, 1, 3).reshape(B, S, D) @ wo

    def _B_ref(x, wqkv, wo):
        B, S, D = x.shape
        H = 16; Dh = D // H
        qkv = (lambda x, *d: x.permute(*d))((x @ wqkv).reshape(B, S, 3, H, Dh), 2, 0, 3, 1, 4)
        q, k, v = qkv[0], qkv[1], qkv[2]
        scale = Dh ** -0.5
        scores = torch.einsum("bhqd,bhkd->bhqk", q, k) * scale
        p = _softmax(scores, axis=-1)
        o = torch.einsum("bhqk,bhkd->bhqd", p, v)
        return (lambda x, *d: x.permute(*d))(o, 0, 2, 1, 3).reshape(B, S, D) @ wo

    a = _A_ref(A_x, A_wqkv, A_wo)
    b = _B_ref(B_x, B_wqkv, B_wo)
    return torch.concatenate([a, b], axis=-1)
```

```python
import re

class Emit:
    def __init__(self):
        self.L = []
        self.vm_n = 0
        self.vm_done = 0
        self.lg_n = 0
        self.lg_done = 0
        self.uid = 0

    def e(self, s):
        for line in s.strip("\n").split("\n"):
            line = line.strip()
            if line:
                self.L.append(line)

    def c(self, s):
        self.L.append("; " + s)

    def label(self, name):
        self.L.append(name + ":")

    def newlabel(self, base):
        self.uid += 1
        return f"L_{base}_{self.uid}"

    def vm(self, s):
        self.L.append(s)
        self.vm_n += 1
        return self.vm_n

    def lg(self, s):
        self.L.append(s)
        self.lg_n += 1
        return self.lg_n

    def wait(self, vm=None, lg=None):
        parts = []
        if vm is not None and vm > self.vm_done:
            n = min(self.vm_n - vm, 63)
            parts.append(f"vmcnt({n})")
            self.vm_done = self.vm_n - n
        if lg is not None and lg > self.lg_done:
            n = min(self.lg_n - lg, 15)
            parts.append(f"lgkmcnt({n})")
            self.lg_done = self.lg_n - n
        if parts:
            self.L.append("s_waitcnt " + " ".join(parts))

    def wait_all(self, vm=True, lg=True):
        parts = []
        if vm:
            parts.append("vmcnt(0)"); self.vm_done = self.vm_n
        if lg:
            parts.append("lgkmcnt(0)"); self.lg_done = self.lg_n
        self.L.append("s_waitcnt " + " ".join(parts))

    def nop(self, n):
        while n > 0:
            k = min(n, 16)
            self.L.append(f"s_nop {k-1}")
            n -= k

    def text(self):
        out = []
        for l in self.L:
            if l.endswith(":") or l.startswith(".") or l.startswith(";"):
                out.append(l)
            else:
                out.append("  " + l)
        return "\n".join(out) + "\n"


REG = re.compile(r"\b([vas])(\d+)\b|\b([vas])\[(\d+):(\d+)\]")

def regs_of(op):
    op = op.strip()
    r = []
    for m in REG.finditer(op):
        if m.group(1):
            r.append((m.group(1), int(m.group(2))))
        else:
            for i in range(int(m.group(4)), int(m.group(5)) + 1):
                r.append((m.group(3), i))
    if re.search(r"\bvcc\b", op): r += [("s", 106), ("s", 107)]
    if re.search(r"\bexec\b", op): r += [("s", 126), ("s", 127)]
    if re.search(r"\bexec_lo\b", op): r += [("s", 126)]
    if re.search(r"\bexec_hi\b", op): r += [("s", 127)]
    if re.search(r"\bm0\b", op): r += [("s", 124)]
    return r

TRANS = ("v_exp_", "v_log_", "v_rcp_", "v_rsq_", "v_sqrt_", "v_sin_", "v_cos_")

class I:
    pass

def parse(line):
    line = line.split(";")[0].strip()
    if not line or line.endswith(":") or line.startswith("."):
        return None
    parts = line.split(None, 1)
    mn = parts[0]
    ops = [o.strip() for o in re.split(r",(?![^\[]*\])", parts[1])] if len(parts) > 1 else []
    it = I(); it.mn = mn; it.ops = ops; it.text = line
    it.w = []; it.r = []
    it.kind = "other"
    it.ws = 1
    if mn == "s_nop":
        it.ws = int(ops[0], 0) + 1; it.kind = "nop"
    elif mn.startswith("v_mfma"):
        it.kind = "mfma"
        it.w = regs_of(ops[0]); it.a = regs_of(ops[1]); it.b = regs_of(ops[2]); it.c = regs_of(ops[3])
        it.r = it.a + it.b + it.c
        it.passes = 8 if "32x32x16" in mn else 4 if "16x16x32" in mn else 16
    elif mn.startswith("v_cmp"):
        it.kind = "valu"
        it.w = regs_of(ops[0]); it.r = sum((regs_of(o) for o in ops[1:]), [])
        if mn.startswith("v_cmpx"): it.w += [("s", 126), ("s", 127)]
    elif mn.startswith("v_readfirstlane") or mn.startswith("v_readlane"):
        it.kind = "valu"; it.lane_read = True
        it.w = regs_of(ops[0]); it.r = sum((regs_of(o) for o in ops[1:]), [])
    elif mn.startswith("v_permlane32_swap") or mn.startswith("v_permlane16_swap"):
        it.kind = "valu"; it.perm = True
        it.w = regs_of(ops[0]) + regs_of(ops[1]); it.r = list(it.w)
    elif mn.startswith("v_"):
        it.kind = "valu"
        it.w = regs_of(ops[0])
        rest = ops[1:]
        if mn.startswith(("v_add_co", "v_sub_co", "v_addc_co", "v_subb_co", "v_subrev_co", "v_div_scale")):
            it.w += regs_of(ops[1]); rest = ops[2:]
        it.r = sum((regs_of(o) for o in rest), [])
        if mn.startswith(("v_fmac", "v_pk_fmac", "v_accvgpr_write")) and mn.startswith(("v_fmac", "v_pk_fmac")): it.r += it.w
        if mn.startswith("v_cndmask") and len(ops) == 3: it.r += [("s", 106), ("s", 107)]
        if "dpp" in line or "row_" in line or "quad_perm" in line: it.dpp = True
        if "UNUSED_PRESERVE" in line: it.r += it.w
        it.trans = mn.startswith(TRANS)
    elif mn.startswith(("buffer_load", "global_load")):
        it.kind = "vmem"
        if " lds" in line or "_lds_" in mn:
            it.r = sum((regs_of(o) for o in ops), []) + [("s", 124)]
            it.dma = True
        else:
            it.w = regs_of(ops[0]); it.r = sum((regs_of(o) for o in ops[1:]), [])
    elif mn.startswith(("buffer_store", "global_store")):
        it.kind = "vmem"; it.store = True
        it.r = sum((regs_of(o) for o in ops), [])
        if mn.startswith("buffer_store"): it.data = regs_of(ops[0])
        else: it.data = regs_of(ops[1])
        it.wide = ("x4" in mn or "x3" in mn)
    elif mn.startswith(("buffer_atomic", "global_atomic")):
        it.kind = "vmem"
        it.r = sum((regs_of(o) for o in ops), [])
        if "sc0" in line: it.w = regs_of(ops[0])
    elif mn.startswith("ds_read") or mn.startswith("ds_bpermute") or mn.startswith("ds_swizzle"):
        it.kind = "ds"; it.w = regs_of(ops[0]); it.r = sum((regs_of(o) for o in ops[1:]), [])
    elif mn.startswith("ds_"):
        it.kind = "ds"; it.r = sum((regs_of(o) for o in ops), [])
    elif mn.startswith("s_"):
        it.kind = "salu"
        if mn.startswith(("s_cmp", "s_cbranch", "s_branch", "s_waitcnt", "s_barrier", "s_endpgm", "s_setprio", "s_sleep", "s_bitcmp")):
            it.r = sum((regs_of(o) for o in ops), [])
        else:
            it.w = regs_of(ops[0]) if ops else []
            it.r = sum((regs_of(o) for o in ops[1:]), [])
            if "saveexec" in mn: it.w += [("s", 126), ("s", 127)]
    return it

def isv(r): return r[0] in "va"

def check(lines, name=""):
    ins = []
    for ln in lines:
        p = parse(ln)
        if p is not None:
            ins.append(p)
    probs = []
    W = 24
    for j, c in enumerate(ins):
        dist = 0
        cr = set(c.r); cw = set(c.w)
        for i in range(j - 1, max(-1, j - 40), -1):
            p = ins[i]
            need = 0; why = ""
            pw = set(p.w)
            if p.kind == "mfma":
                ps = p.passes
                raw_valu = {2: 5, 4: 8, 8: 12, 16: 20}[ps]
                if c.kind == "mfma":
                    if pw & (set(c.a) | set(c.b)):
                        need, why = raw_valu, "mfma D -> mfma A/B"
                    elif pw & set(c.c):
                        if set(c.c) == pw and c.passes == ps:
                            need = 0
                        else:
                            need, why = {2: 4, 4: 6, 8: 10, 16: 18}[ps], "mfma D -> mfma C partial"
                    if (pw & cw) and not (set(c.c) == pw) and need == 0:
                        if c.passes != ps: need, why = raw_valu, "mfma WAW diff passes"
                elif c.kind in ("valu", "vmem", "ds"):
                    if pw & (cr | cw):
                        need, why = raw_valu, "mfma D -> valu/mem access"
                    if c.kind == "valu" and (set(p.c) & cw) and not (pw & cw):
                        n2 = {2: 1, 4: 3, 8: 7, 16: 15}[ps]
                        if n2 > need: need, why = n2, "mfma C read -> valu write (WAR)"
            elif p.kind == "valu":
                pwv = {r for r in pw if isv(r)}
                pws = {r for r in pw if r[0] == "s"}
                if c.kind == "mfma" and (pwv & cr):
                    need, why = 2, "valu write -> mfma read"
                if c.kind == "mfma" and (("s", 126) in pws or ("s", 127) in pws):
                    need, why = max(need, 4), "valu exec write -> mfma"
                if c.kind == "valu":
                    if getattr(p, "trans", False) and not getattr(c, "trans", False) and (pwv & cr):
                        if need < 1: need, why = 1, "trans -> valu"
                    if getattr(c, "perm", False) and (pwv & cr):
                        if need < 2: need, why = 2, "valu -> permlane"
                    if getattr(c, "dpp", False) and (pwv & cr):
                        if need < 2: need, why = 2, "valu -> dpp"
                    if getattr(c, "lane_read", False) and (pwv & cr):
                        if need < 1: need, why = 1, "valu -> readlane"
                    if pws & {r for r in cr if r[0] == "s"}:
                        if need < 2: need, why = 2, "valu sgpr write -> valu read"
                    if "sdwa" in p.mn or "op_sel" in p.text:
                        if pwv & (cr | cw) and need < 1: need, why = 1, "sdwa/opsel -> valu"
                if c.kind == "vmem" and (pws & {r for r in cr if r[0] == "s"}):
                    need, why = max(need, 5), "valu sgpr write -> vmem read"
            elif p.kind == "salu":
                if ("s", 124) in pw and getattr(c, "dma", False):
                    need, why = 1, "m0 write -> lds dma"
            elif p.kind == "vmem" and getattr(p, "store", False) and p.wide:
                if c.kind in ("valu", "mfma") and (set(p.data) & cw):
                    need, why = 2, "wide store data WAR"
                elif (set(p.data) & cw):
                    need, why = 1, "wide store data WAR"
            if need > dist:
                probs.append(f"{name}: need {need} have {dist} [{why}]\n    P: {p.text}\n    C: {c.text}")
            dist += p.ws
            if dist >= W: break
    return probs
```

```python
import sys, math, struct
sys.path.insert(0, "gen")
from asmlib import Emit, check

NAME = "concat_heads__sliding_block__softmax_full_mha__prompt"

def f2u(x): return struct.unpack("<I", struct.pack("<f", x))[0]

KV_B = 0
KV_A = 4 << 20
O_B = 8 << 20
O_A = 10 << 20
Q_B = 12 << 20
Q_A = 14 << 20
WS_BYTES = 16 << 20
X_BYTES = 2048 * 896
W_BYTES = 448 * 2688
WO_BYTES = 448 * 896
OUT_BYTES = 2048 * 1792
QSCALE = (28 ** -0.5) * math.log2(math.e)
MARGIN = 64.0
NEGBIG = -1.0e30

class V:
    def __init__(self, lo, hi): self.n = lo; self.hi = hi
    def a(self, cnt=1, al=1):
        self.n = (self.n + al - 1) // al * al
        r = self.n; self.n += cnt
        assert self.n <= self.hi, "out of regs"
        return r

def vr(b, n=1): return f"v{b}" if n == 1 else f"v[{b}:{b+n-1}]"
def ar(b, n=1): return f"a{b}" if n == 1 else f"a[{b}:{b+n-1}]"
def sr(b, n=1): return f"s{b}" if n == 1 else f"s[{b}:{b+n-1}]"

def mfma(k, d, a, b, c):
    k.e(f"v_mfma_f32_32x32x16_bf16 {d}, {a}, {b}, {c}")

def srd(k, s, base_lo, size):
    k.e(f"s_mov_b32 s{s}, s{base_lo}")
    k.e(f"s_and_b32 s{s+1}, s{base_lo+1}, 0xffff")
    k.e(f"s_mov_b32 s{s+2}, {size}")
    k.e(f"s_mov_b32 s{s+3}, 0x20000")

def unit_ids(k, s_x, s_y, s_hB, s_rB, s_hA, s_rA, tmp):
    k.e(f"s_and_b32 s{s_x}, s2, 7")
    k.e(f"s_lshr_b32 s{s_y}, s2, 3")
    k.e(f"s_and_b32 s{s_hB}, s{s_x}, 3")
    k.e(f"s_lshl_b32 s{s_hB}, s{s_hB}, 2")
    k.e(f"s_and_b32 s{tmp}, s{s_y}, 3")
    k.e(f"s_add_u32 s{s_hB}, s{s_hB}, s{tmp}")
    k.e(f"s_lshr_b32 s{s_rB}, s{s_x}, 2")
    k.e(f"s_lshl_b32 s{s_rB}, s{s_rB}, 3")
    k.e(f"s_lshr_b32 s{tmp}, s{s_y}, 2")
    k.e(f"s_add_u32 s{s_rB}, s{s_rB}, s{tmp}")
    k.e(f"s_and_b32 s{s_hA}, s{s_y}, 15")
    k.e(f"s_lshr_b32 s{tmp}, s{s_y}, 4")
    k.e(f"s_lshl_b32 s{s_rA}, s{s_x}, 1")
    k.e(f"s_add_u32 s{s_rA}, s{s_rA}, s{tmp}")

def kernel_header(name):
    return f""".globl {name}
.p2align 8
.type {name},@function
{name}:
"""

def kernel_desc(name, vgpr, accum, sgpr=96):
    return f""".amdhsa_kernel {name}
  .amdhsa_next_free_vgpr {vgpr}
  .amdhsa_next_free_sgpr {sgpr}
  .amdhsa_accum_offset {accum}
  .amdhsa_group_segment_fixed_size 0
  .amdhsa_kernarg_size 72
  .amdhsa_user_sgpr_count 2
  .amdhsa_user_sgpr_kernarg_segment_ptr 1
  .amdhsa_system_sgpr_workgroup_id_x 1
.end_amdhsa_kernel
"""

def build_masks(k, vDiag, vEdge, vLane, t0, t1, sBig):
    k.e(f"v_and_b32 v{t0}, 31, v{vLane}")
    k.e(f"v_lshrrev_b32 v{t1}, 5, v{vLane}")
    k.e(f"v_lshlrev_b32 v{t1}, 2, v{t1}")
    k.e(f"v_sub_u32 v{t0}, v{t0}, v{t1}")
    k.e(f"s_mov_b32 s{sBig}, {f2u(NEGBIG):#x}")
    k.e(f"v_mov_b32 v{t1}, s{sBig}")
    for i in range(16):
        b = 8 * (i // 4) + (i % 4)
        k.e(f"v_cmp_le_i32 vcc, {b}, v{t0}")
        k.nop(2)
        if vDiag is not None:
            k.e(f"v_cndmask_b32 v{vDiag+i}, v{t1}, 0, vcc" if False else f"v_cndmask_b32_e64 v{vDiag+i}, v{t1}, 0, vcc")
        if vEdge is not None:
            k.e(f"v_cndmask_b32_e64 v{vEdge+i}, 0, v{t1}, vcc")

def colmax(k, vS, vm, vt):
    k.e(f"v_max3_f32 v{vm}, v{vS}, v{vS+1}, v{vS+2}")
    for i in range(3, 15, 2):
        k.e(f"v_max3_f32 v{vm}, v{vm}, v{vS+i}, v{vS+i+1}")
    k.e(f"v_max_f32 v{vm}, v{vm}, v{vS+15}")
    k.e(f"v_mov_b32 v{vt}, v{vm}")
    k.nop(2)
    k.e(f"v_permlane32_swap_b32 v{vm}, v{vt}")
    k.e(f"v_max_f32 v{vm}, v{vm}, v{vt}")

def set_shift(k, vm, vQf, t0, t1, t2, sExec):
    k.e(f"v_and_b32 v{t0}, 0xffff0000, v{vm}")
    k.e(f"v_sub_f32 v{t1}, v{vm}, v{t0}")
    k.e(f"v_and_b32 v{t2}, 0xffff0000, v{t1}")
    k.e(f"v_sub_f32 v{t1}, v{t1}, v{t2}")
    k.e(f"v_lshrrev_b32 v{t0}, 16, v{t0}")
    k.e(f"v_or_b32 v{t0}, v{t0}, v{t2}")
    k.e(f"v_xor_b32 v{t0}, 0x80008000, v{t0}")
    k.e(f"v_lshrrev_b32 v{t1}, 16, v{t1}")
    k.e(f"v_xor_b32 v{t1}, 0x8000, v{t1}")
    k.e(f"s_mov_b32 exec_lo, 0")
    k.e(f"v_mov_b32 v{vQf+6}, v{t0}")
    k.e(f"v_mov_b32 v{vQf+7}, v{t1}")
    k.e(f"s_mov_b32 exec_lo, -1")

def gen_p1(name):
    k = Emit()
    sX, sY, sHB, sRB, sHA, sRA, sT, sT2, sW = 20, 21, 22, 23, 24, 25, 26, 27, 28
    SRD_XB, SRD_WB, SRD_XA, SRD_WA, SRD_WS = 32, 36, 40, 44, 48
    sOffB, sOffA = 52, 53
    sXbaseB, sXbaseA = 54, 55
    sWcolB, sWcolA = 56, 57
    sM0X, sM0W = 58, 59
    sC, sXo, sWo, sWo2 = 60, 61, 62, 63
    sVmask = 64
    sBig = 66
    sKVoffB, sKVoffA, sQoffB, sQoffA = 67, 68, 69, 70
    k.e("s_cmp_ge_u32 s2, 256")
    k.e("s_cbranch_scc1 L_p1_end")
    k.e("s_load_dwordx4 s[4:7], s[0:1], 0")
    k.e("s_load_dwordx4 s[8:11], s[0:1], 24")
    k.e("s_load_dwordx2 s[12:13], s[0:1], 64")
    unit_ids(k, sX, sY, sHB, sRB, sHA, sRA, sT)
    k.e(f"s_and_b32 s{sT}, s{sY}, 3")
    k.e(f"s_lshl_b32 s{sT}, s{sT}, 1")
    k.e(f"s_lshr_b32 s{sT2}, s{sY}, 2")
    k.e(f"s_add_u32 s{sOffB}, s{sT}, s{sT2}")
    k.e(f"s_sub_u32 s{sT}, s{sOffB}, 7")
    k.e(f"s_min_u32 s{sOffB}, s{sOffB}, s{sT}")
    k.e(f"s_lshr_b32 s{sT}, s{sY}, 4")
    k.e(f"s_mul_i32 s{sT}, s{sT}, 3")
    k.e(f"s_add_u32 s{sOffA}, s{sHA}, s{sT}")
    for _ in range(2):
        k.e(f"s_sub_u32 s{sT}, s{sOffA}, 7")
        k.e(f"s_min_u32 s{sOffA}, s{sOffA}, s{sT}")
    k.e(f"s_mul_i32 s{sXbaseB}, s{sRB}, {128*896}")
    k.e(f"s_mul_i32 s{sXbaseA}, s{sRA}, {128*896}")
    k.e(f"s_mul_i32 s{sWcolB}, s{sHB}, 56")
    k.e(f"s_mul_i32 s{sWcolA}, s{sHA}, 56")
    R = V(1, 256)
    vLane = R.a(); vt0 = R.a(); vt1 = R.a(); vt2 = R.a(); vt3 = R.a()
    vXo = R.a(4); vWo = R.a(); vXr = R.a(4); vWr = R.a(); vSt = R.a(); vVpad = R.a()
    vXf = R.a(8, 4); vWf = R.a(24, 4)
    accs = {b: dict(Q=R.a(16, 4), K=R.a(16, 4), V=R.a(16, 4)) for b in "BA"}
    vKf = R.a(8, 4); vVf = R.a(8, 4); vQf = R.a(8, 4); vS = R.a(16, 4); vDiag = R.a(16, 4); vM = R.a()
    k.e(f"v_and_b32 v{vLane}, 63, v0")
    k.e(f"v_lshrrev_b32 v{vt0}, 6, v0")
    k.nop(1)
    k.e(f"v_readfirstlane_b32 s{sW}, v{vt0}")
    for j in range(4):
        k.e(f"v_lshrrev_b32 v{vt0}, 3, v{vLane}")
        k.e(f"v_add_u32 v{vt0}, {8*j}, v{vt0}")
        k.e(f"v_bfe_u32 v{vt1}, v{vt0}, 1, 3")
        k.e(f"v_and_b32 v{vt2}, 7, v{vLane}")
        k.e(f"v_xor_b32 v{vt1}, v{vt1}, v{vt2}")
        k.e(f"v_lshrrev_b32 v{vt2}, 6, v0")
        k.e(f"v_lshl_add_u32 v{vt0}, v{vt2}, 5, v{vt0}")
        k.e(f"v_mul_u32_u24 v{vt0}, 896, v{vt0}")
        k.e(f"v_lshl_add_u32 v{vt0}, v{vt1}, 4, v{vt0}")
        k.e(f"v_subrev_u32 v{vXo+j}, {1024*j}, v{vt0}")
    k.e(f"v_lshrrev_b32 v{vt0}, 2, v{vLane}")
    k.e(f"v_lshrrev_b32 v{vt2}, 6, v0")
    k.e(f"v_lshl_add_u32 v{vt0}, v{vt2}, 4, v{vt0}")
    k.e(f"v_mul_u32_u24 v{vt0}, 2688, v{vt0}")
    k.e(f"v_and_b32 v{vt1}, 3, v{vLane}")
    k.e(f"v_lshl_add_u32 v{vWo}, v{vt1}, 4, v{vt0}")
    for ks in range(4):
        k.e(f"v_lshrrev_b32 v{vt0}, 5, v{vLane}")
        k.e(f"v_add_u32 v{vt0}, {2*ks}, v{vt0}")
        k.e(f"v_bfe_u32 v{vt1}, v{vLane}, 1, 3")
        k.e(f"v_xor_b32 v{vt0}, v{vt0}, v{vt1}")
        k.e(f"v_and_b32 v{vt1}, 31, v{vLane}")
        k.e(f"v_lshlrev_b32 v{vt1}, 7, v{vt1}")
        k.e(f"v_lshl_add_u32 v{vt0}, v{vt0}, 4, v{vt1}")
        k.e(f"v_lshrrev_b32 v{vt2}, 6, v0")
        k.e(f"v_lshl_add_u32 v{vXr+ks}, v{vt2}, 12, v{vt0}")
    k.e(f"v_lshrrev_b32 v{vt0}, 5, v{vLane}")
    k.e(f"v_lshlrev_b32 v{vt0}, 3, v{vt0}")
    k.e(f"v_bfe_u32 v{vt1}, v{vLane}, 2, 2")
    k.e(f"v_add_u32 v{vt0}, v{vt0}, v{vt1}")
    k.e(f"v_lshlrev_b32 v{vt0}, 6, v{vt0}")
    k.e(f"v_bfe_u32 v{vt1}, v{vLane}, 4, 1")
    k.e(f"v_lshl_add_u32 v{vt0}, v{vt1}, 5, v{vt0}")
    k.e(f"v_and_b32 v{vt1}, 3, v{vLane}")
    k.e(f"v_lshl_add_u32 v{vt0}, v{vt1}, 3, v{vt0}")
    k.e(f"v_add_u32 v{vWr}, 65536, v{vt0}")
    k.e(f"v_lshlrev_b32 v{vSt}, 4, v{vLane}")
    k.e(f"v_and_b32 v{vt0}, 31, v{vLane}")
    k.e(f"v_cmp_eq_u32 vcc, 28, v{vt0}")
    k.e(f"v_mov_b32 v{vt1}, 0x3f803f80")
    k.nop(1)
    k.e(f"v_cndmask_b32_e64 v{vVpad}, 0, v{vt1}, vcc")
    k.e(f"v_cmp_le_u32 s[{sVmask}:{sVmask+1}], 28, v{vt0}")
    build_masks(k, vDiag, None, vLane, vt0, vt1, sBig)
    k.e(f"s_lshl_b32 s{sM0X}, s{sW}, 12")
    k.e(f"s_mul_i32 s{sM0W}, s{sW}, 3072")
    k.e(f"s_add_u32 s{sM0W}, s{sM0W}, 65536")
    for (o, q, h, r, kv, qq) in ((sKVoffB, sQoffB, sHB, sRB, KV_B, Q_B), (sKVoffA, sQoffA, sHA, sRA, KV_A, Q_A)):
        k.e(f"s_lshl_b32 s{sT}, s{r}, 2")
        k.e(f"s_add_u32 s{sT}, s{sT}, s{sW}")
        k.e(f"s_lshl_b32 s{sT2}, s{h}, 6")
        k.e(f"s_add_u32 s{sT}, s{sT}, s{sT2}")
        k.e(f"s_lshl_b32 s{o}, s{sT}, 12")
        k.e(f"s_add_u32 s{o}, s{o}, {kv}")
        k.e(f"s_lshl_b32 s{q}, s{sT}, 11")
        k.e(f"s_add_u32 s{q}, s{q}, {qq}")
    k.e("s_waitcnt lgkmcnt(0)")
    srd(k, SRD_XA, 4, X_BYTES); srd(k, SRD_WA, 6, W_BYTES)
    srd(k, SRD_XB, 8, X_BYTES); srd(k, SRD_WB, 10, W_BYTES)
    srd(k, SRD_WS, 12, WS_BYTES)

    NCH = 14
    dma_tok = {}
    def issue_dma(g):
        b = "B" if g < 7 else "A"
        i = g % 7
        slot = g % 4
        off = sOffB if b == "B" else sOffA
        sx = SRD_XB if b == "B" else SRD_XA
        sw = SRD_WB if b == "B" else SRD_WA
        k.e(f"s_add_u32 s{sC}, s{off}, {i}")
        k.e(f"s_sub_u32 s{sT}, s{sC}, 7")
        k.e(f"s_min_u32 s{sC}, s{sC}, s{sT}")
        k.e(f"s_lshl_b32 s{sXo}, s{sC}, 7")
        k.e(f"s_add_u32 s{sXo}, s{sXo}, s{sXbaseB if b == 'B' else sXbaseA}")
        k.e(f"s_add_u32 m0, s{sM0X}, {slot*16384}")
        k.e(f"s_mul_i32 s{sWo}, s{sC}, {64*2688}")
        for j in range(4):
            t = k.vm(f"buffer_load_dwordx4 v{vXo+j}, s[{sx}:{sx+3}], s{sXo} offen offset:{1024*j} lds")
        k.e(f"s_add_u32 s{sWo}, s{sWo}, s{sWcolB if b == 'B' else sWcolA}")
        for sec in range(3):
            k.e(f"s_add_u32 m0, s{sM0W}, {slot*12288 + sec*1024}")
            k.e(f"s_add_u32 s{sWo2}, s{sWo}, {sec*896}")
            t = k.vm(f"buffer_load_dwordx4 v{vWo}, s[{sw}:{sw+3}], s{sWo2} offen lds")
        dma_tok[g] = t

    def reads(g, ks):
        slot = g % 4
        par = ks % 2
        k.lg(f"ds_read_b128 v[{vXf+4*par}:{vXf+4*par+3}], v{vXr+ks} offset:{slot*16384}")
        for sec in range(3):
            base = slot * 12288 + ks * 3072 + sec * 1024
            d = vWf + 12 * par + 4 * sec
            k.lg(f"ds_read_b64_tr_b16 v[{d}:{d+1}], v{vWr} offset:{base}")
            t = k.lg(f"ds_read_b64_tr_b16 v[{d+2}:{d+3}], v{vWr} offset:{base+256}")
        return t

    def mfmas(g, ks, tok):
        b = "B" if g < 7 else "A"
        first = (g % 7 == 0 and ks == 0)
        par = ks % 2
        a = accs[b]
        xf = vr(vXf + 4 * par, 4)
        k.wait(lg=tok)
        for sec, nm in enumerate("QKV"):
            wf = vr(vWf + 12 * par + 4 * sec, 4)
            d = vr(a[nm], 16)
            c = "0" if first else d
            if nm == "V": mfma(k, d, xf, wf, c)
            else: mfma(k, d, wf, xf, c)

    def epilogue(b):
        a = accs[b]
        kvo = sKVoffB if b == "B" else sKVoffA
        qo = sQoffB if b == "B" else sQoffA
        k.nop(12)
        for i in range(8):
            k.e(f"v_cvt_pk_bf16_f32 v{vKf+i}, v{a['K']+2*i}, v{a['K']+2*i+1}")
        k.e("s_mov_b32 exec_lo, 0")
        k.e(f"v_mov_b32 v{vKf+6}, 0x3f803f80")
        k.e(f"v_mov_b32 v{vKf+7}, 0x00003f80")
        k.e("s_mov_b32 exec_lo, -1")
        k.vm(f"buffer_store_dwordx4 v[{vKf}:{vKf+3}], v{vSt}, s[{SRD_WS}:{SRD_WS+3}], s{kvo} offen")
        k.vm(f"buffer_store_dwordx4 v[{vKf+4}:{vKf+7}], v{vSt}, s[{SRD_WS}:{SRD_WS+3}], s{kvo} offen offset:1024")
        for i in range(8):
            k.e(f"v_cvt_pk_bf16_f32 v{vVf+i}, v{a['V']+2*i}, v{a['V']+2*i+1}")
        for i in range(8):
            k.e(f"v_cndmask_b32_e64 v{vVf+i}, v{vVf+i}, v{vVpad}, s[{sVmask}:{sVmask+1}]")
        k.vm(f"buffer_store_dwordx4 v[{vVf}:{vVf+3}], v{vSt}, s[{SRD_WS}:{SRD_WS+3}], s{kvo} offen offset:2048")
        k.vm(f"buffer_store_dwordx4 v[{vVf+4}:{vVf+7}], v{vSt}, s[{SRD_WS}:{SRD_WS+3}], s{kvo} offen offset:3072")
        k.e(f"s_mov_b32 s{sT}, {f2u(QSCALE):#x}")
        for i in range(16):
            k.e(f"v_mul_f32 v{a['Q']+i}, s{sT}, v{a['Q']+i}")
        for i in range(8):
            k.e(f"v_cvt_pk_bf16_f32 v{vQf+i}, v{a['Q']+2*i}, v{a['Q']+2*i+1}")
        k.e("s_mov_b32 exec_lo, 0")
        k.e(f"v_mov_b32 v{vQf+6}, 0")
        k.e(f"v_mov_b32 v{vQf+7}, 0")
        k.e("s_mov_b32 exec_lo, -1")
        k.nop(2)
        mfma(k, vr(vS, 16), vr(vKf, 4), vr(vQf, 4), "0" if b == "B" else vr(vDiag, 16))
        mfma(k, vr(vS, 16), vr(vKf + 4, 4), vr(vQf + 4, 4), vr(vS, 16))
        k.nop(12)
        colmax(k, vS, vM, vt0)
        k.e(f"v_add_f32 v{vM}, {f2u(MARGIN):#x}, v{vM}")
        set_shift(k, vM, vQf, vt0, vt1, vt2, None)
        k.vm(f"buffer_store_dwordx4 v[{vQf}:{vQf+3}], v{vSt}, s[{SRD_WS}:{SRD_WS+3}], s{qo} offen")
        k.vm(f"buffer_store_dwordx4 v[{vQf+4}:{vQf+7}], v{vSt}, s[{SRD_WS}:{SRD_WS+3}], s{qo} offen offset:1024")

    for g in range(3): issue_dma(g)
    pend = None
    for g in range(NCH):
        k.c(f"---- chunk {g}")
        k.wait(vm=dma_tok[g])
        k.wait_all(vm=False, lg=True)
        k.e("s_barrier")
        t0 = reads(g, 0)
        if g + 3 < NCH: issue_dma(g + 3)
        if pend is not None:
            mfmas(*pend)
            if g == 7: epilogue("B")
        toks = t0
        for ks in range(3):
            tn = reads(g, ks + 1)
            mfmas(g, ks, toks)
            toks = tn
        pend = (g, 3, toks)
    mfmas(*pend)
    epilogue("A")
    k.e("s_waitcnt vmcnt(0)")
    k.label("L_p1_end")
    k.e("s_endpgm")
    return k, R.n

def attn_pipeline(k, ops, vS, vP, hook=None):
    N = len(ops)
    def qk(n, part):
        o = ops[n]; S = vr(vS + 16 * (n % 2), 16)
        if part == 0:
            k.wait(vm=o.get("wK"), lg=o.get("lgK"))
            mfma(k, S, o["K"][0], o["Q"][0], o["C"])
        else:
            mfma(k, S, o["K"][1], o["Q"][1], S)
    def pv(n, part):
        o = ops[n]; P = vP + 8 * (n % 2)
        if part == 0:
            k.wait(vm=o.get("wV"), lg=o.get("lgV"))
            mfma(k, o["O"], o["V"][0], vr(P, 4), "0" if o["first"] else o["O"])
        else:
            mfma(k, o["O"], o["V"][1], vr(P + 4, 4), o["O"])
    def expgrp(n, g):
        S = vS + 16 * (n % 2); P = vP + 8 * (n % 2)
        for i in range(4):
            k.e(f"v_exp_f32 v{S+4*g+i}, v{S+4*g+i}")
        k.e(f"v_cvt_pk_bf16_f32 v{P+2*g}, v{S+4*g}, v{S+4*g+1}")
        k.e(f"v_cvt_pk_bf16_f32 v{P+2*g+1}, v{S+4*g+2}, v{S+4*g+3}")
    for n in range(-1, N + 1):
        has_exp = 0 <= n < N
        for g in range(4):
            if g < 2 and n + 1 < N: qk(n + 1, g)
            if g >= 2 and 0 <= n - 1: pv(n - 1, g - 2)
            if hook: hook(n, g)
            if has_exp: expgrp(n, g)
        if n == -1:
            k.nop(12)
        if n == N - 1:
            k.nop(2)

def finalize_o(k, vO, vt0, vt1, vOf):
    k.e(f"v_mov_b32 v{vt0}, v{vO+12}")
    k.e(f"v_mov_b32 v{vt1}, v{vO+12}")
    k.nop(2)
    k.e(f"v_permlane32_swap_b32 v{vt0}, v{vt1}")
    k.e(f"v_rcp_f32 v{vt1}, v{vt1}")
    k.nop(1)
    for i in range(16):
        k.e(f"v_mul_f32 v{vO+i}, v{vO+i}, v{vt1}")
    for i in range(8):
        k.e(f"v_cvt_pk_bf16_f32 v{vOf+i}, v{vO+2*i}, v{vO+2*i+1}")
    k.e("s_mov_b32 exec_lo, 0")
    k.e(f"v_mov_b32 v{vOf+6}, 0")
    k.e(f"v_mov_b32 v{vOf+7}, 0")
    k.e("s_mov_b32 exec_lo, -1")

def gen_attn(name):
    k = Emit()
    sX, sY, sHB, sRB, sHA, sRA, sT, sT2, sW = 20, 21, 22, 23, 24, 25, 26, 27, 28
    SRD_WS = 32
    sKV, sRot, sTo, sQo, sBig, sOo = 36, 37, 38, 39, 40, 41
    k.e("s_cmp_ge_u32 s2, 256")
    k.e("s_cbranch_scc1 L_at_end")
    k.e("s_load_dwordx2 s[12:13], s[0:1], 64")
    unit_ids(k, sX, sY, sHB, sRB, sHA, sRA, sT)
    R = V(1, 256)
    vLane = R.a(); vt0 = R.a(); vt1 = R.a(); vt2 = R.a(); vSt = R.a(); vRed = R.a(); vRedR = R.a()
    vQ = R.a(32, 4); vS = R.a(32, 4); vP = R.a(16, 4); vO = R.a(64, 4); vOf = R.a(8, 4); vTmp = R.a(48, 4)
    vDiag = R.a(16, 4); vEdge = R.a(16, 4)
    k.e(f"v_and_b32 v{vLane}, 63, v0")
    k.e(f"v_lshrrev_b32 v{vt0}, 6, v0")
    k.nop(1)
    k.e(f"v_readfirstlane_b32 s{sW}, v{vt0}")
    k.e(f"v_lshlrev_b32 v{vSt}, 4, v{vLane}")
    build_masks(k, vDiag, vEdge, vLane, vt0, vt1, sBig)
    k.e("s_waitcnt lgkmcnt(0)")
    srd(k, SRD_WS, 12, WS_BYTES)
    ws = f"s[{SRD_WS}:{SRD_WS+3}]"
    qtok = {}
    for d in (1, 2, 3, 0):
        k.e(f"s_add_u32 s{sT}, s{sW}, {d}")
        k.e(f"s_and_b32 s{sT}, s{sT}, 3")
        k.e(f"s_lshl_b32 s{sT2}, s{sRB}, 2")
        k.e(f"s_add_u32 s{sT}, s{sT}, s{sT2}")
        k.e(f"s_lshl_b32 s{sT2}, s{sHB}, 6")
        k.e(f"s_add_u32 s{sT}, s{sT}, s{sT2}")
        k.e(f"s_lshl_b32 s{sQo}, s{sT}, 11")
        k.e(f"s_add_u32 s{sQo}, s{sQo}, {Q_B}")
        k.vm(f"buffer_load_dwordx4 v[{vQ+8*d}:{vQ+8*d+3}], v{vSt}, {ws}, s{sQo} offen")
        qtok[d] = k.vm(f"buffer_load_dwordx4 v[{vQ+8*d+4}:{vQ+8*d+7}], v{vSt}, {ws}, s{sQo} offen offset:1024")
    k.e(f"s_lshl_b32 s{sKV}, s{sHB}, 18")
    k.e(f"s_lshl_b32 s{sT}, s{sW}, 16")
    k.e(f"s_add_u32 s{sKV}, s{sKV}, s{sT}")
    k.e(f"s_add_u32 s{sKV}, s{sKV}, {KV_B}")
    k.e(f"s_and_b32 s{sRot}, s{sRB}, 7")
    k.e(f"s_lshl_b32 s{sRot}, s{sRot}, 1")
    ktok = {}; vtok = {}
    def load_tile(i):
        k.e(f"s_add_u32 s{sT}, s{sRot}, {i}")
        k.e(f"s_and_b32 s{sT}, s{sT}, 15")
        k.e(f"s_lshl_b32 s{sT}, s{sT}, 12")
        k.e(f"s_add_u32 s{sTo}, s{sT}, s{sKV}")
        k.vm(f"buffer_load_dwordx4 a[{16*i}:{16*i+3}], v{vSt}, {ws}, s{sTo} offen")
        ktok[i] = k.vm(f"buffer_load_dwordx4 a[{16*i+4}:{16*i+7}], v{vSt}, {ws}, s{sTo} offen offset:1024")
        k.vm(f"buffer_load_dwordx4 a[{16*i+8}:{16*i+11}], v{vSt}, {ws}, s{sTo} offen offset:2048")
        vtok[i] = k.vm(f"buffer_load_dwordx4 a[{16*i+12}:{16*i+15}], v{vSt}, {ws}, s{sTo} offen offset:3072")
    AHEAD = 4
    for i in range(AHEAD): load_tile(i)
    ops = []
    for p, (d0, d1) in enumerate(((1, 2), (3, 0))):
        for i in range(16):
            for d in (d0, d1):
                ops.append(dict(K=(ar(16*i, 4), ar(16*i+4, 4)), V=(ar(16*i+8, 4), ar(16*i+12, 4)),
                                Q=(vr(vQ+8*d, 4), vr(vQ+8*d+4, 4)), O=vr(vO+16*d, 16), C="0", first=(i == 0), tile=i, p=p, d=d))
    class Lazy(dict):
        pass
    def hook(n, g):
        if g == 0 and n >= 0 and n < 32 and n % 2 == 0:
            i = n // 2 + AHEAD
            if i < 16: load_tile(i)
    class Op(dict):
        def get(self, key, default=None):
            if key == "wK":
                t = ktok[self["tile"]]
                return max(t, qtok[self["d"]])
            if key == "wV": return vtok[self["tile"]]
            return dict.get(self, key, default)
    ops = [Op(o) for o in ops]
    attn_pipeline(k, ops, vS, vP, hook)
    k.nop(12)
    for d in (1, 2, 3):
        k.e(f"s_add_u32 s{sT}, s{sW}, {d}")
        k.e(f"s_and_b32 s{sT}, s{sT}, 3")
        k.e(f"s_mul_i32 s{sT}, s{sT}, {3*4096}")
        k.e(f"s_add_u32 s{sT}, s{sT}, {(d-1)*4096}")
        k.e(f"v_add_u32 v{vRed}, s{sT}, v{vSt}")
        for i in range(4):
            k.lg(f"ds_write_b128 v{vRed}, v[{vO+16*d+4*i}:{vO+16*d+4*i+3}] offset:{1024*i}")
    k.e(f"s_mul_i32 s{sT}, s{sW}, {3*4096}")
    k.e(f"v_add_u32 v{vRedR}, s{sT}, v{vSt}")
    k.wait_all(vm=False)
    k.e("s_barrier")
    for j in range(3):
        for i in range(4):
            t = k.lg(f"ds_read_b128 v[{vTmp+16*j+4*i}:{vTmp+16*j+4*i+3}], v{vRedR} offset:{4096*j+1024*i}")
    k.wait_all(vm=False)
    for j in range(3):
        for i in range(16):
            k.e(f"v_add_f32 v{vO+i}, v{vO+i}, v{vTmp+16*j+i}")
    finalize_o(k, vO, vt0, vt1, vOf)
    k.e(f"s_lshl_b32 s{sT}, s{sRB}, 2")
    k.e(f"s_add_u32 s{sT}, s{sT}, s{sW}")
    k.e(f"s_lshl_b32 s{sT}, s{sT}, 4")
    k.e(f"s_add_u32 s{sT}, s{sT}, s{sHB}")
    k.e(f"s_lshl_b32 s{sOo}, s{sT}, 11")
    k.e(f"s_add_u32 s{sOo}, s{sOo}, {O_B}")
    k.vm(f"buffer_store_dwordx4 v[{vOf}:{vOf+3}], v{vSt}, {ws}, s{sOo} offen")
    k.vm(f"buffer_store_dwordx4 v[{vOf+4}:{vOf+7}], v{vSt}, {ws}, s{sOo} offen offset:1024")
    k.c("---- branch A")
    k.e(f"s_lshl_b32 s{sT}, s{sRA}, 2")
    k.e(f"s_add_u32 s{sT}, s{sT}, s{sW}")
    k.e(f"s_lshl_b32 s{sT2}, s{sHA}, 6")
    k.e(f"s_add_u32 s{sT2}, s{sT2}, s{sT}")
    k.e(f"s_lshl_b32 s{sQo}, s{sT2}, 11")
    k.e(f"s_add_u32 s{sQo}, s{sQo}, {Q_A}")
    k.nop(2)
    k.vm(f"buffer_load_dwordx4 v[{vQ}:{vQ+3}], v{vSt}, {ws}, s{sQo} offen")
    qa = k.vm(f"buffer_load_dwordx4 v[{vQ+4}:{vQ+7}], v{vSt}, {ws}, s{sQo} offen offset:1024")
    k.e(f"s_lshl_b32 s{sKV}, s{sHA}, 18")
    k.e(f"s_add_u32 s{sKV}, s{sKV}, {KV_A}")
    kt = {}; vt = {}
    for j in range(9):
        k.e(f"s_add_i32 s{sT2}, s{sT}, {j-8}")
        k.e(f"s_lshl_b32 s{sTo}, s{sT2}, 12")
        k.e(f"s_add_u32 s{sTo}, s{sTo}, s{sKV}")
        k.e(f"s_cmp_lt_i32 s{sT2}, 0")
        k.e(f"s_cselect_b32 s{sTo}, {WS_BYTES}, s{sTo}")
        k.vm(f"buffer_load_dwordx4 a[{16*j}:{16*j+3}], v{vSt}, {ws}, s{sTo} offen")
        kt[j] = k.vm(f"buffer_load_dwordx4 a[{16*j+4}:{16*j+7}], v{vSt}, {ws}, s{sTo} offen offset:1024")
        k.vm(f"buffer_load_dwordx4 a[{16*j+8}:{16*j+11}], v{vSt}, {ws}, s{sTo} offen offset:2048")
        vt[j] = k.vm(f"buffer_load_dwordx4 a[{16*j+12}:{16*j+15}], v{vSt}, {ws}, s{sTo} offen offset:3072")
    opsA = []
    for j in range(9):
        C = vr(vEdge, 16) if j == 0 else vr(vDiag, 16) if j == 8 else "0"
        opsA.append(dict(K=(ar(16*j, 4), ar(16*j+4, 4)), V=(ar(16*j+8, 4), ar(16*j+12, 4)),
                         Q=(vr(vQ, 4), vr(vQ+4, 4)), O=vr(vO, 16), C=C, first=(j == 0), wK=max(kt[j], qa), wV=vt[j]))
    attn_pipeline(k, opsA, vS, vP)
    k.nop(12)
    finalize_o(k, vO, vt0, vt1, vOf)
    k.e(f"s_lshl_b32 s{sT}, s{sT}, 4")
    k.e(f"s_add_u32 s{sT}, s{sT}, s{sHA}")
    k.e(f"s_lshl_b32 s{sOo}, s{sT}, 11")
    k.e(f"s_add_u32 s{sOo}, s{sOo}, {O_A}")
    k.vm(f"buffer_store_dwordx4 v[{vOf}:{vOf+3}], v{vSt}, {ws}, s{sOo} offen")
    k.vm(f"buffer_store_dwordx4 v[{vOf+4}:{vOf+7}], v{vSt}, {ws}, s{sOo} offen offset:1024")
    k.e("s_waitcnt vmcnt(0)")
    k.label("L_at_end")
    k.e("s_endpgm")
    return k, R.n

def gen_p3(name):
    k = Emit()
    sT, sT2, sW, sTT, sCT = 20, 21, 22, 23, 24
    SRD_WS, SRD_WOA, SRD_WOB, SRD_OUT = 32, 36, 40, 44
    sWoOff, sOo, sM0, sOutOff = 48, 49, 50, 51
    k.e("s_cmp_ge_u32 s2, 256")
    k.e("s_cbranch_scc1 L_p3_end")
    k.e("s_load_dwordx2 s[4:5], s[0:1], 16")
    k.e("s_load_dwordx2 s[6:7], s[0:1], 40")
    k.e("s_load_dwordx2 s[8:9], s[0:1], 48")
    k.e("s_load_dwordx2 s[12:13], s[0:1], 64")
    R = V(1, 256)
    vLane = R.a(); vt0 = R.a(); vt1 = R.a(); vt2 = R.a(); vSt = R.a(); vWo = R.a(); vWr = R.a(); vOr = R.a(); vOut = R.a()
    vA = R.a(16, 4); vB = R.a(8, 4); vD = R.a(16, 4); vPk = R.a(8, 4)
    k.e(f"v_and_b32 v{vLane}, 63, v0")
    k.e(f"v_lshrrev_b32 v{vt0}, 6, v0")
    k.nop(1)
    k.e(f"v_readfirstlane_b32 s{sW}, v{vt0}")
    k.e(f"v_lshlrev_b32 v{vSt}, 4, v{vLane}")
    k.e(f"s_lshr_b32 s{sTT}, s2, 2")
    k.e(f"s_and_b32 s{sCT}, s2, 3")
    k.e(f"s_lshl_b32 s{sCT}, s{sCT}, 2")
    k.e(f"s_add_u32 s{sCT}, s{sCT}, s{sW}")
    k.e(f"v_lshrrev_b32 v{vt0}, 2, v{vLane}")
    k.e(f"v_mul_u32_u24 v{vt0}, 896, v{vt0}")
    k.e(f"v_and_b32 v{vt1}, 3, v{vLane}")
    k.e(f"v_lshl_add_u32 v{vWo}, v{vt1}, 4, v{vt0}")
    k.e(f"v_lshrrev_b32 v{vt0}, 5, v{vLane}")
    k.e(f"v_lshlrev_b32 v{vt0}, 2, v{vt0}")
    k.e(f"v_bfe_u32 v{vt1}, v{vLane}, 2, 2")
    k.e(f"v_add_u32 v{vt0}, v{vt0}, v{vt1}")
    k.e(f"v_lshlrev_b32 v{vt0}, 6, v{vt0}")
    k.e(f"v_bfe_u32 v{vt1}, v{vLane}, 4, 1")
    k.e(f"v_lshl_add_u32 v{vt0}, v{vt1}, 5, v{vt0}")
    k.e(f"v_and_b32 v{vt1}, 3, v{vLane}")
    k.e(f"v_lshl_add_u32 v{vt0}, v{vt1}, 3, v{vt0}")
    k.e(f"s_mul_i32 s{sM0}, s{sW}, 29696")
    k.e(f"v_add_u32 v{vWr}, s{sM0}, v{vt0}")
    k.e(f"v_add_u32 v{vOr}, 118784, v{vSt}")
    k.e(f"v_and_b32 v{vt0}, 31, v{vLane}")
    k.e(f"v_mul_u32_u24 v{vt0}, 1792, v{vt0}")
    k.e(f"v_lshrrev_b32 v{vt1}, 5, v{vLane}")
    k.e(f"v_lshl_add_u32 v{vOut}, v{vt1}, 4, v{vt0}")
    k.e("s_waitcnt lgkmcnt(0)")
    srd(k, SRD_WOA, 4, WO_BYTES); srd(k, SRD_WOB, 6, WO_BYTES); srd(k, SRD_OUT, 8, OUT_BYTES); srd(k, SRD_WS, 12, WS_BYTES)
    ws = f"s[{SRD_WS}:{SRD_WS+3}]"
    for b in "BA":
        k.c(f"---- branch {b}")
        swo = SRD_WOB if b == "B" else SRD_WOA
        k.e(f"s_lshl_b32 s{sOo}, s{sTT}, 15")
        k.e(f"s_add_u32 s{sOo}, s{sOo}, {O_B if b == 'B' else O_A}")
        k.e(f"s_lshl_b32 s{sT}, s{sW}, 13")
        k.e(f"s_add_u32 s{sOo}, s{sOo}, s{sT}")
        k.e(f"s_add_u32 s{sT2}, s{sT}, 118784")
        for j in range(8):
            k.e(f"s_add_u32 m0, s{sT2}, {1024*j}")
            k.e(f"s_add_u32 s{sT}, s{sOo}, {1024*j}")
            k.vm(f"buffer_load_dwordx4 v{vSt}, {ws}, s{sT} offen lds")
        k.e(f"s_lshl_b32 s{sWoOff}, s{sCT}, 6")
        k.e(f"s_cmp_ge_u32 s{sCT}, 14")
        k.e(f"s_cselect_b32 s{sWoOff}, {WO_BYTES}, s{sWoOff}")
        for j in range(29):
            k.e(f"s_add_u32 m0, s{sM0}, {1024*j}")
            k.e(f"s_add_u32 s{sT}, s{sWoOff}, {16*896*j}")
            k.vm(f"buffer_load_dwordx4 v{vWo}, s[{swo}:{swo+3}], s{sT} offen lds")
        k.wait_all()
        k.e("s_barrier")
        def rd(step):
            hd, kk = step // 2, step % 2
            par = step % 2
            row = 28 * hd + 16 * kk
            k.lg(f"ds_read_b64_tr_b16 v[{vA+8*par*0+4*par}:{vA+4*par+1}], v{vWr} offset:{row*64}")
            k.lg(f"ds_read_b64_tr_b16 v[{vA+4*par+2}:{vA+4*par+3}], v{vWr} offset:{(row+8)*64}")
            return k.lg(f"ds_read_b128 v[{vB+4*par}:{vB+4*par+3}], v{vOr} offset:{step*1024}")
        t = rd(0)
        for step in range(32):
            tn = rd(step + 1) if step + 1 < 32 else None
            k.wait(lg=t)
            par = step % 2
            mfma(k, vr(vD, 16), vr(vA + 4 * par, 4), vr(vB + 4 * par, 4), "0" if step == 0 else vr(vD, 16))
            t = tn
        k.nop(12)
        for i in range(8):
            k.e(f"v_cvt_pk_bf16_f32 v{vPk+i}, v{vD+2*i}, v{vD+2*i+1}")
        k.nop(2)
        k.e(f"v_permlane32_swap_b32 v{vPk}, v{vPk+2}")
        k.e(f"v_permlane32_swap_b32 v{vPk+1}, v{vPk+3}")
        k.e(f"v_permlane32_swap_b32 v{vPk+4}, v{vPk+6}")
        k.e(f"v_permlane32_swap_b32 v{vPk+5}, v{vPk+7}")
        k.e(f"s_mul_i32 s{sOutOff}, s{sTT}, {32*1792}")
        k.e(f"s_lshl_b32 s{sT}, s{sCT}, 6")
        k.e(f"s_add_u32 s{sOutOff}, s{sOutOff}, s{sT}")
        if b == "B": k.e(f"s_add_u32 s{sOutOff}, s{sOutOff}, 896")
        k.e(f"s_cmp_ge_u32 s{sCT}, 14")
        k.e(f"s_cselect_b32 s{sOutOff}, {OUT_BYTES}, s{sOutOff}")
        k.vm(f"buffer_store_dwordx4 v[{vPk}:{vPk+3}], v{vOut}, s[{SRD_OUT}:{SRD_OUT+3}], s{sOutOff} offen")
        k.vm(f"buffer_store_dwordx4 v[{vPk+4}:{vPk+7}], v{vOut}, s[{SRD_OUT}:{SRD_OUT+3}], s{sOutOff} offen offset:32")
        k.e("s_barrier")
    k.e("s_waitcnt vmcnt(0)")
    k.label("L_p3_end")
    k.e("s_endpgm")
    return k, R.n

HEADER = open("cdna_kernels/" + NAME + ".s.ref").read().split("; Override")[0]

def main(out):
    ks = []
    for nm, fn, lds in (("p1_kernel", gen_p1, 114688), ("attn_kernel", gen_attn, 49152), ("p3_kernel", gen_p3, 151552)):
        k, nv = fn(nm)
        pr = check(k.L, nm)
        for p in pr: print(p)
        print(nm, "instrs", len(k.L), "vgprs", nv)
        ks.append((nm, k, lds))
    s = HEADER
    for nm, k, lds in ks:
        s += f"; @launch kernel={nm} grid=(256,1,1) block=(256,1,1) lds={lds}\n"
    s += '.amdgcn_target "amdgcn-amd-amdhsa--gfx950"\n.text\n'
    for nm, k, lds in ks:
        s += kernel_header(nm) + k.text()
    s += '.section .rodata,"a"\n'
    for nm, k, lds in ks:
        s += ".p2align 6\n" + kernel_desc(nm, 512, 256)
    open(out, "w").write(s)

if __name__ == "__main__":
    main(sys.argv[1] if len(sys.argv) > 1 else "cdna_kernels/" + NAME + ".s")
```

```python
import sys, math, struct, os
sys.path.insert(0, "gen")
from asmlib import Emit, check

NAME = "concat_heads__sliding_block__softmax_full_mha__prompt"
KNAME = NAME + "_kernel"
def f2u(x): return struct.unpack("<I", struct.pack("<f", x))[0]

KV_OFF = {"B": 0, "A": 4 << 20}
O_OFF = {"B": 8 << 20, "A": 10 << 20}
Q_OFF = {"B": 12 << 20, "A": 14 << 20}
FKV_OFF = 16 << 20
FO_OFF = (16 << 20) + (128 << 10)
NONCE_OFF = (16 << 20) + (512 << 10)
STAMPS = 17 << 20
WS_BYTES = 18 << 20
X_BYTES = 2048 * 896
W_BYTES = 448 * 2688
WO_BYTES = 448 * 896
OUT_BYTES = 2048 * 1792
QSCALE = (28 ** -0.5) * math.log2(math.e)
MARGIN = 64.0
NEGBIG = -1.0e30
STAMP = os.environ.get("STAMP", "0") == "1"
SPIN_MAX = 1 << 22

class V:
    def __init__(self, lo, hi): self.n = lo; self.hi = hi
    def a(self, cnt=1, al=1):
        self.n = (self.n + al - 1) // al * al
        r = self.n; self.n += cnt
        assert self.n <= self.hi, "out of regs"
        return r

def vr(b, n=1): return f"v{b}" if n == 1 else f"v[{b}:{b+n-1}]"
def ar(b, n=1): return f"a{b}" if n == 1 else f"a[{b}:{b+n-1}]"
def mfma(k, d, a, b, c): k.e(f"v_mfma_f32_32x32x16_bf16 {d}, {a}, {b}, {c}")

S_PTR = 4
SRD_X, SRD_W, SRD_WS, SRD_OUT, SRD_WOA, SRD_WOB = 24, 28, 32, 36, 40, 44
sW, sType, sJ, sR, sT, sT2, sT3 = 48, 49, 50, 51, 52, 53, 54
sOff, sXbase, sWcol, sM0X, sM0W, sC, sXo, sWo, sWo2 = 55, 56, 57, 58, 59, 60, 61, 62, 63
sVmask = 64
sNonce = 66
sHead, sTT, sKV, sTo, sQo, sOo, sSpin = 67, 68, 69, 70, 71, 72, 73
sCT, sP3T = 74, 75
sEx = 76
sStampTmp = 78
sStamp0 = 80
WS = f"s[{SRD_WS}:{SRD_WS+3}]"

def srd(k, s, lo, size):
    k.e(f"s_mov_b32 s{s}, s{lo}")
    k.e(f"s_and_b32 s{s+1}, s{lo+1}, 0xffff")
    k.e(f"s_mov_b32 s{s+2}, {size}")
    k.e(f"s_mov_b32 s{s+3}, 0x20000")

class St:
    n = 0
    v = None
def stamp(k, rt=False):
    if not STAMP: return
    i = St.n; St.n += 1
    assert i < 32
    k.e(f"{'s_memrealtime' if rt else 's_memtime'} s[{sStampTmp}:{sStampTmp+1}]")
    k.wait_all(vm=False, lg=True)
    k.e(f"v_writelane_b32 v{St.v}, s{sStampTmp}, {i}")
def stamp_flush(k, vt0, vt1):
    if not STAMP: return
    k.e(f"v_lshrrev_b32 v{vt0}, 6, v0")
    k.e(f"s_lshl_b32 s{sStampTmp}, s2, 2")
    k.e(f"v_add_u32 v{vt0}, s{sStampTmp}, v{vt0}")
    k.e(f"v_lshlrev_b32 v{vt0}, 7, v{vt0}")
    k.e(f"v_and_b32 v{vt1}, 63, v0")
    k.e(f"v_lshl_add_u32 v{vt0}, v{vt1}, 2, v{vt0}")
    k.e(f"s_mov_b32 s{sStampTmp}, {STAMPS}")
    k.e(f"s_mov_b32 exec_hi, 0")
    k.vm(f"buffer_store_dword v{St.v}, v{vt0}, {WS}, s{sStampTmp} offen")
    k.e(f"s_mov_b64 exec, -1")

def build_masks(k, vDiag, vEdge, vLane, t0, t1):
    k.e(f"v_and_b32 v{t0}, 31, v{vLane}")
    k.e(f"v_lshrrev_b32 v{t1}, 5, v{vLane}")
    k.e(f"v_lshlrev_b32 v{t1}, 2, v{t1}")
    k.e(f"v_sub_u32 v{t0}, v{t0}, v{t1}")
    k.e(f"v_mov_b32 v{t1}, {f2u(NEGBIG):#x}")
    prs = [(sEx, sEx + 1), (sStampTmp, sStampTmp + 1), (sT2, sT3)]
    order = []
    for i in range(16):
        b = 8 * (i // 4) + (i % 4)
        order.append((i, b))
    def cmp(i):
        b = order[i][1]; p = [sEx, sStampTmp, sVmaskTmp][i % 3]
        k.e(f"v_cmp_le_i32_e64 s[{p}:{p+1}], {b}, v{t0}")
    sVmaskTmp = 98
    cmp(0); cmp(1)
    for i in range(16):
        if i + 2 < 16: cmp(i + 2)
        else: k.nop(1)
        p = [sEx, sStampTmp, sVmaskTmp][i % 3]
        if vDiag is not None: k.e(f"v_cndmask_b32_e64 v{vDiag+i}, v{t1}, 0, s[{p}:{p+1}]")
        if vEdge is not None: k.e(f"v_cndmask_b32_e64 v{vEdge+i}, 0, v{t1}, s[{p}:{p+1}]")

def colmax(k, vS, vm, vt):
    k.e(f"v_max3_f32 v{vm}, v{vS}, v{vS+1}, v{vS+2}")
    for i in range(3, 15, 2):
        k.e(f"v_max3_f32 v{vm}, v{vm}, v{vS+i}, v{vS+i+1}")
    k.e(f"v_max_f32 v{vm}, v{vm}, v{vS+15}")
    k.e(f"v_mov_b32 v{vt}, v{vm}")
    k.nop(2)
    k.e(f"v_permlane32_swap_b32 v{vm}, v{vt}")
    k.e(f"v_max_f32 v{vm}, v{vm}, v{vt}")

def set_shift(k, vm, vQf, t0, t1, t2):
    k.e(f"v_and_b32 v{t0}, 0xffff0000, v{vm}")
    k.e(f"v_sub_f32 v{t1}, v{vm}, v{t0}")
    k.e(f"v_and_b32 v{t2}, 0xffff0000, v{t1}")
    k.e(f"v_sub_f32 v{t1}, v{t1}, v{t2}")
    k.e(f"v_lshrrev_b32 v{t0}, 16, v{t0}")
    k.e(f"v_or_b32 v{t0}, v{t0}, v{t2}")
    k.e(f"v_xor_b32 v{t0}, 0x80008000, v{t0}")
    k.e(f"v_lshrrev_b32 v{t1}, 16, v{t1}")
    k.e(f"v_xor_b32 v{t1}, 0x8000, v{t1}")
    k.e(f"s_mov_b32 exec_lo, 0")
    k.e(f"v_mov_b32 v{vQf+6}, v{t0}")
    k.e(f"v_mov_b32 v{vQf+7}, v{t1}")
    k.e(f"s_mov_b32 exec_lo, -1")

def poll_flags(k, vAddr, vTmp, nlanes_mask_lo, name):
    L = k.newlabel(name); Ld = k.newlabel(name + "d")
    k.e(f"s_mov_b32 s{sSpin}, 0")
    k.e(f"s_mov_b32 exec_hi, 0")
    k.e(f"s_mov_b32 exec_lo, {nlanes_mask_lo:#x}")
    k.label(L)
    k.e(f"buffer_load_dword v{vTmp}, v{vAddr}, {WS}, 0 offen sc1")
    k.e(f"s_add_u32 s{sSpin}, s{sSpin}, 1")
    k.e(f"s_waitcnt vmcnt(0)")
    k.e(f"v_cmp_ne_u32 vcc, s{sNonce}, v{vTmp}")
    k.e(f"s_cmp_gt_u32 s{sSpin}, {SPIN_MAX}")
    k.e(f"s_cbranch_scc1 {Ld}")
    k.e(f"s_cbranch_vccnz {L}")
    k.label(Ld)
    k.e(f"s_mov_b64 exec, -1")
    k.vm_done = k.vm_n

def publish_flag(k, vAddrTmp, vValTmp, s_off):
    k.wait_all(vm=True, lg=False)
    k.e(f"v_mov_b32 v{vAddrTmp}, 0")
    k.e(f"v_mov_b32 v{vValTmp}, s{sNonce}")
    k.e(f"s_mov_b64 exec, 1")
    k.vm(f"buffer_store_dword v{vValTmp}, v{vAddrTmp}, {WS}, s{s_off} offen sc1")
    k.e(f"s_mov_b64 exec, -1")

def attn_pipeline(k, ops, vS, vP, hook=None):
    N = len(ops)
    def qk(n, part):
        o = ops[n]; S = vr(vS + 16 * (n % 2), 16)
        if part == 0:
            k.wait(vm=o["wK"]() if callable(o.get("wK")) else o.get("wK"))
            mfma(k, S, o["K"][0], o["Q"][0], o["C"])
        else:
            mfma(k, S, o["K"][1], o["Q"][1], S)
    def pv(n, part):
        o = ops[n]; P = vP + 8 * (n % 2)
        if part == 0:
            k.wait(vm=o["wV"]() if callable(o.get("wV")) else o.get("wV"))
            mfma(k, o["O"], o["V"][0], vr(P, 4), "0" if o["first"] else o["O"])
        else:
            mfma(k, o["O"], o["V"][1], vr(P + 4, 4), o["O"])
    def expgrp(n, g):
        S = vS + 16 * (n % 2); P = vP + 8 * (n % 2)
        for i in range(4):
            k.e(f"v_exp_f32 v{S+4*g+i}, v{S+4*g+i}")
        k.e(f"v_cvt_pk_bf16_f32 v{P+2*g}, v{S+4*g}, v{S+4*g+1}")
        k.e(f"v_cvt_pk_bf16_f32 v{P+2*g+1}, v{S+4*g+2}, v{S+4*g+3}")
    for n in range(-1, N + 1):
        has_exp = 0 <= n < N
        for g in range(4):
            if g < 2 and n + 1 < N: qk(n + 1, g)
            if g >= 2 and 0 <= n - 1: pv(n - 1, g - 2)
            if hook: hook(n, g)
            if has_exp: expgrp(n, g)
        if n == -1: k.nop(12)
        if n == N - 1: k.nop(2)

def finalize_o(k, vO, vt0, vt1, vOf):
    k.e(f"v_mov_b32 v{vt0}, v{vO+12}")
    k.e(f"v_mov_b32 v{vt1}, v{vO+12}")
    k.nop(2)
    k.e(f"v_permlane32_swap_b32 v{vt0}, v{vt1}")
    k.e(f"v_rcp_f32 v{vt1}, v{vt1}")
    k.nop(1)
    for i in range(16):
        k.e(f"v_mul_f32 v{vO+i}, v{vO+i}, v{vt1}")
    for i in range(8):
        k.e(f"v_cvt_pk_bf16_f32 v{vOf+i}, v{vO+2*i}, v{vO+2*i+1}")
    k.e("s_mov_b32 exec_lo, 0")
    k.e(f"v_mov_b32 v{vOf+6}, 0")
    k.e(f"v_mov_b32 v{vOf+7}, 0")
    k.e("s_mov_b32 exec_lo, -1")

def gen():
    k = Emit()
    St.n = 0
    k.e("s_cmp_ge_u32 s2, 256")
    k.e("s_cbranch_scc1 L_end")
    k.e(f"s_load_dwordx16 s[{S_PTR}:{S_PTR+15}], s[0:1], 0")
    k.e(f"s_load_dwordx2 s[20:21], s[0:1], 64")
    G = V(1, 16)
    St.v = 15
    stamp(k); stamp(k, True)
    vLane = G.a(); vSt = G.a(); vt0 = G.a(); vt1 = G.a(); vt2 = G.a(); vt3 = G.a()
    k.e(f"v_and_b32 v{vLane}, 63, v0")
    k.e(f"v_lshrrev_b32 v{vt0}, 6, v0")
    k.e(f"s_and_b32 s{sT}, s2, 7")
    k.e(f"v_readfirstlane_b32 s{sW}, v{vt0}")
    k.e(f"s_lshr_b32 s{sT2}, s2, 3")
    k.e(f"s_and_b32 s{sType}, s{sT2}, 1")
    k.e(f"s_bfe_u32 s{sJ}, s{sT2}, 0x10001")
    k.e(f"s_and_b32 s{sT3}, s{sT}, 3")
    k.e(f"s_lshl_b32 s{sT3}, s{sT3}, 1")
    k.e(f"s_lshr_b32 s{sOff}, s{sT2}, 2")
    k.e(f"s_mul_i32 s{sC}, s{sJ}, 3")
    k.e(f"s_add_u32 s{sJ}, s{sJ}, s{sT3}")
    k.e(f"s_lshr_b32 s{sR}, s{sT}, 2")
    k.e(f"s_lshl_b32 s{sR}, s{sR}, 3")
    k.e(f"s_add_u32 s{sR}, s{sR}, s{sOff}")
    k.e(f"s_add_u32 s{sOff}, s{sOff}, s{sC}")
    k.e(f"s_sub_u32 s{sC}, s{sOff}, 7")
    k.e(f"s_min_u32 s{sOff}, s{sOff}, s{sC}")
    k.e(f"s_lshl_b32 s{sP3T}, s{sT}, 3")
    k.e(f"s_lshr_b32 s{sC}, s{sT2}, 2")
    k.e(f"s_add_u32 s{sP3T}, s{sP3T}, s{sC}")
    k.e(f"s_and_b32 s{sCT}, s{sT2}, 3")
    k.e(f"s_mul_i32 s{sXbase}, s{sR}, {128*896}")
    k.e(f"s_mul_i32 s{sWcol}, s{sJ}, 112")
    R = V(16, 256)
    vXo = R.a(4); vWo = R.a(2); vXr = R.a(4); vWr = R.a(4); vVpad = R.a(); vM = R.a()
    vXf = R.a(8, 4); vWf = R.a(48, 4)
    acc = {(hh, nm): R.a(16, 4) for hh in range(2) for nm in "QKV"}
    vKf = R.a(8, 4); vVf = R.a(8, 4); vQf = R.a(8, 4); vS1 = R.a(16, 4); vDiag1 = R.a(16, 4)
    XSLOT = 16640; WSLOT = 24576; WBASE = 3 * XSLOT
    k.e(f"v_lshrrev_b32 v{vt0}, 3, v{vLane}")
    k.e(f"v_bfe_u32 v{vt1}, v{vLane}, 4, 1")
    k.e(f"v_lshlrev_b32 v{vt1}, 2, v{vt1}")
    k.e(f"v_and_b32 v{vt2}, 7, v{vLane}")
    k.e(f"v_xor_b32 v{vt1}, v{vt1}, v{vt2}")
    k.e(f"v_lshrrev_b32 v{vt2}, 6, v0")
    k.e(f"v_lshl_add_u32 v{vt3}, v{vt2}, 5, v{vt0}")
    k.e(f"v_mul_u32_u24 v{vt3}, 896, v{vt3}")
    k.e(f"v_lshl_add_u32 v{vXo}, v{vt1}, 4, v{vt3}")
    for j in range(1, 4):
        k.e(f"v_add_u32 v{vXo+j}, {j*(8*896-1040)}, v{vXo}")
    k.e(f"v_lshl_add_u32 v{vt3}, v{vt2}, 4, v{vt0}")
    k.e(f"v_mul_u32_u24 v{vt3}, 2688, v{vt3}")
    k.e(f"v_lshl_add_u32 v{vWo}, v{vt1}, 4, v{vt3}")
    k.e(f"v_add_u32 v{vWo+1}, {8*2688-1024}, v{vWo}")
    k.e(f"s_mul_i32 s{sM0X}, s{sW}, 4160")
    k.e(f"s_mul_i32 s{sM0W}, s{sW}, 6144")
    k.e(f"s_add_u32 s{sM0W}, s{sM0W}, {WBASE}")
    k.e("s_waitcnt lgkmcnt(0)")
    k.e(f"s_cmp_eq_u32 s{sType}, 1")
    k.e(f"s_cselect_b32 s{SRD_X}, s4, s10")
    k.e(f"s_cselect_b32 s{SRD_X+1}, s5, s11")
    k.e(f"s_cselect_b32 s{SRD_W}, s6, s12")
    k.e(f"s_cselect_b32 s{SRD_W+1}, s7, s13")
    k.e(f"s_and_b32 s{SRD_X+1}, s{SRD_X+1}, 0xffff")
    k.e(f"s_and_b32 s{SRD_W+1}, s{SRD_W+1}, 0xffff")
    k.e(f"s_mov_b32 s{SRD_X+2}, {X_BYTES}")
    k.e(f"s_mov_b32 s{SRD_X+3}, 0x20000")
    k.e(f"s_mov_b32 s{SRD_W+2}, {W_BYTES}")
    k.e(f"s_mov_b32 s{SRD_W+3}, 0x20000")
    X = f"s[{SRD_X}:{SRD_X+3}]"; W = f"s[{SRD_W}:{SRD_W+3}]"
    dma_tok = {}
    def issue_dma(g):
        slot = g % 3
        k.e(f"s_add_u32 s{sC}, s{sOff}, {g}")
        k.e(f"s_sub_u32 s{sT}, s{sC}, 7")
        k.e(f"s_min_u32 s{sC}, s{sC}, s{sT}")
        k.e(f"s_lshl_b32 s{sXo}, s{sC}, 7")
        k.e(f"s_add_u32 s{sXo}, s{sXo}, s{sXbase}")
        k.e(f"s_add_u32 m0, s{sM0X}, {slot*XSLOT}")
        k.e(f"s_mul_i32 s{sWo}, s{sC}, {64*2688}")
        for j in range(4):
            k.vm(f"buffer_load_dwordx4 v{vXo+j}, {X}, s{sXo} offen offset:{1040*j} lds")
        k.e(f"s_add_u32 s{sWo}, s{sWo}, s{sWcol}")
        for sec in range(3):
            k.e(f"s_add_u32 m0, s{sM0W}, {slot*WSLOT + sec*2048}")
            k.e(f"s_add_u32 s{sWo2}, s{sWo}, {sec*896}")
            k.vm(f"buffer_load_dwordx4 v{vWo}, {W}, s{sWo2} offen lds")
            t = k.vm(f"buffer_load_dwordx4 v{vWo+1}, {W}, s{sWo2} offen offset:1024 lds")
        dma_tok[g] = t
    stamp(k)
    issue_dma(0); issue_dma(1)
    stamp(k)
    srd(k, SRD_WS, 20, WS_BYTES); srd(k, SRD_OUT, 16, OUT_BYTES); srd(k, SRD_WOA, 8, WO_BYTES); srd(k, SRD_WOB, 14, WO_BYTES)
    k.e(f"v_lshlrev_b32 v{vSt}, 4, v{vLane}")
    Lnn = k.newlabel("nonce")
    k.e(f"s_or_b32 s{sT}, s2, s{sW}")
    k.e(f"s_cmp_lg_u32 s{sT}, 0")
    k.e(f"s_cbranch_scc1 {Lnn}")
    k.e(f"s_mov_b32 s{sT}, {NONCE_OFF}")
    k.e(f"v_mov_b32 v{vt0}, 0")
    k.e(f"buffer_load_dword v{vt1}, v{vt0}, {WS}, s{sT} offen sc1")
    k.e(f"s_waitcnt vmcnt(0)")
    k.e(f"v_add_u32 v{vt1}, 1, v{vt1}")
    k.e(f"v_max_u32 v{vt1}, 1, v{vt1}")
    k.e(f"s_mov_b64 exec, 1")
    k.e(f"buffer_store_dword v{vt1}, v{vt0}, {WS}, s{sT} offen sc1")
    k.e(f"global_store_dword v{vt0}, v{vt1}, s[18:19] sc1")
    k.e(f"s_mov_b64 exec, -1")
    k.label(Lnn)
    k.e(f"v_and_b32 v{vt0}, 31, v{vLane}")
    k.e(f"v_lshrrev_b32 v{vt1}, 3, v{vt0}")
    k.e(f"v_mul_u32_u24 v{vt1}, 1040, v{vt1}")
    k.e(f"v_and_b32 v{vt2}, 7, v{vt0}")
    k.e(f"v_lshl_add_u32 v{vt1}, v{vt2}, 7, v{vt1}")
    k.e(f"v_add_u32 v{vt1}, s{sM0X}, v{vt1}")
    k.e(f"v_bfe_u32 v{vt2}, v{vLane}, 1, 1")
    k.e(f"v_lshlrev_b32 v{vt2}, 6, v{vt2}")
    k.e(f"v_lshrrev_b32 v{vt3}, 5, v{vLane}")
    k.e(f"v_lshlrev_b32 v{vt3}, 4, v{vt3}")
    for ks in range(4):
        c0 = 2 * ks
        k.e(f"v_xor_b32 v{vXr+ks}, {(ks >> 1) * 64}, v{vt2}")
        k.e(f"v_add_u32 v{vXr+ks}, v{vXr+ks}, v{vt3}")
        k.e(f"v_add_u32 v{vXr+ks}, {((2*ks) & 3) * 16}, v{vXr+ks}")
        k.e(f"v_add_u32 v{vXr+ks}, v{vXr+ks}, v{vt1}")
    k.e(f"v_lshrrev_b32 v{vt0}, 5, v{vLane}")
    k.e(f"v_lshlrev_b32 v{vt0}, 3, v{vt0}")
    k.e(f"v_bfe_u32 v{vt1}, v{vLane}, 2, 2")
    k.e(f"v_add_u32 v{vt0}, v{vt0}, v{vt1}")
    k.e(f"v_lshlrev_b32 v{vt0}, 7, v{vt0}")
    k.e(f"v_bfe_u32 v{vt1}, v{vLane}, 4, 1")
    k.e(f"v_lshlrev_b32 v{vt1}, 5, v{vt1}")
    k.e(f"v_and_b32 v{vt2}, 3, v{vLane}")
    k.e(f"v_lshl_add_u32 v{vt1}, v{vt2}, 3, v{vt1}")
    k.e(f"v_bfe_u32 v{vt2}, v{vLane}, 3, 1")
    k.e(f"v_lshlrev_b32 v{vt2}, 6, v{vt2}")
    for hh in range(2):
        k.e(f"v_add_u32 v{vt3}, {56*hh}, v{vt1}")
        k.e(f"v_xor_b32 v{vt3}, v{vt3}, v{vt2}")
        k.e(f"v_add_u32 v{vt3}, v{vt3}, v{vt0}")
        k.e(f"v_add_u32 v{vWr+hh}, {WBASE}, v{vt3}")
        k.e(f"v_add_u32 v{vWr+2+hh}, {WBASE + 2*WSLOT}, v{vt3}")
    k.e(f"v_and_b32 v{vt0}, 31, v{vLane}")
    k.e(f"v_cmp_eq_u32 vcc, 28, v{vt0}")
    k.e(f"v_mov_b32 v{vt1}, 0x3f803f80")
    k.e(f"v_cmp_le_u32_e64 s[{sVmask}:{sVmask+1}], 28, v{vt0}")
    k.e(f"v_cndmask_b32_e64 v{vVpad}, 0, v{vt1}, vcc")
    build_masks(k, vDiag1, None, vLane, vt0, vt1)
    LmB = k.newlabel("mB")
    k.e(f"s_cmp_eq_u32 s{sType}, 1")
    k.e(f"s_cbranch_scc1 {LmB}")
    for i in range(16): k.e(f"v_mov_b32 v{vDiag1+i}, 0")
    k.label(LmB)

    def rd_list(g, ks):
        slot = g % 3; par = ks % 2
        L = [f"ds_read_b128 v[{vXf+4*par}:{vXf+4*par+3}], v{vXr+ks} offset:{slot*XSLOT}"]
        for hh in range(2):
            for sec in range(3):
                areg = vWr + hh + (2 if slot == 2 else 0)
                base = (slot % 2 if slot < 2 else 0) * WSLOT + ks * 6144 + sec * 2048
                d = vWf + 24 * par + 12 * hh + 4 * sec
                L.append(f"ds_read_b64_tr_b16 v[{d}:{d+1}], v{areg} offset:{base}")
                L.append(f"ds_read_b64_tr_b16 v[{d+2}:{d+3}], v{areg} offset:{base+512}")
        return L
    def mf_list(g, ks):
        first = (g == 0 and ks == 0); par = ks % 2
        xf = vr(vXf + 4 * par, 4)
        L = []
        for hh in range(2):
            for sec, nm in enumerate("QKV"):
                wf = vr(vWf + 24 * par + 12 * hh + 4 * sec, 4)
                d = vr(acc[(hh, nm)], 16); c = "0" if first else d
                L.append(f"v_mfma_f32_32x32x16_bf16 {d}, {xf}, {wf}, {c}" if nm == "V" else f"v_mfma_f32_32x32x16_bf16 {d}, {wf}, {xf}, {c}")
        return L
    def interleave(mf, rds, tok_need):
        k.wait(lg=tok_need)
        t = None; ri = 0
        for i, m in enumerate(mf):
            k.e(m)
            n = (len(rds) - ri + (len(mf) - i) - 1) // (len(mf) - i)
            for _ in range(n):
                t = k.lg(rds[ri]); ri += 1
        return t
    pend = None
    for g in range(7):
        k.c(f"---- chunk {g}")
        k.wait(vm=dma_tok[g])
        k.wait_all(vm=False, lg=True)
        k.e("s_barrier")
        if g in (0, 1, 6): stamp(k)
        r0 = rd_list(g, 0)
        if pend is None:
            for r_ in r0: tok = k.lg(r_)
            issue_dma(g + 2)
        else:
            tok = interleave(mf_list(*pend), r0, None)
            if g + 2 < 7: issue_dma(g + 2)
        for ks in range(3):
            tok = interleave(mf_list(g, ks), rd_list(g, ks + 1), tok)
        pend = (g, 3)
        ptok = tok
    k.wait(lg=ptok)
    for m in mf_list(*pend): k.e(m)
    stamp(k)
    k.e("s_barrier")
    vWoD = R.a(); vOutOff = None
    k.e(f"v_lshrrev_b32 v{vt0}, 4, v{vLane}")
    k.e(f"v_bfe_u32 v{vt1}, v{vLane}, 2, 2")
    k.e(f"v_sub_u32 v{vt1}, v{vt1}, v{vt0}")
    k.e(f"v_and_b32 v{vt1}, 3, v{vt1}")
    k.e(f"v_lshlrev_b32 v{vt1}, 6, v{vt1}")
    k.e(f"v_and_b32 v{vt2}, 3, v{vLane}")
    k.e(f"v_lshl_add_u32 v{vt1}, v{vt2}, 4, v{vt1}")
    k.e(f"v_mul_u32_u24 v{vt0}, 896, v{vt0}")
    k.e(f"v_add_u32 v{vWoD}, v{vt0}, v{vt1}")
    def wo_dma(srdn):
        k.e(f"s_lshl_b32 s{sT}, s{sCT}, 8")
        k.e(f"s_mul_i32 s{sT2}, s{sW}, {112*896}")
        k.e(f"s_add_u32 s{sT}, s{sT}, s{sT2}")
        k.e(f"s_mul_i32 s{sT2}, s{sW}, {112*256}")
        t = None
        for j in range(28):
            k.e(f"s_add_u32 m0, s{sT2}, {1024*j}")
            k.e(f"s_add_u32 s{sT3}, s{sT}, {4*896*j}")
            t = k.vm(f"buffer_load_dwordx4 v{vWoD}, s[{srdn}:{srdn+3}], s{sT3} offen lds")
        return t
    branch_kv = None
    k.e(f"s_lshl_b32 s{sTT}, s{sR}, 2")
    k.e(f"s_add_u32 s{sTT}, s{sTT}, s{sW}")
    k.nop(8)
    for hh in range(2):
        k.e(f"s_lshl_b32 s{sT}, s{sJ}, 1")
        k.e(f"s_add_u32 s{sT}, s{sT}, {hh}")
        k.e(f"s_lshl_b32 s{sT}, s{sT}, 6")
        k.e(f"s_add_u32 s{sT}, s{sT}, s{sTT}")
        k.e(f"s_lshl_b32 s{sKV}, s{sT}, 12")
        k.e(f"s_lshl_b32 s{sT2}, s{sType}, 22")
        k.e(f"s_add_u32 s{sKV}, s{sKV}, s{sT2}")
        k.e(f"s_lshl_b32 s{sQo}, s{sT}, 11")
        k.e(f"s_lshl_b32 s{sT2}, s{sType}, 21")
        k.e(f"s_add_u32 s{sQo}, s{sQo}, s{sT2}")
        k.e(f"s_add_u32 s{sQo}, s{sQo}, {Q_OFF['B']}")
        aK, aV, aQ = acc[(hh, "K")], acc[(hh, "V")], acc[(hh, "Q")]
        for i in range(8): k.e(f"v_cvt_pk_bf16_f32 v{vKf+i}, v{aK+2*i}, v{aK+2*i+1}")
        k.e("s_mov_b32 exec_lo, 0")
        k.e(f"v_mov_b32 v{vKf+6}, 0x3f803f80")
        k.e(f"v_mov_b32 v{vKf+7}, 0x00003f80")
        k.e("s_mov_b32 exec_lo, -1")
        k.vm(f"buffer_store_dwordx4 v[{vKf}:{vKf+3}], v{vSt}, {WS}, s{sKV} offen sc1")
        k.vm(f"buffer_store_dwordx4 v[{vKf+4}:{vKf+7}], v{vSt}, {WS}, s{sKV} offen offset:1024 sc1")
        for i in range(8): k.e(f"v_cvt_pk_bf16_f32 v{vVf+i}, v{aV+2*i}, v{aV+2*i+1}")
        for i in range(8): k.e(f"v_cndmask_b32_e64 v{vVf+i}, v{vVf+i}, v{vVpad}, s[{sVmask}:{sVmask+1}]")
        k.vm(f"buffer_store_dwordx4 v[{vVf}:{vVf+3}], v{vSt}, {WS}, s{sKV} offen offset:2048 sc1")
        k.vm(f"buffer_store_dwordx4 v[{vVf+4}:{vVf+7}], v{vSt}, {WS}, s{sKV} offen offset:3072 sc1")
        k.e(f"s_mov_b32 s{sT}, {f2u(QSCALE):#x}")
        for i in range(16): k.e(f"v_mul_f32 v{aQ+i}, s{sT}, v{aQ+i}")
        for i in range(8): k.e(f"v_cvt_pk_bf16_f32 v{vQf+i}, v{aQ+2*i}, v{aQ+2*i+1}")
        k.e("s_mov_b32 exec_lo, 0")
        k.e(f"v_mov_b32 v{vQf+6}, 0")
        k.e(f"v_mov_b32 v{vQf+7}, 0")
        k.e("s_mov_b32 exec_lo, -1")
        k.nop(2)
        mfma(k, vr(vS1, 16), vr(vKf, 4), vr(vQf, 4), vr(vDiag1, 16))
        mfma(k, vr(vS1, 16), vr(vKf + 4, 4), vr(vQf + 4, 4), vr(vS1, 16))
        k.nop(12)
        colmax(k, vS1, vM, vt0)
        k.e(f"v_add_f32 v{vM}, {f2u(MARGIN):#x}, v{vM}")
        set_shift(k, vM, vQf, vt0, vt1, vt2)
        k.vm(f"buffer_store_dwordx4 v[{vQf}:{vQf+3}], v{vSt}, {WS}, s{sQo} offen sc1")
        k.vm(f"buffer_store_dwordx4 v[{vQf+4}:{vQf+7}], v{vSt}, {WS}, s{sQo} offen offset:1024 sc1")
        k.nop(2)
    stamp(k)
    Ln = k.newlabel("n"); Lnd = k.newlabel("nd")
    k.e(f"v_mov_b32 v{vt0}, 0")
    k.e(f"s_mov_b32 s{sSpin}, 0")
    k.label(Ln)
    k.e(f"global_load_dword v{vt1}, v{vt0}, s[18:19] sc1")
    k.e(f"s_add_u32 s{sSpin}, s{sSpin}, 1")
    k.e(f"s_waitcnt vmcnt(0)")
    k.e(f"v_readfirstlane_b32 s{sNonce}, v{vt1}")
    k.e(f"s_cmp_gt_u32 s{sSpin}, {SPIN_MAX}")
    k.e(f"s_cbranch_scc1 {Lnd}")
    k.e(f"s_cmp_eq_u32 s{sNonce}, 0")
    k.e(f"s_cbranch_scc1 {Ln}")
    k.label(Lnd)
    k.vm_done = k.vm_n
    k.e(f"s_lshl_b32 s{sT}, s{sType}, 3")
    k.e(f"s_add_u32 s{sT}, s{sT}, s{sJ}")
    k.e(f"s_lshl_b32 s{sT}, s{sT}, 6")
    k.e(f"s_add_u32 s{sT}, s{sT}, s{sTT}")
    k.e(f"s_lshl_b32 s{sT}, s{sT}, 7")
    k.e(f"s_add_u32 s{sT}, s{sT}, {FKV_OFF}")
    publish_flag(k, vt0, vt1, sT)
    stamp(k)
    woA_tok = wo_dma(SRD_WOA)

    R = V(16, 256)
    vWoD2 = R.a()
    k.e(f"v_mov_b32 v{vWoD2}, v{vWoD}")
    vWoD = vWoD2
    vRed = R.a(); vRedR = R.a(); vFl = R.a()
    vQA = R.a(8, 4); vQ = R.a(32, 4); vS = R.a(32, 4); vP = R.a(16, 4); vO = R.a(64, 4); vOf = R.a(8, 4); vTmp = vS; assert vP == vS + 32
    vDiag = R.a(16, 4); vEdge = R.a(16, 4)
    build_masks(k, vDiag, vEdge, vLane, vt0, vt1)
    k.e(f"s_lshl_b32 s{sHead}, s{sJ}, 1")
    k.e(f"s_add_u32 s{sHead}, s{sHead}, s{sType}")
    k.e(f"s_sub_u32 s{sT}, s{sTT}, 8")
    k.e(f"v_add_u32 v{vFl}, s{sT}, v{vLane}")
    k.e(f"v_max_i32 v{vFl}, 0, v{vFl}")
    k.e(f"s_add_u32 s{sT}, s{sJ}, 8")
    k.e(f"s_lshl_b32 s{sT}, s{sT}, 6")
    k.e(f"v_add_u32 v{vFl}, s{sT}, v{vFl}")
    k.e(f"v_lshlrev_b32 v{vFl}, 7, v{vFl}")
    k.e(f"v_add_u32 v{vFl}, {FKV_OFF}, v{vFl}")
    poll_flags(k, vFl, vt0, 0x1ff, "pa")
    stamp(k)
    k.e(f"s_lshl_b32 s{sT2}, s{sHead}, 6")
    k.e(f"s_add_u32 s{sT2}, s{sT2}, s{sTT}")
    k.e(f"s_lshl_b32 s{sQo}, s{sT2}, 11")
    k.e(f"s_add_u32 s{sQo}, s{sQo}, {Q_OFF['A']}")
    k.vm(f"buffer_load_dwordx4 v[{vQA}:{vQA+3}], v{vSt}, {WS}, s{sQo} offen sc1")
    qa = k.vm(f"buffer_load_dwordx4 v[{vQA+4}:{vQA+7}], v{vSt}, {WS}, s{sQo} offen offset:1024 sc1")
    k.e(f"s_lshl_b32 s{sKV}, s{sHead}, 18")
    k.e(f"s_add_u32 s{sKV}, s{sKV}, {KV_OFF['A']}")
    kt = {}; vt = {}
    for j in range(9):
        k.e(f"s_add_i32 s{sT2}, s{sTT}, {j-8}")
        k.e(f"s_lshl_b32 s{sTo}, s{sT2}, 12")
        k.e(f"s_add_u32 s{sTo}, s{sTo}, s{sKV}")
        k.e(f"s_cmp_lt_i32 s{sT2}, 0")
        k.e(f"s_cselect_b32 s{sTo}, {WS_BYTES}, s{sTo}")
        k.vm(f"buffer_load_dwordx4 a[{16*j}:{16*j+3}], v{vSt}, {WS}, s{sTo} offen sc1")
        kt[j] = k.vm(f"buffer_load_dwordx4 a[{16*j+4}:{16*j+7}], v{vSt}, {WS}, s{sTo} offen offset:1024 sc1")
        k.vm(f"buffer_load_dwordx4 a[{16*j+8}:{16*j+11}], v{vSt}, {WS}, s{sTo} offen offset:2048 sc1")
        vt[j] = k.vm(f"buffer_load_dwordx4 a[{16*j+12}:{16*j+15}], v{vSt}, {WS}, s{sTo} offen offset:3072 sc1")
    k.e(f"s_lshl_b32 s{sT}, s{sW}, 4")
    k.e(f"v_add_u32 v{vFl}, s{sT}, v{vLane}")
    k.e(f"s_lshl_b32 s{sT}, s{sR}, 2")
    k.e(f"s_sub_u32 s{sT}, s{sT}, 16")
    k.e(f"v_add_u32 v{vt0}, s{sT}, v{vLane}")
    k.e(f"v_cmp_gt_u32 vcc, 16, v{vLane}")
    k.e(f"s_lshl_b32 s{sT}, s{sJ}, 6")
    k.e(f"s_nop 0")
    k.e(f"v_cndmask_b32 v{vFl}, v{vt0}, v{vFl}, vcc")
    k.e(f"v_add_u32 v{vFl}, s{sT}, v{vFl}")
    k.e(f"v_lshlrev_b32 v{vFl}, 7, v{vFl}")
    k.e(f"v_add_u32 v{vFl}, {FKV_OFF}, v{vFl}")
    poll_flags(k, vFl, vt0, 0xfffff, "pb")
    stamp(k)
    qtok = {}
    for d in (1, 2, 3, 0):
        k.e(f"s_add_u32 s{sT}, s{sW}, {d}")
        k.e(f"s_and_b32 s{sT}, s{sT}, 3")
        k.e(f"s_lshl_b32 s{sT2}, s{sR}, 2")
        k.e(f"s_add_u32 s{sT}, s{sT}, s{sT2}")
        k.e(f"s_lshl_b32 s{sT2}, s{sHead}, 6")
        k.e(f"s_add_u32 s{sT}, s{sT}, s{sT2}")
        k.e(f"s_lshl_b32 s{sQo}, s{sT}, 11")
        k.e(f"s_add_u32 s{sQo}, s{sQo}, {Q_OFF['B']}")
        k.vm(f"buffer_load_dwordx4 v[{vQ+8*d}:{vQ+8*d+3}], v{vSt}, {WS}, s{sQo} offen sc1")
        qtok[d] = k.vm(f"buffer_load_dwordx4 v[{vQ+8*d+4}:{vQ+8*d+7}], v{vSt}, {WS}, s{sQo} offen offset:1024 sc1")
    sKVB, sRot = 98, 99
    k.e(f"s_lshl_b32 s{sKVB}, s{sHead}, 18")
    k.e(f"s_lshl_b32 s{sT}, s{sW}, 16")
    k.e(f"s_add_u32 s{sKVB}, s{sKVB}, s{sT}")
    k.e(f"s_and_b32 s{sRot}, s{sR}, 7")
    k.e(f"s_lshl_b32 s{sRot}, s{sRot}, 1")
    ktok = {}; vtok = {}
    order = list(range(9, 16)) + list(range(0, 9))
    def load_tile(pos):
        i = order[pos]
        k.e(f"s_add_u32 s{sT}, s{sRot}, {pos}")
        k.e(f"s_and_b32 s{sT}, s{sT}, 15")
        k.e(f"s_lshl_b32 s{sT}, s{sT}, 12")
        k.e(f"s_add_u32 s{sTo}, s{sT}, s{sKVB}")
        k.vm(f"buffer_load_dwordx4 a[{16*i}:{16*i+3}], v{vSt}, {WS}, s{sTo} offen sc1")
        ktok[i] = k.vm(f"buffer_load_dwordx4 a[{16*i+4}:{16*i+7}], v{vSt}, {WS}, s{sTo} offen offset:1024 sc1")
        k.vm(f"buffer_load_dwordx4 a[{16*i+8}:{16*i+11}], v{vSt}, {WS}, s{sTo} offen offset:2048 sc1")
        vtok[i] = k.vm(f"buffer_load_dwordx4 a[{16*i+12}:{16*i+15}], v{vSt}, {WS}, s{sTo} offen offset:3072 sc1")
    opsA = []
    for j in range(9):
        C = vr(vEdge, 16) if j == 0 else vr(vDiag, 16) if j == 8 else "0"
        opsA.append(dict(K=(ar(16*j, 4), ar(16*j+4, 4)), V=(ar(16*j+8, 4), ar(16*j+12, 4)),
                         Q=(vr(vQA, 4), vr(vQA+4, 4)), O=vr(vO, 16), C=C, first=(j == 0), wK=max(kt[j], qa), wV=vt[j]))
    def hookA(n, g):
        if g == 0 and 0 <= n < 7: load_tile(n)
    attn_pipeline(k, opsA, vS, vP, hookA)
    k.nop(12)
    finalize_o(k, vO, vt0, vt1, vOf)
    k.e(f"s_lshl_b32 s{sT}, s{sTT}, 4")
    k.e(f"s_add_u32 s{sT}, s{sT}, s{sHead}")
    k.e(f"s_lshl_b32 s{sOo}, s{sT}, 11")
    k.e(f"s_add_u32 s{sOo}, s{sOo}, {O_OFF['A']}")
    k.vm(f"buffer_store_dwordx4 v[{vOf}:{vOf+3}], v{vSt}, {WS}, s{sOo} offen sc1")
    oa = k.vm(f"buffer_store_dwordx4 v[{vOf+4}:{vOf+7}], v{vSt}, {WS}, s{sOo} offen offset:1024 sc1")
    sFOA = 97
    k.e(f"s_lshl_b32 s{sFOA}, s{sT}, 7")
    k.e(f"s_add_u32 s{sFOA}, s{sFOA}, {FO_OFF + 64*16*128}")
    stamp(k)
    ops = []
    for p, (d0, d1) in enumerate(((1, 2), (3, 0))):
        for pos in range(16):
            i = order[pos]
            for d in (d0, d1):
                ops.append(dict(K=(ar(16*i, 4), ar(16*i+4, 4)), V=(ar(16*i+8, 4), ar(16*i+12, 4)),
                                Q=(vr(vQ+8*d, 4), vr(vQ+8*d+4, 4)), O=vr(vO+16*d, 16), C="0", first=(pos == 0),
                                wK=(lambda i=i, d=d: max(ktok[i], qtok[d])), wV=(lambda i=i: vtok[i])))
    state = {"pubA": False}
    def hookB(n, g):
        if g == 0 and 0 <= n < 32 and n % 2 == 0:
            pos = n // 2 + 7
            if pos - 4 < 7 and False: pass
            if pos < 16 and n // 2 < 9: load_tile(pos)
        if g == 2 and n == 3:
            k.wait(vm=oa)
            k.e(f"v_mov_b32 v{vt0}, 0")
            k.e(f"v_mov_b32 v{vt1}, s{sNonce}")
            k.e(f"s_mov_b64 exec, 1")
            k.vm(f"buffer_store_dword v{vt1}, v{vt0}, {WS}, s{sFOA} offen sc1")
            k.e(f"s_mov_b64 exec, -1")
    attn_pipeline(k, ops, vS, vP, hookB)
    stamp(k)
    k.nop(12)
    SCR = 114688
    for d in (1, 2, 3):
        k.e(f"s_add_u32 s{sT}, s{sW}, {d}")
        k.e(f"s_and_b32 s{sT}, s{sT}, 3")
        k.e(f"s_mul_i32 s{sT}, s{sT}, {3*4096}")
        k.e(f"s_add_u32 s{sT}, s{sT}, {SCR + (d-1)*4096}")
        k.e(f"v_add_u32 v{vRed}, s{sT}, v{vSt}")
        for i in range(4):
            k.lg(f"ds_write_b128 v{vRed}, v[{vO+16*d+4*i}:{vO+16*d+4*i+3}] offset:{1024*i}")
    k.e(f"s_mul_i32 s{sT}, s{sW}, {3*4096}")
    k.e(f"s_add_u32 s{sT}, s{sT}, {SCR}")
    k.e(f"v_add_u32 v{vRedR}, s{sT}, v{vSt}")
    k.wait_all(vm=False)
    k.e("s_barrier")
    for j in range(3):
        for i in range(4):
            k.lg(f"ds_read_b128 v[{vTmp+16*j+4*i}:{vTmp+16*j+4*i+3}], v{vRedR} offset:{4096*j+1024*i}")
    k.wait_all(vm=False)
    for j in range(3):
        for i in range(0, 16, 2):
            k.e(f"v_pk_add_f32 v[{vO+i}:{vO+i+1}], v[{vO+i}:{vO+i+1}], v[{vTmp+16*j+i}:{vTmp+16*j+i+1}]")
    finalize_o(k, vO, vt0, vt1, vOf)
    k.e(f"s_lshl_b32 s{sT}, s{sTT}, 4")
    k.e(f"s_add_u32 s{sT}, s{sT}, s{sHead}")
    k.e(f"s_lshl_b32 s{sOo}, s{sT}, 11")
    k.e(f"s_add_u32 s{sOo}, s{sOo}, {O_OFF['B']}")
    k.vm(f"buffer_store_dwordx4 v[{vOf}:{vOf+3}], v{vSt}, {WS}, s{sOo} offen sc1")
    k.vm(f"buffer_store_dwordx4 v[{vOf+4}:{vOf+7}], v{vSt}, {WS}, s{sOo} offen offset:1024 sc1")
    k.e(f"s_lshl_b32 s{sT}, s{sT}, 7")
    k.e(f"s_add_u32 s{sT}, s{sT}, {FO_OFF}")
    publish_flag(k, vt0, vt1, sT)
    stamp(k)

    R = V(17, 256)
    vWr3 = R.a(); vOr = R.a(); vOut = R.a(); vFl = R.a()
    vA = R.a(8, 4); vB = R.a(8, 4); vD = R.a(16, 4); vPk = R.a(8, 4)
    k.e(f"v_lshrrev_b32 v{vt0}, 5, v{vLane}")
    k.e(f"v_lshlrev_b32 v{vt0}, 2, v{vt0}")
    k.e(f"v_bfe_u32 v{vt1}, v{vLane}, 2, 2")
    k.e(f"v_add_u32 v{vt0}, v{vt0}, v{vt1}")
    k.e(f"v_add_u32 v{vt2}, s{sW}, v{vt1}")
    k.e(f"v_and_b32 v{vt2}, 3, v{vt2}")
    k.e(f"v_lshlrev_b32 v{vt0}, 8, v{vt0}")
    k.e(f"v_lshl_add_u32 v{vt0}, v{vt2}, 6, v{vt0}")
    k.e(f"v_bfe_u32 v{vt1}, v{vLane}, 4, 1")
    k.e(f"v_lshl_add_u32 v{vt0}, v{vt1}, 5, v{vt0}")
    k.e(f"v_and_b32 v{vt1}, 3, v{vLane}")
    k.e(f"v_lshl_add_u32 v{vWr3}, v{vt1}, 3, v{vt0}")
    vWr3b = R.a()
    k.e(f"v_add_u32 v{vWr3b}, 57344, v{vWr3}")
    vWr3c = R.a()
    k.e(f"v_lshrrev_b32 v{vt0}, 5, v{vLane}")
    k.e(f"v_lshlrev_b32 v{vt0}, 10, v{vt0}")
    k.e(f"v_sub_u32 v{vWr3c}, v{vWr3b}, v{vt0}")
    k.e(f"v_add_u32 v{vOr}, {SCR}, v{vSt}")
    k.e(f"v_and_b32 v{vt0}, 31, v{vLane}")
    k.e(f"v_mul_u32_u24 v{vt0}, 1792, v{vt0}")
    k.e(f"v_lshrrev_b32 v{vt1}, 5, v{vLane}")
    k.e(f"v_lshl_add_u32 v{vOut}, v{vt1}, 4, v{vt0}")
    for bi, b in enumerate("AB"):
        k.c(f"---- P3 {b}")
        k.e(f"s_lshl_b32 s{sT}, s{sP3T}, 4")
        k.e(f"v_add_u32 v{vFl}, s{sT}, v{vLane}")
        k.e(f"v_lshlrev_b32 v{vFl}, 7, v{vFl}")
        k.e(f"v_add_u32 v{vFl}, {FO_OFF + (64*16*128 if b == 'A' else 0)}, v{vFl}")
        poll_flags(k, vFl, vt0, 0xffff, "po")
        stamp(k)
        k.e("s_barrier")
        k.e(f"s_lshl_b32 s{sOo}, s{sP3T}, 15")
        k.e(f"s_add_u32 s{sOo}, s{sOo}, {O_OFF[b]}")
        k.e(f"s_lshl_b32 s{sT}, s{sW}, 13")
        k.e(f"s_add_u32 s{sOo}, s{sOo}, s{sT}")
        k.e(f"s_add_u32 s{sT2}, s{sT}, {SCR}")
        for j in range(8):
            k.e(f"s_add_u32 m0, s{sT2}, {1024*j}")
            k.e(f"s_add_u32 s{sT}, s{sOo}, {1024*j}")
            k.vm(f"buffer_load_dwordx4 v{vSt}, {WS}, s{sT} offen sc1 lds")
        k.wait_all()
        k.e("s_barrier")
        def rd(step):
            hd, kk = step // 2, step % 2
            par = step % 2
            row = 28 * hd + 16 * kk
            row2 = row + 8
            def addr(rw):
                if rw >= 224: return vWr3b, (rw - 224) * 256
                return vWr3, rw * 256
            a1, o1 = addr(row)
            a2, o2 = addr(row2)
            if hd == 15 and kk == 1: a2 = vWr3c
            k.lg(f"ds_read_b64_tr_b16 v[{vA+4*par}:{vA+4*par+1}], v{a1} offset:{o1}")
            k.lg(f"ds_read_b64_tr_b16 v[{vA+4*par+2}:{vA+4*par+3}], v{a2} offset:{o2}")
            return k.lg(f"ds_read_b128 v[{vB+4*par}:{vB+4*par+3}], v{vOr} offset:{step*1024}")
        t = rd(0)
        for step in range(32):
            tn = rd(step + 1) if step + 1 < 32 else None
            k.wait(lg=t)
            par = step % 2
            mfma(k, vr(vD, 16), vr(vA + 4 * par, 4), vr(vB + 4 * par, 4), "0" if step == 0 else vr(vD, 16))
            t = tn
        if b == "A":
            k.e("s_barrier")
            wo_dma(SRD_WOB)
        k.nop(12)
        for i in range(8): k.e(f"v_cvt_pk_bf16_f32 v{vPk+i}, v{vD+2*i}, v{vD+2*i+1}")
        k.nop(2)
        k.e(f"v_permlane32_swap_b32 v{vPk}, v{vPk+2}")
        k.e(f"v_permlane32_swap_b32 v{vPk+1}, v{vPk+3}")
        k.e(f"v_permlane32_swap_b32 v{vPk+4}, v{vPk+6}")
        k.e(f"v_permlane32_swap_b32 v{vPk+5}, v{vPk+7}")
        k.e(f"s_lshl_b32 s{sT2}, s{sCT}, 2")
        k.e(f"s_add_u32 s{sT2}, s{sT2}, s{sW}")
        k.e(f"s_mul_i32 s{sOo}, s{sP3T}, {32*1792}")
        k.e(f"s_lshl_b32 s{sT}, s{sT2}, 6")
        k.e(f"s_add_u32 s{sOo}, s{sOo}, s{sT}")
        if b == "B": k.e(f"s_add_u32 s{sOo}, s{sOo}, 896")
        k.e(f"s_cmp_ge_u32 s{sT2}, 14")
        k.e(f"s_cselect_b32 s{sOo}, {OUT_BYTES}, s{sOo}")
        k.vm(f"buffer_store_dwordx4 v[{vPk}:{vPk+3}], v{vOut}, s[{SRD_OUT}:{SRD_OUT+3}], s{sOo} offen")
        k.vm(f"buffer_store_dwordx4 v[{vPk+4}:{vPk+7}], v{vOut}, s[{SRD_OUT}:{SRD_OUT+3}], s{sOo} offen offset:32")
        stamp(k)
    stamp(k, True)
    stamp_flush(k, vt0, vt1)
    k.label("L_end")
    k.e("s_endpgm")
    return k

HEADER = open("cdna_kernels/" + NAME + ".s.ref").read().split("; Override")[0]

def main(out):
    k = gen()
    pr = check(k.L, "fused")
    for p in pr: print(p)
    print("instrs", len(k.L), "stamps", St.n)
    s = HEADER
    s += "; @launch grid=(256,1,1) block=(256,1,1) lds=163840\n"
    s += '.amdgcn_target "amdgcn-amd-amdhsa--gfx950"\n.text\n'
    s += f".globl {KNAME}\n.p2align 8\n.type {KNAME},@function\n{KNAME}:\n" + k.text()
    s += f""".section .rodata,"a"
.p2align 6
.amdhsa_kernel {KNAME}
  .amdhsa_next_free_vgpr 512
  .amdhsa_next_free_sgpr 102
  .amdhsa_accum_offset 256
  .amdhsa_group_segment_fixed_size 0
  .amdhsa_kernarg_size 72
  .amdhsa_user_sgpr_count 2
  .amdhsa_user_sgpr_kernarg_segment_ptr 1
  .amdhsa_system_sgpr_workgroup_id_x 1
.end_amdhsa_kernel
"""
    open(out, "w").write(s)

if __name__ == "__main__":
    main(sys.argv[1] if len(sys.argv) > 1 else "f1.s")
```

```python
import sys, math, struct, os
sys.path.insert(0, "gen")
from asmlib import Emit, check

NAME = "concat_heads__sliding_block__softmax_full_mha__prompt"
KNAME = NAME + "_kernel"
def f2u(x): return struct.unpack("<I", struct.pack("<f", x))[0]

KV_OFF = {"B": 0, "A": 4 << 20}
O_OFF = {"B": 8 << 20, "A": 10 << 20}
Q_OFF = {"B": 12 << 20, "A": 14 << 20}
FP1_OFF = 16 << 20
FO_OFF = (16 << 20) + (256 << 10)
NONCE_OFF = (16 << 20) + (768 << 10)
STAMPS = 17 << 20
WS_BYTES = 18 << 20
X_BYTES = 2048 * 896
W_BYTES = 448 * 2688
WO_BYTES = 448 * 896
OUT_BYTES = 2048 * 1792
QSCALE = (28 ** -0.5) * math.log2(math.e)
MARGIN = 64.0
NEGBIG = -1.0e30
STAMP = os.environ.get("STAMP", "0") == "1"
SPIN_MAX = 1 << 18
SCR = 114688

class V:
    def __init__(self, lo, hi): self.n = lo; self.hi = hi
    def a(self, cnt=1, al=1):
        self.n = (self.n + al - 1) // al * al
        r = self.n; self.n += cnt
        assert self.n <= self.hi, "out of regs"
        return r

def vr(b, n=1): return f"v{b}" if n == 1 else f"v[{b}:{b+n-1}]"
def ar(b, n=1): return f"a{b}" if n == 1 else f"a[{b}:{b+n-1}]"
def mfma(k, d, a, b, c): k.e(f"v_mfma_f32_32x32x16_bf16 {d}, {a}, {b}, {c}")

S_PTR = 4
SRD_XB, SRD_WB, SRD_WS, SRD_OUT, SRD_XA, SRD_WA = 24, 28, 32, 36, 40, 44
SRD_WO = 4
sWmask = 96
sW, sBeta, sU, sR, sT, sT2, sT3 = 48, 49, 50, 51, 52, 53, 54
sOff, sXbase, sWcol, sM0X, sM0W, sC, sXo, sWo, sWo2 = 55, 56, 57, 58, 59, 60, 61, 62, 63
sVmask = 64
sNonce = 66
sHead, sTT, sKV, sTo, sQo, sOo, sSpin = 67, 68, 69, 70, 71, 72, 73
sCT, sP3T = 74, 75
sEx = 76
sStampTmp = 78
sRA = 80
sUQ, sUK, sUV = 81, 82, 83
sFOA, sFOB, sKVB, sRot, sOffU, sTTA = 84, 85, 86, 87, 88, 89
sMk = 90
WS = f"s[{SRD_WS}:{SRD_WS+3}]"

def srd(k, s, lo, size):
    k.e(f"s_mov_b32 s{s}, s{lo}")
    k.e(f"s_and_b32 s{s+1}, s{lo+1}, 0xffff")
    k.e(f"s_mov_b32 s{s+2}, {size}")
    k.e(f"s_mov_b32 s{s+3}, 0x20000")

class St:
    n = 0; v = 15; names = []
def stamp(k, name="", rt=False):
    if not STAMP: return
    i = St.n; St.n += 1; St.names.append(name)
    assert i < 32
    k.e(f"{'s_memrealtime' if rt else 's_memtime'} s[{sStampTmp}:{sStampTmp+1}]")
    k.wait_all(vm=False, lg=True)
    k.e(f"v_writelane_b32 v{St.v}, s{sStampTmp}, {i}")
def stamp_flush(k, vt0, vt1):
    if not STAMP: return
    k.e(f"v_lshrrev_b32 v{vt0}, 6, v0")
    k.e(f"s_lshl_b32 s{sStampTmp}, s2, 2")
    k.e(f"v_add_u32 v{vt0}, s{sStampTmp}, v{vt0}")
    k.e(f"v_lshlrev_b32 v{vt0}, 7, v{vt0}")
    k.e(f"v_and_b32 v{vt1}, 63, v0")
    k.e(f"v_lshl_add_u32 v{vt0}, v{vt1}, 2, v{vt0}")
    k.e(f"s_mov_b32 s{sStampTmp}, {STAMPS}")
    k.e(f"s_mov_b32 exec_hi, 0")
    k.vm(f"buffer_store_dword v{St.v}, v{vt0}, {WS}, s{sStampTmp} offen")
    k.e(f"s_mov_b64 exec, -1")

def build_masks(k, vDiag, vEdge, vLane, t0, t1):
    k.e(f"v_and_b32 v{t0}, 31, v{vLane}")
    k.e(f"v_lshrrev_b32 v{t1}, 5, v{vLane}")
    k.e(f"v_lshlrev_b32 v{t1}, 2, v{t1}")
    k.e(f"v_sub_u32 v{t0}, v{t0}, v{t1}")
    k.e(f"v_mov_b32 v{t1}, {f2u(NEGBIG):#x}")
    prs = [sMk, sMk + 2, sMk + 4]
    def cmp(i):
        b = 8 * (i // 4) + (i % 4); p = prs[i % 3]
        k.e(f"v_cmp_le_i32_e64 s[{p}:{p+1}], {b}, v{t0}")
    cmp(0); cmp(1)
    for i in range(16):
        if i + 2 < 16: cmp(i + 2)
        else: k.nop(1)
        p = prs[i % 3]
        k.e(f"v_cndmask_b32_e64 v{vDiag+i}, v{t1}, 0, s[{p}:{p+1}]")
        k.e(f"v_cndmask_b32_e64 v{vEdge+i}, 0, v{t1}, s[{p}:{p+1}]")

def colmax(k, vS, vm, vt):
    k.e(f"v_max3_f32 v{vm}, v{vS}, v{vS+1}, v{vS+2}")
    k.e(f"v_max3_f32 v{vt}, v{vS+3}, v{vS+4}, v{vS+5}")
    k.e(f"v_max3_f32 v{vm}, v{vm}, v{vS+6}, v{vS+7}")
    k.e(f"v_max3_f32 v{vt}, v{vt}, v{vS+8}, v{vS+9}")
    k.e(f"v_max3_f32 v{vm}, v{vm}, v{vS+10}, v{vS+11}")
    k.e(f"v_max3_f32 v{vt}, v{vt}, v{vS+12}, v{vS+13}")
    k.e(f"v_max3_f32 v{vm}, v{vm}, v{vS+14}, v{vS+15}")
    k.e(f"v_max_f32 v{vm}, v{vm}, v{vt}")
    k.e(f"v_mov_b32 v{vt}, v{vm}")
    k.nop(2)
    k.e(f"v_permlane32_swap_b32 v{vm}, v{vt}")
    k.e(f"v_max_f32 v{vm}, v{vm}, v{vt}")

def shift_dwords(k, vm, t0, t1, t2):
    k.e(f"v_and_b32 v{t0}, 0xffff0000, v{vm}")
    k.e(f"v_sub_f32 v{t1}, v{vm}, v{t0}")
    k.e(f"v_and_b32 v{t2}, 0xffff0000, v{t1}")
    k.e(f"v_sub_f32 v{t1}, v{t1}, v{t2}")
    k.e(f"v_lshrrev_b32 v{t0}, 16, v{t0}")
    k.e(f"v_or_b32 v{t0}, v{t0}, v{t2}")
    k.e(f"v_xor_b32 v{t0}, 0x80008000, v{t0}")
    k.e(f"v_lshrrev_b32 v{t1}, 16, v{t1}")
    k.e(f"v_xor_b32 v{t1}, 0x8000, v{t1}")

def poll_flags(k, vAddr, vTmp, mask64, name):
    L = k.newlabel(name); Ld = k.newlabel(name + "d")
    k.e(f"s_mov_b32 s{sSpin}, 0")
    k.e(f"s_mov_b32 exec_hi, {(mask64 >> 32) & 0xffffffff:#x}")
    k.e(f"s_mov_b32 exec_lo, {mask64 & 0xffffffff:#x}")
    k.label(L)
    k.e(f"buffer_load_dword v{vTmp}, v{vAddr}, {WS}, 0 offen sc1")
    k.e(f"s_add_u32 s{sSpin}, s{sSpin}, 1")
    k.e(f"s_waitcnt vmcnt(0)")
    k.e(f"v_cmp_ne_u32 vcc, s{sNonce}, v{vTmp}")
    k.e(f"s_cmp_gt_u32 s{sSpin}, {SPIN_MAX}")
    k.e(f"s_cbranch_scc1 {Ld}")
    k.e(f"s_cbranch_vccnz {L}")
    k.label(Ld)
    k.e(f"s_mov_b64 exec, -1")
    k.vm_done = k.vm_n

def store_flag(k, vZero, vVal, s_off):
    k.e(f"v_mov_b32 v{vZero}, 0")
    k.e(f"v_mov_b32 v{vVal}, s{sNonce}")
    k.e(f"s_mov_b64 exec, 1")
    t = k.vm(f"buffer_store_dword v{vVal}, v{vZero}, {WS}, s{s_off} offen sc1")
    k.e(f"s_mov_b64 exec, -1")
    return t

def attn_pipeline(k, ops, vS, vP, hook=None):
    N = len(ops)
    def val(x): return x() if callable(x) else x
    def qk(n, part):
        o = ops[n]; S = vr(vS + 16 * (n % 2), 16)
        if part == 0:
            k.wait(vm=val(o.get("wK")), lg=val(o.get("lK")))
            mfma(k, S, o["K"][0], o["Q"][0], o["C"])
        else:
            mfma(k, S, o["K"][1], o["Q"][1], S)
    def pv(n, part):
        o = ops[n]; P = vP + 8 * (n % 2)
        if part == 0:
            k.wait(vm=val(o.get("wV")), lg=val(o.get("lV")))
            mfma(k, o["O"], o["V"][0], vr(P, 4), "0" if o["first"] else o["O"])
        else:
            mfma(k, o["O"], o["V"][1], vr(P + 4, 4), o["O"])
    def expgrp(n, g):
        S = vS + 16 * (n % 2); P = vP + 8 * (n % 2)
        for i in range(4):
            k.e(f"v_exp_f32 v{S+4*g+i}, v{S+4*g+i}")
        k.e(f"v_cvt_pk_bf16_f32 v{P+2*g}, v{S+4*g}, v{S+4*g+1}")
        k.e(f"v_cvt_pk_bf16_f32 v{P+2*g+1}, v{S+4*g+2}, v{S+4*g+3}")
    for n in range(-1, N + 1):
        has_exp = 0 <= n < N
        for g in range(4):
            if g < 2 and n + 1 < N: qk(n + 1, g)
            if g >= 2 and 0 <= n - 1: pv(n - 1, g - 2)
            if hook: hook(n, g)
            if has_exp: expgrp(n, g)
        if n == -1: k.nop(12)
        if n == N - 1: k.nop(2)

def finalize_o(k, vO, vt0, vt1, vOf):
    k.e(f"v_mov_b32 v{vt0}, v{vO+12}")
    k.e(f"v_mov_b32 v{vt1}, v{vO+12}")
    k.nop(2)
    k.e(f"v_permlane32_swap_b32 v{vt0}, v{vt1}")
    k.e(f"v_rcp_f32 v{vt1}, v{vt1}")
    k.nop(1)
    for i in range(16):
        k.e(f"v_mul_f32 v{vO+i}, v{vO+i}, v{vt1}")
    for i in range(8):
        k.e(f"v_cvt_pk_bf16_f32 v{vOf+i}, v{vO+2*i}, v{vO+2*i+1}")
    k.e("s_mov_b32 exec_lo, 0")
    k.e(f"v_mov_b32 v{vOf+6}, 0")
    k.e(f"v_mov_b32 v{vOf+7}, 0")
    k.e("s_mov_b32 exec_lo, -1")

def div6(k, dst, src, tmp):
    k.e(f"s_mul_i32 s{dst}, s{src}, 43")
    k.e(f"s_lshr_b32 s{dst}, s{dst}, 8")


def async_poll_issue(k, vAddr, vRes, mask64):
    k.e(f"s_mov_b32 exec_hi, {(mask64 >> 32) & 0xffffffff:#x}")
    k.e(f"s_mov_b32 exec_lo, {mask64 & 0xffffffff:#x}")
    t = k.vm(f"buffer_load_dword v{vRes}, v{vAddr}, {WS}, 0 offen sc1")
    k.e(f"s_mov_b64 exec, -1")
    return t

def async_poll_check(k, tok, vAddr, vRes, mask64, name):
    L = k.newlabel(name); Ld = k.newlabel(name + "d")
    k.wait(vm=tok)
    k.e(f"s_mov_b32 exec_hi, {(mask64 >> 32) & 0xffffffff:#x}")
    k.e(f"s_mov_b32 exec_lo, {mask64 & 0xffffffff:#x}")
    k.e(f"v_cmp_ne_u32 vcc, s{sNonce}, v{vRes}")
    k.e(f"s_mov_b32 s{sSpin}, 0")
    k.e(f"s_cbranch_vccz {Ld}")
    k.label(L)
    k.e(f"buffer_load_dword v{vRes}, v{vAddr}, {WS}, 0 offen sc1")
    k.e(f"s_add_u32 s{sSpin}, s{sSpin}, 1")
    k.e(f"s_waitcnt vmcnt(0)")
    k.e(f"v_cmp_ne_u32 vcc, s{sNonce}, v{vRes}")
    k.e(f"s_cmp_gt_u32 s{sSpin}, {SPIN_MAX}")
    k.e(f"s_cbranch_scc1 {Ld}")
    k.e(f"s_cbranch_vccnz {L}")
    k.label(Ld)
    k.e(f"s_mov_b64 exec, -1")

def div3(k, dst, src):
    k.e(f"s_mul_i32 s{dst}, s{src}, 43")
    k.e(f"s_lshr_b32 s{dst}, s{dst}, 7")

def gen():
    k = Emit()
    St.n = 0; St.names = []
    k.e("s_cmp_ge_u32 s2, 256")
    k.e("s_cbranch_scc1 L_end")
    k.e(f"s_load_dwordx16 s[{S_PTR}:{S_PTR+15}], s[0:1], 0")
    k.e(f"s_load_dwordx2 s[20:21], s[0:1], 64")
    G = V(1, 15)
    vLane = G.a(); vSt = G.a(); vt0 = G.a(); vt1 = G.a(); vt2 = G.a(); vt3 = G.a(); vWoD = G.a()
    stamp(k, "start"); stamp(k, "rt", True)
    k.e(f"v_and_b32 v{vLane}, 63, v0")
    k.e(f"v_lshrrev_b32 v{vt0}, 6, v0")
    k.e(f"s_and_b32 s{sT}, s2, 7")
    k.e(f"v_readfirstlane_b32 s{sW}, v{vt0}")
    k.e(f"s_lshr_b32 s{sT2}, s2, 3")
    k.e(f"s_and_b32 s{sU}, s{sT2}, 7")
    k.e(f"s_lshr_b32 s{sR}, s{sT2}, 3")
    k.e(f"s_lshl_b32 s{sOff}, s{sR}, 1")
    k.e(f"s_add_u32 s{sOff}, s{sOff}, s{sU}")
    k.e(f"s_sub_u32 s{sC}, s{sOff}, 7")
    k.e(f"s_min_u32 s{sOff}, s{sOff}, s{sC}")
    k.e(f"s_and_b32 s{sT3}, s{sT}, 1")
    k.e(f"s_lshl_b32 s{sT3}, s{sT3}, 3")
    k.e(f"s_add_u32 s{sU}, s{sU}, s{sT3}")
    k.e(f"s_lshr_b32 s{sT3}, s{sT}, 1")
    k.e(f"s_lshl_b32 s{sT3}, s{sT3}, 2")
    k.e(f"s_add_u32 s{sR}, s{sR}, s{sT3}")
    k.e(f"s_mul_i32 s{sXbase}, s{sR}, {128*896}")
    k.e(f"s_mul_i32 s{sWcol}, s{sU}, 168")
    k.e(f"s_and_b32 s{sOffU}, s{sWcol}, 127")
    k.e(f"s_andn2_b32 s{sWcol}, s{sWcol}, 127")
    k.e(f"s_mov_b32 s{sWmask}, 0xf0ffffff")
    k.e(f"s_mov_b32 s{sWmask+1}, 0x000fffff")
    k.e(f"s_cmp_le_u32 s{sOffU}, 88")
    k.e(f"s_cselect_b32 s{sWmask}, 0xf000ffff, s{sWmask}")
    k.e(f"s_cselect_b32 s{sWmask+1}, 0x00000fff, s{sWmask+1}")
    R = V(16, 256)
    vXo = R.a(4); vWo = R.a(4); vXr = R.a(4); vWr = R.a(6)
    vXf = R.a(8, 4); vWf = R.a(24, 4)
    accs = [[R.a(16, 4) for _ in range(3)] for _ in range(2)]
    vF = R.a(24, 4)
    vVw = R.a(); vVr = R.a(); vVpad = R.a()
    XSLOT = 16640; WSLOT = 28672; WBASE = 3 * XSLOT; VSCR = WBASE + 3 * WSLOT
    k.e(f"v_lshrrev_b32 v{vt0}, 3, v{vLane}")
    k.e(f"v_bfe_u32 v{vt1}, v{vLane}, 4, 1")
    k.e(f"v_lshlrev_b32 v{vt1}, 2, v{vt1}")
    k.e(f"v_and_b32 v{vt2}, 7, v{vLane}")
    k.e(f"v_xor_b32 v{vt1}, v{vt1}, v{vt2}")
    k.e(f"v_lshrrev_b32 v{vt2}, 6, v0")
    k.e(f"v_lshl_add_u32 v{vt3}, v{vt2}, 5, v{vt0}")
    k.e(f"v_mul_u32_u24 v{vt3}, 896, v{vt3}")
    k.e(f"v_lshl_add_u32 v{vXo}, v{vt1}, 4, v{vt3}")
    for j in range(1, 4):
        k.e(f"v_add_u32 v{vXo+j}, {j*(8*896-1040)}, v{vXo}")
    k.e(f"v_cmp_le_u32 vcc, 28, v{vLane}")
    k.e(f"v_lshlrev_b32 v{vt3}, 4, v{vt2}")
    k.e(f"v_mul_u32_u24 v{vt3}, 2688, v{vt3}")
    k.e(f"v_cndmask_b32_e64 v{vt0}, 0, 1, vcc")
    k.e(f"v_mul_u32_u24 v{vt1}, {2688 - 28*16}, v{vt0}")
    k.e(f"v_lshl_add_u32 v{vt1}, v{vLane}, 4, v{vt1}")
    k.e(f"v_add_u32 v{vWo}, v{vt1}, v{vt3}")
    for j in range(1, 4):
        k.e(f"v_add_u32 v{vWo+j}, {j*(5376-896)}, v{vWo}")
    k.e(f"s_mul_i32 s{sM0X}, s{sW}, 4160")
    k.e(f"s_mul_i32 s{sM0W}, s{sW}, 7168")
    k.e(f"s_add_u32 s{sM0W}, s{sM0W}, {WBASE}")
    k.e("s_waitcnt lgkmcnt(0)")
    srd(k, SRD_XB, 10, X_BYTES); srd(k, SRD_WB, 12, W_BYTES)
    dma_tok = {}
    def dma_list(g):
        slot = g % 3; b = g // 7; i0 = g % 7
        sx = SRD_XB if b == 0 else SRD_XA; sw = SRD_WB if b == 0 else SRD_WA
        X = f"s[{sx}:{sx+3}]"; W = f"s[{sw}:{sw+3}]"
        L = []
        def head():
            k.e(f"s_add_u32 s{sC}, s{sOff}, {i0}")
            k.e(f"s_sub_u32 s{sT}, s{sC}, 7")
            k.e(f"s_min_u32 s{sC}, s{sC}, s{sT}")
            k.e(f"s_lshl_b32 s{sXo}, s{sC}, 7")
            k.e(f"s_add_u32 s{sXo}, s{sXo}, s{sXbase}")
            k.e(f"s_mul_i32 s{sWo}, s{sC}, {64*2688}")
            k.e(f"s_add_u32 s{sWo}, s{sWo}, s{sWcol}")
            k.e(f"s_add_u32 s{sWo2}, s{sWo}, {4*5376}")
            k.e(f"s_add_u32 m0, s{sM0X}, {slot*XSLOT}")
            k.e("s_nop 0")
        def xj(j):
            def f():
                if j == 0: head()
                k.vm(f"buffer_load_dwordx4 v{vXo+j}, {X}, s{sXo} offen offset:{1040*j} lds")
            return f
        def wi(i):
            def f():
                if i % 4 == 0: k.e(f"s_add_u32 m0, s{sM0W}, {slot*WSLOT + (i//4)*3584}")
                k.e(f"s_mov_b64 exec, s[{sWmask}:{sWmask+1}]")
                t = k.vm(f"buffer_load_dwordx4 v{vWo+(i%4)}, {W}, s{sWo if i < 4 else sWo2} offen offset:{896*(i%4)} lds")
                k.e(f"s_mov_b64 exec, -1")
                if i == 7: dma_tok[g] = t
            return f
        for j in range(4): L.append(xj(j))
        for i in range(8): L.append(wi(i))
        return L
    stamp(k, "pre-dma")
    for f in dma_list(0): f()
    stamp(k, "dma0 issued")
    srd(k, SRD_XA, 4, X_BYTES); srd(k, SRD_WA, 6, W_BYTES)
    srd(k, SRD_WS, 20, WS_BYTES); srd(k, SRD_OUT, 16, OUT_BYTES)
    k.e(f"v_lshlrev_b32 v{vSt}, 4, v{vLane}")
    Lnn = k.newlabel("nonce")
    k.e(f"s_or_b32 s{sT}, s2, s{sW}")
    k.e(f"s_cmp_lg_u32 s{sT}, 0")
    k.e(f"s_cbranch_scc1 {Lnn}")
    k.e(f"s_mov_b32 s{sT}, {NONCE_OFF}")
    k.e(f"v_mov_b32 v{vt0}, 0")
    k.e(f"buffer_load_dword v{vt1}, v{vt0}, {WS}, s{sT} offen sc1")
    k.e(f"s_waitcnt vmcnt(0)")
    k.e(f"v_add_u32 v{vt1}, 1, v{vt1}")
    k.e(f"v_max_u32 v{vt1}, 1, v{vt1}")
    k.e(f"s_mov_b64 exec, 1")
    k.e(f"global_store_dword v{vt0}, v{vt1}, s[18:19] sc1")
    k.e(f"buffer_store_dword v{vt1}, v{vt0}, {WS}, s{sT} offen sc1")
    k.e(f"s_mov_b64 exec, -1")
    k.label(Lnn)
    k.e(f"s_and_b32 s{sT}, s2, 7")
    k.e(f"s_lshr_b32 s{sT2}, s2, 3")
    k.e(f"s_and_b32 s{sHead}, s{sT}, 3")
    k.e(f"s_lshl_b32 s{sHead}, s{sHead}, 2")
    k.e(f"s_and_b32 s{sT3}, s{sT2}, 3")
    k.e(f"s_add_u32 s{sHead}, s{sHead}, s{sT3}")
    k.e(f"s_lshr_b32 s{sRA}, s{sT}, 2")
    k.e(f"s_lshl_b32 s{sRA}, s{sRA}, 3")
    k.e(f"s_lshr_b32 s{sT3}, s{sT2}, 2")
    k.e(f"s_add_u32 s{sRA}, s{sRA}, s{sT3}")
    k.e(f"s_lshl_b32 s{sP3T}, s{sT}, 3")
    k.e(f"s_add_u32 s{sP3T}, s{sP3T}, s{sT3}")
    k.e(f"s_and_b32 s{sCT}, s{sT2}, 3")
    div3(k, sUQ, sHead)
    k.e(f"s_add_u32 s{sT}, s{sHead}, 16"); div3(k, sUK, sT)
    k.e(f"s_add_u32 s{sT}, s{sHead}, 32"); div3(k, sUV, sT)
    k.e(f"s_lshl_b32 s{sTT}, s{sR}, 2")
    k.e(f"s_add_u32 s{sTT}, s{sTT}, s{sW}")
    k.e(f"s_lshl_b32 s{sTTA}, s{sRA}, 2")
    k.e(f"s_add_u32 s{sTTA}, s{sTTA}, s{sW}")
    k.e(f"v_and_b32 v{vt0}, 31, v{vLane}")
    k.e(f"v_lshrrev_b32 v{vt1}, 3, v{vt0}")
    k.e(f"v_mul_u32_u24 v{vt1}, 1040, v{vt1}")
    k.e(f"v_and_b32 v{vt2}, 7, v{vt0}")
    k.e(f"v_lshl_add_u32 v{vt1}, v{vt2}, 7, v{vt1}")
    k.e(f"v_add_u32 v{vt1}, s{sM0X}, v{vt1}")
    k.e(f"v_bfe_u32 v{vt2}, v{vLane}, 1, 1")
    k.e(f"v_lshlrev_b32 v{vt2}, 6, v{vt2}")
    k.e(f"v_lshrrev_b32 v{vt3}, 5, v{vLane}")
    k.e(f"v_lshlrev_b32 v{vt3}, 4, v{vt3}")
    k.e(f"v_add_u32 v{vt1}, v{vt1}, v{vt3}")
    for ks in range(4):
        k.e(f"v_xor_b32 v{vXr+ks}, {(ks >> 1) * 64}, v{vt2}")
        k.e(f"v_add_u32 v{vXr+ks}, {((2*ks) & 3) * 16}, v{vXr+ks}")
        k.e(f"v_add_u32 v{vXr+ks}, v{vXr+ks}, v{vt1}")
    k.e(f"v_lshrrev_b32 v{vt0}, 5, v{vLane}")
    k.e(f"v_lshlrev_b32 v{vt0}, 3, v{vt0}")
    k.e(f"v_bfe_u32 v{vt1}, v{vLane}, 2, 2")
    k.e(f"v_add_u32 v{vt0}, v{vt0}, v{vt1}")
    k.e(f"v_mul_u32_u24 v{vt0}, 448, v{vt0}")
    k.e(f"v_bfe_u32 v{vt2}, v{vLane}, 4, 1")
    k.e(f"v_lshl_add_u32 v{vt0}, v{vt2}, 5, v{vt0}")
    k.e(f"v_and_b32 v{vt2}, 3, v{vLane}")
    k.e(f"v_lshl_add_u32 v{vt0}, v{vt2}, 3, v{vt0}")
    k.e(f"v_add_u32 v{vt0}, s{sOffU}, v{vt0}")
    for i in range(3):
        k.e(f"v_add_u32 v{vWr+i}, {WBASE + 56*i}, v{vt0}")
        k.e(f"v_add_u32 v{vWr+3+i}, {WBASE + 56*i + 2*WSLOT}, v{vt0}")
    k.e(f"v_and_b32 v{vt0}, 31, v{vLane}")
    k.e(f"v_mul_u32_u24 v{vt1}, 72, v{vt0}")
    k.e(f"v_lshrrev_b32 v{vt2}, 5, v{vLane}")
    k.e(f"v_lshl_add_u32 v{vt1}, v{vt2}, 3, v{vt1}")
    k.e(f"s_mul_i32 s{sT}, s{sW}, 6976")
    k.e(f"s_add_u32 s{sT}, s{sT}, {VSCR}")
    k.e(f"v_add_u32 v{vVw}, s{sT}, v{vt1}")
    k.e(f"v_lshlrev_b32 v{vt1}, 2, v{vt2}")
    k.e(f"v_bfe_u32 v{vt3}, v{vLane}, 2, 2")
    k.e(f"v_add_u32 v{vt1}, v{vt1}, v{vt3}")
    k.e(f"v_mul_u32_u24 v{vt1}, 72, v{vt1}")
    k.e(f"v_bfe_u32 v{vt3}, v{vLane}, 4, 1")
    k.e(f"v_lshl_add_u32 v{vt1}, v{vt3}, 5, v{vt1}")
    k.e(f"v_and_b32 v{vt3}, 3, v{vLane}")
    k.e(f"v_lshl_add_u32 v{vt1}, v{vt3}, 3, v{vt1}")
    k.e(f"v_add_u32 v{vVr}, s{sT}, v{vt1}")
    k.e(f"v_cmp_eq_u32 vcc, 28, v{vt0}")
    k.e(f"v_mov_b32 v{vt1}, 0x3f803f80")
    k.e(f"v_cmp_le_u32_e64 s[{sVmask}:{sVmask+1}], 28, v{vt0}")
    k.e(f"v_cndmask_b32_e64 v{vVpad}, 0, v{vt1}, vcc")
    k.e(f"v_lshrrev_b32 v{vt0}, 4, v{vLane}")
    k.e(f"v_bfe_u32 v{vt1}, v{vLane}, 2, 2")
    k.e(f"v_sub_u32 v{vt1}, v{vt1}, v{vt0}")
    k.e(f"v_and_b32 v{vt1}, 3, v{vt1}")
    k.e(f"v_lshlrev_b32 v{vt1}, 6, v{vt1}")
    k.e(f"v_and_b32 v{vt2}, 3, v{vLane}")
    k.e(f"v_lshl_add_u32 v{vt1}, v{vt2}, 4, v{vt1}")
    k.e(f"v_mul_u32_u24 v{vt0}, 896, v{vt0}")
    k.e(f"v_add_u32 v{vWoD}, v{vt0}, v{vt1}")
    sQs = sMk + 2
    k.e(f"s_mov_b32 s{sQs}, {f2u(QSCALE):#x}")

    def rd_list(g, ks):
        slot = g % 3; par = ks % 2
        L = [f"ds_read_b128 v[{vXf+4*par}:{vXf+4*par+3}], v{vXr+ks} offset:{slot*XSLOT}"]
        for i in range(3):
            areg = vWr + i + (3 if slot == 2 else 0)
            base = (slot if slot < 2 else 0) * WSLOT + ks * 7168
            d = vWf + 12 * par + 4 * i
            L.append(f"ds_read_b64_tr_b16 v[{d}:{d+1}], v{areg} offset:{base}")
            L.append(f"ds_read_b64_tr_b16 v[{d+2}:{d+3}], v{areg} offset:{base+4*448}")
        return L
    def mf_list(g, ks):
        first = (g % 7 == 0 and ks == 0); par = ks % 2
        a = accs[g // 7]
        xf = vr(vXf + 4 * par, 4)
        return [f"v_mfma_f32_32x32x16_bf16 {vr(a[i],16)}, {vr(vWf+12*par+4*i,4)}, {xf}, {'0' if first else vr(a[i],16)}" for i in range(3)]
    def interleave(mf, rds, tok_need, extra):
        k.wait(lg=tok_need)
        t = None; ri = 0
        for i, m in enumerate(mf):
            k.e(m)
            n = (len(rds) - ri + (len(mf) - i) - 1) // (len(mf) - i)
            for _ in range(n):
                t = k.lg(rds[ri]); ri += 1
            if extra: extra.pop(0)()
        return t

    def epilogue(b):
        a = accs[b]
        Lend = k.newlabel("epi_end")
        labels = {v: k.newlabel("epi" + v) for v in ("QQQ", "QKK", "KKK", "KKV", "VVV")}
        def offs(i, kind):
            k.e(f"s_mul_i32 s{sT}, s{sU}, 3")
            k.e(f"s_add_u32 s{sT}, s{sT}, {i}")
            k.e(f"s_and_b32 s{sT}, s{sT}, 15")
            k.e(f"s_lshl_b32 s{sT}, s{sT}, 6")
            k.e(f"s_add_u32 s{sT}, s{sT}, s{sTT}")
            dst = [sKV, sQo, sOo][i]
            if kind == "Q":
                k.e(f"s_lshl_b32 s{dst}, s{sT}, 11")
                k.e(f"s_add_u32 s{dst}, s{dst}, {Q_OFF['B' if b == 0 else 'A']}")
            else:
                k.e(f"s_lshl_b32 s{dst}, s{sT}, 12")
                base = KV_OFF['B' if b == 0 else 'A'] + (2048 if kind == "V" else 0)
                if base: k.e(f"s_add_u32 s{dst}, s{dst}, {base}")
            return dst
        k.e(f"s_cmp_lt_u32 s{sU}, 5"); k.e(f"s_cbranch_scc1 {labels['QQQ']}")
        k.e(f"s_cmp_eq_u32 s{sU}, 5"); k.e(f"s_cbranch_scc1 {labels['QKK']}")
        k.e(f"s_cmp_lt_u32 s{sU}, 10"); k.e(f"s_cbranch_scc1 {labels['KKK']}")
        k.e(f"s_cmp_eq_u32 s{sU}, 10"); k.e(f"s_cbranch_scc1 {labels['KKV']}")
        for vi, var in enumerate(("VVV", "KKV", "KKK", "QKK", "QQQ")):
            if var != "VVV": k.label(labels[var])
            dsts = [offs(i, var[i]) for i in range(3)]
            for i in range(3):
                if var[i] == "V":
                    F = vF + 8 * i
                    for j in range(8): k.e(f"v_cvt_pk_bf16_f32 v{F+j}, v{a[i]+2*j}, v{a[i]+2*j+1}")
                    for g in range(4): k.e(f"ds_write_b64 v{vVw}, v[{F+2*g}:{F+2*g+1}] offset:{i*2304 + 16*g}")
            for i in range(3):
                F = vF + 8 * i
                if var[i] == "Q":
                    for j in range(0, 16, 2):
                        k.e(f"v_pk_mul_f32 v[{a[i]+j}:{a[i]+j+1}], v[{a[i]+j}:{a[i]+j+1}], s[{sQs}:{sQs+1}] op_sel_hi:[1,0]")
                if var[i] in "QK":
                    for j in range(8): k.e(f"v_cvt_pk_bf16_f32 v{F+j}, v{a[i]+2*j}, v{a[i]+2*j+1}")
                    k.e("s_mov_b32 exec_lo, 0")
                    k.e(f"v_mov_b32 v{F+6}, {'0' if var[i] == 'Q' else '0x3f803f80'}")
                    k.e(f"v_mov_b32 v{F+7}, {'0' if var[i] == 'Q' else '0x00003f80'}")
                    k.e("s_mov_b32 exec_lo, -1")
                    k.e(f"buffer_store_dwordx4 v[{F}:{F+3}], v{vSt}, {WS}, s{dsts[i]} offen sc1")
                    k.e(f"buffer_store_dwordx4 v[{F+4}:{F+7}], v{vSt}, {WS}, s{dsts[i]} offen offset:1024 sc1")
            if "V" in var:
                k.e("s_waitcnt lgkmcnt(0)")
                for i in range(3):
                    if var[i] == "V":
                        F = vF + 8 * i
                        for kk in range(2):
                            k.e(f"ds_read_b64_tr_b16 v[{F+4*kk}:{F+4*kk+1}], v{vVr} offset:{i*2304 + (16*kk)*72}")
                            k.e(f"ds_read_b64_tr_b16 v[{F+4*kk+2}:{F+4*kk+3}], v{vVr} offset:{i*2304 + (16*kk+8)*72}")
                k.e("s_waitcnt lgkmcnt(0)")
                for i in range(3):
                    if var[i] == "V":
                        F = vF + 8 * i
                        for j in range(8): k.e(f"v_cndmask_b32_e64 v{F+j}, v{F+j}, v{vVpad}, s[{sVmask}:{sVmask+1}]")
                        k.e(f"buffer_store_dwordx4 v[{F}:{F+3}], v{vSt}, {WS}, s{dsts[i]} offen sc1")
                        k.e(f"buffer_store_dwordx4 v[{F+4}:{F+7}], v{vSt}, {WS}, s{dsts[i]} offen offset:1024 sc1")
            if var != "QQQ": k.e(f"s_branch {Lend}")
        k.label(Lend)
        k.vm_n += 6
        k.lg_done = k.lg_n if False else k.lg_done
        return k.vm_n

    def p1flag_off(b, dst):
        k.e(f"s_add_u32 s{sT}, s{sTT}, {64*b}")
        k.e(f"s_lshl_b32 s{sT}, s{sT}, 4")
        k.e(f"s_add_u32 s{sT}, s{sT}, s{sU}")
        k.e(f"s_lshl_b32 s{sT}, s{sT}, 7")
        k.e(f"s_add_u32 s{dst}, s{sT}, {FP1_OFF}")

    pend = None
    nonce_tok = None; stB = None
    for g in range(14):
        k.c(f"---- chunk {g}")
        k.wait(vm=dma_tok[g])
        k.wait_all(vm=False, lg=True)
        k.e("s_barrier")
        if g in (0, 1, 6, 7, 13): stamp(k, f"bar{g}")
        ex = []
        if g == 0: ex = dma_list(1) + dma_list(2)
        elif g + 2 < 14: ex = dma_list(g + 2)
        r0 = rd_list(g, 0)
        if pend is None:
            for r_ in r0: tok = k.lg(r_)
            for _ in range(12): ex.pop(0)()
        else:
            tok = interleave(mf_list(*pend), r0, None, ex)
        if g == 4:
            k.e(f"v_mov_b32 v{vt0}, 0")
            k.e(f"global_load_dword v{vt3}, v{vt0}, s[18:19] sc1")
            k.vm_n += 1; nonce_tok = k.vm_n
        if g == 7:
            k.wait(lg=tok)
            k.nop(12)
            stB = epilogue(0)
            stamp(k, "epiB")
        if g == 6:
            Ln = k.newlabel("n"); Lnd = k.newlabel("nd")
            k.wait(vm=nonce_tok)
            k.e(f"v_readfirstlane_b32 s{sNonce}, v{vt3}")
            k.e(f"s_mov_b32 s{sSpin}, 0")
            k.e(f"s_cmp_lg_u32 s{sNonce}, 0")
            k.e(f"s_cbranch_scc1 {Lnd}")
            k.label(Ln)
            k.e(f"global_load_dword v{vt3}, v{vt0}, s[18:19] sc1")
            k.e(f"s_add_u32 s{sSpin}, s{sSpin}, 1")
            k.e(f"s_waitcnt vmcnt(0)")
            k.e(f"v_readfirstlane_b32 s{sNonce}, v{vt3}")
            k.e(f"s_cmp_gt_u32 s{sSpin}, {SPIN_MAX}")
            k.e(f"s_cbranch_scc1 {Lnd}")
            k.e(f"s_cmp_eq_u32 s{sNonce}, 0")
            k.e(f"s_cbranch_scc1 {Ln}")
            k.label(Lnd)
        if g == 10:
            p1flag_off(0, sFOB)
            k.wait(vm=stB)
            store_flag(k, vt0, vt1, sFOB)
        for ks in range(3):
            tok = interleave(mf_list(g, ks), rd_list(g, ks + 1), tok, ex)
        while ex: ex.pop(0)()
        pend = (g, 3)
        ptok = tok
    k.wait(lg=ptok)
    for m in mf_list(*pend): k.e(m)
    stamp(k, "mfma done")
    R = V(16 + 0, 256)
    RA = V(200, 256)
    vFlB = RA.a(); vFlBr = RA.a(); vFlA = RA.a(); vFlAr = RA.a()
    k.e(f"v_and_b32 v{vt0}, 15, v{vLane}")
    k.e(f"s_lshl_b32 s{sT}, s{sW}, 4")
    k.e(f"v_add_u32 v{vt0}, s{sT}, v{vt0}")
    k.e(f"v_cmp_gt_u32 vcc, 16, v{vLane}")
    k.e(f"v_mov_b32 v{vt1}, s{sUV}")
    k.e(f"v_mov_b32 v{vt2}, s{sUK}")
    k.e(f"v_cndmask_b32 v{vt1}, v{vt1}, v{vt2}, vcc")
    k.e(f"v_cmp_le_u32 vcc, 32, v{vLane}")
    k.e(f"s_lshl_b32 s{sT}, s{sRA}, 2")
    k.e(f"v_and_b32 v{vt2}, 3, v{vLane}")
    k.e(f"v_add_u32 v{vt2}, s{sT}, v{vt2}")
    k.e(f"v_mov_b32 v{vt3}, s{sUQ}")
    k.e(f"v_cndmask_b32 v{vt0}, v{vt0}, v{vt2}, vcc")
    k.e(f"v_cndmask_b32 v{vt1}, v{vt1}, v{vt3}, vcc")
    k.e(f"v_lshl_add_u32 v{vt0}, v{vt0}, 4, v{vt1}")
    k.e(f"v_lshlrev_b32 v{vFlB}, 7, v{vt0}")
    k.e(f"v_add_u32 v{vFlB}, {FP1_OFF}, v{vFlB}")
    pB = async_poll_issue(k, vFlB, vFlBr, 0xfffffffff)
    k.nop(4)
    stA = epilogue(1)
    stamp(k, "epiA")
    k.e("s_barrier")
    R = V(16, 200)
    vRed = R.a(); vRedR = R.a()
    vQA = R.a(8, 4); vQ = R.a(32, 4); vS = R.a(32, 4); vP = R.a(16, 4); vO = R.a(64, 4); vOf = R.a(8, 4); vTmp = vS
    RM = V(204, 256)
    vDiag = RM.a(16, 4); vEdge = RM.a(16, 4)
    async_poll_check(k, pB, vFlB, vFlBr, 0xfffffffff, "pb")
    stamp(k, "B flags")
    qtok = {}
    for d in (0, 1, 2, 3):
        k.e(f"s_add_u32 s{sT}, s{sW}, {d}")
        k.e(f"s_and_b32 s{sT}, s{sT}, 3")
        k.e(f"s_lshl_b32 s{sT2}, s{sRA}, 2")
        k.e(f"s_add_u32 s{sT}, s{sT}, s{sT2}")
        k.e(f"s_lshl_b32 s{sT2}, s{sHead}, 6")
        k.e(f"s_add_u32 s{sT}, s{sT}, s{sT2}")
        k.e(f"s_lshl_b32 s{sQo}, s{sT}, 11")
        k.e(f"s_add_u32 s{sQo}, s{sQo}, {Q_OFF['B']}")
        k.vm(f"buffer_load_dwordx4 v[{vQ+8*d}:{vQ+8*d+3}], v{vSt}, {WS}, s{sQo} offen sc1")
        qtok[d] = k.vm(f"buffer_load_dwordx4 v[{vQ+8*d+4}:{vQ+8*d+7}], v{vSt}, {WS}, s{sQo} offen offset:1024 sc1")
        if d == 0:
            k.e(f"s_lshl_b32 s{sKVB}, s{sHead}, 18")
            k.e(f"s_lshl_b32 s{sT}, s{sW}, 16")
            k.e(f"s_add_u32 s{sKVB}, s{sKVB}, s{sT}")
            k.e(f"s_and_b32 s{sRot}, s{sRA}, 7")
            k.e(f"s_lshl_b32 s{sRot}, s{sRot}, 1")
            ktok = {}; vtok = {}
            def load_tile(i):
                k.e(f"s_add_u32 s{sT}, s{sRot}, {i}")
                k.e(f"s_and_b32 s{sT}, s{sT}, 15")
                k.e(f"s_lshl_b32 s{sT}, s{sT}, 12")
                k.e(f"s_add_u32 s{sTo}, s{sT}, s{sKVB}")
                k.vm(f"buffer_load_dwordx4 a[{16*i}:{16*i+3}], v{vSt}, {WS}, s{sTo} offen sc1")
                ktok[i] = k.vm(f"buffer_load_dwordx4 a[{16*i+4}:{16*i+7}], v{vSt}, {WS}, s{sTo} offen offset:1024 sc1")
                k.vm(f"buffer_load_dwordx4 a[{16*i+8}:{16*i+11}], v{vSt}, {WS}, s{sTo} offen offset:2048 sc1")
                vtok[i] = k.vm(f"buffer_load_dwordx4 a[{16*i+12}:{16*i+15}], v{vSt}, {WS}, s{sTo} offen offset:3072 sc1")
            load_tile(0)
    for i in range(1, 4): load_tile(i)
    p1flag_off(1, sFOA)
    build_masks(k, vDiag, vEdge, vLane, vt0, vt1)
    k.wait(vm=stA)
    store_flag(k, vt0, vt1, sFOA)
    k.wait(vm=max(ktok[0], qtok[0]))
    mfma(k, vr(vS, 16), ar(0, 4), vr(vQ, 4), "0")
    mfma(k, vr(vS, 16), ar(4, 4), vr(vQ + 4, 4), vr(vS, 16))
    k.e(f"s_lshl_b32 s{sT}, s{sW}, 9")
    k.e(f"v_lshlrev_b32 v{vt2}, 3, v{vLane}")
    k.e(f"v_add_u32 v{vRed}, s{sT}, v{vt2}")
    k.e(f"v_add_u32 v{vRed}, {SCR}, v{vRed}")
    k.nop(8)
    colmax(k, vS, vt3, vt0)
    k.e(f"v_add_f32 v{vt3}, {f2u(MARGIN):#x}, v{vt3}")
    shift_dwords(k, vt3, vOf, vOf + 1, vt1)
    k.lg(f"ds_write_b64 v{vRed}, v[{vOf}:{vOf+1}]")
    k.wait(vm=qtok[3])
    k.wait_all(vm=False)
    k.e("s_barrier")
    k.e("s_mov_b32 exec_lo, 0")
    for d in range(4):
        k.e(f"s_add_u32 s{sT}, s{sW}, {d}")
        k.e(f"s_and_b32 s{sT}, s{sT}, 3")
        k.e(f"s_lshl_b32 s{sT}, s{sT}, 9")
        k.e(f"s_add_u32 s{sT}, s{sT}, {SCR}")
        k.e(f"v_add_u32 v{vt3}, s{sT}, v{vt2}")
        k.lg(f"ds_read_b64 v[{vQ+8*d+6}:{vQ+8*d+7}], v{vt3}")
    k.e("s_mov_b32 exec_lo, -1")
    k.wait_all(vm=False)
    stamp(k, "B standin")
    def wo_items(which):
        lo = 14 if which == "B" else 8
        L = []
        def setup():
            srd(k, SRD_WO, lo, WO_BYTES) if False else None
        items = []
        def first():
            k.e(f"s_lshl_b32 s{sMk}, s{sCT}, 8")
            k.e(f"s_mul_i32 s{sMk+1}, s{sW}, {112*896}")
            k.e(f"s_add_u32 s{sMk}, s{sMk}, s{sMk+1}")
            k.e(f"s_mul_i32 s{sMk+1}, s{sW}, {112*256}")
        def one(j):
            def f():
                if j == 0: first()
                k.e(f"s_add_u32 m0, s{sMk+1}, {1024*j}")
                k.e(f"s_add_u32 s{sMk+4}, s{sMk}, {4*896*j}")
                return k.vm(f"buffer_load_dwordx4 v{vWoD}, s[{SRD_XB if which == 'B' else SRD_XA}:{(SRD_XB if which == 'B' else SRD_XA)+3}], s{sMk+4} offen lds")
            return f
        return [one(j) for j in range(28)]
    srd(k, SRD_XB, 14, WO_BYTES); srd(k, SRD_XA, 8, WO_BYTES)
    woB = wo_items("B")
    k.e(f"v_cmp_gt_u32 vcc, 9, v{vLane}")
    k.e(f"v_subrev_u32 v{vt0}, 9, v{vLane}")
    k.e(f"v_mov_b32 v{vt1}, s{sUV}")
    k.e(f"v_cndmask_b32 v{vt0}, v{vt0}, v{vLane}, vcc")
    k.e(f"v_mov_b32 v{vt2}, s{sUK}")
    k.e(f"v_cndmask_b32 v{vt1}, v{vt1}, v{vt2}, vcc")
    k.e(f"s_sub_u32 s{sT}, s{sTTA}, 8")
    k.e(f"v_add_u32 v{vt0}, s{sT}, v{vt0}")
    k.e(f"v_max_i32 v{vt0}, 0, v{vt0}")
    k.e(f"v_cmp_eq_u32 vcc, 18, v{vLane}")
    k.e(f"v_mov_b32 v{vt2}, s{sTTA}")
    k.e(f"v_mov_b32 v{vt3}, s{sUQ}")
    k.e(f"v_cndmask_b32 v{vt0}, v{vt0}, v{vt2}, vcc")
    k.e(f"v_cndmask_b32 v{vt1}, v{vt1}, v{vt3}, vcc")
    k.e(f"v_add_u32 v{vt0}, 64, v{vt0}")
    k.e(f"v_lshl_add_u32 v{vt0}, v{vt0}, 4, v{vt1}")
    k.e(f"v_lshlrev_b32 v{vFlA}, 7, v{vt0}")
    k.e(f"v_add_u32 v{vFlA}, {FP1_OFF}, v{vFlA}")
    ops = []
    for p, (d0, d1) in enumerate(((1, 2), (3, 0))):
        for i in range(16):
            for d in (d0, d1):
                ops.append(dict(K=(ar(16*i, 4), ar(16*i+4, 4)), V=(ar(16*i+8, 4), ar(16*i+12, 4)),
                                Q=(vr(vQ+8*d, 4), vr(vQ+8*d+4, 4)), O=vr(vO+16*d, 16), C="0", first=(i == 0),
                                wK=(lambda i=i: ktok[i]), wV=(lambda i=i: vtok[i])))
    kt = {}; vt = {}; st = {}
    def loadA(j):
        k.e(f"s_add_i32 s{sT2}, s{sTTA}, {j-8}")
        k.e(f"s_lshl_b32 s{sTo}, s{sT2}, 12")
        k.e(f"s_add_u32 s{sTo}, s{sTo}, s{sKV}")
        k.e(f"s_cmp_lt_i32 s{sT2}, 0")
        k.e(f"s_cselect_b32 s{sTo}, {WS_BYTES}, s{sTo}")
        k.vm(f"buffer_load_dwordx4 a[{16*j}:{16*j+3}], v{vSt}, {WS}, s{sTo} offen sc1")
        kt[j] = k.vm(f"buffer_load_dwordx4 a[{16*j+4}:{16*j+7}], v{vSt}, {WS}, s{sTo} offen offset:1024 sc1")
        k.vm(f"buffer_load_dwordx4 a[{16*j+8}:{16*j+11}], v{vSt}, {WS}, s{sTo} offen offset:2048 sc1")
        vt[j] = k.vm(f"buffer_load_dwordx4 a[{16*j+12}:{16*j+15}], v{vSt}, {WS}, s{sTo} offen offset:3072 sc1")
    def hookB(n, g):
        if g == 0 and 0 <= n < 24 and n % 2 == 0:
            load_tile(4 + n // 2)
        if g == 2 and 1 <= n < 29 and woB:
            st["wo"] = woB.pop(0)()
        if g == 0 and n == 30:
            st["pA"] = async_poll_issue(k, vFlA, vFlAr, 0x7ffff)
        if g == 0 and n == 33:
            async_poll_check(k, st["pA"], vFlA, vFlAr, 0x7ffff, "pa")
            k.e(f"s_lshl_b32 s{sKV}, s{sHead}, 18")
            k.e(f"s_add_u32 s{sKV}, s{sKV}, {KV_OFF['A']}")
            k.e(f"s_lshl_b32 s{sT2}, s{sHead}, 6")
            k.e(f"s_add_u32 s{sT2}, s{sT2}, s{sTTA}")
            k.e(f"s_lshl_b32 s{sQo}, s{sT2}, 11")
            k.e(f"s_add_u32 s{sQo}, s{sQo}, {Q_OFF['A']}")
            k.vm(f"buffer_load_dwordx4 v[{vQA}:{vQA+3}], v{vSt}, {WS}, s{sQo} offen sc1")
            st["qa"] = k.vm(f"buffer_load_dwordx4 v[{vQA+4}:{vQA+7}], v{vSt}, {WS}, s{sQo} offen offset:1024 sc1")
        if g == 0 and n >= 35 and (n - 35) % 2 == 0 and (n - 35) // 2 < 9:
            loadA((n - 35) // 2)
    attn_pipeline(k, ops, vS, vP, hookB)
    stamp(k, "attn B done")
    k.nop(12)
    for d in (1, 2, 3):
        k.e(f"s_add_u32 s{sT}, s{sW}, {d}")
        k.e(f"s_and_b32 s{sT}, s{sT}, 3")
        k.e(f"s_mul_i32 s{sT}, s{sT}, {3*4096}")
        k.e(f"s_add_u32 s{sT}, s{sT}, {SCR + (d-1)*4096}")
        k.e(f"v_add_u32 v{vRed}, s{sT}, v{vSt}")
        for i in range(4):
            k.lg(f"ds_write_b128 v{vRed}, v[{vO+16*d+4*i}:{vO+16*d+4*i+3}] offset:{1024*i}")
    k.e(f"s_mul_i32 s{sT}, s{sW}, {3*4096}")
    k.e(f"s_add_u32 s{sT}, s{sT}, {SCR}")
    k.e(f"v_add_u32 v{vRedR}, s{sT}, v{vSt}")
    k.wait_all(vm=False)
    k.e("s_barrier")
    for j in range(3):
        for i in range(4):
            k.lg(f"ds_read_b128 v[{vTmp+16*j+4*i}:{vTmp+16*j+4*i+3}], v{vRedR} offset:{4096*j+1024*i}")
    k.wait_all(vm=False)
    for j in range(3):
        for i in range(0, 16, 2):
            k.e(f"v_pk_add_f32 v[{vO+i}:{vO+i+1}], v[{vO+i}:{vO+i+1}], v[{vTmp+16*j+i}:{vTmp+16*j+i+1}]")
    finalize_o(k, vO, vt0, vt1, vOf)
    k.e(f"s_lshl_b32 s{sT}, s{sTTA}, 4")
    k.e(f"s_add_u32 s{sT}, s{sT}, s{sHead}")
    k.e(f"s_lshl_b32 s{sOo}, s{sT}, 11")
    k.e(f"s_add_u32 s{sOo}, s{sOo}, {O_OFF['B']}")
    k.vm(f"buffer_store_dwordx4 v[{vOf}:{vOf+3}], v{vSt}, {WS}, s{sOo} offen sc1")
    ob = k.vm(f"buffer_store_dwordx4 v[{vOf+4}:{vOf+7}], v{vSt}, {WS}, s{sOo} offen offset:1024 sc1")
    k.e(f"s_lshl_b32 s{sFOA}, s{sT}, 7")
    k.e(f"s_add_u32 s{sFOB}, s{sFOA}, {FO_OFF}")
    k.e(f"s_add_u32 s{sFOA}, s{sFOA}, {FO_OFF + 64*16*128}")
    stamp(k, "O(B) stored")
    k.wait(vm=max(kt[8], st["qa"]))
    mfma(k, vr(vS, 16), ar(128, 4), vr(vQA, 4), vr(vDiag, 16))
    mfma(k, vr(vS, 16), ar(132, 4), vr(vQA + 4, 4), vr(vS, 16))
    k.nop(12)
    colmax(k, vS, vt3, vt0)
    k.e(f"v_add_f32 v{vt3}, {f2u(MARGIN):#x}, v{vt3}")
    shift_dwords(k, vt3, vt0, vt1, vt2)
    k.e("s_mov_b32 exec_lo, 0")
    k.e(f"v_mov_b32 v{vQA+6}, v{vt0}")
    k.e(f"v_mov_b32 v{vQA+7}, v{vt1}")
    k.e("s_mov_b32 exec_lo, -1")
    k.nop(2)
    opsA = []
    for j in range(9):
        C = vr(vEdge, 16) if j == 0 else vr(vDiag, 16) if j == 8 else "0"
        opsA.append(dict(K=(ar(16*j, 4), ar(16*j+4, 4)), V=(ar(16*j+8, 4), ar(16*j+12, 4)),
                         Q=(vr(vQA, 4), vr(vQA+4, 4)), O=vr(vO+16, 16), C=C, first=(j == 0), wK=kt[j], wV=vt[j]))
    vFo = vFlB; vFor = vFlBr
    def hookA(n, g):
        if g == 0 and n == 4:
            k.wait(vm=ob)
            store_flag(k, vt0, vt1, sFOB)
    attn_pipeline(k, opsA, vS, vP, hookA)
    k.nop(12)
    finalize_o(k, vO + 16, vt0, vt1, vOf)
    k.e(f"s_lshl_b32 s{sT}, s{sTTA}, 4")
    k.e(f"s_add_u32 s{sT}, s{sT}, s{sHead}")
    k.e(f"s_lshl_b32 s{sOo}, s{sT}, 11")
    k.e(f"s_add_u32 s{sOo}, s{sOo}, {O_OFF['A']}")
    k.vm(f"buffer_store_dwordx4 v[{vOf}:{vOf+3}], v{vSt}, {WS}, s{sOo} offen sc1")
    oa = k.vm(f"buffer_store_dwordx4 v[{vOf+4}:{vOf+7}], v{vSt}, {WS}, s{sOo} offen offset:1024 sc1")
    stamp(k, "attn A done")

    R = V(16, 200)
    vWr3 = R.a(); vOr = R.a(); vOut = R.a(); vFl = R.a(); vWr3b = R.a(); vWr3c = R.a()
    NB = 4
    vA = R.a(4 * NB, 4); vB = R.a(4 * NB, 4); vD = R.a(16, 4); vPk = R.a(8, 4)
    k.e(f"v_lshrrev_b32 v{vt0}, 5, v{vLane}")
    k.e(f"v_lshlrev_b32 v{vt0}, 2, v{vt0}")
    k.e(f"v_bfe_u32 v{vt1}, v{vLane}, 2, 2")
    k.e(f"v_add_u32 v{vt0}, v{vt0}, v{vt1}")
    k.e(f"v_add_u32 v{vt2}, s{sW}, v{vt1}")
    k.e(f"v_and_b32 v{vt2}, 3, v{vt2}")
    k.e(f"v_lshlrev_b32 v{vt0}, 8, v{vt0}")
    k.e(f"v_lshl_add_u32 v{vt0}, v{vt2}, 6, v{vt0}")
    k.e(f"v_bfe_u32 v{vt1}, v{vLane}, 4, 1")
    k.e(f"v_lshl_add_u32 v{vt0}, v{vt1}, 5, v{vt0}")
    k.e(f"v_and_b32 v{vt1}, 3, v{vLane}")
    k.e(f"v_lshl_add_u32 v{vWr3}, v{vt1}, 3, v{vt0}")
    k.e(f"v_add_u32 v{vWr3b}, 57344, v{vWr3}")
    k.e(f"v_lshrrev_b32 v{vt0}, 5, v{vLane}")
    k.e(f"v_lshlrev_b32 v{vt0}, 10, v{vt0}")
    k.e(f"v_sub_u32 v{vWr3c}, v{vWr3b}, v{vt0}")
    k.e(f"v_add_u32 v{vOr}, {SCR}, v{vSt}")
    k.e(f"v_and_b32 v{vt0}, 31, v{vLane}")
    k.e(f"v_mul_u32_u24 v{vt0}, 1792, v{vt0}")
    k.e(f"v_lshrrev_b32 v{vt1}, 5, v{vLane}")
    k.e(f"v_lshl_add_u32 v{vOut}, v{vt1}, 4, v{vt0}")
    for bi, b in enumerate("BA"):
        k.c(f"---- P3 {b}")
        k.e(f"s_lshl_b32 s{sT}, s{sP3T}, 4")
        k.e(f"v_add_u32 v{vFl}, s{sT}, v{vLane}")
        k.e(f"v_lshlrev_b32 v{vFl}, 7, v{vFl}")
        k.e(f"v_add_u32 v{vFl}, {FO_OFF + (64*16*128 if b == 'A' else 0)}, v{vFl}")
        if b == "B":
            k.wait(vm=oa)
            store_flag(k, vt0, vt1, sFOA)
        poll_flags(k, vFl, vt0, 0xffff, "po")
        stamp(k, f"P3{b} flags")
        k.e("s_barrier")
        k.e(f"s_lshl_b32 s{sOo}, s{sP3T}, 15")
        k.e(f"s_add_u32 s{sOo}, s{sOo}, {O_OFF[b]}")
        k.e(f"s_lshl_b32 s{sT}, s{sW}, 13")
        k.e(f"s_add_u32 s{sOo}, s{sOo}, s{sT}")
        k.e(f"s_add_u32 s{sT2}, s{sT}, {SCR}")
        for j in range(8):
            if j % 4 == 0:
                k.e(f"s_add_u32 m0, s{sT2}, {1024*j}")
                k.e(f"s_add_u32 s{sT}, s{sOo}, {1024*j}")
            k.vm(f"buffer_load_dwordx4 v{vSt}, {WS}, s{sT} offen offset:{1024*(j%4)} sc1 lds")
        k.wait_all()
        k.e("s_barrier")
        stamp(k, f"P3{b} data")
        def rd(step):
            hd, kk = step // 2, step % 2
            par = step % NB
            row = 28 * hd + 16 * kk
            row2 = row + 8
            def addr(rw):
                if rw >= 224: return vWr3b, (rw - 224) * 256
                return vWr3, rw * 256
            a1, o1 = addr(row); a2, o2 = addr(row2)
            if hd == 15 and kk == 1: a2 = vWr3c
            k.lg(f"ds_read_b64_tr_b16 v[{vA+4*par}:{vA+4*par+1}], v{a1} offset:{o1}")
            k.lg(f"ds_read_b64_tr_b16 v[{vA+4*par+2}:{vA+4*par+3}], v{a2} offset:{o2}")
            return k.lg(f"ds_read_b128 v[{vB+4*par}:{vB+4*par+3}], v{vOr} offset:{step*1024}")
        toks = {}
        for s_ in range(NB - 1): toks[s_] = rd(s_)
        for step in range(32):
            k.wait(lg=toks[step])
            par = step % NB
            mfma(k, vr(vD, 16), vr(vA + 4 * par, 4), vr(vB + 4 * par, 4), "0" if step == 0 else vr(vD, 16))
            if step + NB - 1 < 32: toks[step + NB - 1] = rd(step + NB - 1)
        if b == "B":
            k.e("s_barrier")
            for f in wo_items("A"): f()
        k.nop(12)
        for i in range(8): k.e(f"v_cvt_pk_bf16_f32 v{vPk+i}, v{vD+2*i}, v{vD+2*i+1}")
        k.nop(2)
        k.e(f"v_permlane32_swap_b32 v{vPk}, v{vPk+2}")
        k.e(f"v_permlane32_swap_b32 v{vPk+1}, v{vPk+3}")
        k.e(f"v_permlane32_swap_b32 v{vPk+4}, v{vPk+6}")
        k.e(f"v_permlane32_swap_b32 v{vPk+5}, v{vPk+7}")
        k.e(f"s_lshl_b32 s{sT2}, s{sCT}, 2")
        k.e(f"s_add_u32 s{sT2}, s{sT2}, s{sW}")
        k.e(f"s_mul_i32 s{sOo}, s{sP3T}, {32*1792}")
        k.e(f"s_lshl_b32 s{sT}, s{sT2}, 6")
        k.e(f"s_add_u32 s{sOo}, s{sOo}, s{sT}")
        if b == "B": k.e(f"s_add_u32 s{sOo}, s{sOo}, 896")
        k.e(f"s_cmp_ge_u32 s{sT2}, 14")
        k.e(f"s_cselect_b32 s{sOo}, {OUT_BYTES}, s{sOo}")
        k.vm(f"buffer_store_dwordx4 v[{vPk}:{vPk+3}], v{vOut}, s[{SRD_OUT}:{SRD_OUT+3}], s{sOo} offen")
        k.vm(f"buffer_store_dwordx4 v[{vPk+4}:{vPk+7}], v{vOut}, s[{SRD_OUT}:{SRD_OUT+3}], s{sOo} offen offset:32")
        stamp(k, f"P3{b} done")
    stamp(k, "rt", True)
    stamp_flush(k, vt0, vt1)
    k.label("L_end")
    k.e("s_endpgm")
    return k

HEADER = open("cdna_kernels/" + NAME + ".s.ref").read().split("; Override")[0]

def main(out):
    k = gen()
    pr = check(k.L, "fused")
    for p in pr: print(p)
    print("instrs", len(k.L), "stamps", St.n, St.names)
    s = HEADER
    s += "; @launch grid=(256,1,1) block=(256,1,1) lds=163840\n"
    s += '.amdgcn_target "amdgcn-amd-amdhsa--gfx950"\n.text\n'
    s += f".globl {KNAME}\n.p2align 8\n.type {KNAME},@function\n{KNAME}:\n" + k.text()
    s += f""".section .rodata,"a"
.p2align 6
.amdhsa_kernel {KNAME}
  .amdhsa_next_free_vgpr 512
  .amdhsa_next_free_sgpr 102
  .amdhsa_accum_offset 256
  .amdhsa_group_segment_fixed_size 0
  .amdhsa_kernarg_size 72
  .amdhsa_user_sgpr_count 2
  .amdhsa_user_sgpr_kernarg_segment_ptr 1
  .amdhsa_system_sgpr_workgroup_id_x 1
.end_amdhsa_kernel
"""
    open(out, "w").write(s)

if __name__ == "__main__":
    main(sys.argv[1] if len(sys.argv) > 1 else "f3.s")
```

```python
import sys, math, struct, os
sys.path.insert(0, "gen")
from asmlib import Emit, check

NAME = "concat_heads__sliding_block__softmax_full_mha__prompt"
KNAME = NAME + "_kernel"
def f2u(x): return struct.unpack("<I", struct.pack("<f", x))[0]

KV_OFF = {"B": 0, "A": 4 << 20}
O_OFF = {"B": 8 << 20, "A": 10 << 20}
Q_OFF = {"B": 12 << 20, "A": 14 << 20}
FP1_OFF = 16 << 20
FO_OFF = (16 << 20) + (256 << 10)
NONCE_OFF = (16 << 20) + (768 << 10)
STAMPS = 17 << 20
WS_BYTES = 18 << 20
X_BYTES = 2048 * 896
W_BYTES = 448 * 2688
WO_BYTES = 448 * 896
OUT_BYTES = 2048 * 1792
QSCALE = (28 ** -0.5) * math.log2(math.e)
MARGIN = 64.0
NEGBIG = -1.0e30
MAPB = os.environ.get('MAPB', '0') == '1'
STAMP = os.environ.get("STAMP", "0") in ("1", "2")
STAMPDBG = os.environ.get("STAMP", "0") == "2"
DBGWG = int(os.environ.get("DBGWG", "100"))
SKIP = set(os.environ.get("SKIP", "").split(","))
SPIN_MAX = 1 << 18
SCR = 114688

class V:
    def __init__(self, lo, hi): self.n = lo; self.hi = hi
    def a(self, cnt=1, al=1):
        self.n = (self.n + al - 1) // al * al
        r = self.n; self.n += cnt
        assert self.n <= self.hi, "out of regs"
        return r

def vr(b, n=1): return f"v{b}" if n == 1 else f"v[{b}:{b+n-1}]"
def ar(b, n=1): return f"a{b}" if n == 1 else f"a[{b}:{b+n-1}]"
def mfma(k, d, a, b, c): k.e(f"v_mfma_f32_32x32x16_bf16 {d}, {a}, {b}, {c}")

S_PTR = 4
SRD_XB, SRD_WB, SRD_WS, SRD_OUT, SRD_XA, SRD_WA = 24, 28, 32, 36, 40, 44
SRD_WO = 4
sWmask = 96
sW, sBeta, sU, sR, sT, sT2, sT3 = 48, 49, 50, 51, 52, 53, 54
sOff, sXbase, sWcol, sM0X, sM0W, sC, sXo, sWo, sWo2 = 55, 56, 57, 58, 59, 60, 61, 62, 63
sVmask = 64
sNonce = 66
sHead, sTT, sKV, sTo, sQo, sOo, sSpin = 67, 68, 69, 70, 71, 72, 73
sCT, sP3T = 74, 75
sEx = 76
sStampTmp = 78
sRA = 80
sUQ, sUK, sUV = 81, 82, 83
sFOA, sFOB, sKVB, sRot, sOffU, sTTA = 84, 85, 86, 87, 88, 89
sMk = 90
sD0 = 22
WS = f"s[{SRD_WS}:{SRD_WS+3}]"

def srd(k, s, lo, size):
    k.e(f"s_mov_b32 s{s}, s{lo}")
    k.e(f"s_and_b32 s{s+1}, s{lo+1}, 0xffff")
    k.e(f"s_mov_b32 s{s+2}, {size}")
    k.e(f"s_mov_b32 s{s+3}, 0x20000")

class St:
    n = 0; v = 15; names = []
def stamp(k, name="", rt=False):
    if not STAMP: return
    if STAMPDBG and (rt or name in SKIP): return
    i = St.n; St.n += 1; St.names.append(name)
    assert i < 32
    k.e(f"{'s_memrealtime' if rt else 's_memtime'} s[{sStampTmp}:{sStampTmp+1}]")
    k.wait_all(vm=False, lg=True)
    k.e(f"v_writelane_b32 v{St.v}, s{sStampTmp}, {i}")
def stamp_flush(k, vt0, vt1):
    if not STAMP: return
    if STAMPDBG:
        L = k.newlabel("sf")
        k.e(f"s_lshl_b32 s{sStampTmp}, s2, 2")
        k.e(f"s_add_u32 s{sStampTmp}, s{sStampTmp}, s{sW}")
        k.e(f"s_cmp_lg_u32 s{sStampTmp}, {DBGWG*4}")
        k.e(f"s_cbranch_scc1 {L}")
        k.e(f"v_readlane_b32 s{sStampTmp}, v{St.v}, 0")
        k.e(f"v_and_b32 v{vt0}, 63, v0")
        k.e(f"v_lshlrev_b32 v{vt0}, 2, v{vt0}")
        k.e(f"v_subrev_u32 v{vt1}, s{sStampTmp}, v{St.v}")
        k.e(f"s_mov_b64 exec, 0xfffe")
        k.e(f"global_store_dword v{vt0}, v{vt1}, s[18:19]")
        k.e(f"s_mov_b64 exec, -1")
        k.label(L)
        return
    k.e(f"v_lshrrev_b32 v{vt0}, 6, v0")
    k.e(f"s_lshl_b32 s{sStampTmp}, s2, 2")
    k.e(f"v_add_u32 v{vt0}, s{sStampTmp}, v{vt0}")
    k.e(f"v_lshlrev_b32 v{vt0}, 7, v{vt0}")
    k.e(f"v_and_b32 v{vt1}, 63, v0")
    k.e(f"v_lshl_add_u32 v{vt0}, v{vt1}, 2, v{vt0}")
    k.e(f"s_mov_b32 s{sStampTmp}, {STAMPS}")
    k.e(f"s_mov_b32 exec_hi, 0")
    k.vm(f"buffer_store_dword v{St.v}, v{vt0}, {WS}, s{sStampTmp} offen")
    k.e(f"s_mov_b64 exec, -1")

def build_masks(k, vDiag, vEdge, vLane, t0, t1):
    k.e(f"v_and_b32 v{t0}, 31, v{vLane}")
    k.e(f"v_lshrrev_b32 v{t1}, 5, v{vLane}")
    k.e(f"v_lshlrev_b32 v{t1}, 2, v{t1}")
    k.e(f"v_sub_u32 v{t0}, v{t0}, v{t1}")
    k.e(f"v_mov_b32 v{t1}, {f2u(NEGBIG):#x}")
    prs = [sMk, sMk + 2, sMk + 4]
    def cmp(i):
        b = 8 * (i // 4) + (i % 4); p = prs[i % 3]
        k.e(f"v_cmp_le_i32_e64 s[{p}:{p+1}], {b}, v{t0}")
    cmp(0); cmp(1)
    for i in range(16):
        if i + 2 < 16: cmp(i + 2)
        else: k.nop(1)
        p = prs[i % 3]
        k.e(f"v_cndmask_b32_e64 v{vDiag+i}, v{t1}, 0, s[{p}:{p+1}]")
        k.e(f"v_cndmask_b32_e64 v{vEdge+i}, 0, v{t1}, s[{p}:{p+1}]")

def colmax(k, vS, vm, vt):
    k.e(f"v_max3_f32 v{vm}, v{vS}, v{vS+1}, v{vS+2}")
    k.e(f"v_max3_f32 v{vt}, v{vS+3}, v{vS+4}, v{vS+5}")
    k.e(f"v_max3_f32 v{vm}, v{vm}, v{vS+6}, v{vS+7}")
    k.e(f"v_max3_f32 v{vt}, v{vt}, v{vS+8}, v{vS+9}")
    k.e(f"v_max3_f32 v{vm}, v{vm}, v{vS+10}, v{vS+11}")
    k.e(f"v_max3_f32 v{vt}, v{vt}, v{vS+12}, v{vS+13}")
    k.e(f"v_max3_f32 v{vm}, v{vm}, v{vS+14}, v{vS+15}")
    k.e(f"v_max_f32 v{vm}, v{vm}, v{vt}")
    k.e(f"v_mov_b32 v{vt}, v{vm}")
    k.nop(2)
    k.e(f"v_permlane32_swap_b32 v{vm}, v{vt}")
    k.e(f"v_max_f32 v{vm}, v{vm}, v{vt}")

def shift_dwords(k, vm, t0, t1, t2):
    k.e(f"v_and_b32 v{t0}, 0xffff0000, v{vm}")
    k.e(f"v_sub_f32 v{t1}, v{vm}, v{t0}")
    k.e(f"v_and_b32 v{t2}, 0xffff0000, v{t1}")
    k.e(f"v_sub_f32 v{t1}, v{t1}, v{t2}")
    k.e(f"v_lshrrev_b32 v{t0}, 16, v{t0}")
    k.e(f"v_or_b32 v{t0}, v{t0}, v{t2}")
    k.e(f"v_xor_b32 v{t0}, 0x80008000, v{t0}")
    k.e(f"v_lshrrev_b32 v{t1}, 16, v{t1}")
    k.e(f"v_xor_b32 v{t1}, 0x8000, v{t1}")

def poll_flags(k, vAddr, vTmp, mask64, name):
    L = k.newlabel(name); Ld = k.newlabel(name + "d")
    k.e(f"s_mov_b32 s{sSpin}, 0")
    k.e(f"s_mov_b32 exec_hi, {(mask64 >> 32) & 0xffffffff:#x}")
    k.e(f"s_mov_b32 exec_lo, {mask64 & 0xffffffff:#x}")
    k.label(L)
    k.e(f"buffer_load_dword v{vTmp}, v{vAddr}, {WS}, 0 offen sc1")
    k.e(f"s_add_u32 s{sSpin}, s{sSpin}, 1")
    k.e(f"s_waitcnt vmcnt(0)")
    k.e(f"v_cmp_ne_u32 vcc, s{sNonce}, v{vTmp}")
    k.e(f"s_cmp_gt_u32 s{sSpin}, {SPIN_MAX}")
    k.e(f"s_cbranch_scc1 {Ld}")
    k.e(f"s_cbranch_vccnz {L}")
    k.label(Ld)
    k.e(f"s_mov_b64 exec, -1")
    k.vm_done = k.vm_n

def store_flag(k, vZero, vVal, s_off):
    k.e(f"v_mov_b32 v{vZero}, 0")
    k.e(f"v_mov_b32 v{vVal}, s{sNonce}")
    k.e(f"s_mov_b64 exec, 1")
    t = k.vm(f"buffer_store_dword v{vVal}, v{vZero}, {WS}, s{s_off} offen sc1")
    k.e(f"s_mov_b64 exec, -1")
    return t

def attn_pipeline(k, ops, vS, vP, hook=None):
    N = len(ops)
    def val(x): return x() if callable(x) else x
    def qk(n, part):
        o = ops[n]; S = vr(vS + 16 * (n % 2), 16)
        if part == 0:
            k.wait(vm=val(o.get("wK")), lg=val(o.get("lK")))
            mfma(k, S, o["K"][0], o["Q"][0], o["C"])
        else:
            mfma(k, S, o["K"][1], o["Q"][1], S)
    def pv(n, part):
        o = ops[n]; P = vP + 8 * (n % 2)
        if part == 0:
            k.wait(vm=val(o.get("wV")), lg=val(o.get("lV")))
            mfma(k, o["O"], o["V"][0], vr(P, 4), "0" if o["first"] else o["O"])
        else:
            mfma(k, o["O"], o["V"][1], vr(P + 4, 4), o["O"])
    def expgrp(n, g):
        S = vS + 16 * (n % 2); P = vP + 8 * (n % 2)
        for i in range(4):
            k.e(f"v_exp_f32 v{S+4*g+i}, v{S+4*g+i}")
        k.e(f"v_cvt_pk_bf16_f32 v{P+2*g}, v{S+4*g}, v{S+4*g+1}")
        k.e(f"v_cvt_pk_bf16_f32 v{P+2*g+1}, v{S+4*g+2}, v{S+4*g+3}")
    for n in range(-1, N + 1):
        has_exp = 0 <= n < N
        for g in range(4):
            if g < 2 and n + 1 < N: qk(n + 1, g)
            if g >= 2 and 0 <= n - 1: pv(n - 1, g - 2)
            if hook: hook(n, g)
            if has_exp: expgrp(n, g)
        if n == -1: k.nop(12)
        if n == N - 1: k.nop(2)

def finalize_o(k, vO, vt0, vt1, vOf):
    k.e(f"v_mov_b32 v{vt0}, v{vO+12}")
    k.e(f"v_mov_b32 v{vt1}, v{vO+12}")
    k.nop(2)
    k.e(f"v_permlane32_swap_b32 v{vt0}, v{vt1}")
    k.e(f"v_rcp_f32 v{vt1}, v{vt1}")
    k.nop(1)
    for i in range(16):
        k.e(f"v_mul_f32 v{vO+i}, v{vO+i}, v{vt1}")
    for i in range(8):
        k.e(f"v_cvt_pk_bf16_f32 v{vOf+i}, v{vO+2*i}, v{vO+2*i+1}")
    k.e("s_mov_b32 exec_lo, 0")
    k.e(f"v_mov_b32 v{vOf+6}, 0")
    k.e(f"v_mov_b32 v{vOf+7}, 0")
    k.e("s_mov_b32 exec_lo, -1")

def div6(k, dst, src, tmp):
    k.e(f"s_mul_i32 s{dst}, s{src}, 43")
    k.e(f"s_lshr_b32 s{dst}, s{dst}, 8")


def async_poll_issue(k, vAddr, vRes, mask64):
    k.e(f"s_mov_b32 exec_hi, {(mask64 >> 32) & 0xffffffff:#x}")
    k.e(f"s_mov_b32 exec_lo, {mask64 & 0xffffffff:#x}")
    t = k.vm(f"buffer_load_dword v{vRes}, v{vAddr}, {WS}, 0 offen sc1")
    k.e(f"s_mov_b64 exec, -1")
    return t

def async_poll_check(k, tok, vAddr, vRes, mask64, name):
    L = k.newlabel(name); Ld = k.newlabel(name + "d")
    k.wait(vm=tok)
    k.e(f"s_mov_b32 exec_hi, {(mask64 >> 32) & 0xffffffff:#x}")
    k.e(f"s_mov_b32 exec_lo, {mask64 & 0xffffffff:#x}")
    k.e(f"v_cmp_ne_u32 vcc, s{sNonce}, v{vRes}")
    k.e(f"s_mov_b32 s{sSpin}, 0")
    k.e(f"s_cbranch_vccz {Ld}")
    k.label(L)
    k.e(f"buffer_load_dword v{vRes}, v{vAddr}, {WS}, 0 offen sc1")
    k.e(f"s_add_u32 s{sSpin}, s{sSpin}, 1")
    k.e(f"s_waitcnt vmcnt(0)")
    k.e(f"v_cmp_ne_u32 vcc, s{sNonce}, v{vRes}")
    k.e(f"s_cmp_gt_u32 s{sSpin}, {SPIN_MAX}")
    k.e(f"s_cbranch_scc1 {Ld}")
    k.e(f"s_cbranch_vccnz {L}")
    k.label(Ld)
    k.e(f"s_mov_b64 exec, -1")

def div3(k, dst, src):
    k.e(f"s_mul_i32 s{dst}, s{src}, 43")
    k.e(f"s_lshr_b32 s{dst}, s{dst}, 7")


def gen():
    k = Emit()
    St.n = 0; St.names = []
    k.e("s_cmp_ge_u32 s2, 256")
    k.e("s_cbranch_scc1 L_end")
    k.e(f"s_load_dwordx16 s[{S_PTR}:{S_PTR+15}], s[0:1], 0")
    k.e(f"s_load_dwordx2 s[20:21], s[0:1], 64")
    G = V(1, 15)
    vLane = G.a(); vSt = G.a(); vt0 = G.a(); vt1 = G.a(); vt2 = G.a(); vt3 = G.a(); vWoD = G.a()
    vFlB = G.a(); vFlBr = G.a(); vFlA = G.a(); vFlAr = G.a(); vVw = G.a(); vVr = G.a(); vVpad = G.a()
    SRD_X, SRD_W = SRD_XB, SRD_WB
    stamp(k, "start"); stamp(k, "rt", True)
    k.e(f"v_and_b32 v{vLane}, 63, v0")
    k.e(f"v_lshrrev_b32 v{vt0}, 6, v0")
    k.e(f"s_and_b32 s{sT}, s2, 7")
    k.e(f"v_readfirstlane_b32 s{sW}, v{vt0}")
    k.e(f"s_lshr_b32 s{sT2}, s2, 3")
    if MAPB:
        k.e(f"s_lshr_b32 s{sBeta}, s{sT}, 2")
        k.e(f"s_and_b32 s{sU}, s{sT2}, 3")
        k.e(f"s_lshr_b32 s{sR}, s{sT2}, 2")
        k.e(f"s_lshl_b32 s{sOff}, s{sU}, 1")
        k.e(f"s_add_u32 s{sOff}, s{sOff}, s{sR}")
        k.e(f"s_sub_u32 s{sC}, s{sOff}, 7")
        k.e(f"s_min_u32 s{sOff}, s{sOff}, s{sC}")
        k.e(f"s_and_b32 s{sT3}, s{sT}, 1")
        k.e(f"s_lshl_b32 s{sT3}, s{sT3}, 2")
        k.e(f"s_add_u32 s{sU}, s{sU}, s{sT3}")
        k.e(f"s_bfe_u32 s{sT3}, s{sT}, 0x10001")
        k.e(f"s_lshl_b32 s{sT3}, s{sT3}, 3")
        k.e(f"s_add_u32 s{sR}, s{sR}, s{sT3}")
    else:
        k.e(f"s_and_b32 s{sBeta}, s{sT2}, 1")
        k.e(f"s_bfe_u32 s{sU}, s{sT2}, 0x20001")
        k.e(f"s_lshr_b32 s{sR}, s{sT2}, 3")
        k.e(f"s_lshl_b32 s{sOff}, s{sU}, 1")
        k.e(f"s_add_u32 s{sOff}, s{sOff}, s{sR}")
        k.e(f"s_sub_u32 s{sC}, s{sOff}, 7")
        k.e(f"s_min_u32 s{sOff}, s{sOff}, s{sC}")
        k.e(f"s_and_b32 s{sT3}, s{sT}, 1")
        k.e(f"s_lshl_b32 s{sT3}, s{sT3}, 2")
        k.e(f"s_add_u32 s{sU}, s{sU}, s{sT3}")
        k.e(f"s_lshr_b32 s{sT3}, s{sT}, 1")
        k.e(f"s_lshl_b32 s{sT3}, s{sT3}, 2")
        k.e(f"s_add_u32 s{sR}, s{sR}, s{sT3}")
    k.e(f"s_mul_i32 s{sXbase}, s{sR}, {128*896}")
    k.e(f"s_mul_i32 s{sWcol}, s{sU}, 336")
    k.e(f"s_and_b32 s{sOffU}, s{sWcol}, 127")
    k.e(f"s_andn2_b32 s{sWcol}, s{sWcol}, 127")
    R = V(16, 256)
    vXo = R.a(4); vWo = R.a(4); vXr = R.a(4); vWr = R.a(12)
    vXf = R.a(8, 4); vWf = R.a(48, 4)
    acc = [R.a(16, 4) for _ in range(6)]
    vF = R.a(48, 4)
    assert vF == 192, vF
    XSLOT = 16640; WSLOT = 32768; WBASE = 3 * XSLOT
    k.e(f"v_lshrrev_b32 v{vt0}, 3, v{vLane}")
    k.e(f"v_bfe_u32 v{vt1}, v{vLane}, 4, 1")
    k.e(f"v_lshlrev_b32 v{vt1}, 2, v{vt1}")
    k.e(f"v_and_b32 v{vt2}, 7, v{vLane}")
    k.e(f"v_xor_b32 v{vt1}, v{vt1}, v{vt2}")
    k.e(f"v_lshrrev_b32 v{vt2}, 6, v0")
    k.e(f"v_lshl_add_u32 v{vt3}, v{vt2}, 5, v{vt0}")
    k.e(f"v_mul_u32_u24 v{vt3}, 896, v{vt3}")
    k.e(f"v_lshl_add_u32 v{vXo}, v{vt1}, 4, v{vt3}")
    for j in range(1, 4):
        k.e(f"v_add_u32 v{vXo+j}, {j*(8*896-1040)}, v{vXo}")
    k.e(f"v_lshrrev_b32 v{vt0}, 5, v{vLane}")
    k.e(f"v_lshl_add_u32 v{vt3}, v{vt2}, 4, v{vt0}")
    k.e(f"v_mul_u32_u24 v{vt3}, 2688, v{vt3}")
    k.e(f"v_and_b32 v{vt1}, 31, v{vLane}")
    for par in range(2):
        k.e(f"v_lshlrev_b32 v{vt2}, 2, v{vt0}")
        k.e(f"v_sub_u32 v{vt2}, v{vt1}, v{vt2}")
        if par: k.e(f"v_subrev_u32 v{vt2}, 8, v{vt2}")
        k.e(f"v_and_b32 v{vt2}, 31, v{vt2}")
        k.e(f"v_lshl_add_u32 v{vWo+par}, v{vt2}, 4, v{vt3}")
    k.e(f"v_add_u32 v{vWo+2}, {2*(5376-1024)}, v{vWo}")
    k.e(f"v_add_u32 v{vWo+3}, {3*(5376-1024)}, v{vWo+1}")
    k.e(f"v_add_u32 v{vWo+1}, {1*(5376-1024)}, v{vWo+1}")
    k.e(f"s_mul_i32 s{sM0X}, s{sW}, 4160")
    k.e(f"s_lshl_b32 s{sM0W}, s{sW}, 13")
    k.e(f"s_add_u32 s{sM0W}, s{sM0W}, {WBASE}")
    k.e("s_waitcnt lgkmcnt(0)")
    k.e(f"s_cmp_eq_u32 s{sBeta}, 1")
    k.e(f"s_cselect_b32 s{SRD_X}, s4, s10")
    k.e(f"s_cselect_b32 s{SRD_X+1}, s5, s11")
    k.e(f"s_cselect_b32 s{SRD_W}, s6, s12")
    k.e(f"s_cselect_b32 s{SRD_W+1}, s7, s13")
    k.e(f"s_and_b32 s{SRD_X+1}, s{SRD_X+1}, 0xffff")
    k.e(f"s_and_b32 s{SRD_W+1}, s{SRD_W+1}, 0xffff")
    k.e(f"s_mov_b32 s{SRD_X+2}, {X_BYTES}")
    k.e(f"s_mov_b32 s{SRD_X+3}, 0x20000")
    k.e(f"s_mov_b32 s{SRD_W+2}, {W_BYTES}")
    k.e(f"s_mov_b32 s{SRD_W+3}, 0x20000")
    X = f"s[{SRD_X}:{SRD_X+3}]"; W = f"s[{SRD_W}:{SRD_W+3}]"
    dma_tok = {}
    def dma_list(g):
        slot = g % 3
        L = []
        def head():
            k.e(f"s_add_u32 s{sC}, s{sOff}, {g}")
            k.e(f"s_sub_u32 s{sT}, s{sC}, 7")
            k.e(f"s_min_u32 s{sC}, s{sC}, s{sT}")
            k.e(f"s_lshl_b32 s{sXo}, s{sC}, 7")
            k.e(f"s_add_u32 s{sXo}, s{sXo}, s{sXbase}")
            k.e(f"s_mul_i32 s{sWo}, s{sC}, {64*2688}")
            k.e(f"s_add_u32 s{sWo}, s{sWo}, s{sWcol}")
            k.e(f"s_add_u32 s{sWo2}, s{sWo}, {4*5376}")
            k.e(f"s_add_u32 m0, s{sM0X}, {slot*XSLOT}")
            k.e("s_nop 0")
        def xj(j):
            def f():
                if j == 0: head()
                k.vm(f"buffer_load_dwordx4 v{vXo+j}, {X}, s{sXo} offen offset:{1040*j} lds")
            return f
        def wi(i):
            def f():
                if i % 4 == 0:
                    k.e(f"s_add_u32 m0, s{sM0W}, {slot*WSLOT + (i//4)*4096}")
                    k.e("s_nop 0")
                t = k.vm(f"buffer_load_dwordx4 v{vWo+(i%4)}, {W}, s{sWo if i < 4 else sWo2} offen offset:{1024*(i%4)} lds")
                if i == 7: dma_tok[g] = t
            return f
        for j in range(4): L.append(xj(j))
        for i in range(8): L.append(wi(i))
        return L
    stamp(k, "pre-dma")
    for f in dma_list(0): f()
    stamp(k, "dma0 issued")
    srd(k, SRD_WS, 20, WS_BYTES); srd(k, SRD_OUT, 16, OUT_BYTES)
    srd(k, SRD_XA, 14, WO_BYTES)
    srd(k, SRD_WA, 8, WO_BYTES)
    SRD_WOB, SRD_WOA = SRD_XA, SRD_WA
    k.e(f"v_lshlrev_b32 v{vSt}, 4, v{vLane}")
    Lnn = k.newlabel("nonce")
    k.e(f"s_or_b32 s{sT}, s2, s{sW}")
    k.e(f"s_cmp_lg_u32 s{sT}, 0")
    k.e(f"s_cbranch_scc1 {Lnn}")
    k.e(f"s_mov_b32 s{sT}, {NONCE_OFF}")
    k.e(f"v_mov_b32 v{vt0}, 0")
    k.e(f"buffer_load_dword v{vt1}, v{vt0}, {WS}, s{sT} offen sc1")
    k.e(f"s_waitcnt vmcnt(0)")
    k.e(f"v_add_u32 v{vt1}, 1, v{vt1}")
    k.e(f"v_max_u32 v{vt1}, 1, v{vt1}")
    k.e(f"s_mov_b64 exec, 1")
    k.e(f"global_store_dword v{vt0}, v{vt1}, s[18:19] sc1")
    k.e(f"buffer_store_dword v{vt1}, v{vt0}, {WS}, s{sT} offen sc1")
    k.e(f"s_mov_b64 exec, -1")
    k.label(Lnn)
    k.e(f"s_and_b32 s{sT}, s2, 7")
    k.e(f"s_lshr_b32 s{sT2}, s2, 3")
    k.e(f"s_and_b32 s{sHead}, s{sT}, 3")
    k.e(f"s_lshl_b32 s{sHead}, s{sHead}, 2")
    k.e(f"s_and_b32 s{sT3}, s{sT2}, 3")
    k.e(f"s_add_u32 s{sHead}, s{sHead}, s{sT3}")
    k.e(f"s_lshr_b32 s{sRA}, s{sT}, 2")
    k.e(f"s_lshl_b32 s{sRA}, s{sRA}, 3")
    k.e(f"s_lshr_b32 s{sT3}, s{sT2}, 2")
    k.e(f"s_add_u32 s{sRA}, s{sRA}, s{sT3}")
    k.e(f"s_lshl_b32 s{sP3T}, s{sT}, 3")
    k.e(f"s_add_u32 s{sP3T}, s{sP3T}, s{sT3}")
    k.e(f"s_and_b32 s{sCT}, s{sT2}, 3")
    div6(k, sUQ, sHead, sT)
    k.e(f"s_add_u32 s{sT}, s{sHead}, 16"); div6(k, sUK, sT, sT2)
    k.e(f"s_add_u32 s{sT}, s{sHead}, 32"); div6(k, sUV, sT, sT2)
    k.e(f"s_lshl_b32 s{sTT}, s{sR}, 2")
    k.e(f"s_add_u32 s{sTT}, s{sTT}, s{sW}")
    k.e(f"s_lshl_b32 s{sTTA}, s{sRA}, 2")
    k.e(f"s_add_u32 s{sTTA}, s{sTTA}, s{sW}")
    k.e(f"v_and_b32 v{vt0}, 31, v{vLane}")
    k.e(f"v_lshrrev_b32 v{vt1}, 3, v{vt0}")
    k.e(f"v_mul_u32_u24 v{vt1}, 1040, v{vt1}")
    k.e(f"v_and_b32 v{vt2}, 7, v{vt0}")
    k.e(f"v_lshl_add_u32 v{vt1}, v{vt2}, 7, v{vt1}")
    k.e(f"v_add_u32 v{vt1}, s{sM0X}, v{vt1}")
    k.e(f"v_bfe_u32 v{vt2}, v{vLane}, 1, 1")
    k.e(f"v_lshlrev_b32 v{vt2}, 6, v{vt2}")
    k.e(f"v_lshrrev_b32 v{vt3}, 5, v{vLane}")
    k.e(f"v_lshlrev_b32 v{vt3}, 4, v{vt3}")
    k.e(f"v_add_u32 v{vt1}, v{vt1}, v{vt3}")
    for ks in range(4):
        k.e(f"v_xor_b32 v{vXr+ks}, {(ks >> 1) * 64}, v{vt2}")
        k.e(f"v_add_u32 v{vXr+ks}, {((2*ks) & 3) * 16}, v{vXr+ks}")
        k.e(f"v_add_u32 v{vXr+ks}, v{vXr+ks}, v{vt1}")
    k.e(f"v_lshrrev_b32 v{vt0}, 5, v{vLane}")
    k.e(f"v_lshlrev_b32 v{vt0}, 3, v{vt0}")
    k.e(f"v_bfe_u32 v{vt1}, v{vLane}, 2, 2")
    k.e(f"v_add_u32 v{vt0}, v{vt0}, v{vt1}")
    k.e(f"v_lshlrev_b32 v{vt0}, 9, v{vt0}")
    k.e(f"v_add_u32 v{vt0}, {WBASE}, v{vt0}")
    k.e(f"v_lshlrev_b32 v{vt1}, 6, v{vt1}")
    k.e(f"v_bfe_u32 v{vt2}, v{vLane}, 4, 1")
    k.e(f"v_lshl_add_u32 v{vt1}, v{vt2}, 5, v{vt1}")
    k.e(f"v_and_b32 v{vt2}, 3, v{vLane}")
    k.e(f"v_lshl_add_u32 v{vt1}, v{vt2}, 3, v{vt1}")
    k.e(f"v_add_u32 v{vt1}, s{sOffU}, v{vt1}")
    for i in range(6):
        k.e(f"v_add_u32 v{vt2}, {56*i}, v{vt1}")
        k.e(f"v_and_b32 v{vt2}, 511, v{vt2}")
        k.e(f"v_add_u32 v{vWr+i}, v{vt2}, v{vt0}")
        k.e(f"v_add_u32 v{vWr+6+i}, 65536, v{vWr+i}")
    for f in dma_list(1)[:6]: pass
    k.e(f"v_and_b32 v{vt0}, 31, v{vLane}")
    k.e(f"v_mul_u32_u24 v{vt1}, 72, v{vt0}")
    k.e(f"v_lshrrev_b32 v{vt2}, 5, v{vLane}")
    k.e(f"v_lshl_add_u32 v{vt1}, v{vt2}, 3, v{vt1}")
    k.e(f"s_lshl_b32 s{sT}, s{sW}, 14")
    k.e(f"v_add_u32 v{vVw}, s{sT}, v{vt1}")
    k.e(f"v_lshlrev_b32 v{vt1}, 2, v{vt2}")
    k.e(f"v_bfe_u32 v{vt3}, v{vLane}, 2, 2")
    k.e(f"v_add_u32 v{vt1}, v{vt1}, v{vt3}")
    k.e(f"v_mul_u32_u24 v{vt1}, 72, v{vt1}")
    k.e(f"v_bfe_u32 v{vt3}, v{vLane}, 4, 1")
    k.e(f"v_lshl_add_u32 v{vt1}, v{vt3}, 5, v{vt1}")
    k.e(f"v_and_b32 v{vt3}, 3, v{vLane}")
    k.e(f"v_lshl_add_u32 v{vt1}, v{vt3}, 3, v{vt1}")
    k.e(f"v_add_u32 v{vVr}, s{sT}, v{vt1}")
    k.e(f"v_cmp_eq_u32 vcc, 28, v{vt0}")
    k.e(f"v_mov_b32 v{vt1}, 0x3f803f80")
    k.e(f"v_cmp_le_u32_e64 s[{sVmask}:{sVmask+1}], 28, v{vt0}")
    k.e(f"v_cndmask_b32_e64 v{vVpad}, 0, v{vt1}, vcc")
    k.e(f"v_lshrrev_b32 v{vt0}, 4, v{vLane}")
    k.e(f"v_bfe_u32 v{vt1}, v{vLane}, 2, 2")
    k.e(f"v_sub_u32 v{vt1}, v{vt1}, v{vt0}")
    k.e(f"v_and_b32 v{vt1}, 3, v{vt1}")
    k.e(f"v_lshlrev_b32 v{vt1}, 6, v{vt1}")
    k.e(f"v_and_b32 v{vt2}, 3, v{vLane}")
    k.e(f"v_lshl_add_u32 v{vt1}, v{vt2}, 4, v{vt1}")
    k.e(f"v_mul_u32_u24 v{vt0}, 896, v{vt0}")
    k.e(f"v_add_u32 v{vWoD}, v{vt0}, v{vt1}")
    sQs = sMk + 2
    k.e(f"s_mov_b32 s{sQs}, {f2u(QSCALE):#x}")
    for f in dma_list(1): f()

    def rd_list(g, ks):
        slot = g % 3; par = ks % 2
        L = [f"ds_read_b128 v[{vXf+4*par}:{vXf+4*par+3}], v{vXr+ks} offset:{slot*XSLOT}"]
        for i in range(6):
            areg = vWr + i + (6 if slot == 2 else 0)
            base = (slot if slot < 2 else 0) * WSLOT + ks * 8192
            d = vWf + 24 * par + 4 * i
            L.append(f"ds_read_b64_tr_b16 v[{d}:{d+1}], v{areg} offset:{base}")
            L.append(f"ds_read_b64_tr_b16 v[{d+2}:{d+3}], v{areg} offset:{base+2048}")
        return L
    def mf_list(g, ks):
        first = (g == 0 and ks == 0); par = ks % 2
        xf = vr(vXf + 4 * par, 4)
        return [f"v_mfma_f32_32x32x16_bf16 {vr(acc[i],16)}, {vr(vWf+24*par+4*i,4)}, {xf}, {'0' if first else vr(acc[i],16)}" for i in range(6)]
    def interleave(mf, rds, tok_need, extra):
        k.wait(lg=tok_need)
        t = None; ri = 0
        for i, m in enumerate(mf):
            k.e(m)
            n = (len(rds) - ri + (len(mf) - i) - 1) // (len(mf) - i)
            for _ in range(n):
                t = k.lg(rds[ri]); ri += 1
            if extra and i % 2 == 1: extra.pop(0)()
        return t
    pend = None; nonce_tok = None
    for g in range(7):
        k.c(f"---- chunk {g}")
        k.wait(vm=dma_tok[g])
        k.wait_all(vm=False, lg=True)
        k.e("s_barrier")
        if g in (0, 1, 6): stamp(k, f"bar{g}")
        ex = dma_list(g + 2) if g + 2 < 7 else []
        r0 = rd_list(g, 0)
        if pend is None:
            for r_ in r0: tok = k.lg(r_)
            for _ in range(3): ex.pop(0)()
        else:
            tok = interleave(mf_list(*pend), r0, None, ex)
        if g == 5:
            k.e(f"v_mov_b32 v{vt0}, 0")
            k.e(f"global_load_dword v{vt3}, v{vt0}, s[18:19] sc1")
            k.vm_n += 1; nonce_tok = k.vm_n
        for ks in range(3):
            tok = interleave(mf_list(g, ks), rd_list(g, ks + 1), tok, ex)
        assert not ex
        pend = (g, 3)
        ptok = tok
    k.wait(lg=ptok)
    for m in mf_list(*pend): k.e(m)
    Ln = k.newlabel("n"); Lnd = k.newlabel("nd")
    k.wait(vm=nonce_tok)
    k.e(f"v_readfirstlane_b32 s{sNonce}, v{vt3}")
    k.e(f"s_mov_b32 s{sSpin}, 0")
    k.e(f"s_cmp_lg_u32 s{sNonce}, 0")
    k.e(f"s_cbranch_scc1 {Lnd}")
    k.label(Ln)
    k.e(f"global_load_dword v{vt3}, v{vt0}, s[18:19] sc1")
    k.e(f"s_add_u32 s{sSpin}, s{sSpin}, 1")
    k.e(f"s_waitcnt vmcnt(0)")
    k.e(f"v_readfirstlane_b32 s{sNonce}, v{vt3}")
    k.e(f"s_cmp_gt_u32 s{sSpin}, {SPIN_MAX}")
    k.e(f"s_cbranch_scc1 {Lnd}")
    k.e(f"s_cmp_eq_u32 s{sNonce}, 0")
    k.e(f"s_cbranch_scc1 {Ln}")
    k.label(Lnd)
    stamp(k, "mfma done")
    k.e("s_barrier")
    dsts = [0, 1, 3, 22, 23, 101]
    VAR = {"QQQQQQ": (0, 1), "QQQQKK": (2,), "KKKKKK": (3, 4), "KKVVVV": (5,), "VVVVVV": (6, 7)}
    Lend = k.newlabel("epi_end")
    labels = {v: k.newlabel("epi" + v[0] + v[-1]) for v in VAR}
    def offs(i, kind):
        k.e(f"s_mul_i32 s{sT}, s{sU}, 6")
        k.e(f"s_add_u32 s{sT}, s{sT}, {i}")
        k.e(f"s_and_b32 s{sT}, s{sT}, 15")
        k.e(f"s_lshl_b32 s{sT}, s{sT}, 6")
        k.e(f"s_add_u32 s{sT}, s{sT}, s{sTT}")
        dst = dsts[i]
        if kind == "Q":
            k.e(f"s_lshl_b32 s{dst}, s{sT}, 11")
            k.e(f"s_lshl_b32 s{sT2}, s{sBeta}, 21")
            k.e(f"s_add_u32 s{dst}, s{dst}, s{sT2}")
            k.e(f"s_add_u32 s{dst}, s{dst}, {Q_OFF['B']}")
        else:
            k.e(f"s_lshl_b32 s{dst}, s{sT}, 12")
            k.e(f"s_lshl_b32 s{sT2}, s{sBeta}, 22")
            k.e(f"s_add_u32 s{dst}, s{dst}, s{sT2}")
            if kind == "V": k.e(f"s_add_u32 s{dst}, s{dst}, 2048")
    k.e(f"s_cmp_lt_u32 s{sU}, 2"); k.e(f"s_cbranch_scc1 {labels['QQQQQQ']}")
    k.e(f"s_cmp_eq_u32 s{sU}, 2"); k.e(f"s_cbranch_scc1 {labels['QQQQKK']}")
    k.e(f"s_cmp_lt_u32 s{sU}, 5"); k.e(f"s_cbranch_scc1 {labels['KKKKKK']}")
    k.e(f"s_cmp_eq_u32 s{sU}, 5"); k.e(f"s_cbranch_scc1 {labels['KKVVVV']}")
    for var in ("VVVVVV", "KKVVVV", "KKKKKK", "QQQQKK", "QQQQQQ"):
        if var != "VVVVVV": k.label(labels[var])
        k.nop(4)
        for i in range(6):
            if var[i] == "V":
                F = vF + 8 * i
                for j in range(8): k.e(f"v_cvt_pk_bf16_f32 v{F+j}, v{acc[i]+2*j}, v{acc[i]+2*j+1}")
                for g in range(4): k.e(f"ds_write_b64 v{vVw}, v[{F+2*g}:{F+2*g+1}] offset:{i*2304 + 16*g}")
        for i in range(6):
            F = vF + 8 * i
            if var[i] == "Q":
                for j in range(0, 16, 2):
                    k.e(f"v_pk_mul_f32 v[{acc[i]+j}:{acc[i]+j+1}], v[{acc[i]+j}:{acc[i]+j+1}], s[{sQs}:{sQs+1}] op_sel_hi:[1,0]")
            if var[i] in "QK":
                for j in range(8): k.e(f"v_cvt_pk_bf16_f32 v{F+j}, v{acc[i]+2*j}, v{acc[i]+2*j+1}")
                k.e("s_mov_b32 exec_lo, 0")
                k.e(f"v_mov_b32 v{F+6}, {'0' if var[i] == 'Q' else '0x3f803f80'}")
                k.e(f"v_mov_b32 v{F+7}, {'0' if var[i] == 'Q' else '0x00003f80'}")
                k.e("s_mov_b32 exec_lo, -1")
        if "V" in var:
            k.e("s_waitcnt lgkmcnt(0)")
            for i in range(6):
                if var[i] == "V":
                    F = vF + 8 * i
                    for kk in range(2):
                        k.e(f"ds_read_b64_tr_b16 v[{F+4*kk}:{F+4*kk+1}], v{vVr} offset:{i*2304 + (16*kk)*72}")
                        k.e(f"ds_read_b64_tr_b16 v[{F+4*kk+2}:{F+4*kk+3}], v{vVr} offset:{i*2304 + (16*kk+8)*72}")
        for i in range(6): offs(i, var[i])
        if "V" in var:
            k.e("s_waitcnt lgkmcnt(0)")
            for i in range(6):
                if var[i] == "V":
                    F = vF + 8 * i
                    for j in range(8): k.e(f"v_cndmask_b32_e64 v{F+j}, v{F+j}, v{vVpad}, s[{sVmask}:{sVmask+1}]")
        if var != "QQQQQQ": k.e(f"s_branch {Lend}")
    k.label(Lend)
    k.lg_done = k.lg_n
    sSel = sMk + 3
    def p1_stores(beta_sel):
        res = {}
        def mk(i, h):
            def f():
                if h == 0:
                    k.e(f"s_cmp_eq_u32 s{sBeta}, {beta_sel}")
                    k.e(f"s_cselect_b32 s{sSel}, s{dsts[i]}, {WS_BYTES}")
                F = vF + 8 * i + 4 * h
                res["last"] = k.vm(f"buffer_store_dwordx4 v[{F}:{F+3}], v{vSt}, {WS}, s{sSel} offen offset:{1024*h} sc1")
            return f
        order = [5, 4, 3, 2, 1, 0]
        return [mk(i, h) for i in order for h in range(2)], res
    def p1flag(beta_sel):
        k.e(f"s_lshl_b32 s{sT}, s{sBeta}, 6")
        k.e(f"s_add_u32 s{sT}, s{sT}, s{sTT}")
        k.e(f"s_lshl_b32 s{sT}, s{sT}, 3")
        k.e(f"s_add_u32 s{sT}, s{sT}, s{sU}")
        k.e(f"s_lshl_b32 s{sT}, s{sT}, 7")
        k.e(f"s_add_u32 s{sT}, s{sT}, {FP1_OFF}")
        k.e(f"s_cmp_eq_u32 s{sBeta}, {beta_sel}")
        k.e(f"s_cselect_b32 s{sSel}, s{sT}, {WS_BYTES}")
        store_flag(k, vt0, vt1, sSel)
    stoE, resE = p1_stores(0)
    for f in stoE: f()
    stamp(k, "epilogue+early stores")
    k.e("s_barrier")
    def wo_rows(srdn, row0, nrows_per_wave, lds_row0=None):
        n = nrows_per_wave // 4
        def one(j):
            def f():
                if j == 0:
                    k.e(f"s_lshl_b32 s{sMk}, s{sCT}, 8")
                    k.e(f"s_mul_i32 s{sMk+1}, s{sW}, {nrows_per_wave*896}")
                    k.e(f"s_add_u32 s{sMk}, s{sMk}, s{sMk+1}")
                    k.e(f"s_add_u32 s{sMk}, s{sMk}, {row0*896}")
                    k.e(f"s_mul_i32 s{sMk+1}, s{sW}, {nrows_per_wave*256}")
                    k.e(f"s_add_u32 s{sMk+1}, s{sMk+1}, {row0*256}")
                k.e(f"s_add_u32 m0, s{sMk+1}, {1024*j}")
                k.e(f"s_add_u32 s{sMk+4}, s{sMk}, {4*896*j}")
                return k.vm(f"buffer_load_dwordx4 v{vWoD}, s[{srdn}:{srdn+3}], s{sMk+4} offen lds")
            return f
        return [one(j) for j in range(n)]
    vDiag = 240; vEdge = 192
    woB = wo_rows(SRD_WOB, 0, 112)
    for f in woB: wo_tok = f()
    k.e(f"v_and_b32 v{vt0}, 15, v{vLane}")
    k.e(f"s_lshl_b32 s{sT}, s{sW}, 4")
    k.e(f"v_add_u32 v{vt0}, s{sT}, v{vt0}")
    k.e(f"v_cmp_gt_u32 vcc, 16, v{vLane}")
    k.e(f"v_mov_b32 v{vt1}, s{sUV}")
    k.e(f"v_mov_b32 v{vt2}, s{sUK}")
    k.e(f"v_cndmask_b32 v{vt1}, v{vt1}, v{vt2}, vcc")
    k.e(f"v_cmp_le_u32 vcc, 32, v{vLane}")
    k.e(f"s_lshl_b32 s{sT}, s{sRA}, 2")
    k.e(f"v_and_b32 v{vt2}, 3, v{vLane}")
    k.e(f"v_add_u32 v{vt2}, s{sT}, v{vt2}")
    k.e(f"v_mov_b32 v{vt3}, s{sUQ}")
    k.e(f"v_cndmask_b32 v{vt0}, v{vt0}, v{vt2}, vcc")
    k.e(f"v_cndmask_b32 v{vt1}, v{vt1}, v{vt3}, vcc")
    k.e(f"v_lshl_add_u32 v{vt0}, v{vt0}, 3, v{vt1}")
    k.e(f"v_lshlrev_b32 v{vFlB}, 7, v{vt0}")
    k.e(f"v_add_u32 v{vFlB}, {FP1_OFF}, v{vFlB}")
    k.e(f"v_cmp_gt_u32 vcc, 9, v{vLane}")
    k.e(f"v_subrev_u32 v{vt0}, 9, v{vLane}")
    k.e(f"v_mov_b32 v{vt1}, s{sUV}")
    k.e(f"v_cndmask_b32 v{vt0}, v{vt0}, v{vLane}, vcc")
    k.e(f"v_mov_b32 v{vt2}, s{sUK}")
    k.e(f"v_cndmask_b32 v{vt1}, v{vt1}, v{vt2}, vcc")
    k.e(f"s_sub_u32 s{sT}, s{sTTA}, 8")
    k.e(f"v_add_u32 v{vt0}, s{sT}, v{vt0}")
    k.e(f"v_max_i32 v{vt0}, 0, v{vt0}")
    k.e(f"v_cmp_eq_u32 vcc, 18, v{vLane}")
    k.e(f"v_mov_b32 v{vt2}, s{sTTA}")
    k.e(f"v_mov_b32 v{vt3}, s{sUQ}")
    k.e(f"v_cndmask_b32 v{vt0}, v{vt0}, v{vt2}, vcc")
    k.e(f"v_cndmask_b32 v{vt1}, v{vt1}, v{vt3}, vcc")
    k.e(f"v_add_u32 v{vt0}, 64, v{vt0}")
    k.e(f"v_lshl_add_u32 v{vt0}, v{vt0}, 3, v{vt1}")
    k.e(f"v_lshlrev_b32 v{vFlA}, 7, v{vt0}")
    k.e(f"v_add_u32 v{vFlA}, {FP1_OFF}, v{vFlA}")
    k.e(f"s_lshl_b32 s{sKVB}, s{sHead}, 18")
    k.e(f"s_lshl_b32 s{sT}, s{sW}, 16")
    k.e(f"s_add_u32 s{sKVB}, s{sKVB}, s{sT}")
    k.e(f"s_and_b32 s{sRot}, s{sRA}, 7")
    k.e(f"s_lshl_b32 s{sRot}, s{sRot}, 1")
    k.e(f"v_and_b32 v{vt0}, 31, v{vLane}")
    k.e(f"v_lshrrev_b32 v{vt1}, 5, v{vLane}")
    k.e(f"v_lshlrev_b32 v{vt1}, 2, v{vt1}")
    k.e(f"v_sub_u32 v{vt0}, v{vt0}, v{vt1}")
    k.e(f"v_mov_b32 v{vt1}, {f2u(NEGBIG):#x}")
    for i in range(16):
        b = 8 * (i // 4) + (i % 4)
        k.e(f"v_cmp_le_i32 vcc, {b}, v{vt0}")
        k.nop(2)
        k.e(f"v_cndmask_b32_e64 v{vDiag+i}, v{vt1}, 0, vcc")
    k.wait(vm=resE["last"])
    p1flag(0)
    stamp(k, "flagB stored")
    poll_flags(k, vFlB, vFlBr, 0xfffffffff, "pb")
    stamp(k, "B flags")
    vRed, vRedR, vQA, vOf, vO01, vQ, vS, vP, vO23 = 16, 17, 20, 28, 36, 68, 100, 132, 148
    vTmp = vS
    def vOd(d): return (vO01 + 16 * d) if d < 2 else (vO23 + 16 * (d - 2))
    qtok = {}; ktok = {}; vtok = {}
    sTq = [0, 98, 99]
    def tile_items(i):
        def f(j):
            def g_():
                if j == 0:
                    k.e(f"s_add_u32 s{sT}, s{sRot}, {i}")
                    k.e(f"s_and_b32 s{sT}, s{sT}, 15")
                    k.e(f"s_lshl_b32 s{sT}, s{sT}, 12")
                    k.e(f"s_add_u32 s{sTq[1]}, s{sT}, s{sKVB}")
                t = k.vm(f"buffer_load_dwordx4 a[{16*i+4*j}:{16*i+4*j+3}], v{vSt}, {WS}, s{sTq[1]} offen offset:{1024*j} sc1")
                if j == 1: ktok[i] = t
                if j == 3: vtok[i] = t
            return g_
        return [f(j) for j in range(4)]
    def q_items(d):
        def f(j):
            def g_():
                if j == 0:
                    k.e(f"s_add_u32 s{sT}, s{sW}, {d}")
                    k.e(f"s_and_b32 s{sT}, s{sT}, 3")
                    k.e(f"s_lshl_b32 s{sT2}, s{sRA}, 2")
                    k.e(f"s_add_u32 s{sT}, s{sT}, s{sT2}")
                    k.e(f"s_lshl_b32 s{sT2}, s{sHead}, 6")
                    k.e(f"s_add_u32 s{sT}, s{sT}, s{sT2}")
                    k.e(f"s_lshl_b32 s{sTq[1]}, s{sT}, 11")
                    k.e(f"s_add_u32 s{sTq[1]}, s{sTq[1]}, {Q_OFF['B']}")
                t = k.vm(f"buffer_load_dwordx4 v[{vQ+8*d+4*j}:{vQ+8*d+4*j+3}], v{vSt}, {WS}, s{sTq[1]} offen offset:{1024*j} sc1")
                if j == 1: qtok[d] = t
            return g_
        return [f(0), f(1)]
    for f in q_items(0) + tile_items(0)[:2] + q_items(1) + q_items(2) + q_items(3): f()
    k.e(f"s_add_u32 s{sT}, s{sRot}, 0"); k.e(f"s_and_b32 s{sT}, s{sT}, 15"); k.e(f"s_lshl_b32 s{sT}, s{sT}, 12"); k.e(f"s_add_u32 s{sTq[1]}, s{sT}, s{sKVB}")
    for f in tile_items(0)[2:] + tile_items(1) + tile_items(2): f()
    k.wait(vm=max(ktok[0], qtok[0]))
    mfma(k, vr(vS, 16), ar(0, 4), vr(vQ, 4), "0")
    mfma(k, vr(vS, 16), ar(4, 4), vr(vQ + 4, 4), vr(vS, 16))
    k.e(f"s_lshl_b32 s{sT}, s{sW}, 9")
    k.e(f"v_lshlrev_b32 v{vt2}, 3, v{vLane}")
    k.e(f"v_add_u32 v{vRed}, s{sT}, v{vt2}")
    k.e(f"v_add_u32 v{vRed}, {SCR}, v{vRed}")
    k.nop(8)
    colmax(k, vS, vt3, vt0)
    k.e(f"v_add_f32 v{vt3}, {f2u(MARGIN):#x}, v{vt3}")
    shift_dwords(k, vt3, vOf, vOf + 1, vt1)
    k.lg(f"ds_write_b64 v{vRed}, v[{vOf}:{vOf+1}]")
    k.wait(vm=qtok[3])
    k.wait_all(vm=False)
    k.e("s_barrier")
    k.e("s_mov_b32 exec_lo, 0")
    for d in range(4):
        k.e(f"s_add_u32 s{sT}, s{sW}, {d}")
        k.e(f"s_and_b32 s{sT}, s{sT}, 3")
        k.e(f"s_lshl_b32 s{sT}, s{sT}, 9")
        k.e(f"s_add_u32 s{sT}, s{sT}, {SCR}")
        k.e(f"v_add_u32 v{vt3}, s{sT}, v{vt2}")
        k.lg(f"ds_read_b64 v[{vQ+8*d+6}:{vQ+8*d+7}], v{vt3}")
    k.e("s_mov_b32 exec_lo, -1")
    k.wait_all(vm=False)
    stamp(k, "B standin")
    ops = []
    for i in range(16):
        for d in (1, 2, 3, 0):
            ops.append(dict(K=(ar(16*i, 4), ar(16*i+4, 4)), V=(ar(16*i+8, 4), ar(16*i+12, 4)),
                            Q=(vr(vQ+8*d, 4), vr(vQ+8*d+4, 4)), O=vr(vOd(d), 16), C="0", first=(i == 0),
                            wK=(lambda i=i: ktok[i]), wV=(lambda i=i: vtok[i])))
    kt = {}; vt = {}; st = {}
    def a_items(j):
        def f(q):
            def g_():
                if q == 0:
                    k.e(f"s_add_i32 s{sT2}, s{sTTA}, {j-8}")
                    k.e(f"s_lshl_b32 s{sTq[2]}, s{sT2}, 12")
                    k.e(f"s_add_u32 s{sTq[2]}, s{sTq[2]}, s{sKV}")
                    k.e(f"s_cmp_lt_i32 s{sT2}, 0")
                    k.e(f"s_cselect_b32 s{sTq[2]}, {WS_BYTES}, s{sTq[2]}")
                t = k.vm(f"buffer_load_dwordx4 a[{16*j+4*q}:{16*j+4*q+3}], v{vSt}, {WS}, s{sTq[2]} offen offset:{1024*q} sc1")
                if q == 1: kt[j] = t
                if q == 3: vt[j] = t
            return g_
        return [f(q) for q in range(4)]
    strB = []
    for i in range(3, 16):
        for q, f in enumerate(tile_items(i)): strB.append((4 * (i - 3) + q, f))
    stoL, resL = p1_stores(1)
    strA = []
    for j in (8, 0, 1, 2, 3, 4, 5, 6, 7):
        for q, f in enumerate(a_items(j)): strA.append((max(37, 4 * j + 5), f))
    def hookB(n, g):
        if n < 0: return
        if g == 0 and strB and strB[0][0] <= n: strB.pop(0)[1]()
        if g == 2 and stoL: stoL.pop(0)()
        elif g in (2, 3) and strA and strA[0][0] <= n: strA.pop(0)[1]()
        if g == 1 and n == 20:
            k.wait(vm=resL["last"])
            p1flag(1)
        if g == 1 and n == 30:
            st["pA"] = async_poll_issue(k, vFlA, vFlAr, 0x7ffff)
        if g == 1 and n == 35:
            async_poll_check(k, st["pA"], vFlA, vFlAr, 0x7ffff, "pa")
            k.e(f"s_lshl_b32 s{sKV}, s{sHead}, 18")
            k.e(f"s_add_u32 s{sKV}, s{sKV}, {KV_OFF['A']}")
            k.e(f"s_lshl_b32 s{sT2}, s{sHead}, 6")
            k.e(f"s_add_u32 s{sT2}, s{sT2}, s{sTTA}")
            k.e(f"s_lshl_b32 s{sQo}, s{sT2}, 11")
            k.e(f"s_add_u32 s{sQo}, s{sQo}, {Q_OFF['A']}")
            k.vm(f"buffer_load_dwordx4 v[{vQA}:{vQA+3}], v{vSt}, {WS}, s{sQo} offen sc1")
            st["qa"] = k.vm(f"buffer_load_dwordx4 v[{vQA+4}:{vQA+7}], v{vSt}, {WS}, s{sQo} offen offset:1024 sc1")
    attn_pipeline(k, ops, vS, vP, hookB)
    assert not strB and not strA and not stoL, (len(strB), len(strA), len(stoL))
    stamp(k, "attn B done")
    k.nop(12)
    for d in (1, 2, 3):
        k.e(f"s_add_u32 s{sT}, s{sW}, {d}")
        k.e(f"s_and_b32 s{sT}, s{sT}, 3")
        k.e(f"s_mul_i32 s{sT}, s{sT}, {3*4096}")
        k.e(f"s_add_u32 s{sT}, s{sT}, {SCR + (d-1)*4096}")
        k.e(f"v_add_u32 v{vRed}, s{sT}, v{vSt}")
        for i in range(4):
            k.lg(f"ds_write_b128 v{vRed}, v[{vOd(d)+4*i}:{vOd(d)+4*i+3}] offset:{1024*i}")
    k.e(f"s_mul_i32 s{sT}, s{sW}, {3*4096}")
    k.e(f"s_add_u32 s{sT}, s{sT}, {SCR}")
    k.e(f"v_add_u32 v{vRedR}, s{sT}, v{vSt}")
    k.e(f"v_mov_b32 v{vt1}, {f2u(NEGBIG):#x}")
    for i in range(16): k.e(f"v_sub_f32 v{vEdge+i}, v{vt1}, v{vDiag+i}")
    k.wait_all(vm=False)
    k.e("s_barrier")
    for j in range(3):
        for i in range(4):
            k.lg(f"ds_read_b128 v[{vTmp+16*j+4*i}:{vTmp+16*j+4*i+3}], v{vRedR} offset:{4096*j+1024*i}")
    vS2 = 208
    k.wait(vm=max(kt[8], st["qa"]))
    mfma(k, vr(vS2, 16), ar(128, 4), vr(vQA, 4), vr(vDiag, 16))
    mfma(k, vr(vS2, 16), ar(132, 4), vr(vQA + 4, 4), vr(vS2, 16))
    k.wait_all(vm=False)
    for j in range(3):
        for i in range(0, 16, 2):
            k.e(f"v_pk_add_f32 v[{vOd(0)+i}:{vOd(0)+i+1}], v[{vOd(0)+i}:{vOd(0)+i+1}], v[{vTmp+16*j+i}:{vTmp+16*j+i+1}]")
    finalize_o(k, vOd(0), vt0, vt1, vOf)
    k.e(f"s_lshl_b32 s{sT}, s{sTTA}, 4")
    k.e(f"s_add_u32 s{sT}, s{sT}, s{sHead}")
    k.e(f"s_lshl_b32 s{sOo}, s{sT}, 11")
    k.e(f"s_add_u32 s{sOo}, s{sOo}, {O_OFF['B']}")
    k.vm(f"buffer_store_dwordx4 v[{vOf}:{vOf+3}], v{vSt}, {WS}, s{sOo} offen sc1")
    ob = k.vm(f"buffer_store_dwordx4 v[{vOf+4}:{vOf+7}], v{vSt}, {WS}, s{sOo} offen offset:1024 sc1")
    k.e(f"s_lshl_b32 s{sFOA}, s{sT}, 7")
    k.e(f"s_add_u32 s{sFOB}, s{sFOA}, {FO_OFF}")
    k.e(f"s_add_u32 s{sFOA}, s{sFOA}, {FO_OFF + 64*16*128}")
    stamp(k, "O(B) stored")
    colmax(k, vS2, vt3, vt0)
    k.e(f"v_add_f32 v{vt3}, {f2u(MARGIN):#x}, v{vt3}")
    shift_dwords(k, vt3, vt0, vt1, vt2)
    k.e("s_mov_b32 exec_lo, 0")
    k.e(f"v_mov_b32 v{vQA+6}, v{vt0}")
    k.e(f"v_mov_b32 v{vQA+7}, v{vt1}")
    k.e("s_mov_b32 exec_lo, -1")
    k.e(f"s_lshl_b32 s{sT}, s{sP3T}, 4")
    k.e(f"v_add_u32 v{vFlB}, s{sT}, v{vLane}")
    k.e(f"v_lshlrev_b32 v{vFlB}, 7, v{vFlB}")
    k.e(f"v_add_u32 v{vFlA}, {FO_OFF + 64*16*128}, v{vFlB}")
    k.e(f"v_add_u32 v{vFlB}, {FO_OFF}, v{vFlB}")
    opsA = []
    for j in range(9):
        C = vr(vEdge, 16) if j == 0 else vr(vDiag, 16) if j == 8 else "0"
        opsA.append(dict(K=(ar(16*j, 4), ar(16*j+4, 4)), V=(ar(16*j+8, 4), ar(16*j+12, 4)),
                         Q=(vr(vQA, 4), vr(vQA+4, 4)), O=vr(vOd(1), 16), C=C, first=(j == 0), wK=kt[j], wV=vt[j]))
    def hookA(n, g):
        if g == 0 and n == 5:
            k.wait(vm=ob)
            store_flag(k, vt0, vt1, sFOB)
    attn_pipeline(k, opsA, vS, vP, hookA)
    k.nop(12)
    finalize_o(k, vOd(1), vt0, vt1, vOf)
    k.e(f"s_lshl_b32 s{sT}, s{sTTA}, 4")
    k.e(f"s_add_u32 s{sT}, s{sT}, s{sHead}")
    k.e(f"s_lshl_b32 s{sOo}, s{sT}, 11")
    k.e(f"s_add_u32 s{sOo}, s{sOo}, {O_OFF['A']}")
    k.vm(f"buffer_store_dwordx4 v[{vOf}:{vOf+3}], v{vSt}, {WS}, s{sOo} offen sc1")
    oa = k.vm(f"buffer_store_dwordx4 v[{vOf+4}:{vOf+7}], v{vSt}, {WS}, s{sOo} offen offset:1024 sc1")
    stamp(k, "attn A done")

    R = V(36, 200)
    vWr3 = R.a(); vOr = R.a(); vOut = R.a(); vWr3b = R.a(); vWr3c = R.a()
    NB = 4
    vA = R.a(4 * NB, 4); vB = R.a(4 * NB, 4); vD = R.a(16, 4); vPk = R.a(8, 4)
    k.e(f"v_lshrrev_b32 v{vt0}, 5, v{vLane}")
    k.e(f"v_lshlrev_b32 v{vt0}, 2, v{vt0}")
    k.e(f"v_bfe_u32 v{vt1}, v{vLane}, 2, 2")
    k.e(f"v_add_u32 v{vt0}, v{vt0}, v{vt1}")
    k.e(f"v_add_u32 v{vt2}, s{sW}, v{vt1}")
    k.e(f"v_and_b32 v{vt2}, 3, v{vt2}")
    k.e(f"v_lshlrev_b32 v{vt0}, 8, v{vt0}")
    k.e(f"v_lshl_add_u32 v{vt0}, v{vt2}, 6, v{vt0}")
    k.e(f"v_bfe_u32 v{vt1}, v{vLane}, 4, 1")
    k.e(f"v_lshl_add_u32 v{vt0}, v{vt1}, 5, v{vt0}")
    k.e(f"v_and_b32 v{vt1}, 3, v{vLane}")
    k.e(f"v_lshl_add_u32 v{vWr3}, v{vt1}, 3, v{vt0}")
    k.e(f"v_add_u32 v{vWr3b}, 57344, v{vWr3}")
    k.e(f"v_lshrrev_b32 v{vt0}, 5, v{vLane}")
    k.e(f"v_lshlrev_b32 v{vt0}, 10, v{vt0}")
    k.e(f"v_sub_u32 v{vWr3c}, v{vWr3b}, v{vt0}")
    k.e(f"v_add_u32 v{vOr}, {SCR}, v{vSt}")
    k.e(f"v_and_b32 v{vt0}, 31, v{vLane}")
    k.e(f"v_mul_u32_u24 v{vt0}, 1792, v{vt0}")
    k.e(f"v_lshrrev_b32 v{vt1}, 5, v{vLane}")
    k.e(f"v_lshl_add_u32 v{vOut}, v{vt1}, 4, v{vt0}")
    k.wait(vm=oa)
    store_flag(k, vt0, vt1, sFOA)
    woA_tok = {}
    for bi, b in enumerate("BA"):
        k.c(f"---- P3 {b}")
        poll_flags(k, vFlB if b == "B" else vFlA, vt0, 0xffff, "po")
        stamp(k, f"P3{b} flags")
        k.e("s_barrier")
        k.e(f"s_lshl_b32 s{sOo}, s{sP3T}, 15")
        k.e(f"s_add_u32 s{sOo}, s{sOo}, {O_OFF[b]}")
        k.e(f"s_lshl_b32 s{sT}, s{sW}, 13")
        k.e(f"s_add_u32 s{sOo}, s{sOo}, s{sT}")
        k.e(f"s_add_u32 s{sT2}, s{sT}, {SCR}")
        for j in range(8):
            if j % 4 == 0:
                k.e(f"s_add_u32 m0, s{sT2}, {1024*j}")
                k.e(f"s_add_u32 s{sT}, s{sOo}, {1024*j}")
            k.vm(f"buffer_load_dwordx4 v{vSt}, {WS}, s{sT} offen offset:{1024*(j%4)} sc1 lds")
        k.wait_all()
        k.e("s_barrier")
        stamp(k, f"P3{b} data")
        def rd(step):
            hd, kk = step // 2, step % 2
            par = step % NB
            row = 28 * hd + 16 * kk
            row2 = row + 8
            def addr(rw):
                if rw >= 224: return vWr3b, (rw - 224) * 256
                return vWr3, rw * 256
            a1, o1 = addr(row); a2, o2 = addr(row2)
            if hd == 15 and kk == 1: a2 = vWr3c
            k.lg(f"ds_read_b64_tr_b16 v[{vA+4*par}:{vA+4*par+1}], v{a1} offset:{o1}")
            k.lg(f"ds_read_b64_tr_b16 v[{vA+4*par+2}:{vA+4*par+3}], v{a2} offset:{o2}")
            return k.lg(f"ds_read_b128 v[{vB+4*par}:{vB+4*par+3}], v{vOr} offset:{step*1024}")
        toks = {}
        for s_ in range(NB - 1): toks[s_] = rd(s_)
        pendA = []
        for step in range(32):
            k.wait(lg=toks[step])
            par = step % NB
            mfma(k, vr(vD, 16), vr(vA + 4 * par, 4), vr(vB + 4 * par, 4), "0" if step == 0 else vr(vD, 16))
            if step + NB - 1 < 32: toks[step + NB - 1] = rd(step + NB - 1)
            if b == "B":
                if step % 8 == 7 and step < 31:
                    k.e("s_barrier")
                    pendA += wo_rows(SRD_WOA, 112 * (step // 8), 28)
                if pendA: pendA.pop(0)()
        if b == "B":
            k.e("s_barrier")
            while pendA: pendA.pop(0)()
            for f in wo_rows(SRD_WOA, 336, 28): f()
        k.nop(12)
        for i in range(8): k.e(f"v_cvt_pk_bf16_f32 v{vPk+i}, v{vD+2*i}, v{vD+2*i+1}")
        k.nop(2)
        k.e(f"v_permlane32_swap_b32 v{vPk}, v{vPk+2}")
        k.e(f"v_permlane32_swap_b32 v{vPk+1}, v{vPk+3}")
        k.e(f"v_permlane32_swap_b32 v{vPk+4}, v{vPk+6}")
        k.e(f"v_permlane32_swap_b32 v{vPk+5}, v{vPk+7}")
        k.e(f"s_lshl_b32 s{sT2}, s{sCT}, 2")
        k.e(f"s_add_u32 s{sT2}, s{sT2}, s{sW}")
        k.e(f"s_mul_i32 s{sOo}, s{sP3T}, {32*1792}")
        k.e(f"s_lshl_b32 s{sT}, s{sT2}, 6")
        k.e(f"s_add_u32 s{sOo}, s{sOo}, s{sT}")
        if b == "B": k.e(f"s_add_u32 s{sOo}, s{sOo}, 896")
        k.e(f"s_cmp_ge_u32 s{sT2}, 14")
        k.e(f"s_cselect_b32 s{sOo}, {OUT_BYTES}, s{sOo}")
        k.vm(f"buffer_store_dwordx4 v[{vPk}:{vPk+3}], v{vOut}, s[{SRD_OUT}:{SRD_OUT+3}], s{sOo} offen")
        k.vm(f"buffer_store_dwordx4 v[{vPk+4}:{vPk+7}], v{vOut}, s[{SRD_OUT}:{SRD_OUT+3}], s{sOo} offen offset:32")
        stamp(k, f"P3{b} done")
    stamp(k, "rt", True)
    stamp_flush(k, vt0, vt1)
    k.label("L_end")
    k.e("s_endpgm")
    return k

HEADER = open("cdna_kernels/" + NAME + ".s.ref").read().split("; Override")[0]

def main(out):
    k = gen()
    pr = check(k.L, "fused")
    for p in pr: print(p)
    print("instrs", len(k.L), "stamps", St.n, St.names)
    s = HEADER
    s += "; @launch grid=(256,1,1) block=(256,1,1) lds=163840\n"
    s += '.amdgcn_target "amdgcn-amd-amdhsa--gfx950"\n.text\n'
    s += f".globl {KNAME}\n.p2align 8\n.type {KNAME},@function\n{KNAME}:\n" + k.text()
    s += f""".section .rodata,"a"
.p2align 6
.amdhsa_kernel {KNAME}
  .amdhsa_next_free_vgpr 512
  .amdhsa_next_free_sgpr 102
  .amdhsa_accum_offset 256
  .amdhsa_group_segment_fixed_size 0
  .amdhsa_kernarg_size 72
  .amdhsa_user_sgpr_count 2
  .amdhsa_user_sgpr_kernarg_segment_ptr 1
  .amdhsa_system_sgpr_workgroup_id_x 1
.end_amdhsa_kernel
"""
    open(out, "w").write(s)

if __name__ == "__main__":
    main(sys.argv[1] if len(sys.argv) > 1 else "f3.s")
```

```python
import sys, math, struct, os
sys.path.insert(0, "gen")
from asmlib import Emit, check

NAME = "concat_heads__sliding_block__softmax_full_mha__prompt"
KNAME = NAME + "_kernel"
def f2u(x): return struct.unpack("<I", struct.pack("<f", x))[0]

KV_OFF = {"B": 0, "A": 4 << 20}
O_OFF = {"B": 8 << 20, "A": 10 << 20}
Q_OFF = {"B": 12 << 20, "A": 14 << 20}
FP1_OFF = 16 << 20
FO_OFF = (16 << 20) + (256 << 10)
NONCE_OFF = (16 << 20) + (768 << 10)
STAMPS = 17 << 20
WS_BYTES = 18 << 20
X_BYTES = 2048 * 896
W_BYTES = 448 * 2688
WO_BYTES = 448 * 896
OUT_BYTES = 2048 * 1792
QSCALE = (28 ** -0.5) * math.log2(math.e)
MARGIN = 64.0
NEGBIG = -1.0e30
MAPB = os.environ.get('MAPB', '0') == '1'
STAMP = os.environ.get("STAMP", "0") in ("1", "2")
STAMPDBG = os.environ.get("STAMP", "0") == "2"
DBGWG = int(os.environ.get("DBGWG", "100"))
SKIP = set(os.environ.get("SKIP", "").split(","))
SPIN_MAX = 1 << 18
SCR = 114688

class V:
    def __init__(self, lo, hi): self.n = lo; self.hi = hi
    def a(self, cnt=1, al=1):
        self.n = (self.n + al - 1) // al * al
        r = self.n; self.n += cnt
        assert self.n <= self.hi, "out of regs"
        return r

def vr(b, n=1): return f"v{b}" if n == 1 else f"v[{b}:{b+n-1}]"
def ar(b, n=1): return f"a{b}" if n == 1 else f"a[{b}:{b+n-1}]"
def mfma(k, d, a, b, c): k.e(f"v_mfma_f32_32x32x16_bf16 {d}, {a}, {b}, {c}")

S_PTR = 4
SRD_XB, SRD_WB, SRD_WS, SRD_OUT, SRD_XA, SRD_WA = 24, 28, 32, 36, 40, 44
SRD_WO = 4
sWmask = 96
sW, sBeta, sU, sR, sT, sT2, sT3 = 48, 49, 50, 51, 52, 53, 54
sOff, sXbase, sWcol, sM0X, sM0W, sC, sXo, sWo, sWo2 = 55, 56, 57, 58, 59, 60, 61, 62, 63
sVmask = 64
sNonce = 66
sHead, sTT, sKV, sTo, sQo, sOo, sSpin = 67, 68, 69, 70, 71, 72, 73
sCT, sP3T = 74, 75
sEx = 76
sStampTmp = 78
sRA = 80
sUQ, sUK, sUV = 81, 82, 83
sFOA, sFOB, sKVB, sRot, sOffU, sTTA = 84, 85, 86, 87, 88, 89
sMk = 90
sD0 = 22
WS = f"s[{SRD_WS}:{SRD_WS+3}]"

def srd(k, s, lo, size):
    k.e(f"s_mov_b32 s{s}, s{lo}")
    k.e(f"s_and_b32 s{s+1}, s{lo+1}, 0xffff")
    k.e(f"s_mov_b32 s{s+2}, {size}")
    k.e(f"s_mov_b32 s{s+3}, 0x20000")

class St:
    n = 0; v = 15; names = []
def stamp(k, name="", rt=False):
    if not STAMP: return
    if STAMPDBG and (rt or name in SKIP): return
    i = St.n; St.n += 1; St.names.append(name)
    assert i < 32
    k.e(f"{'s_memrealtime' if rt else 's_memtime'} s[{sStampTmp}:{sStampTmp+1}]")
    k.wait_all(vm=False, lg=True)
    k.e(f"v_writelane_b32 v{St.v}, s{sStampTmp}, {i}")
def stamp_flush(k, vt0, vt1):
    if not STAMP: return
    if STAMPDBG:
        L = k.newlabel("sf")
        k.e(f"s_lshl_b32 s{sStampTmp}, s2, 2")
        k.e(f"s_add_u32 s{sStampTmp}, s{sStampTmp}, s{sW}")
        k.e(f"s_cmp_lg_u32 s{sStampTmp}, {DBGWG*4}")
        k.e(f"s_cbranch_scc1 {L}")
        k.e(f"v_readlane_b32 s{sStampTmp}, v{St.v}, 0")
        k.e(f"v_and_b32 v{vt0}, 63, v0")
        k.e(f"v_lshlrev_b32 v{vt0}, 2, v{vt0}")
        k.e(f"v_subrev_u32 v{vt1}, s{sStampTmp}, v{St.v}")
        k.e(f"s_mov_b64 exec, 0xfffe")
        k.e(f"global_store_dword v{vt0}, v{vt1}, s[18:19]")
        k.e(f"s_mov_b64 exec, -1")
        k.label(L)
        return
    k.e(f"v_lshrrev_b32 v{vt0}, 6, v0")
    k.e(f"s_lshl_b32 s{sStampTmp}, s2, 2")
    k.e(f"v_add_u32 v{vt0}, s{sStampTmp}, v{vt0}")
    k.e(f"v_lshlrev_b32 v{vt0}, 7, v{vt0}")
    k.e(f"v_and_b32 v{vt1}, 63, v0")
    k.e(f"v_lshl_add_u32 v{vt0}, v{vt1}, 2, v{vt0}")
    k.e(f"s_mov_b32 s{sStampTmp}, {STAMPS}")
    k.e(f"s_mov_b32 exec_hi, 0")
    k.vm(f"buffer_store_dword v{St.v}, v{vt0}, {WS}, s{sStampTmp} offen")
    k.e(f"s_mov_b64 exec, -1")

def build_masks(k, vDiag, vEdge, vLane, t0, t1):
    k.e(f"v_and_b32 v{t0}, 31, v{vLane}")
    k.e(f"v_lshrrev_b32 v{t1}, 5, v{vLane}")
    k.e(f"v_lshlrev_b32 v{t1}, 2, v{t1}")
    k.e(f"v_sub_u32 v{t0}, v{t0}, v{t1}")
    k.e(f"v_mov_b32 v{t1}, {f2u(NEGBIG):#x}")
    prs = [sMk, sMk + 2, sMk + 4]
    def cmp(i):
        b = 8 * (i // 4) + (i % 4); p = prs[i % 3]
        k.e(f"v_cmp_le_i32_e64 s[{p}:{p+1}], {b}, v{t0}")
    cmp(0); cmp(1)
    for i in range(16):
        if i + 2 < 16: cmp(i + 2)
        else: k.nop(1)
        p = prs[i % 3]
        k.e(f"v_cndmask_b32_e64 v{vDiag+i}, v{t1}, 0, s[{p}:{p+1}]")
        k.e(f"v_cndmask_b32_e64 v{vEdge+i}, 0, v{t1}, s[{p}:{p+1}]")

def colmax(k, vS, vm, vt):
    k.e(f"v_max3_f32 v{vm}, v{vS}, v{vS+1}, v{vS+2}")
    k.e(f"v_max3_f32 v{vt}, v{vS+3}, v{vS+4}, v{vS+5}")
    k.e(f"v_max3_f32 v{vm}, v{vm}, v{vS+6}, v{vS+7}")
    k.e(f"v_max3_f32 v{vt}, v{vt}, v{vS+8}, v{vS+9}")
    k.e(f"v_max3_f32 v{vm}, v{vm}, v{vS+10}, v{vS+11}")
    k.e(f"v_max3_f32 v{vt}, v{vt}, v{vS+12}, v{vS+13}")
    k.e(f"v_max3_f32 v{vm}, v{vm}, v{vS+14}, v{vS+15}")
    k.e(f"v_max_f32 v{vm}, v{vm}, v{vt}")
    k.e(f"v_mov_b32 v{vt}, v{vm}")
    k.nop(2)
    k.e(f"v_permlane32_swap_b32 v{vm}, v{vt}")
    k.e(f"v_max_f32 v{vm}, v{vm}, v{vt}")

def shift_dwords(k, vm, t0, t1, t2):
    k.e(f"v_and_b32 v{t0}, 0xffff0000, v{vm}")
    k.e(f"v_sub_f32 v{t1}, v{vm}, v{t0}")
    k.e(f"v_and_b32 v{t2}, 0xffff0000, v{t1}")
    k.e(f"v_sub_f32 v{t1}, v{t1}, v{t2}")
    k.e(f"v_lshrrev_b32 v{t0}, 16, v{t0}")
    k.e(f"v_or_b32 v{t0}, v{t0}, v{t2}")
    k.e(f"v_xor_b32 v{t0}, 0x80008000, v{t0}")
    k.e(f"v_lshrrev_b32 v{t1}, 16, v{t1}")
    k.e(f"v_xor_b32 v{t1}, 0x8000, v{t1}")

def poll_flags(k, vAddr, vTmp, mask64, name):
    L = k.newlabel(name); Ld = k.newlabel(name + "d")
    k.e(f"s_mov_b32 s{sSpin}, 0")
    k.e(f"s_mov_b32 exec_hi, {(mask64 >> 32) & 0xffffffff:#x}")
    k.e(f"s_mov_b32 exec_lo, {mask64 & 0xffffffff:#x}")
    k.label(L)
    k.e(f"buffer_load_dword v{vTmp}, v{vAddr}, {WS}, 0 offen sc1")
    k.e(f"s_add_u32 s{sSpin}, s{sSpin}, 1")
    k.e(f"s_waitcnt vmcnt(0)")
    k.e(f"v_cmp_ne_u32 vcc, s{sNonce}, v{vTmp}")
    k.e(f"s_cmp_gt_u32 s{sSpin}, {SPIN_MAX}")
    k.e(f"s_cbranch_scc1 {Ld}")
    k.e(f"s_cbranch_vccnz {L}")
    k.label(Ld)
    k.e(f"s_mov_b64 exec, -1")
    k.vm_done = k.vm_n

def store_flag(k, vZero, vVal, s_off):
    k.e(f"v_mov_b32 v{vZero}, 0")
    k.e(f"v_mov_b32 v{vVal}, s{sNonce}")
    k.e(f"s_mov_b64 exec, 1")
    t = k.vm(f"buffer_store_dword v{vVal}, v{vZero}, {WS}, s{s_off} offen sc1")
    k.e(f"s_mov_b64 exec, -1")
    return t

def attn_pipeline(k, ops, vS, vP, hook=None):
    N = len(ops)
    def val(x): return x() if callable(x) else x
    def qk(n, part):
        o = ops[n]; S = vr(vS + 16 * (n % 2), 16)
        if part == 0:
            k.wait(vm=val(o.get("wK")), lg=val(o.get("lK")))
            mfma(k, S, o["K"][0], o["Q"][0], o["C"])
        else:
            mfma(k, S, o["K"][1], o["Q"][1], S)
    def pv(n, part):
        o = ops[n]; P = vP + 8 * (n % 2)
        if part == 0:
            k.wait(vm=val(o.get("wV")), lg=val(o.get("lV")))
            mfma(k, o["O"], o["V"][0], vr(P, 4), "0" if o["first"] else o["O"])
        else:
            mfma(k, o["O"], o["V"][1], vr(P + 4, 4), o["O"])
    def expgrp(n, g):
        S = vS + 16 * (n % 2); P = vP + 8 * (n % 2)
        for i in range(4):
            k.e(f"v_exp_f32 v{S+4*g+i}, v{S+4*g+i}")
        k.e(f"v_cvt_pk_bf16_f32 v{P+2*g}, v{S+4*g}, v{S+4*g+1}")
        k.e(f"v_cvt_pk_bf16_f32 v{P+2*g+1}, v{S+4*g+2}, v{S+4*g+3}")
    for n in range(-1, N + 1):
        has_exp = 0 <= n < N
        for g in range(4):
            if g < 2 and n + 1 < N: qk(n + 1, g)
            if g >= 2 and 0 <= n - 1: pv(n - 1, g - 2)
            if hook: hook(n, g)
            if has_exp: expgrp(n, g)
        if n == -1: k.nop(12)
        if n == N - 1: k.nop(2)

def finalize_o(k, vO, vt0, vt1, vOf):
    k.e(f"v_mov_b32 v{vt0}, v{vO+12}")
    k.e(f"v_mov_b32 v{vt1}, v{vO+12}")
    k.nop(2)
    k.e(f"v_permlane32_swap_b32 v{vt0}, v{vt1}")
    k.e(f"v_rcp_f32 v{vt1}, v{vt1}")
    k.nop(1)
    for i in range(16):
        k.e(f"v_mul_f32 v{vO+i}, v{vO+i}, v{vt1}")
    for i in range(8):
        k.e(f"v_cvt_pk_bf16_f32 v{vOf+i}, v{vO+2*i}, v{vO+2*i+1}")
    k.e("s_mov_b32 exec_lo, 0")
    k.e(f"v_mov_b32 v{vOf+6}, 0")
    k.e(f"v_mov_b32 v{vOf+7}, 0")
    k.e("s_mov_b32 exec_lo, -1")

def div6(k, dst, src, tmp):
    k.e(f"s_mul_i32 s{dst}, s{src}, 43")
    k.e(f"s_lshr_b32 s{dst}, s{dst}, 8")


def async_poll_issue(k, vAddr, vRes, mask64):
    k.e(f"s_mov_b32 exec_hi, {(mask64 >> 32) & 0xffffffff:#x}")
    k.e(f"s_mov_b32 exec_lo, {mask64 & 0xffffffff:#x}")
    t = k.vm(f"buffer_load_dword v{vRes}, v{vAddr}, {WS}, 0 offen sc1")
    k.e(f"s_mov_b64 exec, -1")
    return t

def async_poll_check(k, tok, vAddr, vRes, mask64, name):
    L = k.newlabel(name); Ld = k.newlabel(name + "d")
    k.wait(vm=tok)
    k.e(f"s_mov_b32 exec_hi, {(mask64 >> 32) & 0xffffffff:#x}")
    k.e(f"s_mov_b32 exec_lo, {mask64 & 0xffffffff:#x}")
    k.e(f"v_cmp_ne_u32 vcc, s{sNonce}, v{vRes}")
    k.e(f"s_mov_b32 s{sSpin}, 0")
    k.e(f"s_cbranch_vccz {Ld}")
    k.label(L)
    k.e(f"buffer_load_dword v{vRes}, v{vAddr}, {WS}, 0 offen sc1")
    k.e(f"s_add_u32 s{sSpin}, s{sSpin}, 1")
    k.e(f"s_waitcnt vmcnt(0)")
    k.e(f"v_cmp_ne_u32 vcc, s{sNonce}, v{vRes}")
    k.e(f"s_cmp_gt_u32 s{sSpin}, {SPIN_MAX}")
    k.e(f"s_cbranch_scc1 {Ld}")
    k.e(f"s_cbranch_vccnz {L}")
    k.label(Ld)
    k.e(f"s_mov_b64 exec, -1")

def chk4(k, vR, vT):
    k.e(f"v_xor_b32 v{vT}, s{sNonce}, v{vR}")
    k.e(f"v_xor_b32 v{vR+1}, s{sNonce}, v{vR+1}")
    k.e(f"v_xor_b32 v{vR+2}, s{sNonce}, v{vR+2}")
    k.e(f"v_xor_b32 v{vR+3}, s{sNonce}, v{vR+3}")
    k.e(f"v_or3_b32 v{vT}, v{vT}, v{vR+1}, v{vR+2}")
    k.e(f"v_or_b32 v{vT}, v{vT}, v{vR+3}")
    k.e(f"v_cmp_ne_u32 vcc, 0, v{vT}")

def poll4_issue(k, vAddr, vR, mask):
    k.e(f"s_mov_b64 exec, {mask:#x}")
    t = k.vm(f"buffer_load_dwordx4 v[{vR}:{vR+3}], v{vAddr}, {WS}, 0 offen sc1")
    k.e(f"s_mov_b64 exec, -1")
    return t

def poll4_finish(k, tok, vAddr, vR0, vR1, vT, mask, name):
    L = k.newlabel(name); Ld = k.newlabel(name + "d")
    k.wait(vm=tok)
    k.e(f"s_mov_b64 exec, {mask:#x}")
    chk4(k, vR0, vT)
    k.e(f"s_mov_b32 s{sSpin}, 0")
    k.e(f"s_cbranch_vccz {Ld}")
    k.e(f"buffer_load_dwordx4 v[{vR0}:{vR0+3}], v{vAddr}, {WS}, 0 offen sc1")
    k.label(L)
    k.e(f"buffer_load_dwordx4 v[{vR1}:{vR1+3}], v{vAddr}, {WS}, 0 offen sc1")
    k.e(f"s_waitcnt vmcnt(1)")
    chk4(k, vR0, vT)
    k.e(f"s_add_u32 s{sSpin}, s{sSpin}, 1")
    k.e(f"s_cbranch_vccz {Ld}")
    k.e(f"buffer_load_dwordx4 v[{vR0}:{vR0+3}], v{vAddr}, {WS}, 0 offen sc1")
    k.e(f"s_waitcnt vmcnt(1)")
    chk4(k, vR1, vT)
    k.e(f"s_cmp_gt_u32 s{sSpin}, {SPIN_MAX}")
    k.e(f"s_cbranch_scc1 {Ld}")
    k.e(f"s_cbranch_vccnz {L}")
    k.label(Ld)
    k.e(f"s_mov_b64 exec, -1")

def div3(k, dst, src):
    k.e(f"s_mul_i32 s{dst}, s{src}, 43")
    k.e(f"s_lshr_b32 s{dst}, s{dst}, 7")


def gen():
    k = Emit()
    St.n = 0; St.names = []
    k.e("s_cmp_ge_u32 s2, 256")
    k.e("s_cbranch_scc1 L_end")
    k.e(f"s_load_dwordx16 s[{S_PTR}:{S_PTR+15}], s[0:1], 0")
    k.e(f"s_load_dwordx2 s[20:21], s[0:1], 64")
    G = V(1, 15)
    vLane = G.a(); vSt = G.a(); vt0 = G.a(); vt1 = G.a(); vt2 = G.a(); vt3 = G.a(); vWoD = G.a()
    vFlB = G.a(); vFlA = G.a(); vVw = G.a(); vVr = G.a(); vP3a = G.a()
    stamp(k, "start"); stamp(k, "rt", True)
    k.e(f"v_and_b32 v{vLane}, 63, v0")
    k.e(f"v_lshrrev_b32 v{vt0}, 6, v0")
    k.e(f"s_and_b32 s{sT}, s2, 7")
    k.e(f"v_readfirstlane_b32 s{sW}, v{vt0}")
    k.e(f"s_lshr_b32 s{sT2}, s2, 3")
    k.e(f"s_and_b32 s{sU}, s{sT2}, 7")
    k.e(f"s_lshr_b32 s{sR}, s{sT2}, 3")
    k.e(f"s_lshl_b32 s{sOff}, s{sR}, 1")
    k.e(f"s_add_u32 s{sOff}, s{sOff}, s{sU}")
    k.e(f"s_sub_u32 s{sC}, s{sOff}, 7")
    k.e(f"s_min_u32 s{sOff}, s{sOff}, s{sC}")
    k.e(f"s_and_b32 s{sT3}, s{sT}, 1")
    k.e(f"s_lshl_b32 s{sT3}, s{sT3}, 3")
    k.e(f"s_add_u32 s{sU}, s{sU}, s{sT3}")
    k.e(f"s_lshr_b32 s{sT3}, s{sT}, 1")
    k.e(f"s_lshl_b32 s{sT3}, s{sT3}, 2")
    k.e(f"s_add_u32 s{sR}, s{sR}, s{sT3}")
    k.e(f"s_mul_i32 s{sXbase}, s{sR}, {128*896}")
    k.e(f"s_mul_i32 s{sWcol}, s{sU}, 168")
    k.e(f"s_and_b32 s{sOffU}, s{sWcol}, 127")
    k.e(f"s_andn2_b32 s{sWcol}, s{sWcol}, 127")
    k.e(f"s_mov_b32 s{sWmask}, 0xf0ffffff")
    k.e(f"s_mov_b32 s{sWmask+1}, 0x000fffff")
    k.e(f"s_cmp_le_u32 s{sOffU}, 88")
    k.e(f"s_cselect_b32 s{sWmask}, 0xf000ffff, s{sWmask}")
    k.e(f"s_cselect_b32 s{sWmask+1}, 0x00000fff, s{sWmask+1}")
    R = V(16, 256)
    vXo = R.a(4); vWo = R.a(4); vXr = R.a(4); vWr = R.a(6)
    vXf = R.a(8, 4); vWf = R.a(24, 4)
    accs = [[R.a(16, 4) for _ in range(3)] for _ in range(2)]
    assert accs[0][0] == 68 and accs[1][0] == 116
    FB, FA, vTr = 164, 192, 216
    XSLOT = 16640; WSLOT = 28672; WBASE = 3 * XSLOT; VSCR = WBASE + 3 * WSLOT
    k.e(f"v_lshrrev_b32 v{vt0}, 3, v{vLane}")
    k.e(f"v_bfe_u32 v{vt1}, v{vLane}, 4, 1")
    k.e(f"v_lshlrev_b32 v{vt1}, 2, v{vt1}")
    k.e(f"v_and_b32 v{vt2}, 7, v{vLane}")
    k.e(f"v_xor_b32 v{vt1}, v{vt1}, v{vt2}")
    k.e(f"v_lshrrev_b32 v{vt2}, 6, v0")
    k.e(f"v_lshl_add_u32 v{vt3}, v{vt2}, 5, v{vt0}")
    k.e(f"v_mul_u32_u24 v{vt3}, 896, v{vt3}")
    k.e(f"v_lshl_add_u32 v{vXo}, v{vt1}, 4, v{vt3}")
    for j in range(1, 4):
        k.e(f"v_add_u32 v{vXo+j}, {j*(8*896-1040)}, v{vXo}")
    k.e(f"v_cmp_le_u32 vcc, 28, v{vLane}")
    k.e(f"v_lshlrev_b32 v{vt3}, 4, v{vt2}")
    k.e(f"v_mul_u32_u24 v{vt3}, 2688, v{vt3}")
    k.e(f"v_cndmask_b32_e64 v{vt0}, 0, 1, vcc")
    k.e(f"v_mul_u32_u24 v{vt1}, {2688 - 28*16}, v{vt0}")
    k.e(f"v_lshl_add_u32 v{vt1}, v{vLane}, 4, v{vt1}")
    k.e(f"v_add_u32 v{vWo}, v{vt1}, v{vt3}")
    for j in range(1, 4):
        k.e(f"v_add_u32 v{vWo+j}, {j*(5376-896)}, v{vWo}")
    k.e(f"s_mul_i32 s{sM0X}, s{sW}, 4160")
    k.e(f"s_mul_i32 s{sM0W}, s{sW}, 7168")
    k.e(f"s_add_u32 s{sM0W}, s{sM0W}, {WBASE}")
    k.e("s_waitcnt lgkmcnt(0)")
    srd(k, SRD_XB, 10, X_BYTES); srd(k, SRD_WB, 12, W_BYTES)
    dma_tok = {}
    def dma_list(g):
        slot = g % 3; b = g // 7; i0 = g % 7
        sx = SRD_XB if b == 0 else SRD_XA; sw = SRD_WB if b == 0 else SRD_WA
        X = f"s[{sx}:{sx+3}]"; W = f"s[{sw}:{sw+3}]"
        L = []
        def head():
            k.e(f"s_add_u32 s{sC}, s{sOff}, {i0}")
            k.e(f"s_sub_u32 s{sT}, s{sC}, 7")
            k.e(f"s_min_u32 s{sC}, s{sC}, s{sT}")
            k.e(f"s_lshl_b32 s{sXo}, s{sC}, 7")
            k.e(f"s_add_u32 s{sXo}, s{sXo}, s{sXbase}")
            k.e(f"s_mul_i32 s{sWo}, s{sC}, {64*2688}")
            k.e(f"s_add_u32 s{sWo}, s{sWo}, s{sWcol}")
            k.e(f"s_add_u32 s{sWo2}, s{sWo}, {4*5376}")
            k.e(f"s_add_u32 m0, s{sM0X}, {slot*XSLOT}")
            k.e("s_nop 0")
        def xj(j):
            def f():
                if j == 0: head()
                k.vm(f"buffer_load_dwordx4 v{vXo+j}, {X}, s{sXo} offen offset:{1040*j} lds")
            return f
        def wi(i):
            def f():
                if i % 4 == 0: k.e(f"s_add_u32 m0, s{sM0W}, {slot*WSLOT + (i//4)*3584}")
                k.e(f"s_mov_b64 exec, s[{sWmask}:{sWmask+1}]")
                t = k.vm(f"buffer_load_dwordx4 v{vWo+(i%4)}, {W}, s{sWo if i < 4 else sWo2} offen offset:{896*(i%4)} lds")
                k.e(f"s_mov_b64 exec, -1")
                if i == 7: dma_tok[g] = t
            return f
        for j in range(4): L.append(xj(j))
        for i in range(8): L.append(wi(i))
        return L
    stamp(k, "pre-dma")
    for f in dma_list(0): f()
    stamp(k, "dma0 issued")
    srd(k, SRD_XA, 4, X_BYTES); srd(k, SRD_WA, 6, W_BYTES)
    srd(k, SRD_WS, 20, WS_BYTES); srd(k, SRD_OUT, 16, OUT_BYTES)
    k.e(f"v_lshlrev_b32 v{vSt}, 4, v{vLane}")
    Lnn = k.newlabel("nonce")
    k.e(f"s_or_b32 s{sT}, s2, s{sW}")
    k.e(f"s_cmp_lg_u32 s{sT}, 0")
    k.e(f"s_cbranch_scc1 {Lnn}")
    k.e(f"s_mov_b32 s{sT}, {NONCE_OFF}")
    k.e(f"v_mov_b32 v{vt0}, 0")
    k.e(f"buffer_load_dword v{vt1}, v{vt0}, {WS}, s{sT} offen sc1")
    k.e(f"s_waitcnt vmcnt(0)")
    k.e(f"v_add_u32 v{vt1}, 1, v{vt1}")
    k.e(f"v_max_u32 v{vt1}, 1, v{vt1}")
    k.e(f"s_mov_b64 exec, 1")
    k.e(f"global_store_dword v{vt0}, v{vt1}, s[18:19] sc1")
    k.e(f"buffer_store_dword v{vt1}, v{vt0}, {WS}, s{sT} offen sc1")
    k.e(f"s_mov_b64 exec, -1")
    k.label(Lnn)
    k.e(f"s_and_b32 s{sT}, s2, 7")
    k.e(f"s_lshr_b32 s{sT2}, s2, 3")
    k.e(f"s_and_b32 s{sHead}, s{sT}, 3")
    k.e(f"s_lshl_b32 s{sHead}, s{sHead}, 2")
    k.e(f"s_and_b32 s{sT3}, s{sT2}, 3")
    k.e(f"s_add_u32 s{sHead}, s{sHead}, s{sT3}")
    k.e(f"s_lshr_b32 s{sRA}, s{sT}, 2")
    k.e(f"s_lshl_b32 s{sRA}, s{sRA}, 3")
    k.e(f"s_lshr_b32 s{sT3}, s{sT2}, 2")
    k.e(f"s_add_u32 s{sRA}, s{sRA}, s{sT3}")
    k.e(f"s_mul_i32 s{sT3}, s{sT2}, 37")
    k.e(f"s_lshr_b32 s{sT3}, s{sT3}, 8")
    k.e(f"s_lshl_b32 s{sP3T}, s{sT}, 2")
    k.e(f"s_add_u32 s{sP3T}, s{sP3T}, s{sT3}")
    k.e(f"s_mul_i32 s{sT3}, s{sT3}, 7")
    k.e(f"s_sub_u32 s{sCT}, s{sT2}, s{sT3}")
    div3(k, sUQ, sHead)
    k.e(f"s_add_u32 s{sT}, s{sHead}, 16"); div3(k, sUK, sT)
    k.e(f"s_add_u32 s{sT}, s{sHead}, 32"); div3(k, sUV, sT)
    k.e(f"s_lshl_b32 s{sTT}, s{sR}, 2")
    k.e(f"s_add_u32 s{sTT}, s{sTT}, s{sW}")
    k.e(f"s_lshl_b32 s{sTTA}, s{sRA}, 2")
    k.e(f"s_add_u32 s{sTTA}, s{sTTA}, s{sW}")
    dsts = [[0, 1, 3], [22, 23, 101]]
    sSec = [4, 5, 6]
    for i in range(3):
        k.e(f"s_mul_i32 s{sT}, s{sU}, 3")
        k.e(f"s_add_u32 s{sT}, s{sT}, {i}")
        k.e(f"s_lshr_b32 s{sSec[i]}, s{sT}, 4")
        k.e(f"s_and_b32 s{sT}, s{sT}, 15")
        k.e(f"s_lshl_b32 s{sT}, s{sT}, 6")
        k.e(f"s_add_u32 s{sT}, s{sT}, s{sTT}")
        k.e(f"s_lshl_b32 s{sT3}, s{sT}, 11")
        k.e(f"s_add_u32 s{sT3}, s{sT3}, {Q_OFF['B']}")
        k.e(f"s_lshl_b32 s{sT}, s{sT}, 12")
        k.e(f"s_lshr_b32 s{sC}, s{sSec[i]}, 1")
        k.e(f"s_lshl_b32 s{sC}, s{sC}, 11")
        k.e(f"s_add_u32 s{sT}, s{sT}, s{sC}")
        k.e(f"s_cmp_eq_u32 s{sSec[i]}, 0")
        k.e(f"s_cselect_b32 s{dsts[0][i]}, s{sT3}, s{sT}")
        k.e(f"s_cselect_b32 s{sC}, {Q_OFF['A'] - Q_OFF['B']}, 0")
        k.e(f"s_add_u32 s{dsts[1][i]}, s{dsts[0][i]}, s{sC}")
        k.e(f"s_cmp_eq_u32 s{sSec[i]}, 0")
        k.e(f"s_cselect_b32 s{sC}, 0, {KV_OFF['A'] - KV_OFF['B']}")
        k.e(f"s_add_u32 s{dsts[1][i]}, s{dsts[1][i]}, s{sC}")
    k.e(f"v_and_b32 v{vt0}, 31, v{vLane}")
    k.e(f"v_lshrrev_b32 v{vt1}, 3, v{vt0}")
    k.e(f"v_mul_u32_u24 v{vt1}, 1040, v{vt1}")
    k.e(f"v_and_b32 v{vt2}, 7, v{vt0}")
    k.e(f"v_lshl_add_u32 v{vt1}, v{vt2}, 7, v{vt1}")
    k.e(f"v_add_u32 v{vt1}, s{sM0X}, v{vt1}")
    k.e(f"v_bfe_u32 v{vt2}, v{vLane}, 1, 1")
    k.e(f"v_lshlrev_b32 v{vt2}, 6, v{vt2}")
    k.e(f"v_lshrrev_b32 v{vt3}, 5, v{vLane}")
    k.e(f"v_lshlrev_b32 v{vt3}, 4, v{vt3}")
    k.e(f"v_add_u32 v{vt1}, v{vt1}, v{vt3}")
    for ks in range(4):
        k.e(f"v_xor_b32 v{vXr+ks}, {(ks >> 1) * 64}, v{vt2}")
        k.e(f"v_add_u32 v{vXr+ks}, {((2*ks) & 3) * 16}, v{vXr+ks}")
        k.e(f"v_add_u32 v{vXr+ks}, v{vXr+ks}, v{vt1}")
    k.e(f"v_lshrrev_b32 v{vt0}, 5, v{vLane}")
    k.e(f"v_lshlrev_b32 v{vt0}, 3, v{vt0}")
    k.e(f"v_bfe_u32 v{vt1}, v{vLane}, 2, 2")
    k.e(f"v_add_u32 v{vt0}, v{vt0}, v{vt1}")
    k.e(f"v_mul_u32_u24 v{vt0}, 448, v{vt0}")
    k.e(f"v_bfe_u32 v{vt2}, v{vLane}, 4, 1")
    k.e(f"v_lshl_add_u32 v{vt0}, v{vt2}, 5, v{vt0}")
    k.e(f"v_and_b32 v{vt2}, 3, v{vLane}")
    k.e(f"v_lshl_add_u32 v{vt0}, v{vt2}, 3, v{vt0}")
    k.e(f"v_add_u32 v{vt0}, s{sOffU}, v{vt0}")
    for i in range(3):
        k.e(f"v_add_u32 v{vWr+i}, {WBASE + 56*i}, v{vt0}")
        k.e(f"v_add_u32 v{vWr+3+i}, {WBASE + 56*i + 2*WSLOT}, v{vt0}")
    k.e(f"v_and_b32 v{vt0}, 31, v{vLane}")
    k.e(f"v_mul_u32_u24 v{vt1}, 72, v{vt0}")
    k.e(f"v_lshrrev_b32 v{vt2}, 5, v{vLane}")
    k.e(f"v_lshl_add_u32 v{vt1}, v{vt2}, 3, v{vt1}")
    k.e(f"s_mul_i32 s{sT}, s{sW}, 6976")
    k.e(f"s_add_u32 s{sT}, s{sT}, {VSCR}")
    k.e(f"v_add_u32 v{vVw}, s{sT}, v{vt1}")
    k.e(f"v_lshlrev_b32 v{vt1}, 2, v{vt2}")
    k.e(f"v_bfe_u32 v{vt3}, v{vLane}, 2, 2")
    k.e(f"v_add_u32 v{vt1}, v{vt1}, v{vt3}")
    k.e(f"v_mul_u32_u24 v{vt1}, 72, v{vt1}")
    k.e(f"v_bfe_u32 v{vt3}, v{vLane}, 4, 1")
    k.e(f"v_lshl_add_u32 v{vt1}, v{vt3}, 5, v{vt1}")
    k.e(f"v_and_b32 v{vt3}, 3, v{vLane}")
    k.e(f"v_lshl_add_u32 v{vt1}, v{vt3}, 3, v{vt1}")
    k.e(f"v_add_u32 v{vVr}, s{sT}, v{vt1}")
    k.e(f"v_lshrrev_b32 v{vt0}, 3, v{vLane}")
    k.e(f"v_bfe_u32 v{vt1}, v{vLane}, 4, 1")
    k.e(f"v_lshlrev_b32 v{vt1}, 2, v{vt1}")
    k.e(f"v_and_b32 v{vt2}, 7, v{vLane}")
    k.e(f"v_xor_b32 v{vt1}, v{vt1}, v{vt2}")
    k.e(f"v_mul_u32_u24 v{vt0}, 896, v{vt0}")
    k.e(f"v_lshl_add_u32 v{vWoD}, v{vt1}, 4, v{vt0}")
    k.e(f"v_lshrrev_b32 v{vt0}, 5, v{vLane}")
    k.e(f"v_lshlrev_b32 v{vt0}, 2, v{vt0}")
    k.e(f"v_bfe_u32 v{vt1}, v{vLane}, 2, 2")
    k.e(f"v_add_u32 v{vt0}, v{vt0}, v{vt1}")
    k.e(f"v_lshlrev_b32 v{vt0}, 7, v{vt0}")
    k.e(f"s_and_b32 s{sT}, s{sW}, 1")
    k.e(f"s_lshl_b32 s{sT}, s{sT}, 6")
    k.e(f"v_bfe_u32 v{vt1}, v{vLane}, 4, 1")
    k.e(f"v_lshlrev_b32 v{vt1}, 5, v{vt1}")
    k.e(f"v_and_b32 v{vt2}, 3, v{vLane}")
    k.e(f"v_lshl_add_u32 v{vt1}, v{vt2}, 3, v{vt1}")
    k.e(f"v_add_u32 v{vt1}, s{sT}, v{vt1}")
    k.e(f"v_bfe_u32 v{vt2}, v{vLane}, 3, 1")
    k.e(f"v_lshlrev_b32 v{vt2}, 6, v{vt2}")
    k.e(f"v_xor_b32 v{vt1}, v{vt1}, v{vt2}")
    k.e(f"v_add_u32 v{vP3a}, v{vt0}, v{vt1}")
    k.e(f"v_and_b32 v{vt0}, 3, v{vLane}")
    k.e(f"s_lshl_b32 s{sT}, s{sW}, 2")
    k.e(f"v_add_u32 v{vt0}, s{sT}, v{vt0}")
    k.e(f"v_cmp_gt_u32 vcc, 4, v{vLane}")
    k.e(f"v_mov_b32 v{vt1}, s{sUV}")
    k.e(f"v_mov_b32 v{vt2}, s{sUK}")
    k.e(f"v_cndmask_b32 v{vt1}, v{vt1}, v{vt2}, vcc")
    k.e(f"v_cmp_eq_u32 vcc, 8, v{vLane}")
    k.e(f"v_mov_b32 v{vt2}, s{sRA}")
    k.e(f"v_mov_b32 v{vt3}, s{sUQ}")
    k.e(f"v_cndmask_b32 v{vt0}, v{vt0}, v{vt2}, vcc")
    k.e(f"v_cndmask_b32 v{vt1}, v{vt1}, v{vt3}, vcc")
    k.e(f"v_lshl_add_u32 v{vt0}, v{vt0}, 4, v{vt1}")
    k.e(f"v_lshlrev_b32 v{vFlB}, 7, v{vt0}")
    k.e(f"v_add_u32 v{vFlB}, {FP1_OFF}, v{vFlB}")
    k.e(f"v_cmp_gt_u32 vcc, 3, v{vLane}")
    k.e(f"v_subrev_u32 v{vt0}, 3, v{vLane}")
    k.e(f"v_mov_b32 v{vt1}, s{sUV}")
    k.e(f"v_cndmask_b32 v{vt0}, v{vt0}, v{vLane}, vcc")
    k.e(f"v_mov_b32 v{vt2}, s{sUK}")
    k.e(f"v_cndmask_b32 v{vt1}, v{vt1}, v{vt2}, vcc")
    k.e(f"s_sub_u32 s{sT}, s{sRA}, 2")
    k.e(f"v_add_u32 v{vt0}, s{sT}, v{vt0}")
    k.e(f"v_max_i32 v{vt0}, 0, v{vt0}")
    k.e(f"v_cmp_eq_u32 vcc, 6, v{vLane}")
    k.e(f"v_mov_b32 v{vt2}, s{sRA}")
    k.e(f"v_mov_b32 v{vt3}, s{sUQ}")
    k.e(f"v_cndmask_b32 v{vt0}, v{vt0}, v{vt2}, vcc")
    k.e(f"v_cndmask_b32 v{vt1}, v{vt1}, v{vt3}, vcc")
    k.e(f"v_add_u32 v{vt0}, 16, v{vt0}")
    k.e(f"v_lshl_add_u32 v{vt0}, v{vt0}, 4, v{vt1}")
    k.e(f"v_lshlrev_b32 v{vFlA}, 7, v{vt0}")
    k.e(f"v_add_u32 v{vFlA}, {FP1_OFF}, v{vFlA}")
    k.e(f"s_lshl_b32 s{sKVB}, s{sHead}, 18")
    k.e(f"s_lshl_b32 s{sT}, s{sW}, 16")
    k.e(f"s_add_u32 s{sKVB}, s{sKVB}, s{sT}")
    k.e(f"s_and_b32 s{sRot}, s{sRA}, 7")
    k.e(f"s_lshl_b32 s{sRot}, s{sRot}, 1")
    vDiag = 240; vEdge = 192
    k.e(f"v_and_b32 v{vt0}, 31, v{vLane}")
    k.e(f"v_lshrrev_b32 v{vt1}, 5, v{vLane}")
    k.e(f"v_lshlrev_b32 v{vt1}, 2, v{vt1}")
    k.e(f"v_sub_u32 v{vt0}, v{vt0}, v{vt1}")
    k.e(f"v_mov_b32 v{vt1}, {f2u(NEGBIG):#x}")
    prs = [sMk, sMk + 2, sMk + 4]
    def cmpm(i):
        b = 8 * (i // 4) + (i % 4); p = prs[i % 3]
        k.e(f"v_cmp_le_i32_e64 s[{p}:{p+1}], {b}, v{vt0}")
    cmpm(0); cmpm(1)
    for i in range(16):
        if i + 2 < 16: cmpm(i + 2)
        else: k.nop(1)
        p = prs[i % 3]
        k.e(f"v_cndmask_b32_e64 v{vDiag+i}, v{vt1}, 0, s[{p}:{p+1}]")
    for f in dma_list(1): f()

    def rd_list(g, ks):
        slot = g % 3; par = ks % 2
        L = [f"ds_read_b128 v[{vXf+4*par}:{vXf+4*par+3}], v{vXr+ks} offset:{slot*XSLOT}"]
        for i in range(3):
            areg = vWr + i + (3 if slot == 2 else 0)
            base = (slot if slot < 2 else 0) * WSLOT + ks * 7168
            d = vWf + 12 * par + 4 * i
            L.append(f"ds_read_b64_tr_b16 v[{d}:{d+1}], v{areg} offset:{base}")
            L.append(f"ds_read_b64_tr_b16 v[{d+2}:{d+3}], v{areg} offset:{base+4*448}")
        return L
    def mf_list(g, ks):
        first = (g % 7 == 0 and ks == 0); par = ks % 2
        a = accs[g // 7]
        xf = vr(vXf + 4 * par, 4)
        return [f"v_mfma_f32_32x32x16_bf16 {vr(a[i],16)}, {vr(vWf+12*par+4*i,4)}, {xf}, {'0' if first else vr(a[i],16)}" for i in range(3)]
    def interleave(mf, rds, tok_need, extra, extra2=None):
        k.wait(lg=tok_need)
        t = None; ri = 0
        for i, m in enumerate(mf):
            k.e(m)
            n = (len(rds) - ri + (len(mf) - i) - 1) // (len(mf) - i)
            for _ in range(n):
                t = k.lg(rds[ri]); ri += 1
            if extra: extra.pop(0)()
            if extra2: extra2.pop(0)()
        return t

    sSc = sEx
    sVm = sMk
    def epi_items(b, F0):
        a = accs[b]; items = []; lg = {}
        def p_mul(i):
            def f():
                k.e(f"s_cmp_eq_u32 s{sSec[i]}, 0")
                k.e(f"s_cselect_b32 s{sSc}, {f2u(QSCALE):#x}, 1.0")
                for j in range(0, 16, 2):
                    k.e(f"v_pk_mul_f32 v[{a[i]+j}:{a[i]+j+1}], v[{a[i]+j}:{a[i]+j+1}], s[{sSc}:{sSc+1}] op_sel_hi:[1,0]")
            return f
        def p_cvt(i):
            def f():
                F = F0 + 8 * i
                for j in range(8): k.e(f"v_cvt_pk_bf16_f32 v{F+j}, v{a[i]+2*j}, v{a[i]+2*j+1}")
                k.e(f"s_cmp_eq_u32 s{sSec[i]}, 1")
                k.e(f"s_cselect_b32 s{sT}, 0x3f803f80, 0")
                k.e(f"s_cselect_b32 s{sT2}, 0x3f80, 0")
                k.e(f"s_cmp_eq_u32 s{sSec[i]}, 2")
                k.e(f"s_cselect_b32 s{sT}, 0x3f80, s{sT}")
                k.e("s_mov_b32 exec_lo, 0")
                k.e(f"v_mov_b32 v{F+6}, s{sT}")
                k.e(f"v_mov_b32 v{F+7}, s{sT2}")
                k.e("s_mov_b32 exec_lo, -1")
                for g in range(4): lg[("w", i)] = k.lg(f"ds_write_b64 v{vVw}, v[{F+2*g}:{F+2*g+1}] offset:{i*2304 + 16*g}")
            return f
        def p_rd(i):
            def f():
                k.wait(lg=lg[("w", i)])
                T = vTr + 8 * i
                for kk in range(2):
                    k.lg(f"ds_read_b64_tr_b16 v[{T+4*kk}:{T+4*kk+1}], v{vVr} offset:{i*2304 + (16*kk)*72}")
                    lg[("r", i)] = k.lg(f"ds_read_b64_tr_b16 v[{T+4*kk+2}:{T+4*kk+3}], v{vVr} offset:{i*2304 + (16*kk+8)*72}")
            return f
        def p_sel(i):
            def f():
                k.wait(lg=lg[("r", i)])
                F = F0 + 8 * i; T = vTr + 8 * i
                k.e(f"s_cmp_eq_u32 s{sSec[i]}, 2")
                k.e(f"s_cselect_b64 s[{sVm}:{sVm+1}], -1, 0")
                for j in range(8): k.e(f"v_cndmask_b32_e64 v{F+j}, v{F+j}, v{T+j}, s[{sVm}:{sVm+1}]")
            return f
        return dict(mul=[p_mul(i) for i in range(3)], cvt=[p_cvt(i) for i in range(3)], rd=[p_rd(i) for i in range(3)], sel=[p_sel(i) for i in range(3)])
    def st_items(b, F0):
        res = {}
        def mk(i, h):
            def f():
                F = F0 + 8 * i + 4 * h
                res["last"] = k.vm(f"buffer_store_dwordx4 v[{F}:{F+3}], v{vSt}, {WS}, s{dsts[b][i]} offen offset:{1024*h} sc1")
            return f
        return [mk(i, h) for i in (0, 1, 2) for h in range(2)], res
    sSel = sMk + 3
    def p1flag(b):
        k.e(f"s_add_u32 s{sT}, s{sR}, {16*b}")
        k.e(f"s_lshl_b32 s{sT}, s{sT}, 4")
        k.e(f"s_add_u32 s{sT}, s{sT}, s{sU}")
        k.e(f"s_lshl_b32 s{sT}, s{sT}, 7")
        k.e(f"s_lshl_b32 s{sT2}, s{sW}, 2")
        k.e(f"s_add_u32 s{sT}, s{sT}, s{sT2}")
        k.e(f"s_add_u32 s{sSel}, s{sT}, {FP1_OFF}")
        store_flag(k, vt0, vt1, sSel)

    vRed, vRedR, vQA, vOf, vO01, vQ, vS, vP, vO23 = 16, 17, 20, 28, 36, 68, 100, 132, 148
    qtok = {}; ktok = {}; vtok = {}
    sTq = [0, 98, 99]
    def tile_items(i):
        def f(j):
            def g_():
                if j == 0 or j == 2:
                    k.e(f"s_add_u32 s{sT}, s{sRot}, {i}")
                    k.e(f"s_and_b32 s{sT}, s{sT}, 15")
                    k.e(f"s_lshl_b32 s{sT}, s{sT}, 12")
                    k.e(f"s_add_u32 s{sTq[1]}, s{sT}, s{sKVB}")
                t = k.vm(f"buffer_load_dwordx4 a[{16*i+4*j}:{16*i+4*j+3}], v{vSt}, {WS}, s{sTq[1]} offen offset:{1024*j} sc1")
                if j == 1: ktok[i] = t
                if j == 3: vtok[i] = t
            return g_
        return [f(j) for j in range(4)]
    def q_items(d):
        def f(j):
            def g_():
                if j == 0:
                    k.e(f"s_add_u32 s{sT}, s{sW}, {d}")
                    k.e(f"s_and_b32 s{sT}, s{sT}, 3")
                    k.e(f"s_lshl_b32 s{sT2}, s{sRA}, 2")
                    k.e(f"s_add_u32 s{sT}, s{sT}, s{sT2}")
                    k.e(f"s_lshl_b32 s{sT2}, s{sHead}, 6")
                    k.e(f"s_add_u32 s{sT}, s{sT}, s{sT2}")
                    k.e(f"s_lshl_b32 s{sTq[1]}, s{sT}, 11")
                    k.e(f"s_add_u32 s{sTq[1]}, s{sTq[1]}, {Q_OFF['B']}")
                t = k.vm(f"buffer_load_dwordx4 v[{vQ+8*d+4*j}:{vQ+8*d+4*j+3}], v{vSt}, {WS}, s{sTq[1]} offen offset:{1024*j} sc1")
                if j == 1: qtok[d] = t
            return g_
        return [f(0), f(1)]
    vPR0, vPR1, vPT = 180, 184, 188
    pend = None; nonce_tok = None
    epi = []; sto = []
    for g in range(14):
        k.c(f"---- chunk {g}")
        k.wait(vm=dma_tok[g])
        k.wait_all(vm=False, lg=True)
        k.e("s_barrier")
        if g in (0, 6, 7, 8, 10, 13): stamp(k, f"bar{g}")
        ex = dma_list(g + 2) if (g >= 0 and g + 2 < 14) else []
        r0 = rd_list(g, 0)
        if pend is None:
            for r_ in r0: tok = k.lg(r_)
            for _ in range(3): ex.pop(0)()
        else:
            tok = interleave(mf_list(*pend), r0, None, ex)
        if g == 4:
            k.e(f"v_mov_b32 v{vt0}, 0")
            k.e(f"global_load_dword v{vt3}, v{vt0}, s[18:19] sc1")
            k.vm_n += 1; nonce_tok = k.vm_n
        if g == 6:
            Ln = k.newlabel("n"); Lnd = k.newlabel("nd")
            k.wait(vm=nonce_tok)
            k.e(f"v_readfirstlane_b32 s{sNonce}, v{vt3}")
            k.e(f"s_mov_b32 s{sSpin}, 0")
            k.e(f"s_cmp_lg_u32 s{sNonce}, 0")
            k.e(f"s_cbranch_scc1 {Lnd}")
            k.label(Ln)
            k.e(f"global_load_dword v{vt3}, v{vt0}, s[18:19] sc1")
            k.e(f"s_add_u32 s{sSpin}, s{sSpin}, 1")
            k.e(f"s_waitcnt vmcnt(0)")
            k.e(f"v_readfirstlane_b32 s{sNonce}, v{vt3}")
            k.e(f"s_cmp_gt_u32 s{sSpin}, {SPIN_MAX}")
            k.e(f"s_cbranch_scc1 {Lnd}")
            k.e(f"s_cmp_eq_u32 s{sNonce}, 0")
            k.e(f"s_cbranch_scc1 {Ln}")
            k.label(Lnd)
        if g == 7:
            E = epi_items(0, FB); stoB, resB = st_items(0, FB)
            nop_ = lambda: None
            epi = [E["mul"][0], E["cvt"][0], E["mul"][1], E["rd"][0], E["cvt"][1], E["sel"][0],
                   stoB[0], E["rd"][1], E["mul"][2], stoB[1], E["cvt"][2], E["sel"][1], E["rd"][2], nop_, E["sel"][2],
                   stoB[2], nop_, nop_, stoB[3], nop_, nop_, nop_, nop_, nop_,
                   stoB[4], nop_, nop_, stoB[5]]
        if g == 12:
            k.wait(vm=resB["last"])
            p1flag(0)
            stamp(k, "flagB stored")
        if g == 13:
            pB = poll4_issue(k, vFlB, vPR0, 0x1ff)
        for ks in range(3):
            e2 = None
            if (g == 7 and ks >= 1) or g in (8, 9, 10): e2 = epi
            tok = interleave(mf_list(g, ks), rd_list(g, ks + 1), tok, ex, e2)
        while ex: ex.pop(0)()
        pend = (g, 3)
        ptok = tok
    assert not epi
    k.wait(lg=ptok)
    for m in mf_list(*pend): k.e(m)
    stamp(k, "mfma done")
    poll4_finish(k, pB, vFlB, vPR0, vPR1, vPT, 0x1ff, "pb")
    stamp(k, "B flags")
    for f in q_items(0) + tile_items(0)[:2] + q_items(1) + q_items(2) + q_items(3) + tile_items(0)[2:]: f()
    E = epi_items(1, FA)
    for f in [E["mul"][0], E["cvt"][0], E["mul"][1], E["cvt"][1], E["mul"][2], E["cvt"][2], E["rd"][0], E["rd"][1], E["rd"][2], E["sel"][0], E["sel"][1], E["sel"][2]]: f()
    stoL, resL = st_items(1, FA)
    for f in tile_items(1): f()
    stamp(k, "epiA")
    k.wait_all(vm=False, lg=True)
    k.e("s_barrier")
    WOB_L, WOA_L = 0, 57344
    def wo_items(srdn, lbase):
        def one(j):
            def f():
                if j == 0:
                    k.e(f"s_lshl_b32 s{sMk}, s{sCT}, 7")
                    k.e(f"s_mul_i32 s{sMk+1}, s{sW}, {112*896}")
                    k.e(f"s_add_u32 s{sMk}, s{sMk}, s{sMk+1}")
                    k.e(f"s_mul_i32 s{sMk+1}, s{sW}, {112*128}")
                    k.e(f"s_add_u32 s{sMk+1}, s{sMk+1}, {lbase}")
                k.e(f"s_add_u32 m0, s{sMk+1}, {1024*j}")
                k.e(f"s_add_u32 s{sMk+4}, s{sMk}, {8*896*j}")
                return k.vm(f"buffer_load_dwordx4 v{vWoD}, s[{srdn}:{srdn+3}], s{sMk+4} offen lds")
            return f
        return [one(j) for j in range(14)]
    srd(k, SRD_XB, 14, WO_BYTES); srd(k, SRD_WB, 8, WO_BYTES)
    SRD_WOB, SRD_WOA = SRD_XB, SRD_WB
    vTmp = vS
    def vOd(d): return (vO01 + 16 * d) if d < 2 else (vO23 + 16 * (d - 2))
    k.wait(vm=max(ktok[0], qtok[0]))
    mfma(k, vr(vS, 16), ar(0, 4), vr(vQ, 4), "0")
    mfma(k, vr(vS, 16), ar(4, 4), vr(vQ + 4, 4), vr(vS, 16))
    k.e(f"s_lshl_b32 s{sT}, s{sW}, 9")
    k.e(f"v_lshlrev_b32 v{vt2}, 3, v{vLane}")
    k.e(f"v_add_u32 v{vRed}, s{sT}, v{vt2}")
    k.e(f"v_add_u32 v{vRed}, {SCR}, v{vRed}")
    k.nop(8)
    colmax(k, vS, vt3, vt0)
    k.e(f"v_add_f32 v{vt3}, {f2u(MARGIN):#x}, v{vt3}")
    shift_dwords(k, vt3, vOf, vOf + 1, vt1)
    k.lg(f"ds_write_b64 v{vRed}, v[{vOf}:{vOf+1}]")
    k.wait(vm=qtok[3])
    k.wait_all(vm=False)
    k.e("s_barrier")
    k.e("s_mov_b32 exec_lo, 0")
    for d in range(4):
        k.e(f"s_add_u32 s{sT}, s{sW}, {d}")
        k.e(f"s_and_b32 s{sT}, s{sT}, 3")
        k.e(f"s_lshl_b32 s{sT}, s{sT}, 9")
        k.e(f"s_add_u32 s{sT}, s{sT}, {SCR}")
        k.e(f"v_add_u32 v{vt3}, s{sT}, v{vt2}")
        k.lg(f"ds_read_b64 v[{vQ+8*d+6}:{vQ+8*d+7}], v{vt3}")
    k.e("s_mov_b32 exec_lo, -1")
    k.wait_all(vm=False)
    stamp(k, "B standin")
    vS2, vOA = 208, 224
    PI = {8: 0, 0: 1, 1: 2, 2: 3, 3: 4, 4: 5, 5: 6, 6: 7, 7: 8}
    kt = {}; vt = {}; st = {}
    def bop(i, d):
        return dict(K=(ar(16*i, 4), ar(16*i+4, 4)), V=(ar(16*i+8, 4), ar(16*i+12, 4)),
                    Q=(vr(vQ+8*d, 4), vr(vQ+8*d+4, 4)), O=vr(vOd(d), 16), C="0", first=(i == 0),
                    wK=(lambda i=i: ktok[i]), wV=(lambda i=i: vtok[i]))
    def aop(j):
        a = PI[j]
        C = vr(vEdge, 16) if j == 0 else vr(vDiag, 16) if j == 8 else "0"
        return dict(K=(ar(16*a, 4), ar(16*a+4, 4)), V=(ar(16*a+8, 4), ar(16*a+12, 4)), Q=(vr(vQA, 4), vr(vQA+4, 4)),
                    O=vr(vOA, 16), C=C, first=(j == 0), wK=(lambda j=j: kt[j]), wV=(lambda j=j: vt[j]))
    A0 = 48
    ops = [bop(i, d) for i in range(12) for d in (1, 2, 3, 0)] + [aop(j) for j in range(9)] + [bop(i, d) for i in range(12, 16) for d in (1, 2, 3, 0)]
    N = len(ops)
    def a_items(j):
        a = PI[j]
        def f(q):
            def g_():
                if q == 0:
                    k.e(f"s_add_i32 s{sT2}, s{sTTA}, {j-8}")
                    k.e(f"s_lshl_b32 s{sTq[2]}, s{sT2}, 12")
                    k.e(f"s_add_u32 s{sTq[2]}, s{sTq[2]}, s{sKV}")
                    k.e(f"s_cmp_lt_i32 s{sT2}, 0")
                    k.e(f"s_cselect_b32 s{sTq[2]}, {WS_BYTES}, s{sTq[2]}")
                t = k.vm(f"buffer_load_dwordx4 a[{16*a+4*q}:{16*a+4*q+3}], v{vSt}, {WS}, s{sTq[2]} offen offset:{1024*q} sc1")
                if q == 1: kt[j] = t
                if q == 3: vt[j] = t
            return g_
        return [f(q) for q in range(4)]
    strB = []
    for q, f in enumerate(tile_items(2)): strB.append((0, f))
    for i in range(3, 16):
        use = 4 * i if i < 12 else 4 * i + 9
        for q, f in enumerate(tile_items(i)): strB.append((max(use - 12 + q + 2, 0), f))
    strA = []
    for j in (8, 0, 1, 2, 3, 4, 5, 6, 7):
        for q, f in enumerate(a_items(j)): strA.append((max(29, 4 * PI[j] + 5), f))
    strW = [(8 + j, f) for j, f in enumerate(wo_items(SRD_WOA, WOA_L))] + [(58 + j, f) for j, f in enumerate(wo_items(SRD_WOB, WOB_L))]
    vR1, vR2, vR3 = 189, 190, 191
    def red_addr():
        for d, vv in ((1, vR1), (2, vR2), (3, vR3)):
            k.e(f"s_add_u32 s{sT}, s{sW}, {d}")
            k.e(f"s_and_b32 s{sT}, s{sT}, 3")
            k.e(f"s_mul_i32 s{sT}, s{sT}, {3*4096}")
            k.e(f"s_add_u32 s{sT}, s{sT}, {SCR + (d-1)*4096}")
            k.e(f"v_add_u32 v{vv}, s{sT}, v{vSt}")
        k.e(f"s_mul_i32 s{sT}, s{sW}, {3*4096}")
        k.e(f"s_add_u32 s{sT}, s{sT}, {SCR}")
        k.e(f"v_add_u32 v{vRedR}, s{sT}, v{vSt}")
    def red_write(d, i):
        vv = {1: vR1, 2: vR2, 3: vR3}[d]
        k.lg(f"ds_write_b128 v{vv}, v[{vOd(d)+4*i}:{vOd(d)+4*i+3}] offset:{1024*i}")
    def o_flag_offsets():
        k.e(f"s_lshl_b32 s{sFOA}, s{sTTA}, 2")
        k.e(f"s_lshr_b32 s{sT}, s{sHead}, 2")
        k.e(f"s_add_u32 s{sFOA}, s{sFOA}, s{sT}")
        k.e(f"s_lshl_b32 s{sFOA}, s{sFOA}, 7")
        k.e(f"s_and_b32 s{sT}, s{sHead}, 3")
        k.e(f"s_lshl_b32 s{sT}, s{sT}, 2")
        k.e(f"s_add_u32 s{sFOA}, s{sFOA}, s{sT}")
        k.e(f"s_add_u32 s{sFOB}, s{sFOA}, {FO_OFF}")
        k.e(f"s_add_u32 s{sFOA}, s{sFOA}, {FO_OFF + 64*4*128}")
    def hookB(n, g):
        if n < 0: return
        if g == 0 and strB and strB[0][0] <= n: strB.pop(0)[1]()
        if g == 3 and n < 8 and strB and strB[0][0] <= n: strB.pop(0)[1]()
        if g == 2 and stoL: stoL.pop(0)()
        elif g in (2, 3) and strA and strA[0][0] <= n: strA.pop(0)[1]()
        if g == 1 and strW and strW[0][0] <= n: st["wo"] = strW.pop(0)[1]()
        if g == 1 and n == 14:
            k.wait(vm=resL["last"])
            p1flag(1)
        if g == 0 and n == 23:
            st["pA"] = poll4_issue(k, vFlA, vPR0, 0x7f)
        if g == 0 and n == 28:
            poll4_finish(k, st["pA"], vFlA, vPR0, vPR1, vPT, 0x7f, "pa")
            k.e(f"s_lshl_b32 s{sKV}, s{sHead}, 18")
            k.e(f"s_add_u32 s{sKV}, s{sKV}, {KV_OFF['A']}")
            k.e(f"s_lshl_b32 s{sT2}, s{sHead}, 6")
            k.e(f"s_add_u32 s{sT2}, s{sT2}, s{sTTA}")
            k.e(f"s_lshl_b32 s{sQo}, s{sT2}, 11")
            k.e(f"s_add_u32 s{sQo}, s{sQo}, {Q_OFF['A']}")
            k.vm(f"buffer_load_dwordx4 v[{vQA}:{vQA+3}], v{vSt}, {WS}, s{sQo} offen sc1")
            st["qa"] = k.vm(f"buffer_load_dwordx4 v[{vQA+4}:{vQA+7}], v{vSt}, {WS}, s{sQo} offen offset:1024 sc1")
        if g == 1 and n == 38:
            k.e(f"v_mov_b32 v{vt1}, {f2u(NEGBIG):#x}")
            for i in range(16): k.e(f"v_sub_f32 v{vEdge+i}, v{vt1}, v{vDiag+i}")
        if g == 1 and n == 40:
            k.wait(vm=max(kt[8], st["qa"]))
            mfma(k, vr(vS2, 16), ar(0, 4), vr(vQA, 4), vr(vDiag, 16))
            mfma(k, vr(vS2, 16), ar(4, 4), vr(vQA + 4, 4), vr(vS2, 16))
        if g == 1 and n == 42:
            colmax(k, vS2, vt3, vt0)
            k.e(f"v_add_f32 v{vt3}, {f2u(MARGIN):#x}, v{vt3}")
            shift_dwords(k, vt3, vt0, vt1, vt2)
            k.e("s_mov_b32 exec_lo, 0")
            k.e(f"v_mov_b32 v{vQA+6}, v{vt0}")
            k.e(f"v_mov_b32 v{vQA+7}, v{vt1}")
            k.e("s_mov_b32 exec_lo, -1")
        if g == 1 and n == A0 + 11:
            finalize_o(k, vOA, vt0, vt1, vOf)
            k.e(f"s_lshl_b32 s{sT}, s{sTTA}, 4")
            k.e(f"s_add_u32 s{sT}, s{sT}, s{sHead}")
            k.e(f"s_lshl_b32 s{sOo}, s{sT}, 11")
            k.e(f"s_add_u32 s{sOo}, s{sOo}, {O_OFF['A']}")
            k.vm(f"buffer_store_dwordx4 v[{vOf}:{vOf+3}], v{vSt}, {WS}, s{sOo} offen sc1")
            st["oa"] = k.vm(f"buffer_store_dwordx4 v[{vOf+4}:{vOf+7}], v{vSt}, {WS}, s{sOo} offen offset:1024 sc1")
            o_flag_offsets()
        if g == 1 and n == A0 + 18:
            k.wait(vm=st["oa"])
            store_flag(k, vt0, vt1, sFOA)
        if g == 1 and n == N - 6:
            red_addr()
        if n == N - 1: red_write(1, g)
        if n == N and g < 2:
            red_write(2, 2 * g); red_write(2, 2 * g + 1)
    attn_pipeline(k, ops, vS, vP, hookB)
    assert not strB and not strA and not stoL and not strW, (len(strB), len(strA), len(stoL), len(strW))
    stamp(k, "attn done")
    k.e(f"s_lshl_b32 s{sT}, s{sP3T}, 3")
    k.e(f"v_add_u32 v{vFlB}, s{sT}, v{vLane}")
    k.e(f"v_lshlrev_b32 v{vFlB}, 7, v{vFlB}")
    k.e(f"v_add_u32 v{vFlA}, {FO_OFF + 64*4*128}, v{vFlB}")
    k.e(f"v_add_u32 v{vFlB}, {FO_OFF}, v{vFlB}")
    tpA = poll4_issue(k, vFlA, vPR0, 0xff)
    k.nop(4)
    for i in range(4): red_write(3, i)
    k.wait_all(vm=False)
    k.e("s_barrier")
    for j in range(3):
        for i in range(4):
            k.lg(f"ds_read_b128 v[{vTmp+16*j+4*i}:{vTmp+16*j+4*i+3}], v{vRedR} offset:{4096*j+1024*i}")
    for j in range(3):
        k.wait(lg=k.lg_n - 4 * (2 - j))
        for i in range(0, 16, 2):
            k.e(f"v_pk_add_f32 v[{vOd(0)+i}:{vOd(0)+i+1}], v[{vOd(0)+i}:{vOd(0)+i+1}], v[{vTmp+16*j+i}:{vTmp+16*j+i+1}]")
    finalize_o(k, vOd(0), vt0, vt1, vOf)
    k.e(f"s_lshl_b32 s{sT}, s{sTTA}, 4")
    k.e(f"s_add_u32 s{sT}, s{sT}, s{sHead}")
    k.e(f"s_lshl_b32 s{sOo}, s{sT}, 11")
    k.e(f"s_add_u32 s{sOo}, s{sOo}, {O_OFF['B']}")
    k.vm(f"buffer_store_dwordx4 v[{vOf}:{vOf+3}], v{vSt}, {WS}, s{sOo} offen sc1")
    ob = k.vm(f"buffer_store_dwordx4 v[{vOf+4}:{vOf+7}], v{vSt}, {WS}, s{sOo} offen offset:1024 sc1")
    stamp(k, "O(B) stored")
    Lp3 = k.newlabel("p3")
    k.e(f"s_cmp_lt_u32 s2, 224")
    k.e(f"s_cbranch_scc1 {Lp3}")
    k.e("s_waitcnt vmcnt(0)")
    k.e(f"v_mov_b32 v{vt0}, 0")
    k.e(f"v_mov_b32 v{vt1}, s{sNonce}")
    k.e(f"s_mov_b64 exec, 1")
    k.e(f"buffer_store_dword v{vt1}, v{vt0}, {WS}, s{sFOB} offen sc1")
    k.e(f"s_endpgm")
    k.label(Lp3)
    vWrB, vWrA, vWrBc, vWrAc, vOr, vOut = 16, 17, 18, 19, 189, 190
    k.e(f"v_mov_b32 v{vWrB}, v{vP3a}")
    k.e(f"v_add_u32 v{vWrA}, {WOA_L}, v{vP3a}")
    k.e(f"v_lshrrev_b32 v{vt0}, 5, v{vLane}")
    k.e(f"v_lshlrev_b32 v{vt0}, 9, v{vt0}")
    k.e(f"v_sub_u32 v{vWrBc}, v{vWrB}, v{vt0}")
    k.e(f"v_sub_u32 v{vWrAc}, v{vWrA}, v{vt0}")
    k.e(f"v_and_b32 v{vt0}, 31, v{vLane}")
    k.e(f"v_mul_u32_u24 v{vt0}, 1792, v{vt0}")
    k.e(f"v_lshrrev_b32 v{vt1}, 5, v{vLane}")
    k.e(f"v_lshl_add_u32 v{vOut}, v{vt1}, 4, v{vt0}")
    poll4_finish(k, tpA, vFlA, vPR0, vPR1, vPT, 0xff, "poA")
    stamp(k, "P3A flags")
    k.e(f"s_lshl_b32 s{sT}, s{sP3T}, 1")
    k.e(f"s_lshr_b32 s{sT2}, s{sW}, 1")
    k.e(f"s_add_u32 s{sTT}, s{sT}, s{sT2}")
    k.e(f"s_lshl_b32 s{sKV}, s{sTT}, 15")
    k.e(f"s_add_u32 s{sKV}, s{sKV}, {O_OFF['A']}")
    at = {}
    for step in range(32):
        if step % 4 == 0: k.e(f"s_add_u32 s{sTo}, s{sKV}, {1024*step}")
        at[step] = k.vm(f"buffer_load_dwordx4 a[{4*step}:{4*step+3}], v{vSt}, {WS}, s{sTo} offen offset:{1024*(step%4)} sc1")
        if step == 19:
            k.wait(vm=ob)
            store_flag(k, vt0, vt1, sFOB)
    NB = 4
    vA3, vB3, vD3, vPk = 36, 52, 68, 84
    def rdA(step, vW, vWc):
        hd, kk = step // 2, step % 2
        par = step % NB
        row = 28 * hd + 16 * kk
        a2 = vWc if (hd == 15 and kk == 1) else vW
        k.lg(f"ds_read_b64_tr_b16 v[{vA3+4*par}:{vA3+4*par+1}], v{vW} offset:{row*128}")
        return k.lg(f"ds_read_b64_tr_b16 v[{vA3+4*par+2}:{vA3+4*par+3}], v{a2} offset:{(row+8)*128}")
    def out_store(b):
        k.nop(12)
        for i in range(8): k.e(f"v_cvt_pk_bf16_f32 v{vPk+i}, v{vD3+2*i}, v{vD3+2*i+1}")
        k.e(f"s_lshl_b32 s{sT2}, s{sCT}, 1")
        k.e(f"s_and_b32 s{sT}, s{sW}, 1")
        k.e(f"s_add_u32 s{sT2}, s{sT2}, s{sT}")
        k.e(f"v_permlane32_swap_b32 v{vPk}, v{vPk+2}")
        k.e(f"v_permlane32_swap_b32 v{vPk+1}, v{vPk+3}")
        k.e(f"v_permlane32_swap_b32 v{vPk+4}, v{vPk+6}")
        k.e(f"v_permlane32_swap_b32 v{vPk+5}, v{vPk+7}")
        k.e(f"s_mul_i32 s{sOo}, s{sTT}, {32*1792}")
        k.e(f"s_lshl_b32 s{sT}, s{sT2}, 6")
        k.e(f"s_add_u32 s{sOo}, s{sOo}, s{sT}")
        if b == "B": k.e(f"s_add_u32 s{sOo}, s{sOo}, 896")
        k.vm(f"buffer_store_dwordx4 v[{vPk}:{vPk+3}], v{vOut}, s[{SRD_OUT}:{SRD_OUT+3}], s{sOo} offen")
        k.vm(f"buffer_store_dwordx4 v[{vPk+4}:{vPk+7}], v{vOut}, s[{SRD_OUT}:{SRD_OUT+3}], s{sOo} offen offset:32")
    k.c("---- P3 A  (wo(A) was waited for long ago by later counted waits; make it explicit)")
    k.wait(vm=st["wo"])
    k.e("s_barrier")
    toks = {}
    for s_ in range(NB - 1): toks[s_] = rdA(s_, vWrA, vWrAc)
    for step in range(32):
        k.wait(vm=at[step], lg=toks[step])
        par = step % NB
        mfma(k, vr(vD3, 16), vr(vA3 + 4 * par, 4), ar(4 * step, 4), "0" if step == 0 else vr(vD3, 16))
        if step + NB - 1 < 32: toks[step + NB - 1] = rdA(step + NB - 1, vWrA, vWrAc)
    tpB = poll4_issue(k, vFlB, vPR0, 0xff)
    out_store("A")
    stamp(k, "P3A done")
    k.e("s_barrier")
    poll4_finish(k, tpB, vFlB, vPR0, vPR1, vPT, 0xff, "poB")
    stamp(k, "P3B flags")
    k.e(f"s_lshl_b32 s{sOo}, s{sP3T}, 16")
    k.e(f"s_add_u32 s{sOo}, s{sOo}, {O_OFF['B']}")
    k.e(f"s_lshl_b32 s{sT}, s{sW}, 14")
    k.e(f"s_add_u32 s{sOo}, s{sOo}, s{sT}")
    k.e(f"s_add_u32 s{sT2}, s{sT}, {WOA_L}")
    for j in range(16):
        if j % 4 == 0:
            k.e(f"s_add_u32 m0, s{sT2}, {1024*j}")
            k.e(f"s_add_u32 s{sT}, s{sOo}, {1024*j}")
        k.vm(f"buffer_load_dwordx4 v{vSt}, {WS}, s{sT} offen offset:{1024*(j%4)} sc1 lds")
    k.e(f"s_lshr_b32 s{sT}, s{sW}, 1")
    k.e(f"s_lshl_b32 s{sT}, s{sT}, 15")
    k.e(f"s_add_u32 s{sT}, s{sT}, {WOA_L}")
    k.e(f"v_add_u32 v{vOr}, s{sT}, v{vSt}")
    toks = {}
    for s_ in range(NB - 1): toks[s_] = rdA(s_, vWrB, vWrBc)
    k.wait_all(vm=True, lg=False)
    k.e("s_barrier")
    stamp(k, "P3B data")
    tb = {}
    def rdB(step):
        par = step % NB
        return k.lg(f"ds_read_b128 v[{vB3+4*par}:{vB3+4*par+3}], v{vOr} offset:{step*1024}")
    for s_ in range(NB - 1): tb[s_] = rdB(s_)
    for step in range(32):
        k.wait(lg=max(toks[step], tb[step]))
        par = step % NB
        mfma(k, vr(vD3, 16), vr(vA3 + 4 * par, 4), vr(vB3 + 4 * par, 4), "0" if step == 0 else vr(vD3, 16))
        if step + NB - 1 < 32:
            toks[step + NB - 1] = rdA(step + NB - 1, vWrB, vWrBc)
            tb[step + NB - 1] = rdB(step + NB - 1)
    out_store("B")
    stamp(k, "P3B done")
    stamp(k, "rt", True)
    stamp_flush(k, vt0, vt1)
    k.label("L_end")
    k.e("s_endpgm")
    return k

HEADER = open("cdna_kernels/" + NAME + ".s.ref").read().split("; Override")[0]

def main(out):
    k = gen()
    pr = check(k.L, "fused")
    for p in pr: print(p)
    print("instrs", len(k.L), "stamps", St.n, St.names)
    s = HEADER
    s += "; @launch grid=(256,1,1) block=(256,1,1) lds=163840\n"
    s += '.amdgcn_target "amdgcn-amd-amdhsa--gfx950"\n.text\n'
    s += f".globl {KNAME}\n.p2align 8\n.type {KNAME},@function\n{KNAME}:\n" + k.text()
    s += f""".section .rodata,"a"
.p2align 6
.amdhsa_kernel {KNAME}
  .amdhsa_next_free_vgpr 512
  .amdhsa_next_free_sgpr 102
  .amdhsa_accum_offset 256
  .amdhsa_group_segment_fixed_size 0
  .amdhsa_kernarg_size 72
  .amdhsa_user_sgpr_count 2
  .amdhsa_user_sgpr_kernarg_segment_ptr 1
  .amdhsa_system_sgpr_workgroup_id_x 1
.end_amdhsa_kernel
"""
    open(out, "w").write(s)

if __name__ == "__main__":
    main(sys.argv[1] if len(sys.argv) > 1 else "f3.s")
```

```python
import sys, math, struct, os
sys.path.insert(0, "gen")
from asmlib import Emit, check

NAME = "concat_heads__sliding_block__softmax_full_mha__prompt"
KNAME = NAME + "_kernel"
def f2u(x): return struct.unpack("<I", struct.pack("<f", x))[0]

KV_OFF = {"B": 0, "A": 4 << 20}
O_OFF = {"B": 8 << 20, "A": 10 << 20}
Q_OFF = {"B": 12 << 20, "A": 14 << 20}
FP1_OFF = 16 << 20
FO_OFF = (16 << 20) + (256 << 10)
NONCE_OFF = (16 << 20) + (768 << 10)
STAMPS = 17 << 20
WS_BYTES = 18 << 20
X_BYTES = 2048 * 896
W_BYTES = 448 * 2688
WO_BYTES = 448 * 896
OUT_BYTES = 2048 * 1792
QSCALE = (28 ** -0.5) * math.log2(math.e)
MARGIN = 64.0
NEGBIG = -1.0e30
MAPB = os.environ.get('MAPB', '0') == '1'
STAMP = os.environ.get("STAMP", "0") in ("1", "2")
STAMPDBG = os.environ.get("STAMP", "0") == "2"
DBGWG = int(os.environ.get("DBGWG", "100"))
SKIP = set(os.environ.get("SKIP", "").split(","))
SPIN_MAX = 1 << 18
SCR = 114688

class V:
    def __init__(self, lo, hi): self.n = lo; self.hi = hi
    def a(self, cnt=1, al=1):
        self.n = (self.n + al - 1) // al * al
        r = self.n; self.n += cnt
        assert self.n <= self.hi, "out of regs"
        return r

def vr(b, n=1): return f"v{b}" if n == 1 else f"v[{b}:{b+n-1}]"
def ar(b, n=1): return f"a{b}" if n == 1 else f"a[{b}:{b+n-1}]"
def mfma(k, d, a, b, c): k.e(f"v_mfma_f32_32x32x16_bf16 {d}, {a}, {b}, {c}")

S_PTR = 4
SRD_XB, SRD_WB, SRD_WS, SRD_OUT, SRD_XA, SRD_WA = 24, 28, 32, 36, 40, 44
SRD_WO = 4
sWmask = 96
sW, sBeta, sU, sR, sT, sT2, sT3 = 48, 49, 50, 51, 52, 53, 54
sOff, sXbase, sWcol, sM0X, sM0W, sC, sXo, sWo, sWo2 = 55, 56, 57, 58, 59, 60, 61, 62, 63
sVmask = 64
sNonce = 66
sHead, sTT, sKV, sTo, sQo, sOo, sSpin = 67, 68, 69, 70, 71, 72, 73
sCT, sP3T = 74, 75
sEx = 76
sStampTmp = 78
sRA = 80
sUQ, sUK, sUV = 81, 82, 83
sFOA, sFOB, sKVB, sRot, sOffU, sTTA = 84, 85, 86, 87, 88, 89
sMk = 90
sD0 = 22
WS = f"s[{SRD_WS}:{SRD_WS+3}]"

def srd(k, s, lo, size):
    k.e(f"s_mov_b32 s{s}, s{lo}")
    k.e(f"s_and_b32 s{s+1}, s{lo+1}, 0xffff")
    k.e(f"s_mov_b32 s{s+2}, {size}")
    k.e(f"s_mov_b32 s{s+3}, 0x20000")

class St:
    n = 0; v = 15; names = []
def stamp(k, name="", rt=False):
    if not STAMP: return
    if STAMPDBG and (rt or name in SKIP): return
    i = St.n; St.n += 1; St.names.append(name)
    assert i < 32
    k.e(f"{'s_memrealtime' if rt else 's_memtime'} s[{sStampTmp}:{sStampTmp+1}]")
    k.wait_all(vm=False, lg=True)
    k.e(f"v_writelane_b32 v{St.v}, s{sStampTmp}, {i}")
def stamp_flush(k, vt0, vt1):
    if not STAMP: return
    if STAMPDBG:
        L = k.newlabel("sf")
        k.e(f"s_lshl_b32 s{sStampTmp}, s2, 2")
        k.e(f"s_add_u32 s{sStampTmp}, s{sStampTmp}, s{sW}")
        k.e(f"s_cmp_lg_u32 s{sStampTmp}, {DBGWG*4}")
        k.e(f"s_cbranch_scc1 {L}")
        k.e(f"v_readlane_b32 s{sStampTmp}, v{St.v}, 0")
        k.e(f"v_and_b32 v{vt0}, 63, v0")
        k.e(f"v_lshlrev_b32 v{vt0}, 2, v{vt0}")
        k.e(f"v_subrev_u32 v{vt1}, s{sStampTmp}, v{St.v}")
        k.e(f"s_mov_b64 exec, 0xfffe")
        k.e(f"global_store_dword v{vt0}, v{vt1}, s[18:19]")
        k.e(f"s_mov_b64 exec, -1")
        k.label(L)
        return
    k.e(f"v_lshrrev_b32 v{vt0}, 6, v0")
    k.e(f"s_lshl_b32 s{sStampTmp}, s2, 2")
    k.e(f"v_add_u32 v{vt0}, s{sStampTmp}, v{vt0}")
    k.e(f"v_lshlrev_b32 v{vt0}, 7, v{vt0}")
    k.e(f"v_and_b32 v{vt1}, 63, v0")
    k.e(f"v_lshl_add_u32 v{vt0}, v{vt1}, 2, v{vt0}")
    k.e(f"s_mov_b32 s{sStampTmp}, {STAMPS}")
    k.e(f"s_mov_b32 exec_hi, 0")
    k.vm(f"buffer_store_dword v{St.v}, v{vt0}, {WS}, s{sStampTmp} offen")
    k.e(f"s_mov_b64 exec, -1")

def build_masks(k, vDiag, vEdge, vLane, t0, t1):
    k.e(f"v_and_b32 v{t0}, 31, v{vLane}")
    k.e(f"v_lshrrev_b32 v{t1}, 5, v{vLane}")
    k.e(f"v_lshlrev_b32 v{t1}, 2, v{t1}")
    k.e(f"v_sub_u32 v{t0}, v{t0}, v{t1}")
    k.e(f"v_mov_b32 v{t1}, {f2u(NEGBIG):#x}")
    prs = [sMk, sMk + 2, sMk + 4]
    def cmp(i):
        b = 8 * (i // 4) + (i % 4); p = prs[i % 3]
        k.e(f"v_cmp_le_i32_e64 s[{p}:{p+1}], {b}, v{t0}")
    cmp(0); cmp(1)
    for i in range(16):
        if i + 2 < 16: cmp(i + 2)
        else: k.nop(1)
        p = prs[i % 3]
        k.e(f"v_cndmask_b32_e64 v{vDiag+i}, v{t1}, 0, s[{p}:{p+1}]")
        k.e(f"v_cndmask_b32_e64 v{vEdge+i}, 0, v{t1}, s[{p}:{p+1}]")

def colmax(k, vS, vm, vt):
    k.e(f"v_max3_f32 v{vm}, v{vS}, v{vS+1}, v{vS+2}")
    k.e(f"v_max3_f32 v{vt}, v{vS+3}, v{vS+4}, v{vS+5}")
    k.e(f"v_max3_f32 v{vm}, v{vm}, v{vS+6}, v{vS+7}")
    k.e(f"v_max3_f32 v{vt}, v{vt}, v{vS+8}, v{vS+9}")
    k.e(f"v_max3_f32 v{vm}, v{vm}, v{vS+10}, v{vS+11}")
    k.e(f"v_max3_f32 v{vt}, v{vt}, v{vS+12}, v{vS+13}")
    k.e(f"v_max3_f32 v{vm}, v{vm}, v{vS+14}, v{vS+15}")
    k.e(f"v_max_f32 v{vm}, v{vm}, v{vt}")
    k.e(f"v_mov_b32 v{vt}, v{vm}")
    k.nop(2)
    k.e(f"v_permlane32_swap_b32 v{vm}, v{vt}")
    k.e(f"v_max_f32 v{vm}, v{vm}, v{vt}")

def shift_dwords(k, vm, t0, t1, t2):
    k.e(f"v_and_b32 v{t0}, 0xffff0000, v{vm}")
    k.e(f"v_sub_f32 v{t1}, v{vm}, v{t0}")
    k.e(f"v_and_b32 v{t2}, 0xffff0000, v{t1}")
    k.e(f"v_sub_f32 v{t1}, v{t1}, v{t2}")
    k.e(f"v_lshrrev_b32 v{t0}, 16, v{t0}")
    k.e(f"v_or_b32 v{t0}, v{t0}, v{t2}")
    k.e(f"v_xor_b32 v{t0}, 0x80008000, v{t0}")
    k.e(f"v_lshrrev_b32 v{t1}, 16, v{t1}")
    k.e(f"v_xor_b32 v{t1}, 0x8000, v{t1}")

def poll_flags(k, vAddr, vTmp, mask64, name):
    L = k.newlabel(name); Ld = k.newlabel(name + "d")
    k.e(f"s_mov_b32 s{sSpin}, 0")
    k.e(f"s_mov_b32 exec_hi, {(mask64 >> 32) & 0xffffffff:#x}")
    k.e(f"s_mov_b32 exec_lo, {mask64 & 0xffffffff:#x}")
    k.label(L)
    k.e(f"buffer_load_dword v{vTmp}, v{vAddr}, {WS}, 0 offen sc1")
    k.e(f"s_add_u32 s{sSpin}, s{sSpin}, 1")
    k.e(f"s_waitcnt vmcnt(0)")
    k.e(f"v_cmp_ne_u32 vcc, s{sNonce}, v{vTmp}")
    k.e(f"s_cmp_gt_u32 s{sSpin}, {SPIN_MAX}")
    k.e(f"s_cbranch_scc1 {Ld}")
    k.e(f"s_cbranch_vccnz {L}")
    k.label(Ld)
    k.e(f"s_mov_b64 exec, -1")
    k.vm_done = k.vm_n

def store_flag(k, vZero, vVal, s_off):
    k.e(f"v_mov_b32 v{vZero}, 0")
    k.e(f"v_mov_b32 v{vVal}, s{sNonce}")
    k.e(f"s_mov_b64 exec, 1")
    t = k.vm(f"buffer_store_dword v{vVal}, v{vZero}, {WS}, s{s_off} offen sc1")
    k.e(f"s_mov_b64 exec, -1")
    return t

def attn_pipeline(k, ops, vS, vP, hook=None):
    N = len(ops)
    def val(x): return x() if callable(x) else x
    def qk(n, part):
        o = ops[n]; S = vr(vS + 16 * (n % 2), 16)
        if part == 0:
            k.wait(vm=val(o.get("wK")), lg=val(o.get("lK")))
            mfma(k, S, o["K"][0], o["Q"][0], o["C"])
        else:
            mfma(k, S, o["K"][1], o["Q"][1], S)
    def pv(n, part):
        o = ops[n]; P = vP + 8 * (n % 2)
        if part == 0:
            k.wait(vm=val(o.get("wV")), lg=val(o.get("lV")))
            mfma(k, o["O"], o["V"][0], vr(P, 4), "0" if o["first"] else o["O"])
        else:
            mfma(k, o["O"], o["V"][1], vr(P + 4, 4), o["O"])
    def expgrp(n, g):
        S = vS + 16 * (n % 2); P = vP + 8 * (n % 2)
        for i in range(4):
            k.e(f"v_exp_f32 v{S+4*g+i}, v{S+4*g+i}")
        k.e(f"v_cvt_pk_bf16_f32 v{P+2*g}, v{S+4*g}, v{S+4*g+1}")
        k.e(f"v_cvt_pk_bf16_f32 v{P+2*g+1}, v{S+4*g+2}, v{S+4*g+3}")
    for n in range(-1, N + 1):
        has_exp = 0 <= n < N
        for g in range(4):
            if g < 2 and n + 1 < N: qk(n + 1, g)
            if g >= 2 and 0 <= n - 1: pv(n - 1, g - 2)
            if hook: hook(n, g)
            if has_exp: expgrp(n, g)
        if n == -1: k.nop(12)
        if n == N - 1: k.nop(2)

def finalize_o(k, vO, vt0, vt1, vOf):
    k.e(f"v_mov_b32 v{vt0}, v{vO+12}")
    k.e(f"v_mov_b32 v{vt1}, v{vO+12}")
    k.nop(2)
    k.e(f"v_permlane32_swap_b32 v{vt0}, v{vt1}")
    k.e(f"v_rcp_f32 v{vt1}, v{vt1}")
    k.nop(1)
    for i in range(16):
        k.e(f"v_mul_f32 v{vO+i}, v{vO+i}, v{vt1}")
    for i in range(8):
        k.e(f"v_cvt_pk_bf16_f32 v{vOf+i}, v{vO+2*i}, v{vO+2*i+1}")
    k.e("s_mov_b32 exec_lo, 0")
    k.e(f"v_mov_b32 v{vOf+6}, 0")
    k.e(f"v_mov_b32 v{vOf+7}, 0")
    k.e("s_mov_b32 exec_lo, -1")

def div6(k, dst, src, tmp):
    k.e(f"s_mul_i32 s{dst}, s{src}, 43")
    k.e(f"s_lshr_b32 s{dst}, s{dst}, 8")


def async_poll_issue(k, vAddr, vRes, mask64):
    k.e(f"s_mov_b32 exec_hi, {(mask64 >> 32) & 0xffffffff:#x}")
    k.e(f"s_mov_b32 exec_lo, {mask64 & 0xffffffff:#x}")
    t = k.vm(f"buffer_load_dword v{vRes}, v{vAddr}, {WS}, 0 offen sc1")
    k.e(f"s_mov_b64 exec, -1")
    return t

def async_poll_check(k, tok, vAddr, vRes, mask64, name):
    L = k.newlabel(name); Ld = k.newlabel(name + "d")
    k.wait(vm=tok)
    k.e(f"s_mov_b32 exec_hi, {(mask64 >> 32) & 0xffffffff:#x}")
    k.e(f"s_mov_b32 exec_lo, {mask64 & 0xffffffff:#x}")
    k.e(f"v_cmp_ne_u32 vcc, s{sNonce}, v{vRes}")
    k.e(f"s_mov_b32 s{sSpin}, 0")
    k.e(f"s_cbranch_vccz {Ld}")
    k.label(L)
    k.e(f"buffer_load_dword v{vRes}, v{vAddr}, {WS}, 0 offen sc1")
    k.e(f"s_add_u32 s{sSpin}, s{sSpin}, 1")
    k.e(f"s_waitcnt vmcnt(0)")
    k.e(f"v_cmp_ne_u32 vcc, s{sNonce}, v{vRes}")
    k.e(f"s_cmp_gt_u32 s{sSpin}, {SPIN_MAX}")
    k.e(f"s_cbranch_scc1 {Ld}")
    k.e(f"s_cbranch_vccnz {L}")
    k.label(Ld)
    k.e(f"s_mov_b64 exec, -1")

def chk4(k, vR, vT):
    k.e(f"v_xor_b32 v{vT}, s{sNonce}, v{vR}")
    k.e(f"v_xor_b32 v{vR+1}, s{sNonce}, v{vR+1}")
    k.e(f"v_xor_b32 v{vR+2}, s{sNonce}, v{vR+2}")
    k.e(f"v_xor_b32 v{vR+3}, s{sNonce}, v{vR+3}")
    k.e(f"v_or3_b32 v{vT}, v{vT}, v{vR+1}, v{vR+2}")
    k.e(f"v_or_b32 v{vT}, v{vT}, v{vR+3}")
    k.e(f"v_cmp_ne_u32 vcc, 0, v{vT}")

def poll4_issue(k, vAddr, vR, mask):
    k.e(f"s_mov_b64 exec, {mask:#x}")
    t = k.vm(f"buffer_load_dwordx4 v[{vR}:{vR+3}], v{vAddr}, {WS}, 0 offen sc1")
    k.e(f"s_mov_b64 exec, -1")
    return t

def poll4_finish(k, tok, vAddr, vR0, vR1, vT, mask, name):
    L = k.newlabel(name); Ld = k.newlabel(name + "d")
    k.wait(vm=tok)
    k.e(f"s_mov_b64 exec, {mask:#x}")
    chk4(k, vR0, vT)
    k.e(f"s_mov_b32 s{sSpin}, 0")
    k.e(f"s_cbranch_vccz {Ld}")
    k.e(f"buffer_load_dwordx4 v[{vR0}:{vR0+3}], v{vAddr}, {WS}, 0 offen sc1")
    k.label(L)
    k.e(f"buffer_load_dwordx4 v[{vR1}:{vR1+3}], v{vAddr}, {WS}, 0 offen sc1")
    k.e(f"s_waitcnt vmcnt(1)")
    chk4(k, vR0, vT)
    k.e(f"s_add_u32 s{sSpin}, s{sSpin}, 1")
    k.e(f"s_cbranch_vccz {Ld}")
    k.e(f"buffer_load_dwordx4 v[{vR0}:{vR0+3}], v{vAddr}, {WS}, 0 offen sc1")
    k.e(f"s_waitcnt vmcnt(1)")
    chk4(k, vR1, vT)
    k.e(f"s_cmp_gt_u32 s{sSpin}, {SPIN_MAX}")
    k.e(f"s_cbranch_scc1 {Ld}")
    k.e(f"s_cbranch_vccnz {L}")
    k.label(Ld)
    k.e(f"s_mov_b64 exec, -1")

def div3(k, dst, src):
    k.e(f"s_mul_i32 s{dst}, s{src}, 43")
    k.e(f"s_lshr_b32 s{dst}, s{dst}, 7")


BARS = eval(os.environ.get('BARS', '(0, 6, 7, 8, 10, 13)'))
DBG = os.environ.get('DBG', '')
def gen():
    k = Emit()
    St.n = 0; St.names = []
    k.e("s_cmp_ge_u32 s2, 256")
    k.e("s_cbranch_scc1 L_end")
    k.e(f"s_load_dwordx16 s[{S_PTR}:{S_PTR+15}], s[0:1], 0")
    k.e(f"s_load_dwordx2 s[20:21], s[0:1], 64")
    G = V(1, 15)
    vLane = G.a(); vSt = G.a(); vt0 = G.a(); vt1 = G.a(); vt2 = G.a(); vt3 = G.a(); vWoD = G.a()
    vFlB = G.a(); vFlA = G.a(); vVw = G.a(); vVr = G.a(); vP3a = G.a()
    stamp(k, "start"); stamp(k, "rt", True)
    k.e(f"v_and_b32 v{vLane}, 63, v0")
    k.e(f"v_lshrrev_b32 v{vt0}, 6, v0")
    k.e(f"s_and_b32 s{sT}, s2, 7")
    k.e(f"v_readfirstlane_b32 s{sW}, v{vt0}")
    k.e(f"s_lshr_b32 s{sT2}, s2, 3")
    k.e(f"s_and_b32 s{sU}, s{sT2}, 7")
    k.e(f"s_lshr_b32 s{sR}, s{sT2}, 3")
    k.e(f"s_lshl_b32 s{sOff}, s{sR}, 1")
    k.e(f"s_add_u32 s{sOff}, s{sOff}, s{sU}")
    k.e(f"s_sub_u32 s{sC}, s{sOff}, 7")
    k.e(f"s_min_u32 s{sOff}, s{sOff}, s{sC}")
    k.e(f"s_and_b32 s{sT3}, s{sT}, 1")
    k.e(f"s_lshl_b32 s{sT3}, s{sT3}, 3")
    k.e(f"s_add_u32 s{sU}, s{sU}, s{sT3}")
    k.e(f"s_lshr_b32 s{sT3}, s{sT}, 1")
    k.e(f"s_lshl_b32 s{sT3}, s{sT3}, 2")
    k.e(f"s_add_u32 s{sR}, s{sR}, s{sT3}")
    k.e(f"s_mul_i32 s{sXbase}, s{sR}, {128*896}")
    k.e(f"s_mul_i32 s{sWcol}, s{sU}, 168")
    k.e(f"s_and_b32 s{sOffU}, s{sWcol}, 127")
    k.e(f"s_andn2_b32 s{sWcol}, s{sWcol}, 127")
    k.e(f"s_mov_b32 s{sWmask}, 0xf0ffffff")
    k.e(f"s_mov_b32 s{sWmask+1}, 0x000fffff")
    k.e(f"s_cmp_le_u32 s{sOffU}, 88")
    k.e(f"s_cselect_b32 s{sWmask}, 0xf000ffff, s{sWmask}")
    k.e(f"s_cselect_b32 s{sWmask+1}, 0x00000fff, s{sWmask+1}")
    R = V(16, 256)
    vXo = R.a(4); vWo = R.a(4); vXr = R.a(4); vWr = R.a(6)
    vXf = R.a(8, 4); vWf = R.a(24, 4)
    accs = [[R.a(16, 4) for _ in range(3)] for _ in range(2)]
    assert accs[0][0] == 68 and accs[1][0] == 116
    FB, FA, vTr = 164, 192, 216
    XSLOT = 16640; WSLOT = 28672; WBASE = 3 * XSLOT; VSCR = WBASE + 3 * WSLOT
    k.e(f"v_lshrrev_b32 v{vt0}, 3, v{vLane}")
    k.e(f"v_bfe_u32 v{vt1}, v{vLane}, 4, 1")
    k.e(f"v_lshlrev_b32 v{vt1}, 2, v{vt1}")
    k.e(f"v_and_b32 v{vt2}, 7, v{vLane}")
    k.e(f"v_xor_b32 v{vt1}, v{vt1}, v{vt2}")
    k.e(f"v_lshrrev_b32 v{vt2}, 6, v0")
    k.e(f"v_lshl_add_u32 v{vt3}, v{vt2}, 5, v{vt0}")
    k.e(f"v_mul_u32_u24 v{vt3}, 896, v{vt3}")
    k.e(f"v_lshl_add_u32 v{vXo}, v{vt1}, 4, v{vt3}")
    for j in range(1, 4):
        k.e(f"v_add_u32 v{vXo+j}, {j*(8*896-1040)}, v{vXo}")
    k.e(f"v_cmp_le_u32 vcc, 28, v{vLane}")
    k.e(f"v_lshlrev_b32 v{vt3}, 4, v{vt2}")
    k.e(f"v_mul_u32_u24 v{vt3}, 2688, v{vt3}")
    k.e(f"v_cndmask_b32_e64 v{vt0}, 0, 1, vcc")
    k.e(f"v_mul_u32_u24 v{vt1}, {2688 - 28*16}, v{vt0}")
    k.e(f"v_lshl_add_u32 v{vt1}, v{vLane}, 4, v{vt1}")
    k.e(f"v_add_u32 v{vWo}, v{vt1}, v{vt3}")
    for j in range(1, 4):
        k.e(f"v_add_u32 v{vWo+j}, {j*(5376-896)}, v{vWo}")
    k.e(f"s_mul_i32 s{sM0X}, s{sW}, 4160")
    k.e(f"s_mul_i32 s{sM0W}, s{sW}, 7168")
    k.e(f"s_add_u32 s{sM0W}, s{sM0W}, {WBASE}")
    k.e("s_waitcnt lgkmcnt(0)")
    srd(k, SRD_XB, 10, X_BYTES); srd(k, SRD_WB, 12, W_BYTES)
    dma_tok = {}
    def dma_list(g):
        slot = g % 3; b = g // 7; i0 = g % 7
        sx = SRD_XB if b == 0 else SRD_XA; sw = SRD_WB if b == 0 else SRD_WA
        X = f"s[{sx}:{sx+3}]"; W = f"s[{sw}:{sw+3}]"
        L = []
        def head():
            k.e(f"s_add_u32 s{sC}, s{sOff}, {i0}")
            k.e(f"s_sub_u32 s{sT}, s{sC}, 7")
            k.e(f"s_min_u32 s{sC}, s{sC}, s{sT}")
            k.e(f"s_lshl_b32 s{sXo}, s{sC}, 7")
            k.e(f"s_add_u32 s{sXo}, s{sXo}, s{sXbase}")
            k.e(f"s_mul_i32 s{sWo}, s{sC}, {64*2688}")
            k.e(f"s_add_u32 s{sWo}, s{sWo}, s{sWcol}")
            k.e(f"s_add_u32 s{sWo2}, s{sWo}, {4*5376}")
            k.e(f"s_add_u32 m0, s{sM0X}, {slot*XSLOT}")
            k.e("s_nop 0")
        def xj(j):
            def f():
                if j == 0: head()
                k.vm(f"buffer_load_dwordx4 v{vXo+j}, {X}, s{sXo} offen offset:{1040*j} lds")
            return f
        def wi(i):
            def f():
                if i % 4 == 0: k.e(f"s_add_u32 m0, s{sM0W}, {slot*WSLOT + (i//4)*3584}")
                k.e(f"s_mov_b64 exec, s[{sWmask}:{sWmask+1}]")
                t = k.vm(f"buffer_load_dwordx4 v{vWo+(i%4)}, {W}, s{sWo if i < 4 else sWo2} offen offset:{896*(i%4)} lds")
                k.e(f"s_mov_b64 exec, -1")
                if i == 7: dma_tok[g] = t
            return f
        for j in range(4): L.append(xj(j))
        for i in range(8): L.append(wi(i))
        return L
    stamp(k, "pre-dma")
    for f in dma_list(0): f()
    stamp(k, "dma0 issued")
    srd(k, SRD_XA, 4, X_BYTES); srd(k, SRD_WA, 6, W_BYTES)
    srd(k, SRD_WS, 20, WS_BYTES); srd(k, SRD_OUT, 16, OUT_BYTES)
    k.e(f"v_lshlrev_b32 v{vSt}, 4, v{vLane}")
    Lnn = k.newlabel("nonce")
    k.e(f"s_or_b32 s{sT}, s2, s{sW}")
    k.e(f"s_cmp_lg_u32 s{sT}, 0")
    k.e(f"s_cbranch_scc1 {Lnn}")
    k.e(f"s_mov_b32 s{sT}, {NONCE_OFF}")
    k.e(f"v_mov_b32 v{vt0}, 0")
    k.e(f"buffer_load_dword v{vt1}, v{vt0}, {WS}, s{sT} offen sc1")
    k.e(f"s_waitcnt vmcnt(0)")
    k.e(f"v_add_u32 v{vt1}, 1, v{vt1}")
    k.e(f"v_max_u32 v{vt1}, 1, v{vt1}")
    k.e(f"s_mov_b64 exec, 1")
    k.e(f"global_store_dword v{vt0}, v{vt1}, s[18:19] sc1")
    k.e(f"buffer_store_dword v{vt1}, v{vt0}, {WS}, s{sT} offen sc1")
    k.e(f"s_mov_b64 exec, -1")
    k.label(Lnn)
    k.e(f"s_and_b32 s{sT}, s2, 7")
    k.e(f"s_lshr_b32 s{sT2}, s2, 3")
    k.e(f"s_and_b32 s{sHead}, s{sT}, 3")
    k.e(f"s_lshl_b32 s{sHead}, s{sHead}, 2")
    k.e(f"s_and_b32 s{sT3}, s{sT2}, 3")
    k.e(f"s_add_u32 s{sHead}, s{sHead}, s{sT3}")
    k.e(f"s_lshr_b32 s{sRA}, s{sT}, 2")
    k.e(f"s_lshl_b32 s{sRA}, s{sRA}, 3")
    k.e(f"s_lshr_b32 s{sT3}, s{sT2}, 2")
    k.e(f"s_add_u32 s{sRA}, s{sRA}, s{sT3}")
    k.e(f"s_mul_i32 s{sT3}, s{sT2}, 37")
    k.e(f"s_lshr_b32 s{sT3}, s{sT3}, 8")
    k.e(f"s_min_u32 s{sC}, s{sT3}, 3")
    k.e(f"s_lshl_b32 s{sP3T}, s{sT}, 2")
    k.e(f"s_add_u32 s{sP3T}, s{sP3T}, s{sC}")
    k.e(f"s_mul_i32 s{sT3}, s{sT3}, 7")
    k.e(f"s_sub_u32 s{sCT}, s{sT2}, s{sT3}")
    div3(k, sUQ, sHead)
    k.e(f"s_add_u32 s{sT}, s{sHead}, 16"); div3(k, sUK, sT)
    k.e(f"s_add_u32 s{sT}, s{sHead}, 32"); div3(k, sUV, sT)
    k.e(f"s_lshl_b32 s{sTT}, s{sR}, 2")
    k.e(f"s_add_u32 s{sTT}, s{sTT}, s{sW}")
    k.e(f"s_lshl_b32 s{sTTA}, s{sRA}, 2")
    k.e(f"s_add_u32 s{sTTA}, s{sTTA}, s{sW}")
    dsts = [[0, 1, 3], [22, 23, 101]]
    sSec = [4, 5, 6]
    for i in range(3):
        k.e(f"s_mul_i32 s{sT}, s{sU}, 3")
        k.e(f"s_add_u32 s{sT}, s{sT}, {i}")
        k.e(f"s_lshr_b32 s{sSec[i]}, s{sT}, 4")
        k.e(f"s_and_b32 s{sT}, s{sT}, 15")
        k.e(f"s_lshl_b32 s{sT}, s{sT}, 6")
        k.e(f"s_add_u32 s{sT}, s{sT}, s{sTT}")
        k.e(f"s_lshl_b32 s{sT3}, s{sT}, 11")
        k.e(f"s_add_u32 s{sT3}, s{sT3}, {Q_OFF['B']}")
        k.e(f"s_lshl_b32 s{sT}, s{sT}, 12")
        k.e(f"s_lshr_b32 s{sC}, s{sSec[i]}, 1")
        k.e(f"s_lshl_b32 s{sC}, s{sC}, 11")
        k.e(f"s_add_u32 s{sT}, s{sT}, s{sC}")
        k.e(f"s_cmp_eq_u32 s{sSec[i]}, 0")
        k.e(f"s_cselect_b32 s{dsts[0][i]}, s{sT3}, s{sT}")
        k.e(f"s_cselect_b32 s{sC}, {Q_OFF['A'] - Q_OFF['B']}, 0")
        k.e(f"s_add_u32 s{dsts[1][i]}, s{dsts[0][i]}, s{sC}")
        k.e(f"s_cmp_eq_u32 s{sSec[i]}, 0")
        k.e(f"s_cselect_b32 s{sC}, 0, {KV_OFF['A'] - KV_OFF['B']}")
        k.e(f"s_add_u32 s{dsts[1][i]}, s{dsts[1][i]}, s{sC}")
    k.e(f"v_and_b32 v{vt0}, 31, v{vLane}")
    k.e(f"v_lshrrev_b32 v{vt1}, 3, v{vt0}")
    k.e(f"v_mul_u32_u24 v{vt1}, 1040, v{vt1}")
    k.e(f"v_and_b32 v{vt2}, 7, v{vt0}")
    k.e(f"v_lshl_add_u32 v{vt1}, v{vt2}, 7, v{vt1}")
    k.e(f"v_add_u32 v{vt1}, s{sM0X}, v{vt1}")
    k.e(f"v_bfe_u32 v{vt2}, v{vLane}, 1, 1")
    k.e(f"v_lshlrev_b32 v{vt2}, 6, v{vt2}")
    k.e(f"v_lshrrev_b32 v{vt3}, 5, v{vLane}")
    k.e(f"v_lshlrev_b32 v{vt3}, 4, v{vt3}")
    k.e(f"v_add_u32 v{vt1}, v{vt1}, v{vt3}")
    for ks in range(4):
        k.e(f"v_xor_b32 v{vXr+ks}, {(ks >> 1) * 64}, v{vt2}")
        k.e(f"v_add_u32 v{vXr+ks}, {((2*ks) & 3) * 16}, v{vXr+ks}")
        k.e(f"v_add_u32 v{vXr+ks}, v{vXr+ks}, v{vt1}")
    k.e(f"v_lshrrev_b32 v{vt0}, 5, v{vLane}")
    k.e(f"v_lshlrev_b32 v{vt0}, 3, v{vt0}")
    k.e(f"v_bfe_u32 v{vt1}, v{vLane}, 2, 2")
    k.e(f"v_add_u32 v{vt0}, v{vt0}, v{vt1}")
    k.e(f"v_mul_u32_u24 v{vt0}, 448, v{vt0}")
    k.e(f"v_bfe_u32 v{vt2}, v{vLane}, 4, 1")
    k.e(f"v_lshl_add_u32 v{vt0}, v{vt2}, 5, v{vt0}")
    k.e(f"v_and_b32 v{vt2}, 3, v{vLane}")
    k.e(f"v_lshl_add_u32 v{vt0}, v{vt2}, 3, v{vt0}")
    k.e(f"v_add_u32 v{vt0}, s{sOffU}, v{vt0}")
    for i in range(3):
        k.e(f"v_add_u32 v{vWr+i}, {WBASE + 56*i}, v{vt0}")
        k.e(f"v_add_u32 v{vWr+3+i}, {WBASE + 56*i + 2*WSLOT}, v{vt0}")
    vVpad = vVw
    k.e(f"v_and_b32 v{vt0}, 31, v{vLane}")
    k.e(f"v_cmp_eq_u32 vcc, 28, v{vt0}")
    k.e(f"v_mov_b32 v{vt1}, 0x3f803f80")
    k.e(f"v_cmp_le_u32_e64 s[{sVmask}:{sVmask+1}], 28, v{vt0}")
    k.e(f"v_cndmask_b32_e64 v{vVpad}, 0, v{vt1}, vcc")
    k.e(f"v_lshrrev_b32 v{vt0}, 3, v{vLane}")
    k.e(f"v_bfe_u32 v{vt1}, v{vLane}, 4, 1")
    k.e(f"v_lshlrev_b32 v{vt1}, 2, v{vt1}")
    k.e(f"v_and_b32 v{vt2}, 7, v{vLane}")
    k.e(f"v_xor_b32 v{vt1}, v{vt1}, v{vt2}")
    k.e(f"v_mul_u32_u24 v{vt0}, 896, v{vt0}")
    k.e(f"v_lshl_add_u32 v{vWoD}, v{vt1}, 4, v{vt0}")
    k.e(f"v_lshrrev_b32 v{vt0}, 5, v{vLane}")
    k.e(f"v_lshlrev_b32 v{vt0}, 2, v{vt0}")
    k.e(f"v_bfe_u32 v{vt1}, v{vLane}, 2, 2")
    k.e(f"v_add_u32 v{vt0}, v{vt0}, v{vt1}")
    k.e(f"v_lshlrev_b32 v{vt0}, 7, v{vt0}")
    k.e(f"s_and_b32 s{sT}, s{sW}, 1")
    k.e(f"s_lshl_b32 s{sT}, s{sT}, 6")
    k.e(f"v_bfe_u32 v{vt1}, v{vLane}, 4, 1")
    k.e(f"v_lshlrev_b32 v{vt1}, 5, v{vt1}")
    k.e(f"v_and_b32 v{vt2}, 3, v{vLane}")
    k.e(f"v_lshl_add_u32 v{vt1}, v{vt2}, 3, v{vt1}")
    k.e(f"v_add_u32 v{vt1}, s{sT}, v{vt1}")
    k.e(f"v_bfe_u32 v{vt2}, v{vLane}, 3, 1")
    k.e(f"v_lshlrev_b32 v{vt2}, 6, v{vt2}")
    k.e(f"v_xor_b32 v{vt1}, v{vt1}, v{vt2}")
    k.e(f"v_add_u32 v{vP3a}, v{vt0}, v{vt1}")
    k.e(f"v_and_b32 v{vt0}, 3, v{vLane}")
    k.e(f"s_lshl_b32 s{sT}, s{sW}, 2")
    k.e(f"v_add_u32 v{vt0}, s{sT}, v{vt0}")
    k.e(f"v_cmp_gt_u32 vcc, 4, v{vLane}")
    k.e(f"v_mov_b32 v{vt1}, s{sUV}")
    k.e(f"v_mov_b32 v{vt2}, s{sUK}")
    k.e(f"v_cndmask_b32 v{vt1}, v{vt1}, v{vt2}, vcc")
    k.e(f"v_cmp_eq_u32 vcc, 8, v{vLane}")
    k.e(f"v_mov_b32 v{vt2}, s{sRA}")
    k.e(f"v_mov_b32 v{vt3}, s{sUQ}")
    k.e(f"v_cndmask_b32 v{vt0}, v{vt0}, v{vt2}, vcc")
    k.e(f"v_cndmask_b32 v{vt1}, v{vt1}, v{vt3}, vcc")
    k.e(f"v_lshl_add_u32 v{vt0}, v{vt0}, 4, v{vt1}")
    k.e(f"v_lshlrev_b32 v{vFlB}, 7, v{vt0}")
    k.e(f"v_add_u32 v{vFlB}, {FP1_OFF}, v{vFlB}")
    k.e(f"v_cmp_gt_u32 vcc, 3, v{vLane}")
    k.e(f"v_subrev_u32 v{vt0}, 3, v{vLane}")
    k.e(f"v_mov_b32 v{vt1}, s{sUV}")
    k.e(f"v_cndmask_b32 v{vt0}, v{vt0}, v{vLane}, vcc")
    k.e(f"v_mov_b32 v{vt2}, s{sUK}")
    k.e(f"v_cndmask_b32 v{vt1}, v{vt1}, v{vt2}, vcc")
    k.e(f"s_sub_u32 s{sT}, s{sRA}, 2")
    k.e(f"v_add_u32 v{vt0}, s{sT}, v{vt0}")
    k.e(f"v_max_i32 v{vt0}, 0, v{vt0}")
    k.e(f"v_cmp_eq_u32 vcc, 6, v{vLane}")
    k.e(f"v_mov_b32 v{vt2}, s{sRA}")
    k.e(f"v_mov_b32 v{vt3}, s{sUQ}")
    k.e(f"v_cndmask_b32 v{vt0}, v{vt0}, v{vt2}, vcc")
    k.e(f"v_cndmask_b32 v{vt1}, v{vt1}, v{vt3}, vcc")
    k.e(f"v_add_u32 v{vt0}, 16, v{vt0}")
    k.e(f"v_lshl_add_u32 v{vt0}, v{vt0}, 4, v{vt1}")
    k.e(f"v_lshlrev_b32 v{vFlA}, 7, v{vt0}")
    k.e(f"v_add_u32 v{vFlA}, {FP1_OFF}, v{vFlA}")
    k.e(f"s_lshl_b32 s{sKVB}, s{sHead}, 18")
    k.e(f"s_lshl_b32 s{sT}, s{sW}, 16")
    k.e(f"s_add_u32 s{sKVB}, s{sKVB}, s{sT}")
    k.e(f"s_and_b32 s{sRot}, s{sRA}, 7")
    k.e(f"s_lshl_b32 s{sRot}, s{sRot}, 1")
    vDiag = 240; vEdge = 192
    k.e(f"v_and_b32 v{vt0}, 31, v{vLane}")
    k.e(f"v_lshrrev_b32 v{vt1}, 5, v{vLane}")
    k.e(f"v_lshlrev_b32 v{vt1}, 2, v{vt1}")
    k.e(f"v_sub_u32 v{vt0}, v{vt0}, v{vt1}")
    k.e(f"v_mov_b32 v{vt1}, {f2u(NEGBIG):#x}")
    prs = [sMk, sMk + 2, sMk + 4]
    def cmpm(i):
        b = 8 * (i // 4) + (i % 4); p = prs[i % 3]
        k.e(f"v_cmp_le_i32_e64 s[{p}:{p+1}], {b}, v{vt0}")
    cmpm(0); cmpm(1)
    for i in range(16):
        if i + 2 < 16: cmpm(i + 2)
        else: k.nop(1)
        p = prs[i % 3]
        k.e(f"v_cndmask_b32_e64 v{vDiag+i}, v{vt1}, 0, s[{p}:{p+1}]")
    for f in dma_list(1): f()

    def rd_list(g, ks):
        slot = g % 3; par = ks % 2
        L = [f"ds_read_b128 v[{vXf+4*par}:{vXf+4*par+3}], v{vXr+ks} offset:{slot*XSLOT}"]
        for i in range(3):
            areg = vWr + i + (3 if slot == 2 else 0)
            base = (slot if slot < 2 else 0) * WSLOT + ks * 7168
            d = vWf + 12 * par + 4 * i
            L.append(f"ds_read_b64_tr_b16 v[{d}:{d+1}], v{areg} offset:{base}")
            L.append(f"ds_read_b64_tr_b16 v[{d+2}:{d+3}], v{areg} offset:{base+4*448}")
        return L
    def mf_list(g, ks, pat):
        first = (g % 7 == 0 and ks == 0); par = ks % 2
        a = accs[g // 7]
        xf = vr(vXf + 4 * par, 4)
        L = []
        for i in range(3):
            wf = vr(vWf + 12 * par + 4 * i, 4); d = vr(a[i], 16); c = '0' if first else d
            L.append(f"v_mfma_f32_32x32x16_bf16 {d}, {xf}, {wf}, {c}" if pat[i] == "V" else f"v_mfma_f32_32x32x16_bf16 {d}, {wf}, {xf}, {c}")
        return L
    def interleave(mf, rds, tok_need, extra, extra2=None):
        k.wait(lg=tok_need)
        t = None; ri = 0
        for i, m in enumerate(mf):
            k.e(m)
            n = (len(rds) - ri + (len(mf) - i) - 1) // (len(mf) - i)
            for _ in range(n):
                t = k.lg(rds[ri]); ri += 1
            if extra: extra.pop(0)()
            if extra2: extra2.pop(0)()
        return t

    sSc = sEx
    def epi_items(b, F0, pat):
        a = accs[b]; items = []
        def qk(i):
            def f():
                F = F0 + 8 * i
                k.e(f"s_cmp_eq_u32 s{sSec[i]}, 0")
                k.e(f"s_cselect_b32 s{sSc}, {f2u(QSCALE):#x}, 1.0")
                k.e(f"s_cselect_b32 s{sT}, 0, 0x3f803f80")
                k.e(f"s_cselect_b32 s{sT2}, 0, 0x3f80")
                for j in range(0, 16, 2):
                    k.e(f"v_pk_mul_f32 v[{a[i]+j}:{a[i]+j+1}], v[{a[i]+j}:{a[i]+j+1}], s[{sSc}:{sSc+1}] op_sel_hi:[1,0]")
                for j in range(8): k.e(f"v_cvt_pk_bf16_f32 v{F+j}, v{a[i]+2*j}, v{a[i]+2*j+1}")
                k.e("s_mov_b32 exec_lo, 0")
                k.e(f"v_mov_b32 v{F+6}, s{sT}")
                k.e(f"v_mov_b32 v{F+7}, s{sT2}")
                k.e("s_mov_b32 exec_lo, -1")
            return f
        def kk_(i):
            def f():
                F = F0 + 8 * i
                for j in range(8): k.e(f"v_cvt_pk_bf16_f32 v{F+j}, v{a[i]+2*j}, v{a[i]+2*j+1}")
                k.e("s_mov_b32 exec_lo, 0")
                k.e(f"v_mov_b32 v{F+6}, 0x3f803f80")
                k.e(f"v_mov_b32 v{F+7}, 0x3f80")
                k.e("s_mov_b32 exec_lo, -1")
            return f
        def vv(i):
            def f():
                F = F0 + 8 * i
                for j in range(8): k.e(f"v_cvt_pk_bf16_f32 v{F+j}, v{a[i]+2*j}, v{a[i]+2*j+1}")
                for j in range(8): k.e(f"v_cndmask_b32_e64 v{F+j}, v{F+j}, v{vVpad}, s[{sVmask}:{sVmask+1}]")
            return f
        return [{"X": qk, "K": kk_, "V": vv}[pat[i]](i) for i in range(3)]
    def st_items(b, F0):
        res = {}
        def mk(i, h):
            def f():
                F = F0 + 8 * i + 4 * h
                res["last"] = k.vm(f"buffer_store_dwordx4 v[{F}:{F+3}], v{vSt}, {WS}, s{dsts[b][i]} offen offset:{1024*h} sc1")
            return f
        return [mk(i, h) for i in (0, 1, 2) for h in range(2)], res
    sSel = sMk + 3
    def p1flag(b):
        k.e(f"s_add_u32 s{sT}, s{sR}, {16*b}")
        k.e(f"s_lshl_b32 s{sT}, s{sT}, 4")
        k.e(f"s_add_u32 s{sT}, s{sT}, s{sU}")
        k.e(f"s_lshl_b32 s{sT}, s{sT}, 7")
        k.e(f"s_lshl_b32 s{sT2}, s{sW}, 2")
        k.e(f"s_add_u32 s{sT}, s{sT}, s{sT2}")
        k.e(f"s_add_u32 s{sSel}, s{sT}, {FP1_OFF}")
        store_flag(k, vt0, vt1, sSel)

    vRed, vRedR, vQA, vOf, vO01, vQ, vS, vP, vO23 = 16, 17, 20, 28, 36, 68, 100, 132, 148
    qtok = {}; ktok = {}; vtok = {}
    sTq = [0, 98, 99]
    def tile_items(i):
        def f(j):
            def g_():
                if j == 0 or j == 2:
                    k.e(f"s_add_u32 s{sT}, s{sRot}, {i}")
                    k.e(f"s_and_b32 s{sT}, s{sT}, 15")
                    k.e(f"s_lshl_b32 s{sT}, s{sT}, 12")
                    k.e(f"s_add_u32 s{sTq[1]}, s{sT}, s{sKVB}")
                t = k.vm(f"buffer_load_dwordx4 a[{16*i+4*j}:{16*i+4*j+3}], v{vSt}, {WS}, s{sTq[1]} offen offset:{1024*j} sc1")
                if j == 1: ktok[i] = t
                if j == 3: vtok[i] = t
            return g_
        return [f(j) for j in range(4)]
    def q_items(d):
        def f(j):
            def g_():
                if j == 0:
                    k.e(f"s_add_u32 s{sT}, s{sW}, {d}")
                    k.e(f"s_and_b32 s{sT}, s{sT}, 3")
                    k.e(f"s_lshl_b32 s{sT2}, s{sRA}, 2")
                    k.e(f"s_add_u32 s{sT}, s{sT}, s{sT2}")
                    k.e(f"s_lshl_b32 s{sT2}, s{sHead}, 6")
                    k.e(f"s_add_u32 s{sT}, s{sT}, s{sT2}")
                    k.e(f"s_lshl_b32 s{sTq[1]}, s{sT}, 11")
                    k.e(f"s_add_u32 s{sTq[1]}, s{sTq[1]}, {Q_OFF['B']}")
                t = k.vm(f"buffer_load_dwordx4 v[{vQ+8*d+4*j}:{vQ+8*d+4*j+3}], v{vSt}, {WS}, s{sTq[1]} offen offset:{1024*j} sc1")
                if j == 1: qtok[d] = t
            return g_
        return [f(0), f(1)]
    vPR0, vPR1, vPT = 180, 184, 188
    def gen_p1(pat):
        pend = None; nonce_tok = None
        epi = []
        for g in range(14):
            k.c(f"---- chunk {g} [{pat}]")
            k.wait(vm=dma_tok[g])
            k.wait_all(vm=False, lg=True)
            k.e("s_barrier")
            if g in BARS: stamp(k, f"bar{g}")
            ex = dma_list(g + 2) if g + 2 < 14 else []
            r0 = rd_list(g, 0)
            if pend is None:
                for r_ in r0: tok = k.lg(r_)
                for _ in range(3): ex.pop(0)()
            else:
                tok = interleave(mf_list(*pend, pat), r0, None, ex)
            if g == 4:
                k.e(f"v_mov_b32 v{vt0}, 0")
                k.e(f"global_load_dword v{vt3}, v{vt0}, s[18:19] sc1")
                k.vm_n += 1; nonce_tok = k.vm_n
            if g == 6:
                Ln = k.newlabel("n"); Lnd = k.newlabel("nd")
                k.wait(vm=nonce_tok)
                k.e(f"v_readfirstlane_b32 s{sNonce}, v{vt3}")
                k.e(f"s_mov_b32 s{sSpin}, 0")
                k.e(f"s_cmp_lg_u32 s{sNonce}, 0")
                k.e(f"s_cbranch_scc1 {Lnd}")
                k.label(Ln)
                k.e(f"global_load_dword v{vt3}, v{vt0}, s[18:19] sc1")
                k.e(f"s_add_u32 s{sSpin}, s{sSpin}, 1")
                k.e(f"s_waitcnt vmcnt(0)")
                k.e(f"v_readfirstlane_b32 s{sNonce}, v{vt3}")
                k.e(f"s_cmp_gt_u32 s{sSpin}, {SPIN_MAX}")
                k.e(f"s_cbranch_scc1 {Lnd}")
                k.e(f"s_cmp_eq_u32 s{sNonce}, 0")
                k.e(f"s_cbranch_scc1 {Ln}")
                k.label(Lnd)
            if g == 7:
                epi = epi_items(0, FB, pat); stoB, resB = st_items(0, FB)
            if g == 10:
                k.wait(vm=resB["last"])
                p1flag(0)
                stamp(k, "flagB stored")
            if g == 12:
                R_["pB"] = poll4_issue(k, vFlB, vPR0, 0x1ff)
            if g == 13:
                poll4_finish(k, R_["pB"], vFlB, vPR0, vPR1, vPT, 0x1ff, "pb")
                stamp(k, "B flags")
                ex = q_items(0) + tile_items(0)[:2] + q_items(1) + q_items(2) + q_items(3) + tile_items(0)[2:]
            for ks in range(3):
                e2 = epi if (g == 7 and ks >= 1) else None
                tok = interleave(mf_list(g, ks, pat), rd_list(g, ks + 1), tok, ex, e2)
            if g < 13:
                while ex: ex.pop(0)()
            if g == 7:
                while epi: epi.pop(0)()
                for f in stoB: f()
            pend = (g, 3)
            ptok = tok
        k.wait(lg=ptok)
        for m in mf_list(*pend, pat):
            k.e(m)
            if ex: ex.pop(0)()
        while ex: ex.pop(0)()
        stamp(k, "mfma done")
        for f in tile_items(1): f()
        k.nop(4)
        for f in epi_items(1, FA, pat): f()
        stamp(k, "epiA")
        k.wait_all(vm=False, lg=True)
    R_ = {}
    Ljoin = k.newlabel("p1join"); LV = k.newlabel("p1V"); LKV = k.newlabel("p1KV")
    k.e(f"s_cmp_gt_u32 s{sU}, 10"); k.e(f"s_cbranch_scc1 {LV}")
    k.e(f"s_cmp_eq_u32 s{sU}, 10"); k.e(f"s_cbranch_scc1 {LKV}")
    snap = (k.vm_n, k.vm_done, k.lg_n, k.lg_done, St.n, list(St.names), dict(dma_tok))
    ends = []
    for idx, (pat, lab) in enumerate((("XXX", None), ("KKV", LKV), ("VVV", LV))):
        k.vm_n, k.vm_done, k.lg_n, k.lg_done, St.n = snap[:5]
        St.names = list(snap[5]); dma_tok.clear(); dma_tok.update(snap[6])
        qtok.clear(); ktok.clear(); vtok.clear()
        if lab: k.label(lab)
        gen_p1(pat)
        ends.append((k.vm_n, k.lg_n, St.n))
        if idx < 2: k.e(f"s_branch {Ljoin}")
    assert ends[0] == ends[1] == ends[2], ends
    k.label(Ljoin)
    stoL, resL = st_items(1, FA)
    k.e("s_barrier")
    WOB_L, WOA_L = 0, 57344
    def wo_items(srdn, lbase):
        def one(j):
            def f():
                if j == 0:
                    k.e(f"s_lshl_b32 s{sMk}, s{sCT}, 7")
                    k.e(f"s_mul_i32 s{sMk+1}, s{sW}, {112*896}")
                    k.e(f"s_add_u32 s{sMk}, s{sMk}, s{sMk+1}")
                    k.e(f"s_mul_i32 s{sMk+1}, s{sW}, {112*128}")
                    k.e(f"s_add_u32 s{sMk+1}, s{sMk+1}, {lbase}")
                k.e(f"s_add_u32 m0, s{sMk+1}, {1024*j}")
                k.e(f"s_add_u32 s{sMk+4}, s{sMk}, {8*896*j}")
                return k.vm(f"buffer_load_dwordx4 v{vWoD}, s[{srdn}:{srdn+3}], s{sMk+4} offen lds")
            return f
        return [one(j) for j in range(14)]
    srd(k, SRD_XB, 14, WO_BYTES); srd(k, SRD_WB, 8, WO_BYTES)
    SRD_WOB, SRD_WOA = SRD_XB, SRD_WB
    vTmp = vS
    def vOd(d): return (vO01 + 16 * d) if d < 2 else (vO23 + 16 * (d - 2))
    k.wait(vm=max(ktok[0], qtok[0]))
    mfma(k, vr(vS, 16), ar(0, 4), vr(vQ, 4), "0")
    mfma(k, vr(vS, 16), ar(4, 4), vr(vQ + 4, 4), vr(vS, 16))
    k.e(f"s_lshl_b32 s{sT}, s{sW}, 9")
    k.e(f"v_lshlrev_b32 v{vt2}, 3, v{vLane}")
    k.e(f"v_add_u32 v{vRed}, s{sT}, v{vt2}")
    k.e(f"v_add_u32 v{vRed}, {SCR}, v{vRed}")
    k.nop(8)
    colmax(k, vS, vt3, vt0)
    k.e(f"v_add_f32 v{vt3}, {f2u(MARGIN):#x}, v{vt3}")
    shift_dwords(k, vt3, vOf, vOf + 1, vt1)
    k.lg(f"ds_write_b64 v{vRed}, v[{vOf}:{vOf+1}]")
    k.wait(vm=qtok[3])
    k.wait_all(vm=False)
    k.e("s_barrier")
    k.e("s_mov_b32 exec_lo, 0")
    for d in range(4):
        k.e(f"s_add_u32 s{sT}, s{sW}, {d}")
        k.e(f"s_and_b32 s{sT}, s{sT}, 3")
        k.e(f"s_lshl_b32 s{sT}, s{sT}, 9")
        k.e(f"s_add_u32 s{sT}, s{sT}, {SCR}")
        k.e(f"v_add_u32 v{vt3}, s{sT}, v{vt2}")
        k.lg(f"ds_read_b64 v[{vQ+8*d+6}:{vQ+8*d+7}], v{vt3}")
    k.e("s_mov_b32 exec_lo, -1")
    k.wait_all(vm=False)
    stamp(k, "B standin")
    vS2, vOA = 208, 224
    kt = {}; vt = {}; st = {}
    def bop(i, d):
        return dict(K=(ar(16*i, 4), ar(16*i+4, 4)), V=(ar(16*i+8, 4), ar(16*i+12, 4)),
                    Q=(vr(vQ+8*d, 4), vr(vQ+8*d+4, 4)), O=vr(vOd(d), 16), C="0", first=(i == 0),
                    wK=(lambda i=i: ktok[i]), wV=(lambda i=i: vtok[i]))
    def aslot(j): return j % 3
    lk = {}; lv = {}
    def aop(j):
        a = aslot(j)
        C = vr(vEdge, 16) if j == 0 else vr(vDiag, 16) if j == 8 else "0"
        return dict(K=(ar(16*a, 4), ar(16*a+4, 4)), V=(ar(16*a+8, 4), ar(16*a+12, 4)), Q=(vr(vQA, 4), vr(vQA+4, 4)),
                    O=vr(vOA, 16), C=C, first=(j == 0), lK=(lambda j=j: lk[j]), lV=(lambda j=j: lv[j]))
    A0 = 40
    NT1 = A0 // 4
    ops = [bop(i, d) for i in range(NT1) for d in (1, 2, 3, 0)] + [aop(j) for j in range(9)] + [bop(i, d) for i in range(NT1, 16) for d in (1, 2, 3, 0)]
    N = len(ops)
    vKVr = 191
    def rdKa(j):
        a = aslot(j)
        k.lg(f"ds_read_b128 a[{16*a}:{16*a+3}], v{vKVr} offset:{j*4096}")
        lk[j] = k.lg(f"ds_read_b128 a[{16*a+4}:{16*a+7}], v{vKVr} offset:{j*4096+1024}")
    def rdVa(j):
        a = aslot(j)
        k.lg(f"ds_read_b128 a[{16*a+8}:{16*a+11}], v{vKVr} offset:{j*4096+2048}")
        lv[j] = k.lg(f"ds_read_b128 a[{16*a+12}:{16*a+15}], v{vKVr} offset:{j*4096+3072}")
    def a_dma_items():
        def f(i, q):
            def g_():
                if q == 0:
                    k.e(f"s_mul_i32 s{sT}, s{sW}, 3")
                    k.e(f"s_lshl_b32 s{sT2}, s{sRA}, 2")
                    k.e(f"s_add_u32 s{sT}, s{sT}, s{sT2}")
                    k.e(f"s_add_i32 s{sT2}, s{sT}, {i-8}")
                    k.e(f"s_lshl_b32 s{sTq[2]}, s{sT2}, 12")
                    k.e(f"s_add_u32 s{sTq[2]}, s{sTq[2]}, s{sKV}")
                    k.e(f"s_cmp_lt_i32 s{sT2}, 0")
                    k.e(f"s_cselect_b32 s{sTq[2]}, {WS_BYTES}, s{sTq[2]}")
                k.e(f"s_mul_i32 s{sT}, s{sW}, {3*4096}")
                k.e(f"s_add_u32 m0, s{sT}, {SCR + i*4096}")
                k.e("s_nop 0")
                st["ad"] = k.vm(f"buffer_load_dwordx4 v{vSt}, {WS}, s{sTq[2]} offen offset:{1024*q} sc1 lds")
            return g_
        return [f(i, q) for i in range(3) for q in range(4)]
    strB = []
    for q, f in enumerate(tile_items(2)): strB.append((0, f))
    for i in range(3, 16):
        use = 4 * i if i < NT1 else 4 * i + 9
        for q, f in enumerate(tile_items(i)): strB.append((max(use - 12 + q + 2, 0), f))
    strA = [(26, f) for f in a_dma_items()]
    strW = [(6 + j, f) for j, f in enumerate(wo_items(SRD_WOA, WOA_L))] + [(46 + j, f) for j, f in enumerate(wo_items(SRD_WOB, WOB_L))]
    strO = []
    at = {}
    vR1, vR2, vR3 = 189, 190, 191
    def red_addr():
        for d, vv in ((1, vR1), (2, vR2), (3, vR3)):
            k.e(f"s_add_u32 s{sT}, s{sW}, {d}")
            k.e(f"s_and_b32 s{sT}, s{sT}, 3")
            k.e(f"s_mul_i32 s{sT}, s{sT}, {3*4096}")
            k.e(f"s_add_u32 s{sT}, s{sT}, {SCR + (d-1)*4096}")
            k.e(f"v_add_u32 v{vv}, s{sT}, v{vSt}")
        k.e(f"s_mul_i32 s{sT}, s{sW}, {3*4096}")
        k.e(f"s_add_u32 s{sT}, s{sT}, {SCR}")
        k.e(f"v_add_u32 v{vRedR}, s{sT}, v{vSt}")
    def red_write(d, i):
        vv = {1: vR1, 2: vR2, 3: vR3}[d]
        k.lg(f"ds_write_b128 v{vv}, v[{vOd(d)+4*i}:{vOd(d)+4*i+3}] offset:{1024*i}")
    def o_flag_offsets():
        k.e(f"s_lshl_b32 s{sFOA}, s{sTTA}, 2")
        k.e(f"s_lshr_b32 s{sT}, s{sHead}, 2")
        k.e(f"s_add_u32 s{sFOA}, s{sFOA}, s{sT}")
        k.e(f"s_lshl_b32 s{sFOA}, s{sFOA}, 7")
        k.e(f"s_and_b32 s{sT}, s{sHead}, 3")
        k.e(f"s_lshl_b32 s{sT}, s{sT}, 2")
        k.e(f"s_add_u32 s{sFOA}, s{sFOA}, s{sT}")
        k.e(f"s_add_u32 s{sFOB}, s{sFOA}, {FO_OFF}")
        k.e(f"s_add_u32 s{sFOA}, s{sFOA}, {FO_OFF + 64*4*128}")
    def oa_items():
        def f(step):
            def g_():
                if step == 0:
                    k.e(f"s_lshl_b32 s{sT}, s{sP3T}, 1")
                    k.e(f"s_lshr_b32 s{sT2}, s{sW}, 1")
                    k.e(f"s_add_u32 s{sTT}, s{sT}, s{sT2}")
                    k.e(f"s_lshl_b32 s{sKV}, s{sTT}, 15")
                    k.e(f"s_add_u32 s{sKV}, s{sKV}, {O_OFF['A']}")
                if step % 4 == 0: k.e(f"s_add_u32 s{sTq[2]}, s{sKV}, {1024*step}")
                at[step] = k.vm(f"buffer_load_dwordx4 a[{4*step}:{4*step+3}], v{vSt}, {WS}, s{sTq[2]} offen offset:{1024*(step%4)} sc1")
            return g_
        return [f(step) for step in range(32)]
    def hookB(n, g):
        if n < 0: return
        if g == 0 and strB and strB[0][0] <= n: strB.pop(0)[1]()
        if g == 3 and n < 8 and strB and strB[0][0] <= n: strB.pop(0)[1]()
        if g == 2:
            if stoL and n >= 1: stoL.pop(0)()
            elif strA and strA[0][0] <= n: strA.pop(0)[1]()
            elif strW and strW[0][0] <= n: st["wo"] = strW.pop(0)[1]()
            elif strO: strO.pop(0)()
        if g == 3 and strA and strA[0][0] <= n: strA.pop(0)[1]()
        if g in (1, 3) and n >= 69 and strO: strO.pop(0)()
        if g == 1 and n == 15:
            k.wait(vm=resL["last"])
            p1flag(1)
        if g == 1 and n == 21:
            st["pA"] = poll4_issue(k, vFlA, vPR0, 0x7f)
        if g == 1 and n == 25:
            poll4_finish(k, st["pA"], vFlA, vPR0, vPR1, vPT, 0x7f, "pa")
            k.e(f"s_lshl_b32 s{sKV}, s{sHead}, 18")
            k.e(f"s_add_u32 s{sKV}, s{sKV}, {KV_OFF['A']}")
            k.e(f"s_lshl_b32 s{sT2}, s{sHead}, 6")
            k.e(f"s_add_u32 s{sT2}, s{sT2}, s{sTTA}")
            k.e(f"s_lshl_b32 s{sQo}, s{sT2}, 11")
            k.e(f"s_add_u32 s{sQo}, s{sQo}, {Q_OFF['A']}")
            k.vm(f"buffer_load_dwordx4 v[{vQA}:{vQA+3}], v{vSt}, {WS}, s{sQo} offen sc1")
            st["qa"] = k.vm(f"buffer_load_dwordx4 v[{vQA+4}:{vQA+7}], v{vSt}, {WS}, s{sQo} offen offset:1024 sc1")
        if g == 1 and n == 36:
            assert not strA
            k.wait(vm=st["ad"])
            k.e("s_barrier")
            k.e(f"s_lshl_b32 s{sT}, s{sW}, 12")
            k.e(f"s_add_u32 s{sT}, s{sT}, {SCR}")
            k.e(f"v_add_u32 v{vKVr}, s{sT}, v{vSt}")
            k.lg(f"ds_read_b128 a[32:35], v{vKVr} offset:{8*4096}")
            st["dk"] = k.lg(f"ds_read_b128 a[36:39], v{vKVr} offset:{8*4096+1024}")
            k.e(f"v_mov_b32 v{vt1}, {f2u(NEGBIG):#x}")
            for i in range(16): k.e(f"v_sub_f32 v{vEdge+i}, v{vt1}, v{vDiag+i}")
        if g == 3 and n == 36:
            k.wait(vm=st["qa"], lg=st["dk"])
            mfma(k, vr(vS2, 16), ar(32, 4), vr(vQA, 4), vr(vDiag, 16))
            mfma(k, vr(vS2, 16), ar(36, 4), vr(vQA + 4, 4), vr(vS2, 16))
        if g == 1 and n == 38:
            colmax(k, vS2, vt3, vt0)
            k.e(f"v_add_f32 v{vt3}, {f2u(MARGIN):#x}, v{vt3}")
            shift_dwords(k, vt3, vt0, vt1, vt2)
            k.e("s_mov_b32 exec_lo, 0")
            k.e(f"v_mov_b32 v{vQA+6}, v{vt0}")
            k.e(f"v_mov_b32 v{vQA+7}, v{vt1}")
            k.e("s_mov_b32 exec_lo, -1")
        for j in range(9):
            if g == 3 and n == A0 + j - 3: rdKa(j)
            if g == 3 and n == A0 + j - 1: rdVa(j)
        if g == 1 and n == A0 + 11:
            finalize_o(k, vOA, vt0, vt1, vOf)
            k.e(f"s_lshl_b32 s{sT}, s{sTTA}, 4")
            k.e(f"s_add_u32 s{sT}, s{sT}, s{sHead}")
            k.e(f"s_lshl_b32 s{sOo}, s{sT}, 11")
            k.e(f"s_add_u32 s{sOo}, s{sOo}, {O_OFF['A']}")
            k.vm(f"buffer_store_dwordx4 v[{vOf}:{vOf+3}], v{vSt}, {WS}, s{sOo} offen sc1")
            st["oa"] = k.vm(f"buffer_store_dwordx4 v[{vOf+4}:{vOf+7}], v{vSt}, {WS}, s{sOo} offen offset:1024 sc1")
            o_flag_offsets()
        if g == 1 and n == A0 + 18:
            k.wait(vm=st["oa"])
            store_flag(k, vt0, vt1, sFOA)
            k.e(f"s_lshl_b32 s{sT}, s{sP3T}, 3")
            k.e(f"v_add_u32 v{vFlB}, s{sT}, v{vLane}")
            k.e(f"v_lshlrev_b32 v{vFlB}, 7, v{vFlB}")
            k.e(f"v_add_u32 v{vFlA}, {FO_OFF + 64*4*128}, v{vFlB}")
            k.e(f"v_add_u32 v{vFlB}, {FO_OFF}, v{vFlB}")
        if g == 1 and n == 64:
            st["pOA"] = poll4_issue(k, vFlA, vPR0, 0xff)
        if g == 1 and n == 68:
            poll4_finish(k, st["pOA"], vFlA, vPR0, vPR1, vPT, 0xff, "poA")
            strO.extend(oa_items())
        if g == 1 and n == N - 8:
            red_addr()
        if n == N - 1: red_write(1, g)
        if n == N and g < 2:
            red_write(2, 2 * g); red_write(2, 2 * g + 1)
    attn_pipeline(k, ops, vS, vP, hookB)
    assert not strB and not strA and not stoL and not strW, (len(strB), len(strA), len(stoL), len(strW))
    stamp(k, "attn done")
    k.nop(8)
    for i in range(4): red_write(3, i)
    k.wait_all(vm=False)
    k.e("s_barrier")
    for j in range(3):
        for i in range(4):
            k.lg(f"ds_read_b128 v[{vTmp+16*j+4*i}:{vTmp+16*j+4*i+3}], v{vRedR} offset:{4096*j+1024*i}")
    for j in range(3):
        k.wait(lg=k.lg_n - 4 * (2 - j))
        for i in range(0, 16, 2):
            k.e(f"v_pk_add_f32 v[{vOd(0)+i}:{vOd(0)+i+1}], v[{vOd(0)+i}:{vOd(0)+i+1}], v[{vTmp+16*j+i}:{vTmp+16*j+i+1}]")
    finalize_o(k, vOd(0), vt0, vt1, vOf)
    k.e(f"s_lshl_b32 s{sT}, s{sTTA}, 4")
    k.e(f"s_add_u32 s{sT}, s{sT}, s{sHead}")
    k.e(f"s_lshl_b32 s{sOo}, s{sT}, 11")
    k.e(f"s_add_u32 s{sOo}, s{sOo}, {O_OFF['B']}")
    k.vm(f"buffer_store_dwordx4 v[{vOf}:{vOf+3}], v{vSt}, {WS}, s{sOo} offen sc1")
    ob = k.vm(f"buffer_store_dwordx4 v[{vOf+4}:{vOf+7}], v{vSt}, {WS}, s{sOo} offen offset:1024 sc1")
    stamp(k, "O(B) stored")
    Lp3 = k.newlabel("p3")
    k.e(f"s_cmp_lt_u32 s2, 224")
    k.e(f"s_cbranch_scc1 {Lp3}")
    k.e("s_waitcnt vmcnt(0)")
    k.e(f"v_mov_b32 v{vt0}, 0")
    k.e(f"v_mov_b32 v{vt1}, s{sNonce}")
    k.e(f"s_mov_b64 exec, 1")
    k.e(f"buffer_store_dword v{vt1}, v{vt0}, {WS}, s{sFOB} offen sc1")
    k.e(f"s_endpgm")
    k.label(Lp3)
    vWrB, vWrA, vWrBc, vWrAc, vOr, vOut = 16, 17, 18, 19, 189, 190
    k.e(f"v_mov_b32 v{vWrB}, v{vP3a}")
    k.e(f"v_add_u32 v{vWrA}, {WOA_L}, v{vP3a}")
    k.e(f"v_lshrrev_b32 v{vt0}, 5, v{vLane}")
    k.e(f"v_lshlrev_b32 v{vt0}, 9, v{vt0}")
    k.e(f"v_sub_u32 v{vWrBc}, v{vWrB}, v{vt0}")
    k.e(f"v_sub_u32 v{vWrAc}, v{vWrA}, v{vt0}")
    k.e(f"v_and_b32 v{vt0}, 31, v{vLane}")
    k.e(f"v_mul_u32_u24 v{vt0}, 1792, v{vt0}")
    k.e(f"v_lshrrev_b32 v{vt1}, 5, v{vLane}")
    k.e(f"v_lshl_add_u32 v{vOut}, v{vt1}, 4, v{vt0}")
    cnt = 0
    while strO:
        strO.pop(0)(); cnt += 1
        if cnt == 8:
            k.wait(vm=ob)
            store_flag(k, vt0, vt1, sFOB)
    if cnt < 8:
        k.wait(vm=ob)
        store_flag(k, vt0, vt1, sFOB)
    stamp(k, "flag O(B)")
    NB = 4
    vA3, vB3, vD3, vPk = 36, 52, 68, 84
    def rdA(step, vW, vWc):
        hd, kk = step // 2, step % 2
        par = step % NB
        row = 28 * hd + 16 * kk
        a2 = vWc if (hd == 15 and kk == 1) else vW
        k.lg(f"ds_read_b64_tr_b16 v[{vA3+4*par}:{vA3+4*par+1}], v{vW} offset:{row*128}")
        return k.lg(f"ds_read_b64_tr_b16 v[{vA3+4*par+2}:{vA3+4*par+3}], v{a2} offset:{(row+8)*128}")
    def out_store(b):
        k.nop(12)
        for i in range(8): k.e(f"v_cvt_pk_bf16_f32 v{vPk+i}, v{vD3+2*i}, v{vD3+2*i+1}")
        k.e(f"s_lshl_b32 s{sT2}, s{sCT}, 1")
        k.e(f"s_and_b32 s{sT}, s{sW}, 1")
        k.e(f"s_add_u32 s{sT2}, s{sT2}, s{sT}")
        k.e(f"v_permlane32_swap_b32 v{vPk}, v{vPk+2}")
        k.e(f"v_permlane32_swap_b32 v{vPk+1}, v{vPk+3}")
        k.e(f"v_permlane32_swap_b32 v{vPk+4}, v{vPk+6}")
        k.e(f"v_permlane32_swap_b32 v{vPk+5}, v{vPk+7}")
        k.e(f"s_mul_i32 s{sOo}, s{sTT}, {32*1792}")
        k.e(f"s_lshl_b32 s{sT}, s{sT2}, 6")
        k.e(f"s_add_u32 s{sOo}, s{sOo}, s{sT}")
        if b == "B": k.e(f"s_add_u32 s{sOo}, s{sOo}, 896")
        k.vm(f"buffer_store_dwordx4 v[{vPk}:{vPk+3}], v{vOut}, s[{SRD_OUT}:{SRD_OUT+3}], s{sOo} offen")
        k.vm(f"buffer_store_dwordx4 v[{vPk+4}:{vPk+7}], v{vOut}, s[{SRD_OUT}:{SRD_OUT+3}], s{sOo} offen offset:32")
    k.c("---- P3 A  (wo(A) was waited for long ago by later counted waits; make it explicit)")
    k.wait(vm=st["wo"])
    k.e("s_barrier")
    toks = {}
    for s_ in range(NB - 1): toks[s_] = rdA(s_, vWrA, vWrAc)
    for step in range(32):
        k.wait(vm=at[step], lg=toks[step])
        par = step % NB
        mfma(k, vr(vD3, 16), vr(vA3 + 4 * par, 4), ar(4 * step, 4), "0" if step == 0 else vr(vD3, 16))
        if step + NB - 1 < 32: toks[step + NB - 1] = rdA(step + NB - 1, vWrA, vWrAc)
    tpB = poll4_issue(k, vFlB, vPR0, 0xff)
    out_store("A")
    stamp(k, "P3A done")
    k.e("s_barrier")
    poll4_finish(k, tpB, vFlB, vPR0, vPR1, vPT, 0xff, "poB")
    stamp(k, "P3B flags")
    k.e(f"s_lshl_b32 s{sOo}, s{sP3T}, 16")
    k.e(f"s_add_u32 s{sOo}, s{sOo}, {O_OFF['B']}")
    k.e(f"s_lshl_b32 s{sT}, s{sW}, 14")
    k.e(f"s_add_u32 s{sOo}, s{sOo}, s{sT}")
    k.e(f"s_add_u32 s{sT2}, s{sT}, {WOA_L}")
    for j in range(16):
        if j % 4 == 0:
            k.e(f"s_add_u32 m0, s{sT2}, {1024*j}")
            k.e(f"s_add_u32 s{sT}, s{sOo}, {1024*j}")
        k.vm(f"buffer_load_dwordx4 v{vSt}, {WS}, s{sT} offen offset:{1024*(j%4)} sc1 lds")
    k.e(f"s_lshr_b32 s{sT}, s{sW}, 1")
    k.e(f"s_lshl_b32 s{sT}, s{sT}, 15")
    k.e(f"s_add_u32 s{sT}, s{sT}, {WOA_L}")
    k.e(f"v_add_u32 v{vOr}, s{sT}, v{vSt}")
    toks = {}
    for s_ in range(NB - 1): toks[s_] = rdA(s_, vWrB, vWrBc)
    k.wait_all(vm=True, lg=False)
    k.e("s_barrier")
    stamp(k, "P3B data")
    tb = {}
    def rdB(step):
        par = step % NB
        return k.lg(f"ds_read_b128 v[{vB3+4*par}:{vB3+4*par+3}], v{vOr} offset:{step*1024}")
    for s_ in range(NB - 1): tb[s_] = rdB(s_)
    for step in range(32):
        k.wait(lg=max(toks[step], tb[step]))
        par = step % NB
        mfma(k, vr(vD3, 16), vr(vA3 + 4 * par, 4), vr(vB3 + 4 * par, 4), "0" if step == 0 else vr(vD3, 16))
        if step + NB - 1 < 32:
            toks[step + NB - 1] = rdA(step + NB - 1, vWrB, vWrBc)
            tb[step + NB - 1] = rdB(step + NB - 1)
    out_store("B")
    stamp(k, "P3B done")
    stamp(k, "rt", True)
    stamp_flush(k, vt0, vt1)
    k.label("L_end")
    k.e("s_endpgm")
    return k

HEADER = open("cdna_kernels/" + NAME + ".s.ref").read().split("; Override")[0]

def main(out):
    k = gen()
    pr = check(k.L, "fused")
    for p in pr: print(p)
    print("instrs", len(k.L), "stamps", St.n, St.names)
    s = HEADER
    s += "; @launch grid=(256,1,1) block=(256,1,1) lds=163840\n"
    s += '.amdgcn_target "amdgcn-amd-amdhsa--gfx950"\n.text\n'
    s += f".globl {KNAME}\n.p2align 8\n.type {KNAME},@function\n{KNAME}:\n" + k.text()
    s += f""".section .rodata,"a"
.p2align 6
.amdhsa_kernel {KNAME}
  .amdhsa_next_free_vgpr 512
  .amdhsa_next_free_sgpr 102
  .amdhsa_accum_offset 256
  .amdhsa_group_segment_fixed_size 0
  .amdhsa_kernarg_size 72
  .amdhsa_user_sgpr_count 2
  .amdhsa_user_sgpr_kernarg_segment_ptr 1
  .amdhsa_system_sgpr_workgroup_id_x 1
.end_amdhsa_kernel
"""
    open(out, "w").write(s)

if __name__ == "__main__":
    main(sys.argv[1] if len(sys.argv) > 1 else "f3.s")
```

```python
import sys, math, struct, os
sys.path.insert(0, "gen")
from asmlib import Emit, check

NAME = "concat_heads__sliding_block__softmax_full_mha__prompt"
KNAME = NAME + "_kernel"
def f2u(x): return struct.unpack("<I", struct.pack("<f", x))[0]

KV_OFF = {"B": 0, "A": 4 << 20}
O_OFF = {"B": 8 << 20, "A": 10 << 20}
Q_OFF = {"B": 12 << 20, "A": 14 << 20}
FP1_OFF = 16 << 20
FO_OFF = (16 << 20) + (256 << 10)
NONCE_OFF = (16 << 20) + (768 << 10)
CEN_OFF = (16 << 20) + (800 << 10)
STAMPS = 17 << 20
WS_BYTES = 18 << 20
X_BYTES = 2048 * 896
W_BYTES = 448 * 2688
WO_BYTES = 448 * 896
OUT_BYTES = 2048 * 1792
QSCALE = (28 ** -0.5) * math.log2(math.e)
MARGIN = 64.0
NEGBIG = -1.0e30
MAPB = os.environ.get('MAPB', '0') == '1'
STAMP = os.environ.get("STAMP", "0") in ("1", "2")
STAMPDBG = os.environ.get("STAMP", "0") == "2"
DBGWG = int(os.environ.get("DBGWG", "100"))
SKIP = set(os.environ.get("SKIP", "").split(","))
SPIN_MAX = 1 << 18
SCR = 114688

class V:
    def __init__(self, lo, hi): self.n = lo; self.hi = hi
    def a(self, cnt=1, al=1):
        self.n = (self.n + al - 1) // al * al
        r = self.n; self.n += cnt
        assert self.n <= self.hi, "out of regs"
        return r

def vr(b, n=1): return f"v{b}" if n == 1 else f"v[{b}:{b+n-1}]"
def ar(b, n=1): return f"a{b}" if n == 1 else f"a[{b}:{b+n-1}]"
def mfma(k, d, a, b, c): k.e(f"v_mfma_f32_32x32x16_bf16 {d}, {a}, {b}, {c}")

S_PTR = 4
SRD_XB, SRD_WB, SRD_WS, SRD_OUT, SRD_XA, SRD_WA = 24, 28, 32, 36, 40, 44
SRD_WO = 4
sWmask = 96
sW, sBeta, sU, sR, sT, sT2, sT3 = 48, 49, 50, 51, 52, 53, 54
sOff, sXbase, sWcol, sM0X, sM0W, sC, sXo, sWo, sWo2 = 55, 56, 57, 58, 59, 60, 61, 62, 63
sVmask = 64
sNonce = 66
sHead, sTT, sKV, sTo, sQo, sOo, sSpin = 67, 68, 69, 70, 71, 72, 73
sCT, sP3T = 74, 75
sEx = 76
sStampTmp = 78
sRA = 80
sUQ, sUK, sUV = 81, 82, 83
sFOA, sFOB, sKVB, sRot, sOffU, sTTA = 84, 85, 86, 87, 88, 89
sMk = 90
sD0 = 22
WS = f"s[{SRD_WS}:{SRD_WS+3}]"

def srd(k, s, lo, size):
    k.e(f"s_mov_b32 s{s}, s{lo}")
    k.e(f"s_and_b32 s{s+1}, s{lo+1}, 0xffff")
    k.e(f"s_mov_b32 s{s+2}, {size}")
    k.e(f"s_mov_b32 s{s+3}, 0x20000")

class St:
    n = 0; v = 15; names = []
def stamp(k, name="", rt=False):
    if not STAMP: return
    if STAMPDBG and (rt or name in SKIP): return
    i = St.n; St.n += 1; St.names.append(name)
    assert i < 32
    k.e(f"{'s_memrealtime' if rt else 's_memtime'} s[{sStampTmp}:{sStampTmp+1}]")
    k.wait_all(vm=False, lg=True)
    k.e(f"v_writelane_b32 v{St.v}, s{sStampTmp}, {i}")
def stamp_flush(k, vt0, vt1):
    if not STAMP: return
    if STAMPDBG:
        L = k.newlabel("sf")
        k.e(f"s_lshl_b32 s{sStampTmp}, s2, 2")
        k.e(f"s_add_u32 s{sStampTmp}, s{sStampTmp}, s{sW}")
        k.e(f"s_cmp_lg_u32 s{sStampTmp}, {DBGWG*4}")
        k.e(f"s_cbranch_scc1 {L}")
        k.e(f"v_readlane_b32 s{sStampTmp}, v{St.v}, 0")
        k.e(f"v_and_b32 v{vt0}, 63, v0")
        k.e(f"v_lshlrev_b32 v{vt0}, 2, v{vt0}")
        k.e(f"v_subrev_u32 v{vt1}, s{sStampTmp}, v{St.v}")
        k.e(f"s_mov_b64 exec, 0xfffe")
        k.e(f"global_store_dword v{vt0}, v{vt1}, s[18:19]")
        k.e(f"s_mov_b64 exec, -1")
        k.label(L)
        return
    k.e(f"v_lshrrev_b32 v{vt0}, 6, v0")
    k.e(f"s_lshl_b32 s{sStampTmp}, s2, 2")
    k.e(f"v_add_u32 v{vt0}, s{sStampTmp}, v{vt0}")
    k.e(f"v_lshlrev_b32 v{vt0}, 7, v{vt0}")
    k.e(f"v_and_b32 v{vt1}, 63, v0")
    k.e(f"v_lshl_add_u32 v{vt0}, v{vt1}, 2, v{vt0}")
    k.e(f"s_mov_b32 s{sStampTmp}, {STAMPS}")
    k.e(f"s_mov_b32 exec_hi, 0")
    k.vm(f"buffer_store_dword v{St.v}, v{vt0}, {WS}, s{sStampTmp} offen")
    k.e(f"s_mov_b64 exec, -1")

def build_masks(k, vDiag, vEdge, vLane, t0, t1):
    k.e(f"v_and_b32 v{t0}, 31, v{vLane}")
    k.e(f"v_lshrrev_b32 v{t1}, 5, v{vLane}")
    k.e(f"v_lshlrev_b32 v{t1}, 2, v{t1}")
    k.e(f"v_sub_u32 v{t0}, v{t0}, v{t1}")
    k.e(f"v_mov_b32 v{t1}, {f2u(NEGBIG):#x}")
    prs = [sMk, sMk + 2, sMk + 4]
    def cmp(i):
        b = 8 * (i // 4) + (i % 4); p = prs[i % 3]
        k.e(f"v_cmp_le_i32_e64 s[{p}:{p+1}], {b}, v{t0}")
    cmp(0); cmp(1)
    for i in range(16):
        if i + 2 < 16: cmp(i + 2)
        else: k.nop(1)
        p = prs[i % 3]
        k.e(f"v_cndmask_b32_e64 v{vDiag+i}, v{t1}, 0, s[{p}:{p+1}]")
        k.e(f"v_cndmask_b32_e64 v{vEdge+i}, 0, v{t1}, s[{p}:{p+1}]")

def colmax(k, vS, vm, vt):
    k.e(f"v_max3_f32 v{vm}, v{vS}, v{vS+1}, v{vS+2}")
    k.e(f"v_max3_f32 v{vt}, v{vS+3}, v{vS+4}, v{vS+5}")
    k.e(f"v_max3_f32 v{vm}, v{vm}, v{vS+6}, v{vS+7}")
    k.e(f"v_max3_f32 v{vt}, v{vt}, v{vS+8}, v{vS+9}")
    k.e(f"v_max3_f32 v{vm}, v{vm}, v{vS+10}, v{vS+11}")
    k.e(f"v_max3_f32 v{vt}, v{vt}, v{vS+12}, v{vS+13}")
    k.e(f"v_max3_f32 v{vm}, v{vm}, v{vS+14}, v{vS+15}")
    k.e(f"v_max_f32 v{vm}, v{vm}, v{vt}")
    k.e(f"v_mov_b32 v{vt}, v{vm}")
    k.nop(2)
    k.e(f"v_permlane32_swap_b32 v{vm}, v{vt}")
    k.e(f"v_max_f32 v{vm}, v{vm}, v{vt}")

def shift_dwords(k, vm, t0, t1, t2):
    k.e(f"v_and_b32 v{t0}, 0xffff0000, v{vm}")
    k.e(f"v_sub_f32 v{t1}, v{vm}, v{t0}")
    k.e(f"v_and_b32 v{t2}, 0xffff0000, v{t1}")
    k.e(f"v_sub_f32 v{t1}, v{t1}, v{t2}")
    k.e(f"v_lshrrev_b32 v{t0}, 16, v{t0}")
    k.e(f"v_or_b32 v{t0}, v{t0}, v{t2}")
    k.e(f"v_xor_b32 v{t0}, 0x80008000, v{t0}")
    k.e(f"v_lshrrev_b32 v{t1}, 16, v{t1}")
    k.e(f"v_xor_b32 v{t1}, 0x8000, v{t1}")

def poll_flags(k, vAddr, vTmp, mask64, name):
    L = k.newlabel(name); Ld = k.newlabel(name + "d")
    k.e(f"s_mov_b32 s{sSpin}, 0")
    k.e(f"s_mov_b32 exec_hi, {(mask64 >> 32) & 0xffffffff:#x}")
    k.e(f"s_mov_b32 exec_lo, {mask64 & 0xffffffff:#x}")
    k.label(L)
    k.e(f"buffer_load_dword v{vTmp}, v{vAddr}, {WS}, 0 offen sc1")
    k.e(f"s_add_u32 s{sSpin}, s{sSpin}, 1")
    k.e(f"s_waitcnt vmcnt(0)")
    k.e(f"v_cmp_ne_u32 vcc, s{sNonce}, v{vTmp}")
    k.e(f"s_cmp_gt_u32 s{sSpin}, {SPIN_MAX}")
    k.e(f"s_cbranch_scc1 {Ld}")
    k.e(f"s_cbranch_vccnz {L}")
    k.label(Ld)
    k.e(f"s_mov_b64 exec, -1")
    k.vm_done = k.vm_n

def store_flag(k, vZero, vVal, s_off):
    k.e(f"v_mov_b32 v{vZero}, 0")
    k.e(f"v_mov_b32 v{vVal}, s{sNonce}")
    k.e(f"s_mov_b64 exec, 1")
    t = k.vm(f"buffer_store_dword v{vVal}, v{vZero}, {WS}, s{s_off} offen sc1")
    k.e(f"s_mov_b64 exec, -1")
    return t

def attn_pipeline(k, ops, vS, vP, hook=None):
    N = len(ops)
    def val(x): return x() if callable(x) else x
    def qk(n, part):
        o = ops[n]; S = vr(vS + 16 * (n % 2), 16)
        if part == 0:
            k.wait(vm=val(o.get("wK")), lg=val(o.get("lK")))
            mfma(k, S, o["K"][0], o["Q"][0], o["C"])
        else:
            mfma(k, S, o["K"][1], o["Q"][1], S)
    def pv(n, part):
        o = ops[n]; P = vP + 8 * (n % 2)
        if part == 0:
            k.wait(vm=val(o.get("wV")), lg=val(o.get("lV")))
            mfma(k, o["O"], o["V"][0], vr(P, 4), "0" if o["first"] else o["O"])
        else:
            mfma(k, o["O"], o["V"][1], vr(P + 4, 4), o["O"])
    def expgrp(n, g):
        S = vS + 16 * (n % 2); P = vP + 8 * (n % 2)
        for i in range(4):
            k.e(f"v_exp_f32 v{S+4*g+i}, v{S+4*g+i}")
        k.e(f"v_cvt_pk_bf16_f32 v{P+2*g}, v{S+4*g}, v{S+4*g+1}")
        k.e(f"v_cvt_pk_bf16_f32 v{P+2*g+1}, v{S+4*g+2}, v{S+4*g+3}")
    for n in range(-1, N + 1):
        has_exp = 0 <= n < N
        for g in range(4):
            if g < 2 and n + 1 < N: qk(n + 1, g)
            if g >= 2 and 0 <= n - 1: pv(n - 1, g - 2)
            if hook: hook(n, g)
            if has_exp: expgrp(n, g)
        if n == -1: k.nop(12)
        if n == N - 1: k.nop(2)

def finalize_o(k, vO, vt0, vt1, vOf):
    k.e(f"v_mov_b32 v{vt0}, v{vO+12}")
    k.e(f"v_mov_b32 v{vt1}, v{vO+12}")
    k.nop(2)
    k.e(f"v_permlane32_swap_b32 v{vt0}, v{vt1}")
    k.e(f"v_rcp_f32 v{vt1}, v{vt1}")
    k.nop(1)
    for i in range(16):
        k.e(f"v_mul_f32 v{vO+i}, v{vO+i}, v{vt1}")
    for i in range(8):
        k.e(f"v_cvt_pk_bf16_f32 v{vOf+i}, v{vO+2*i}, v{vO+2*i+1}")
    k.e("s_mov_b32 exec_lo, 0")
    k.e(f"v_mov_b32 v{vOf+6}, 0")
    k.e(f"v_mov_b32 v{vOf+7}, 0")
    k.e("s_mov_b32 exec_lo, -1")

def div6(k, dst, src, tmp):
    k.e(f"s_mul_i32 s{dst}, s{src}, 43")
    k.e(f"s_lshr_b32 s{dst}, s{dst}, 8")


def async_poll_issue(k, vAddr, vRes, mask64):
    k.e(f"s_mov_b32 exec_hi, {(mask64 >> 32) & 0xffffffff:#x}")
    k.e(f"s_mov_b32 exec_lo, {mask64 & 0xffffffff:#x}")
    t = k.vm(f"buffer_load_dword v{vRes}, v{vAddr}, {WS}, 0 offen sc1")
    k.e(f"s_mov_b64 exec, -1")
    return t

def async_poll_check(k, tok, vAddr, vRes, mask64, name):
    L = k.newlabel(name); Ld = k.newlabel(name + "d")
    k.wait(vm=tok)
    k.e(f"s_mov_b32 exec_hi, {(mask64 >> 32) & 0xffffffff:#x}")
    k.e(f"s_mov_b32 exec_lo, {mask64 & 0xffffffff:#x}")
    k.e(f"v_cmp_ne_u32 vcc, s{sNonce}, v{vRes}")
    k.e(f"s_mov_b32 s{sSpin}, 0")
    k.e(f"s_cbranch_vccz {Ld}")
    k.label(L)
    k.e(f"buffer_load_dword v{vRes}, v{vAddr}, {WS}, 0 offen sc1")
    k.e(f"s_add_u32 s{sSpin}, s{sSpin}, 1")
    k.e(f"s_waitcnt vmcnt(0)")
    k.e(f"v_cmp_ne_u32 vcc, s{sNonce}, v{vRes}")
    k.e(f"s_cmp_gt_u32 s{sSpin}, {SPIN_MAX}")
    k.e(f"s_cbranch_scc1 {Ld}")
    k.e(f"s_cbranch_vccnz {L}")
    k.label(Ld)
    k.e(f"s_mov_b64 exec, -1")

def chk4(k, vR, vT):
    k.e(f"v_xor_b32 v{vT}, s{sNonce}, v{vR}")
    k.e(f"v_xor_b32 v{vR+1}, s{sNonce}, v{vR+1}")
    k.e(f"v_xor_b32 v{vR+2}, s{sNonce}, v{vR+2}")
    k.e(f"v_xor_b32 v{vR+3}, s{sNonce}, v{vR+3}")
    k.e(f"v_or3_b32 v{vT}, v{vT}, v{vR+1}, v{vR+2}")
    k.e(f"v_or_b32 v{vT}, v{vT}, v{vR+3}")
    k.e(f"v_cmp_ne_u32 vcc, 0, v{vT}")

def poll4_issue(k, vAddr, vR, mask):
    k.e(f"s_mov_b64 exec, {mask:#x}")
    t = k.vm(f"buffer_load_dwordx4 v[{vR}:{vR+3}], v{vAddr}, {WS}, 0 offen sc1")
    k.e(f"s_mov_b64 exec, -1")
    return t

def poll4_finish(k, tok, vAddr, vR0, vR1, vT, mask, name):
    L = k.newlabel(name); Ld = k.newlabel(name + "d")
    k.wait(vm=tok)
    k.e(f"s_mov_b64 exec, {mask:#x}")
    chk4(k, vR0, vT)
    k.e(f"s_mov_b32 s{sSpin}, 0")
    k.e(f"s_cbranch_vccz {Ld}")
    k.e(f"buffer_load_dwordx4 v[{vR0}:{vR0+3}], v{vAddr}, {WS}, 0 offen sc1")
    k.label(L)
    k.e(f"buffer_load_dwordx4 v[{vR1}:{vR1+3}], v{vAddr}, {WS}, 0 offen sc1")
    k.e(f"s_waitcnt vmcnt(1)")
    chk4(k, vR0, vT)
    k.e(f"s_add_u32 s{sSpin}, s{sSpin}, 1")
    k.e(f"s_cbranch_vccz {Ld}")
    k.e(f"buffer_load_dwordx4 v[{vR0}:{vR0+3}], v{vAddr}, {WS}, 0 offen sc1")
    k.e(f"s_waitcnt vmcnt(1)")
    chk4(k, vR1, vT)
    k.e(f"s_cmp_gt_u32 s{sSpin}, {SPIN_MAX}")
    k.e(f"s_cbranch_scc1 {Ld}")
    k.e(f"s_cbranch_vccnz {L}")
    k.label(Ld)
    k.e(f"s_mov_b64 exec, -1")

def div3(k, dst, src):
    k.e(f"s_mul_i32 s{dst}, s{src}, 43")
    k.e(f"s_lshr_b32 s{dst}, s{dst}, 7")


BARS = eval(os.environ.get('BARS', '(0, 1, 6)'))
DBG = os.environ.get('DBG', '')
sXcc, sFast = 100, 95

def gen():
    k = Emit()
    St.n = 0; St.names = []
    k.e("s_cmp_ge_u32 s2, 256")
    k.e("s_cbranch_scc1 L_end")
    k.e(f"s_load_dwordx16 s[{S_PTR}:{S_PTR+15}], s[0:1], 0")
    k.e(f"s_load_dwordx2 s[20:21], s[0:1], 64")
    G = V(1, 15)
    vLane = G.a(); vSt = G.a(); vt0 = G.a(); vt1 = G.a(); vt2 = G.a(); vt3 = G.a(); vWoD = G.a()
    vFlB = G.a(); vFlA = G.a(); vVpad = G.a(); vCen = G.a(); vP3a = G.a()
    SRD_X, SRD_W = SRD_XB, SRD_WB
    stamp(k, "start"); stamp(k, "rt", True)
    k.e(f"v_and_b32 v{vLane}, 63, v0")
    k.e(f"v_lshrrev_b32 v{vt0}, 6, v0")
    k.e(f"s_and_b32 s{sU}, s2, 7")
    k.e(f"v_readfirstlane_b32 s{sW}, v{vt0}")
    k.e(f"s_lshr_b32 s{sT2}, s2, 3")
    k.e(f"s_and_b32 s{sBeta}, s{sT2}, 1")
    k.e(f"s_lshr_b32 s{sR}, s{sT2}, 1")
    k.e(f"s_mul_i32 s{sOff}, s{sR}, 37")
    k.e(f"s_lshr_b32 s{sOff}, s{sOff}, 8")
    k.e(f"s_mul_i32 s{sOff}, s{sOff}, 7")
    k.e(f"s_sub_u32 s{sOff}, s{sR}, s{sOff}")
    k.e(f"s_mul_i32 s{sXbase}, s{sR}, {128*896}")
    k.e(f"s_mul_i32 s{sWcol}, s{sU}, 112")
    R = V(16, 256)
    vXo = R.a(4); vWo = R.a(2); vXr = R.a(4); vWr = R.a(4)
    vXf = R.a(8, 4); vWf = R.a(48, 4)
    acc = {(hh, nm): R.a(16, 4) for hh in range(2) for nm in "QKV"}
    vF = R.a(48, 4)
    vS1 = vWf
    vDiag = 240
    assert R.n <= 240, R.n
    XSLOT = 16640; WSLOT = 24576; WBASE = 3 * XSLOT
    k.e(f"v_lshrrev_b32 v{vt0}, 3, v{vLane}")
    k.e(f"v_bfe_u32 v{vt1}, v{vLane}, 4, 1")
    k.e(f"v_lshlrev_b32 v{vt1}, 2, v{vt1}")
    k.e(f"v_and_b32 v{vt2}, 7, v{vLane}")
    k.e(f"v_xor_b32 v{vt1}, v{vt1}, v{vt2}")
    k.e(f"v_lshrrev_b32 v{vt2}, 6, v0")
    k.e(f"v_lshl_add_u32 v{vt3}, v{vt2}, 5, v{vt0}")
    k.e(f"v_mul_u32_u24 v{vt3}, 896, v{vt3}")
    k.e(f"v_lshl_add_u32 v{vXo}, v{vt1}, 4, v{vt3}")
    for j in range(1, 4):
        k.e(f"v_add_u32 v{vXo+j}, {j*(8*896-1040)}, v{vXo}")
    k.e(f"v_lshl_add_u32 v{vt3}, v{vt2}, 4, v{vt0}")
    k.e(f"v_mul_u32_u24 v{vt3}, 2688, v{vt3}")
    k.e(f"v_lshl_add_u32 v{vWo}, v{vt1}, 4, v{vt3}")
    k.e(f"v_add_u32 v{vWo+1}, {8*2688-1024}, v{vWo}")
    k.e(f"s_mul_i32 s{sM0X}, s{sW}, 4160")
    k.e(f"s_mul_i32 s{sM0W}, s{sW}, 6144")
    k.e(f"s_add_u32 s{sM0W}, s{sM0W}, {WBASE}")
    k.e(f"s_getreg_b32 s{sXcc}, hwreg(HW_REG_XCC_ID)")
    k.e("s_waitcnt lgkmcnt(0)")
    k.e(f"s_cmp_eq_u32 s{sBeta}, 1")
    k.e(f"s_cselect_b32 s{SRD_X}, s4, s10")
    k.e(f"s_cselect_b32 s{SRD_X+1}, s5, s11")
    k.e(f"s_cselect_b32 s{SRD_W}, s6, s12")
    k.e(f"s_cselect_b32 s{SRD_W+1}, s7, s13")
    k.e(f"s_and_b32 s{SRD_X+1}, s{SRD_X+1}, 0xffff")
    k.e(f"s_and_b32 s{SRD_W+1}, s{SRD_W+1}, 0xffff")
    k.e(f"s_mov_b32 s{SRD_X+2}, {X_BYTES}")
    k.e(f"s_mov_b32 s{SRD_X+3}, 0x20000")
    k.e(f"s_mov_b32 s{SRD_W+2}, {W_BYTES}")
    k.e(f"s_mov_b32 s{SRD_W+3}, 0x20000")
    X = f"s[{SRD_X}:{SRD_X+3}]"; W = f"s[{SRD_W}:{SRD_W+3}]"
    dma_tok = {}
    def dma_list(g):
        slot = g % 3
        L = []
        def head():
            k.e(f"s_add_u32 s{sC}, s{sOff}, {g}")
            k.e(f"s_sub_u32 s{sT}, s{sC}, 7")
            k.e(f"s_min_u32 s{sC}, s{sC}, s{sT}")
            k.e(f"s_lshl_b32 s{sXo}, s{sC}, 7")
            k.e(f"s_add_u32 s{sXo}, s{sXo}, s{sXbase}")
            k.e(f"s_mul_i32 s{sWo}, s{sC}, {64*2688}")
            k.e(f"s_add_u32 s{sWo}, s{sWo}, s{sWcol}")
            k.e(f"s_add_u32 m0, s{sM0X}, {slot*XSLOT}")
            k.e("s_nop 0")
        def xj(j):
            def f():
                if j == 0: head()
                k.vm(f"buffer_load_dwordx4 v{vXo+j}, {X}, s{sXo} offen offset:{1040*j} lds")
            return f
        def wi(sec, half):
            def f():
                if half == 0:
                    k.e(f"s_add_u32 m0, s{sM0W}, {slot*WSLOT + sec*2048}")
                    k.e(f"s_add_u32 s{sWo2}, s{sWo}, {sec*896}")
                t = k.vm(f"buffer_load_dwordx4 v{vWo+half}, {W}, s{sWo2} offen offset:{1024*half} lds")
                if sec == 2 and half == 1: dma_tok[g] = t
            return f
        for j in range(4): L.append(xj(j))
        for sec in range(3):
            for half in range(2): L.append(wi(sec, half))
        return L
    stamp(k, "pre-dma")
    for f in dma_list(0): f()
    stamp(k, "dma0 issued")
    srd(k, SRD_WS, 20, WS_BYTES); srd(k, SRD_OUT, 16, OUT_BYTES)
    srd(k, SRD_XA, 14, WO_BYTES); srd(k, SRD_WA, 8, WO_BYTES)
    SRD_WOB, SRD_WOA = SRD_XA, SRD_WA
    k.e(f"v_lshlrev_b32 v{vSt}, 4, v{vLane}")
    Lnn = k.newlabel("nonce")
    k.e(f"s_or_b32 s{sT}, s2, s{sW}")
    k.e(f"s_cmp_lg_u32 s{sT}, 0")
    k.e(f"s_cbranch_scc1 {Lnn}")
    k.e(f"s_mov_b32 s{sT}, {NONCE_OFF}")
    k.e(f"v_mov_b32 v{vt0}, 0")
    k.e(f"buffer_load_dword v{vt1}, v{vt0}, {WS}, s{sT} offen sc1")
    k.e(f"s_waitcnt vmcnt(0)")
    k.e(f"v_add_u32 v{vt1}, 1, v{vt1}")
    k.e(f"v_max_u32 v{vt1}, 1, v{vt1}")
    k.e(f"s_mov_b64 exec, 1")
    k.e(f"global_store_dword v{vt0}, v{vt1}, s[18:19] sc1")
    k.e(f"buffer_store_dword v{vt1}, v{vt0}, {WS}, s{sT} offen sc1")
    k.e(f"s_mov_b64 exec, -1")
    k.label(Lnn)
    k.e(f"s_lshr_b32 s{sT2}, s2, 3")
    k.e(f"s_lshl_b32 s{sHead}, s{sU}, 1")
    k.e(f"s_add_u32 s{sHead}, s{sHead}, s{sBeta}")
    k.e(f"s_mov_b32 s{sRA}, s{sR}")
    k.e(f"s_mul_i32 s{sT3}, s{sT2}, 37")
    k.e(f"s_lshr_b32 s{sT3}, s{sT3}, 8")
    k.e(f"s_min_u32 s{sC}, s{sT3}, 3")
    k.e(f"s_lshl_b32 s{sP3T}, s{sU}, 2")
    k.e(f"s_add_u32 s{sP3T}, s{sP3T}, s{sC}")
    k.e(f"s_mul_i32 s{sT3}, s{sT3}, 7")
    k.e(f"s_sub_u32 s{sCT}, s{sT2}, s{sT3}")
    k.e(f"s_lshl_b32 s{sTT}, s{sR}, 2")
    k.e(f"s_add_u32 s{sTT}, s{sTT}, s{sW}")
    k.e(f"s_mov_b32 s{sTTA}, s{sTT}")
    dsts = [0, 1, 3, 22, 23, 101]
    for hh in range(2):
        k.e(f"s_lshl_b32 s{sT}, s{sU}, 1")
        k.e(f"s_add_u32 s{sT}, s{sT}, {hh}")
        k.e(f"s_lshl_b32 s{sT}, s{sT}, 6")
        k.e(f"s_add_u32 s{sT}, s{sT}, s{sTT}")
        k.e(f"s_lshl_b32 s{sT3}, s{sT}, 12")
        k.e(f"s_lshl_b32 s{sC}, s{sBeta}, 22")
        k.e(f"s_add_u32 s{dsts[3*hh]}, s{sT3}, s{sC}")
        k.e(f"s_add_u32 s{dsts[3*hh+1]}, s{dsts[3*hh]}, 2048")
        k.e(f"s_lshl_b32 s{sT3}, s{sT}, 11")
        k.e(f"s_lshl_b32 s{sC}, s{sBeta}, 21")
        k.e(f"s_add_u32 s{sT3}, s{sT3}, s{sC}")
        k.e(f"s_add_u32 s{dsts[3*hh+2]}, s{sT3}, {Q_OFF['B']}")
    k.e(f"v_and_b32 v{vt0}, 31, v{vLane}")
    k.e(f"v_lshrrev_b32 v{vt1}, 3, v{vt0}")
    k.e(f"v_mul_u32_u24 v{vt1}, 1040, v{vt1}")
    k.e(f"v_and_b32 v{vt2}, 7, v{vt0}")
    k.e(f"v_lshl_add_u32 v{vt1}, v{vt2}, 7, v{vt1}")
    k.e(f"v_add_u32 v{vt1}, s{sM0X}, v{vt1}")
    k.e(f"v_bfe_u32 v{vt2}, v{vLane}, 1, 1")
    k.e(f"v_lshlrev_b32 v{vt2}, 6, v{vt2}")
    k.e(f"v_lshrrev_b32 v{vt3}, 5, v{vLane}")
    k.e(f"v_lshlrev_b32 v{vt3}, 4, v{vt3}")
    k.e(f"v_add_u32 v{vt1}, v{vt1}, v{vt3}")
    for ks in range(4):
        k.e(f"v_xor_b32 v{vXr+ks}, {(ks >> 1) * 64}, v{vt2}")
        k.e(f"v_add_u32 v{vXr+ks}, {((2*ks) & 3) * 16}, v{vXr+ks}")
        k.e(f"v_add_u32 v{vXr+ks}, v{vXr+ks}, v{vt1}")
    k.e(f"v_lshrrev_b32 v{vt0}, 5, v{vLane}")
    k.e(f"v_lshlrev_b32 v{vt0}, 3, v{vt0}")
    k.e(f"v_bfe_u32 v{vt1}, v{vLane}, 2, 2")
    k.e(f"v_add_u32 v{vt0}, v{vt0}, v{vt1}")
    k.e(f"v_lshlrev_b32 v{vt0}, 7, v{vt0}")
    k.e(f"v_bfe_u32 v{vt1}, v{vLane}, 4, 1")
    k.e(f"v_lshlrev_b32 v{vt1}, 5, v{vt1}")
    k.e(f"v_and_b32 v{vt2}, 3, v{vLane}")
    k.e(f"v_lshl_add_u32 v{vt1}, v{vt2}, 3, v{vt1}")
    k.e(f"v_bfe_u32 v{vt2}, v{vLane}, 3, 1")
    k.e(f"v_lshlrev_b32 v{vt2}, 6, v{vt2}")
    for hh in range(2):
        k.e(f"v_add_u32 v{vt3}, {56*hh}, v{vt1}")
        k.e(f"v_xor_b32 v{vt3}, v{vt3}, v{vt2}")
        k.e(f"v_add_u32 v{vt3}, v{vt3}, v{vt0}")
        k.e(f"v_add_u32 v{vWr+hh}, {WBASE}, v{vt3}")
        k.e(f"v_add_u32 v{vWr+2+hh}, {WBASE + 2*WSLOT}, v{vt3}")
    for f in dma_list(1)[:5]: f()
    k.e(f"v_and_b32 v{vt0}, 31, v{vLane}")
    k.e(f"v_cmp_eq_u32 vcc, 28, v{vt0}")
    k.e(f"v_mov_b32 v{vt1}, 0x3f803f80")
    k.e(f"v_cmp_le_u32_e64 s[{sVmask}:{sVmask+1}], 28, v{vt0}")
    k.e(f"v_cndmask_b32_e64 v{vVpad}, 0, v{vt1}, vcc")
    k.e(f"v_lshrrev_b32 v{vt0}, 3, v{vLane}")
    k.e(f"v_bfe_u32 v{vt1}, v{vLane}, 4, 1")
    k.e(f"v_lshlrev_b32 v{vt1}, 2, v{vt1}")
    k.e(f"v_and_b32 v{vt2}, 7, v{vLane}")
    k.e(f"v_xor_b32 v{vt1}, v{vt1}, v{vt2}")
    k.e(f"v_mul_u32_u24 v{vt0}, 896, v{vt0}")
    k.e(f"v_lshl_add_u32 v{vWoD}, v{vt1}, 4, v{vt0}")
    k.e(f"v_lshrrev_b32 v{vt0}, 5, v{vLane}")
    k.e(f"v_lshlrev_b32 v{vt0}, 2, v{vt0}")
    k.e(f"v_bfe_u32 v{vt1}, v{vLane}, 2, 2")
    k.e(f"v_add_u32 v{vt0}, v{vt0}, v{vt1}")
    k.e(f"v_lshlrev_b32 v{vt0}, 7, v{vt0}")
    k.e(f"s_and_b32 s{sT}, s{sW}, 1")
    k.e(f"s_lshl_b32 s{sT}, s{sT}, 6")
    k.e(f"v_bfe_u32 v{vt1}, v{vLane}, 4, 1")
    k.e(f"v_lshlrev_b32 v{vt1}, 5, v{vt1}")
    k.e(f"v_and_b32 v{vt2}, 3, v{vLane}")
    k.e(f"v_lshl_add_u32 v{vt1}, v{vt2}, 3, v{vt1}")
    k.e(f"v_add_u32 v{vt1}, s{sT}, v{vt1}")
    k.e(f"v_bfe_u32 v{vt2}, v{vLane}, 3, 1")
    k.e(f"v_lshlrev_b32 v{vt2}, 6, v{vt2}")
    k.e(f"v_xor_b32 v{vt1}, v{vt1}, v{vt2}")
    k.e(f"v_add_u32 v{vP3a}, v{vt0}, v{vt1}")
    k.e(f"s_lshl_b32 s{sT}, s{sW}, 2")
    k.e(f"v_add_u32 v{vt0}, s{sT}, v{vLane}")
    k.e(f"v_cmp_eq_u32 vcc, 4, v{vLane}")
    k.e(f"v_mov_b32 v{vt1}, s{sRA}")
    k.e(f"s_sub_u32 s{sT}, s{sRA}, 7")
    k.e(f"v_cndmask_b32 v{vt0}, v{vt0}, v{vt1}, vcc")
    k.e(f"v_add_u32 v{vt1}, s{sT}, v{vLane}")
    k.e(f"v_max_i32 v{vt1}, 0, v{vt1}")
    k.e(f"v_add_u32 v{vt1}, 128, v{vt1}")
    k.e(f"v_cmp_lt_u32 vcc, 4, v{vLane}")
    k.e(f"s_lshl_b32 s{sT}, s{sU}, 4")
    k.e(f"s_nop 0")
    k.e(f"v_cndmask_b32 v{vt0}, v{vt0}, v{vt1}, vcc")
    k.e(f"v_add_u32 v{vt0}, s{sT}, v{vt0}")
    k.e(f"v_lshlrev_b32 v{vFlB}, 7, v{vt0}")
    k.e(f"v_add_u32 v{vFlB}, {FP1_OFF}, v{vFlB}")
    k.e(f"v_lshrrev_b32 v{vt0}, 3, v{vLane}")
    k.e(f"s_lshl_b32 s{sT}, s{sU}, 2")
    k.e(f"v_add_u32 v{vt0}, s{sT}, v{vt0}")
    k.e(f"v_lshlrev_b32 v{vt0}, 7, v{vt0}")
    k.e(f"v_and_b32 v{vt1}, 7, v{vLane}")
    k.e(f"v_lshl_add_u32 v{vt0}, v{vt1}, 2, v{vt0}")
    k.e(f"v_add_u32 v{vCen}, {CEN_OFF}, v{vt0}")
    k.e(f"s_lshl_b32 s{sKVB}, s{sHead}, 18")
    k.e(f"s_lshl_b32 s{sT}, s{sW}, 16")
    k.e(f"s_add_u32 s{sKVB}, s{sKVB}, s{sT}")
    k.e(f"s_and_b32 s{sRot}, s{sRA}, 7")
    k.e(f"s_lshl_b32 s{sRot}, s{sRot}, 1")
    k.e(f"v_and_b32 v{vt0}, 31, v{vLane}")
    k.e(f"v_lshrrev_b32 v{vt1}, 5, v{vLane}")
    k.e(f"v_lshlrev_b32 v{vt1}, 2, v{vt1}")
    k.e(f"v_sub_u32 v{vt0}, v{vt0}, v{vt1}")
    k.e(f"v_mov_b32 v{vt1}, {f2u(NEGBIG):#x}")
    prs = [sMk, sMk + 2, sMk + 4]
    def cmpm(i):
        b = 8 * (i // 4) + (i % 4); p = prs[i % 3]
        k.e(f"v_cmp_le_i32_e64 s[{p}:{p+1}], {b}, v{vt0}")
    cmpm(0); cmpm(1)
    for i in range(16):
        if i + 2 < 16: cmpm(i + 2)
        else: k.nop(1)
        p = prs[i % 3]
        k.e(f"v_cndmask_b32_e64 v{vDiag+i}, v{vt1}, 0, s[{p}:{p+1}]")
    rest1 = None
    L1 = dma_list(1)
    for f in L1[5:]: f()

    def rd_list(g, ks):
        slot = g % 3; par = ks % 2
        L = [f"ds_read_b128 v[{vXf+4*par}:{vXf+4*par+3}], v{vXr+ks} offset:{slot*XSLOT}"]
        for hh in range(2):
            for sec in range(3):
                areg = vWr + hh + (2 if slot == 2 else 0)
                base = (slot % 2 if slot < 2 else 0) * WSLOT + ks * 6144 + sec * 2048
                d = vWf + 24 * par + 12 * hh + 4 * sec
                L.append(f"ds_read_b64_tr_b16 v[{d}:{d+1}], v{areg} offset:{base}")
                L.append(f"ds_read_b64_tr_b16 v[{d+2}:{d+3}], v{areg} offset:{base+512}")
        return L
    def mf_list(g, ks):
        first = (g == 0 and ks == 0); par = ks % 2
        xf = vr(vXf + 4 * par, 4)
        L = []
        for hh in range(2):
            for sec, nm in enumerate("QKV"):
                wf = vr(vWf + 24 * par + 12 * hh + 4 * sec, 4)
                d = vr(acc[(hh, nm)], 16); c = "0" if first else d
                L.append(f"v_mfma_f32_32x32x16_bf16 {d}, {xf}, {wf}, {c}" if nm == "V" else f"v_mfma_f32_32x32x16_bf16 {d}, {wf}, {xf}, {c}")
        return L
    def interleave(mf, rds, tok_need, extra):
        k.wait(lg=tok_need)
        t = None; ri = 0
        for i, m in enumerate(mf):
            k.e(m)
            n = (len(rds) - ri + (len(mf) - i) - 1) // (len(mf) - i)
            for _ in range(n):
                t = k.lg(rds[ri]); ri += 1
            if extra and i % 2 == 1: extra.pop(0)()
        return t
    pend = None; nonce_tok = None
    for g in range(7):
        k.c(f"---- chunk {g}")
        k.wait(vm=dma_tok[g])
        k.wait_all(vm=False, lg=True)
        k.e("s_barrier")
        if g in BARS: stamp(k, f"bar{g}")
        ex = dma_list(g + 2) if g + 2 < 7 else []
        r0 = rd_list(g, 0)
        if pend is None:
            for r_ in r0: tok = k.lg(r_)
            ex.pop(0)()
        else:
            tok = interleave(mf_list(*pend), r0, None, ex)
        if g == 2:
            k.e(f"v_mov_b32 v{vt0}, 0")
            k.e(f"global_load_dword v{vt3}, v{vt0}, s[18:19] sc1")
            k.vm_n += 1; nonce_tok = k.vm_n
        if g == 3:
            Ln = k.newlabel("n"); Lnd = k.newlabel("nd"); Lc = k.newlabel("cen")
            k.wait(vm=nonce_tok)
            k.e(f"v_readfirstlane_b32 s{sNonce}, v{vt3}")
            k.e(f"s_mov_b32 s{sSpin}, 0")
            k.e(f"s_cmp_lg_u32 s{sNonce}, 0")
            k.e(f"s_cbranch_scc1 {Lnd}")
            k.label(Ln)
            k.e(f"global_load_dword v{vt3}, v{vt0}, s[18:19] sc1")
            k.e(f"s_add_u32 s{sSpin}, s{sSpin}, 1")
            k.e(f"s_waitcnt vmcnt(0)")
            k.e(f"v_readfirstlane_b32 s{sNonce}, v{vt3}")
            k.e(f"s_cmp_gt_u32 s{sSpin}, {SPIN_MAX}")
            k.e(f"s_cbranch_scc1 {Lnd}")
            k.e(f"s_cmp_eq_u32 s{sNonce}, 0")
            k.e(f"s_cbranch_scc1 {Ln}")
            k.label(Lnd)
            k.e(f"s_add_u32 s{sT}, s{sXcc}, 1")
            k.e(f"s_lshl_b32 s{sT}, s{sT}, 24")
            k.e(f"s_add_u32 s{sFast}, s{sNonce}, s{sT}")
            k.e(f"s_lshr_b32 s{sT}, s2, 3")
            k.e(f"s_lshr_b32 s{sT2}, s{sT}, 3")
            k.e(f"s_lshl_b32 s{sT3}, s{sU}, 2")
            k.e(f"s_add_u32 s{sT2}, s{sT2}, s{sT3}")
            k.e(f"s_lshl_b32 s{sT2}, s{sT2}, 7")
            k.e(f"s_and_b32 s{sT}, s{sT}, 7")
            k.e(f"s_lshl_b32 s{sT}, s{sT}, 2")
            k.e(f"s_add_u32 s{sT2}, s{sT2}, s{sT}")
            k.e(f"s_add_u32 s{sT2}, s{sT2}, {CEN_OFF}")
            k.e(f"s_cmp_eq_u32 s{sW}, 0")
            k.e(f"s_cselect_b32 s{sT2}, s{sT2}, {WS_BYTES}")
            k.e(f"v_mov_b32 v{vt0}, 0")
            k.e(f"v_mov_b32 v{vt1}, s{sFast}")
            k.e(f"s_mov_b64 exec, 1")
            k.vm(f"buffer_store_dword v{vt1}, v{vt0}, {WS}, s{sT2} offen sc1")
            k.e(f"s_mov_b64 exec, -1")
        if g == 4:
            poll4_issue(k, vFlB, 232, 0xff)
        if g == 6:
            k.e(f"s_mov_b64 exec, 0xffffffff")
            cen_tok = k.vm(f"buffer_load_dword v{vt3}, v{vCen}, {WS}, 0 offen sc1")
            k.e(f"s_mov_b64 exec, -1")
        for ks in range(3):
            tok = interleave(mf_list(g, ks), rd_list(g, ks + 1), tok, ex)
        while ex: ex.pop(0)()
        pend = (g, 3)
        ptok = tok
    k.wait(lg=ptok)
    for m in mf_list(*pend): k.e(m)
    stamp(k, "mfma done")
    def F(hh, nm): return vF + 24 * hh + 8 * "KVQ".index(nm)
    sQs = sMk + 2
    k.e(f"s_mov_b32 s{sQs}, {f2u(QSCALE):#x}")
    k.nop(2)
    k.wait(vm=cen_tok)
    k.e(f"s_mov_b64 exec, 0xffffffff")
    k.e(f"v_cmp_ne_u32 vcc, s{sFast}, v{vt3}")
    k.e(f"s_mov_b64 exec, -1")
    k.e(f"s_cmp_eq_u64 vcc, 0")
    k.e(f"s_cselect_b32 s{sFast}, 1, 0")
    if 'slow' in DBG: k.e(f"s_mov_b32 s{sFast}, 0")
    if STAMP: k.e(f"v_writelane_b32 v{St.v}, s{sFast}, 31")
    for hh in range(2):
        aK, aQ = acc[(hh, "K")], acc[(hh, "Q")]
        fK, fQ = F(hh, "K"), F(hh, "Q")
        for j in range(8): k.e(f"v_cvt_pk_bf16_f32 v{fK+j}, v{aK+2*j}, v{aK+2*j+1}")
        for j in range(0, 16, 2):
            k.e(f"v_pk_mul_f32 v[{aQ+j}:{aQ+j+1}], v[{aQ+j}:{aQ+j+1}], s[{sQs}:{sQs+1}] op_sel_hi:[1,0]")
        for j in range(8): k.e(f"v_cvt_pk_bf16_f32 v{fQ+j}, v{aQ+2*j}, v{aQ+2*j+1}")
        k.e("s_mov_b32 exec_lo, 0")
        k.e(f"v_mov_b32 v{fK+6}, 0x3f803f80")
        k.e(f"v_mov_b32 v{fK+7}, 0x00003f80")
        k.e(f"v_mov_b32 v{fQ+6}, 0")
        k.e(f"v_mov_b32 v{fQ+7}, 0")
        k.e("s_mov_b32 exec_lo, -1")
    k.e(f"s_cmp_eq_u32 s{sBeta}, 1")
    k.e(f"s_cselect_b32 s{sT}, 1.0, 0")
    for i in range(0, 16, 2):
        k.e(f"v_pk_mul_f32 v[{vS1+i}:{vS1+i+1}], v[{vDiag+i}:{vDiag+i+1}], s[{sT}:{sT+1}] op_sel_hi:[1,0]")
    k.nop(2)
    for hh in range(2):
        S = acc[(hh, "K")]
        mfma(k, vr(S, 16), vr(F(hh, "K"), 4), vr(F(hh, "Q"), 4), vr(vS1, 16))
        mfma(k, vr(S, 16), vr(F(hh, "K") + 4, 4), vr(F(hh, "Q") + 4, 4), vr(S, 16))
    for hh in range(2):
        aV = acc[(hh, "V")]; fV = F(hh, "V")
        for j in range(8): k.e(f"v_cvt_pk_bf16_f32 v{fV+j}, v{aV+2*j}, v{aV+2*j+1}")
        for j in range(8): k.e(f"v_cndmask_b32_e64 v{fV+j}, v{fV+j}, v{vVpad}, s[{sVmask}:{sVmask+1}]")
    for hh in range(2):
        S = acc[(hh, "K")]; fQ = F(hh, "Q")
        colmax(k, S, vt3, vt0)
        k.e(f"v_add_f32 v{vt3}, {f2u(MARGIN):#x}, v{vt3}")
        shift_dwords(k, vt3, vt0, vt1, vt2)
        k.e("s_mov_b32 exec_lo, 0")
        k.e(f"v_mov_b32 v{fQ+6}, v{vt0}")
        k.e(f"v_mov_b32 v{fQ+7}, v{vt1}")
        k.e("s_mov_b32 exec_lo, -1")
    stamp(k, "epilogue")
    k.e(f"s_lshl_b32 s{sT}, s{sBeta}, 3")
    k.e(f"s_add_u32 s{sT}, s{sT}, s{sU}")
    k.e(f"s_lshl_b32 s{sT}, s{sT}, 4")
    k.e(f"s_add_u32 s{sT}, s{sT}, s{sR}")
    k.e(f"s_lshl_b32 s{sT}, s{sT}, 7")
    k.e(f"s_lshl_b32 s{sT2}, s{sW}, 2")
    k.e(f"s_add_u32 s{sT}, s{sT}, s{sT2}")
    k.e(f"s_add_u32 s{sFOB}, s{sT}, {FP1_OFF}")
    Lslow = k.newlabel("slow"); Lst = k.newlabel("stored")
    k.e(f"s_cmp_eq_u32 s{sFast}, 0")
    k.e(f"s_cbranch_scc1 {Lslow}")
    def qkv_stores(flag):
        for hh in range(2):
            for nm in "KVQ":
                f = F(hh, nm); d = dsts[3 * hh + "KVQ".index(nm)]
                k.e(f"buffer_store_dwordx4 v[{f}:{f+3}], v{vSt}, {WS}, s{d} offen {flag}")
                k.e(f"buffer_store_dwordx4 v[{f+4}:{f+7}], v{vSt}, {WS}, s{d} offen offset:1024 {flag}")
        k.e(f"v_mov_b32 v{vt0}, 0")
        k.e(f"v_mov_b32 v{vt1}, s{sNonce}")
        k.e(f"s_waitcnt vmcnt(0)")
        k.e(f"s_mov_b64 exec, 1")
        k.e(f"buffer_store_dword v{vt1}, v{vt0}, {WS}, s{sFOB} offen {flag}")
        k.e(f"s_mov_b64 exec, -1")
    qkv_stores(os.environ.get("FASTST", "nt"))
    k.e(f"s_branch {Lst}")
    k.label(Lslow)
    qkv_stores("sc1")
    k.label(Lst)
    k.vm_n += 13; k.vm_done = k.vm_n - 1
    stamp(k, "flag stored")
    k.e("s_barrier")
    vRed, vRedR, vQA, vOf, vO01, vQ, vS, vP, vO23 = 16, 17, 20, 28, 36, 68, 100, 132, 148
    vPR0, vPR1, vPT = 180, 184, 188
    vTmp = vS
    def vOd(d): return (vO01 + 16 * d) if d < 2 else (vO23 + 16 * (d - 2))
    qtok = {}; ktok = {}; vtok = {}
    sTq = [0, 98, 99]
    def tile_items(i):
        def f(j):
            def g_():
                if j == 0 or j == 2:
                    k.e(f"s_add_u32 s{sT}, s{sRot}, {i}")
                    k.e(f"s_and_b32 s{sT}, s{sT}, 15")
                    k.e(f"s_lshl_b32 s{sT}, s{sT}, 12")
                    k.e(f"s_add_u32 s{sTq[1]}, s{sT}, s{sKVB}")
                t = k.vm(f"buffer_load_dwordx4 a[{16*i+4*j}:{16*i+4*j+3}], v{vSt}, {WS}, s{sTq[1]} offen offset:{1024*j} sc1")
                if j == 1: ktok[i] = t
                if j == 3: vtok[i] = t
            return g_
        return [f(j) for j in range(4)]
    def q_items(d):
        def f(j):
            def g_():
                if j == 0:
                    k.e(f"s_add_u32 s{sT}, s{sW}, {d}")
                    k.e(f"s_and_b32 s{sT}, s{sT}, 3")
                    k.e(f"s_lshl_b32 s{sT2}, s{sRA}, 2")
                    k.e(f"s_add_u32 s{sT}, s{sT}, s{sT2}")
                    k.e(f"s_lshl_b32 s{sT2}, s{sHead}, 6")
                    k.e(f"s_add_u32 s{sT}, s{sT}, s{sT2}")
                    k.e(f"s_lshl_b32 s{sTq[1]}, s{sT}, 11")
                    k.e(f"s_add_u32 s{sTq[1]}, s{sTq[1]}, {Q_OFF['B']}")
                t = k.vm(f"buffer_load_dwordx4 v[{vQ+8*d+4*j}:{vQ+8*d+4*j+3}], v{vSt}, {WS}, s{sTq[1]} offen offset:{1024*j} sc1")
                if j == 1: qtok[d] = t
            return g_
        return [f(0), f(1)]
    WOB_L, WOA_L = 0, 57344
    def wo_items(srdn, lbase):
        def one(j):
            def f():
                if j == 0:
                    k.e(f"s_lshl_b32 s{sMk}, s{sCT}, 7")
                    k.e(f"s_mul_i32 s{sMk+1}, s{sW}, {112*896}")
                    k.e(f"s_add_u32 s{sMk}, s{sMk}, s{sMk+1}")
                    k.e(f"s_mul_i32 s{sMk+1}, s{sW}, {112*128}")
                    k.e(f"s_add_u32 s{sMk+1}, s{sMk+1}, {lbase}")
                k.e(f"s_add_u32 m0, s{sMk+1}, {1024*j}")
                k.e(f"s_add_u32 s{sMk+4}, s{sMk}, {8*896*j}")
                return k.vm(f"buffer_load_dwordx4 v{vWoD}, s[{srdn}:{srdn+3}], s{sMk+4} offen lds")
            return f
        return [one(j) for j in range(14)]
    tp = poll4_issue(k, vFlB, vPR0, 0xff)
    poll4_finish(k, tp, vFlB, vPR0, vPR1, vPT, 0xff, "pb")
    stamp(k, "P1 flags")
    t0i = tile_items(0)
    for f in q_items(1) + t0i[:2] + q_items(2) + t0i[2:] + q_items(3) + q_items(0): f()
    vOA = 224; vEdge = 192
    kt = {}; vt = {}; st = {}
    def bop(i, d):
        return dict(K=(ar(16*i, 4), ar(16*i+4, 4)), V=(ar(16*i+8, 4), ar(16*i+12, 4)),
                    Q=(vr(vQ+8*d, 4), vr(vQ+8*d+4, 4)), O=vr(vOd(d), 16), C="0", first=(i == 0),
                    wK=(lambda i=i, d=d: max(ktok[i], qtok[d])), wV=(lambda i=i: vtok[i]))
    def aslot(j): return j % 3
    lk = {}; lv = {}
    def aop(j):
        a = aslot(j)
        C = vr(vEdge, 16) if j == 0 else vr(vDiag, 16) if j == 8 else "0"
        return dict(K=(ar(16*a, 4), ar(16*a+4, 4)), V=(ar(16*a+8, 4), ar(16*a+12, 4)), Q=(vr(vQA, 4), vr(vQA+4, 4)),
                    O=vr(vOA, 16), C=C, first=(j == 0), lK=(lambda j=j: lk[j]), lV=(lambda j=j: lv[j]))
    A0 = 12
    NT1 = A0 // 4
    ops = [bop(i, d) for i in range(NT1) for d in (1, 2, 3, 0)] + [aop(j) for j in range(9)] + [bop(i, d) for i in range(NT1, 16) for d in (1, 2, 3, 0)]
    N = len(ops)
    vKVr = 191
    def rdKa(j):
        a = aslot(j)
        k.lg(f"ds_read_b128 a[{16*a}:{16*a+3}], v{vKVr} offset:{j*4096}")
        lk[j] = k.lg(f"ds_read_b128 a[{16*a+4}:{16*a+7}], v{vKVr} offset:{j*4096+1024}")
    def rdVa(j):
        a = aslot(j)
        k.lg(f"ds_read_b128 a[{16*a+8}:{16*a+11}], v{vKVr} offset:{j*4096+2048}")
        lv[j] = k.lg(f"ds_read_b128 a[{16*a+12}:{16*a+15}], v{vKVr} offset:{j*4096+3072}")
    def a_dma_items():
        def f(i, q):
            def g_():
                if q == 0:
                    k.e(f"s_mul_i32 s{sT}, s{sW}, 3")
                    k.e(f"s_lshl_b32 s{sT2}, s{sRA}, 2")
                    k.e(f"s_add_u32 s{sT}, s{sT}, s{sT2}")
                    k.e(f"s_add_i32 s{sT2}, s{sT}, {i-8}")
                    k.e(f"s_lshl_b32 s{sTq[2]}, s{sT2}, 12")
                    k.e(f"s_add_u32 s{sTq[2]}, s{sTq[2]}, s{sKV}")
                    k.e(f"s_cmp_lt_i32 s{sT2}, 0")
                    k.e(f"s_cselect_b32 s{sTq[2]}, {WS_BYTES}, s{sTq[2]}")
                k.e(f"s_mul_i32 s{sT}, s{sW}, {3*4096}")
                k.e(f"s_add_u32 m0, s{sT}, {SCR + i*4096}")
                k.e("s_nop 0")
                st["ad"] = k.vm(f"buffer_load_dwordx4 v{vSt}, {WS}, s{sTq[2]} offen offset:{1024*q} sc1 lds")
            return g_
        return [f(i, q) for i in range(3) for q in range(4)]
    strB = []
    for i in range(1, 16):
        use = 4 * i if i < NT1 else 4 * i + 9
        for q, f in enumerate(tile_items(i)): strB.append((max(use - 8 + q, -1), f))
    strA = [(0, f) for f in a_dma_items()]
    strW = [(10 + j, f) for j, f in enumerate(wo_items(SRD_WOA, WOA_L))] + [(26 + j, f) for j, f in enumerate(wo_items(SRD_WOB, WOB_L))]
    strO = []
    at = {}
    vR1, vR2, vR3 = 189, 190, 191
    def red_addr():
        for d, vv in ((1, vR1), (2, vR2), (3, vR3)):
            k.e(f"s_add_u32 s{sT}, s{sW}, {d}")
            k.e(f"s_and_b32 s{sT}, s{sT}, 3")
            k.e(f"s_mul_i32 s{sT}, s{sT}, {3*4096}")
            k.e(f"s_add_u32 s{sT}, s{sT}, {SCR + (d-1)*4096}")
            k.e(f"v_add_u32 v{vv}, s{sT}, v{vSt}")
        k.e(f"s_mul_i32 s{sT}, s{sW}, {3*4096}")
        k.e(f"s_add_u32 s{sT}, s{sT}, {SCR}")
        k.e(f"v_add_u32 v{vRedR}, s{sT}, v{vSt}")
    def red_write(d, i):
        vv = {1: vR1, 2: vR2, 3: vR3}[d]
        k.lg(f"ds_write_b128 v{vv}, v[{vOd(d)+4*i}:{vOd(d)+4*i+3}] offset:{1024*i}")
    def o_flag_offsets():
        k.e(f"s_lshl_b32 s{sFOA}, s{sTTA}, 2")
        k.e(f"s_lshr_b32 s{sT}, s{sHead}, 2")
        k.e(f"s_add_u32 s{sFOA}, s{sFOA}, s{sT}")
        k.e(f"s_lshl_b32 s{sFOA}, s{sFOA}, 7")
        k.e(f"s_and_b32 s{sT}, s{sHead}, 3")
        k.e(f"s_lshl_b32 s{sT}, s{sT}, 2")
        k.e(f"s_add_u32 s{sFOA}, s{sFOA}, s{sT}")
        k.e(f"s_add_u32 s{sFOB}, s{sFOA}, {FO_OFF}")
        k.e(f"s_add_u32 s{sFOA}, s{sFOA}, {FO_OFF + 64*4*128}")
    def oa_items():
        def f(step):
            def g_():
                if step == 0:
                    k.e(f"s_lshl_b32 s{sT}, s{sP3T}, 1")
                    k.e(f"s_lshr_b32 s{sT2}, s{sW}, 1")
                    k.e(f"s_add_u32 s{sTT}, s{sT}, s{sT2}")
                    k.e(f"s_lshl_b32 s{sKV}, s{sTT}, 15")
                    k.e(f"s_add_u32 s{sKV}, s{sKV}, {O_OFF['A']}")
                if step % 4 == 0: k.e(f"s_add_u32 s{sTq[2]}, s{sKV}, {1024*step}")
                at[step] = k.vm(f"buffer_load_dwordx4 a[{4*step}:{4*step+3}], v{vSt}, {WS}, s{sTq[2]} offen offset:{1024*(step%4)} sc1")
            return g_
        return [f(step) for step in range(32)]
    SL = eval(os.environ.get("SLOTS", "()"))
    def hookB(n, g):
        if g == 0 and n in SL: stamp(k, f"slot{n}")
        if g == 0 and strB and strB[0][0] <= n: strB.pop(0)[1]()
        if n < 0:
            if g == 1:
                k.e(f"s_lshl_b32 s{sKV}, s{sHead}, 18")
                k.e(f"s_add_u32 s{sKV}, s{sKV}, {KV_OFF['A']}")
                k.e(f"s_lshl_b32 s{sT2}, s{sHead}, 6")
                k.e(f"s_add_u32 s{sT2}, s{sT2}, s{sTTA}")
                k.e(f"s_lshl_b32 s{sQo}, s{sT2}, 11")
                k.e(f"s_add_u32 s{sQo}, s{sQo}, {Q_OFF['A']}")
                k.vm(f"buffer_load_dwordx4 v[{vQA}:{vQA+3}], v{vSt}, {WS}, s{sQo} offen sc1")
                st["qa"] = k.vm(f"buffer_load_dwordx4 v[{vQA+4}:{vQA+7}], v{vSt}, {WS}, s{sQo} offen offset:1024 sc1")
            return
        if g == 3 and n < 6 and strB and strB[0][0] <= n: strB.pop(0)[1]()
        if g == 2:
            if strA and strA[0][0] <= n: strA.pop(0)[1]()
            elif strW and strW[0][0] <= n: st["wo"] = strW.pop(0)[1]()
        if g == 1 and strA and strA[0][0] <= n: strA.pop(0)[1]()
        if g == 3 and n >= 45 and strO: strO.pop(0)()
        if g == 1 and n == 8:
            assert not strA
            k.wait(vm=max(st["ad"], st["qa"]))
            k.e("s_barrier")
            k.e(f"s_lshl_b32 s{sT}, s{sW}, 12")
            k.e(f"s_add_u32 s{sT}, s{sT}, {SCR}")
            k.e(f"v_add_u32 v{vKVr}, s{sT}, v{vSt}")
            k.e(f"v_mov_b32 v{vt1}, {f2u(NEGBIG):#x}")
            for i in range(16): k.e(f"v_sub_f32 v{vEdge+i}, v{vt1}, v{vDiag+i}")
        for j in range(9):
            if g == 3 and n == A0 + j - 3: rdKa(j)
            if g == 3 and n == A0 + j - 1: rdVa(j)
        if g == 1 and n == A0 + 11:
            finalize_o(k, vOA, vt0, vt1, vOf)
            k.e(f"s_lshl_b32 s{sT}, s{sTTA}, 4")
            k.e(f"s_add_u32 s{sT}, s{sT}, s{sHead}")
            k.e(f"s_lshl_b32 s{sOo}, s{sT}, 11")
            k.e(f"s_add_u32 s{sOo}, s{sOo}, {O_OFF['A']}")
            k.vm(f"buffer_store_dwordx4 v[{vOf}:{vOf+3}], v{vSt}, {WS}, s{sOo} offen sc1")
            st["oa"] = k.vm(f"buffer_store_dwordx4 v[{vOf+4}:{vOf+7}], v{vSt}, {WS}, s{sOo} offen offset:1024 sc1")
            o_flag_offsets()
        if g == 1 and n == A0 + 19:
            k.wait(vm=st["oa"])
            store_flag(k, vt0, vt1, sFOA)
            k.e(f"s_lshl_b32 s{sT}, s{sP3T}, 3")
            k.e(f"v_add_u32 v{vFlB}, s{sT}, v{vLane}")
            k.e(f"v_lshlrev_b32 v{vFlB}, 7, v{vFlB}")
            k.e(f"v_add_u32 v{vFlA}, {FO_OFF + 64*4*128}, v{vFlB}")
            k.e(f"v_add_u32 v{vFlB}, {FO_OFF}, v{vFlB}")
        if g == 1 and n == 40:
            st["pOA"] = poll4_issue(k, vFlA, vPR0, 0xff)
        if g == 1 and n == 44:
            poll4_finish(k, st["pOA"], vFlA, vPR0, vPR1, vPT, 0xff, "poA")
            strO.extend(oa_items())
        if g == 1 and n == N - 8:
            red_addr()
        if n == N - 1: red_write(1, g)
        if n == N and g < 2:
            red_write(2, 2 * g); red_write(2, 2 * g + 1)
    attn_pipeline(k, ops, vS, vP, hookB)
    assert not strB and not strA and not strW, (len(strB), len(strA), len(strW))
    stamp(k, "attn done")
    k.nop(8)
    for i in range(4): red_write(3, i)
    k.wait_all(vm=False)
    k.e("s_barrier")
    for j in range(3):
        for i in range(4):
            k.lg(f"ds_read_b128 v[{vTmp+16*j+4*i}:{vTmp+16*j+4*i+3}], v{vRedR} offset:{4096*j+1024*i}")
    for j in range(3):
        k.wait(lg=k.lg_n - 4 * (2 - j))
        for i in range(0, 16, 2):
            k.e(f"v_pk_add_f32 v[{vOd(0)+i}:{vOd(0)+i+1}], v[{vOd(0)+i}:{vOd(0)+i+1}], v[{vTmp+16*j+i}:{vTmp+16*j+i+1}]")
    finalize_o(k, vOd(0), vt0, vt1, vOf)
    k.e(f"s_lshl_b32 s{sT}, s{sTTA}, 4")
    k.e(f"s_add_u32 s{sT}, s{sT}, s{sHead}")
    k.e(f"s_lshl_b32 s{sOo}, s{sT}, 11")
    k.e(f"s_add_u32 s{sOo}, s{sOo}, {O_OFF['B']}")
    k.vm(f"buffer_store_dwordx4 v[{vOf}:{vOf+3}], v{vSt}, {WS}, s{sOo} offen sc1")
    ob = k.vm(f"buffer_store_dwordx4 v[{vOf+4}:{vOf+7}], v{vSt}, {WS}, s{sOo} offen offset:1024 sc1")
    stamp(k, "O(B) stored")
    Lp3 = k.newlabel("p3")
    k.e(f"s_cmp_lt_u32 s2, 224")
    k.e(f"s_cbranch_scc1 {Lp3}")
    k.e("s_waitcnt vmcnt(0)")
    k.e(f"v_mov_b32 v{vt0}, 0")
    k.e(f"v_mov_b32 v{vt1}, s{sNonce}")
    k.e(f"s_mov_b64 exec, 1")
    k.e(f"buffer_store_dword v{vt1}, v{vt0}, {WS}, s{sFOB} offen sc1")
    k.e(f"s_endpgm")
    k.label(Lp3)
    vWrB, vWrA, vWrBc, vWrAc, vOr, vOut = 16, 17, 18, 19, 189, 190
    k.e(f"v_mov_b32 v{vWrB}, v{vP3a}")
    k.e(f"v_add_u32 v{vWrA}, {WOA_L}, v{vP3a}")
    k.e(f"v_lshrrev_b32 v{vt0}, 5, v{vLane}")
    k.e(f"v_lshlrev_b32 v{vt0}, 9, v{vt0}")
    k.e(f"v_sub_u32 v{vWrBc}, v{vWrB}, v{vt0}")
    k.e(f"v_sub_u32 v{vWrAc}, v{vWrA}, v{vt0}")
    k.e(f"v_and_b32 v{vt0}, 31, v{vLane}")
    k.e(f"v_mul_u32_u24 v{vt0}, 1792, v{vt0}")
    k.e(f"v_lshrrev_b32 v{vt1}, 5, v{vLane}")
    k.e(f"v_lshl_add_u32 v{vOut}, v{vt1}, 4, v{vt0}")
    cnt = 0
    while strO:
        strO.pop(0)(); cnt += 1
        if cnt == 8:
            k.wait(vm=ob)
            store_flag(k, vt0, vt1, sFOB)
    if cnt < 8:
        k.wait(vm=ob)
        store_flag(k, vt0, vt1, sFOB)
    stamp(k, "flag O(B)")
    NB = 4
    vA3, vB3, vD3, vPk = 36, 52, 68, 84
    def rdA(step, vW, vWc):
        hd, kk = step // 2, step % 2
        par = step % NB
        row = 28 * hd + 16 * kk
        a2 = vWc if (hd == 15 and kk == 1) else vW
        k.lg(f"ds_read_b64_tr_b16 v[{vA3+4*par}:{vA3+4*par+1}], v{vW} offset:{row*128}")
        return k.lg(f"ds_read_b64_tr_b16 v[{vA3+4*par+2}:{vA3+4*par+3}], v{a2} offset:{(row+8)*128}")
    def out_store(b):
        k.nop(12)
        for i in range(8): k.e(f"v_cvt_pk_bf16_f32 v{vPk+i}, v{vD3+2*i}, v{vD3+2*i+1}")
        k.e(f"s_lshl_b32 s{sT2}, s{sCT}, 1")
        k.e(f"s_and_b32 s{sT}, s{sW}, 1")
        k.e(f"s_add_u32 s{sT2}, s{sT2}, s{sT}")
        k.e(f"v_permlane32_swap_b32 v{vPk}, v{vPk+2}")
        k.e(f"v_permlane32_swap_b32 v{vPk+1}, v{vPk+3}")
        k.e(f"v_permlane32_swap_b32 v{vPk+4}, v{vPk+6}")
        k.e(f"v_permlane32_swap_b32 v{vPk+5}, v{vPk+7}")
        k.e(f"s_mul_i32 s{sOo}, s{sTT}, {32*1792}")
        k.e(f"s_lshl_b32 s{sT}, s{sT2}, 6")
        k.e(f"s_add_u32 s{sOo}, s{sOo}, s{sT}")
        if b == "B": k.e(f"s_add_u32 s{sOo}, s{sOo}, 896")
        k.vm(f"buffer_store_dwordx4 v[{vPk}:{vPk+3}], v{vOut}, s[{SRD_OUT}:{SRD_OUT+3}], s{sOo} offen nt")
        k.vm(f"buffer_store_dwordx4 v[{vPk+4}:{vPk+7}], v{vOut}, s[{SRD_OUT}:{SRD_OUT+3}], s{sOo} offen offset:32 nt")
    k.c("---- P3 A  (wo(A) was waited for long ago by later counted waits; make it explicit)")
    k.wait(vm=st["wo"])
    k.e("s_barrier")
    toks = {}
    for s_ in range(NB - 1): toks[s_] = rdA(s_, vWrA, vWrAc)
    for step in range(32):
        k.wait(vm=at[step], lg=toks[step])
        par = step % NB
        mfma(k, vr(vD3, 16), vr(vA3 + 4 * par, 4), ar(4 * step, 4), "0" if step == 0 else vr(vD3, 16))
        if step + NB - 1 < 32: toks[step + NB - 1] = rdA(step + NB - 1, vWrA, vWrAc)
    tpB = poll4_issue(k, vFlB, vPR0, 0xff)
    out_store("A")
    stamp(k, "P3A done")
    k.e("s_barrier")
    poll4_finish(k, tpB, vFlB, vPR0, vPR1, vPT, 0xff, "poB")
    stamp(k, "P3B flags")
    k.e(f"s_lshl_b32 s{sOo}, s{sP3T}, 16")
    k.e(f"s_add_u32 s{sOo}, s{sOo}, {O_OFF['B']}")
    k.e(f"s_lshl_b32 s{sT}, s{sW}, 14")
    k.e(f"s_add_u32 s{sOo}, s{sOo}, s{sT}")
    k.e(f"s_add_u32 s{sT2}, s{sT}, {WOA_L}")
    for j in range(16):
        if j % 4 == 0:
            k.e(f"s_add_u32 m0, s{sT2}, {1024*j}")
            k.e(f"s_add_u32 s{sT}, s{sOo}, {1024*j}")
        k.vm(f"buffer_load_dwordx4 v{vSt}, {WS}, s{sT} offen offset:{1024*(j%4)} sc1 lds")
    k.e(f"s_lshr_b32 s{sT}, s{sW}, 1")
    k.e(f"s_lshl_b32 s{sT}, s{sT}, 15")
    k.e(f"s_add_u32 s{sT}, s{sT}, {WOA_L}")
    k.e(f"v_add_u32 v{vOr}, s{sT}, v{vSt}")
    toks = {}
    for s_ in range(NB - 1): toks[s_] = rdA(s_, vWrB, vWrBc)
    k.wait_all(vm=True, lg=False)
    k.e("s_barrier")
    stamp(k, "P3B data")
    tb = {}
    def rdB(step):
        par = step % NB
        return k.lg(f"ds_read_b128 v[{vB3+4*par}:{vB3+4*par+3}], v{vOr} offset:{step*1024}")
    for s_ in range(NB - 1): tb[s_] = rdB(s_)
    for step in range(32):
        k.wait(lg=max(toks[step], tb[step]))
        par = step % NB
        mfma(k, vr(vD3, 16), vr(vA3 + 4 * par, 4), vr(vB3 + 4 * par, 4), "0" if step == 0 else vr(vD3, 16))
        if step + NB - 1 < 32:
            toks[step + NB - 1] = rdA(step + NB - 1, vWrB, vWrBc)
            tb[step + NB - 1] = rdB(step + NB - 1)
    out_store("B")
    stamp(k, "P3B done")
    stamp(k, "rt", True)
    stamp_flush(k, vt0, vt1)
    k.label("L_end")
    k.e("s_endpgm")
    return k

HEADER = open("cdna_kernels/" + NAME + ".s.ref").read().split("; Override")[0]

def main(out):
    k = gen()
    pr = check(k.L, "fused")
    for p in pr: print(p)
    print("instrs", len(k.L), "stamps", St.n, St.names)
    s = HEADER
    s += "; @launch grid=(256,1,1) block=(256,1,1) lds=163840\n"
    s += '.amdgcn_target "amdgcn-amd-amdhsa--gfx950"\n.text\n'
    s += f".globl {KNAME}\n.p2align 8\n.type {KNAME},@function\n{KNAME}:\n" + k.text()
    s += f""".section .rodata,"a"
.p2align 6
.amdhsa_kernel {KNAME}
  .amdhsa_next_free_vgpr 512
  .amdhsa_next_free_sgpr 102
  .amdhsa_accum_offset 256
  .amdhsa_group_segment_fixed_size 0
  .amdhsa_kernarg_size 72
  .amdhsa_user_sgpr_count 2
  .amdhsa_user_sgpr_kernarg_segment_ptr 1
  .amdhsa_system_sgpr_workgroup_id_x 1
.end_amdhsa_kernel
"""
    open(out, "w").write(s)

if __name__ == "__main__":
    main(sys.argv[1] if len(sys.argv) > 1 else "f3.s")
```

```python
import sys, math, struct, os
sys.path.insert(0, "gen")
from asmlib import Emit, check

NAME = "concat_heads__sliding_block__softmax_full_mha__prompt"
KNAME = NAME + "_kernel"
def f2u(x): return struct.unpack("<I", struct.pack("<f", x))[0]

KV_OFF = {"B": 0, "A": 4 << 20}
O_OFF = {"B": 8 << 20, "A": 10 << 20}
Q_OFF = {"B": 12 << 20, "A": 14 << 20}
FP1_OFF = 16 << 20
FO_OFF = (16 << 20) + (256 << 10)
NONCE_OFF = (16 << 20) + (768 << 10)
CEN_OFF = (16 << 20) + (800 << 10)
STAMPS = 17 << 20
WS_BYTES = 18 << 20
X_BYTES = 2048 * 896
W_BYTES = 448 * 2688
WO_BYTES = 448 * 896
OUT_BYTES = 2048 * 1792
QSCALE = (28 ** -0.5) * math.log2(math.e)
MARGIN = 64.0
NEGBIG = -1.0e30
MAPB = os.environ.get('MAPB', '0') == '1'
STAMP = os.environ.get("STAMP", "0") in ("1", "2")
STAMPDBG = os.environ.get("STAMP", "0") == "2"
DBGWG = int(os.environ.get("DBGWG", "100"))
SKIP = set(os.environ.get("SKIP", "").split(","))
SPIN_MAX = 1 << 18
SCR = 114688

class V:
    def __init__(self, lo, hi): self.n = lo; self.hi = hi
    def a(self, cnt=1, al=1):
        self.n = (self.n + al - 1) // al * al
        r = self.n; self.n += cnt
        assert self.n <= self.hi, "out of regs"
        return r

def vr(b, n=1): return f"v{b}" if n == 1 else f"v[{b}:{b+n-1}]"
def ar(b, n=1): return f"a{b}" if n == 1 else f"a[{b}:{b+n-1}]"
def mfma(k, d, a, b, c): k.e(f"v_mfma_f32_32x32x16_bf16 {d}, {a}, {b}, {c}")

S_PTR = 4
SRD_XB, SRD_WB, SRD_WS, SRD_OUT, SRD_XA, SRD_WA = 24, 28, 32, 36, 40, 44
SRD_WO = 4
sWmask = 96
sW, sBeta, sU, sR, sT, sT2, sT3 = 48, 49, 50, 51, 52, 53, 54
sOff, sXbase, sWcol, sM0X, sM0W, sC, sXo, sWo, sWo2 = 55, 56, 57, 58, 59, 60, 61, 62, 63
sVmask = 64
sNonce = 66
sHead, sTT, sKV, sTo, sQo, sOo, sSpin = 67, 68, 69, 70, 71, 72, 73
sCT, sP3T = 74, 75
sEx = 76
sStampTmp = 78
sRA = 80
sUQ, sUK, sUV = 81, 82, 83
sFOA, sFOB, sKVB, sRot, sOffU, sTTA = 84, 85, 86, 87, 88, 89
sMk = 90
sD0 = 22
WS = f"s[{SRD_WS}:{SRD_WS+3}]"

def srd(k, s, lo, size):
    k.e(f"s_mov_b32 s{s}, s{lo}")
    k.e(f"s_and_b32 s{s+1}, s{lo+1}, 0xffff")
    k.e(f"s_mov_b32 s{s+2}, {size}")
    k.e(f"s_mov_b32 s{s+3}, 0x20000")

class St:
    n = 0; v = 15; names = []
def stamp(k, name="", rt=False):
    if not STAMP: return
    if STAMPDBG and (rt or name in SKIP): return
    i = St.n; St.n += 1; St.names.append(name)
    assert i < 32
    k.e(f"{'s_memrealtime' if rt else 's_memtime'} s[{sStampTmp}:{sStampTmp+1}]")
    k.wait_all(vm=False, lg=True)
    k.e(f"v_writelane_b32 v{St.v}, s{sStampTmp}, {i}")
def stamp_flush(k, vt0, vt1):
    if not STAMP: return
    if STAMPDBG:
        L = k.newlabel("sf")
        k.e(f"s_lshl_b32 s{sStampTmp}, s2, 2")
        k.e(f"s_add_u32 s{sStampTmp}, s{sStampTmp}, s{sW}")
        k.e(f"s_cmp_lg_u32 s{sStampTmp}, {DBGWG*4}")
        k.e(f"s_cbranch_scc1 {L}")
        k.e(f"v_readlane_b32 s{sStampTmp}, v{St.v}, 0")
        k.e(f"v_and_b32 v{vt0}, 63, v0")
        k.e(f"v_lshlrev_b32 v{vt0}, 2, v{vt0}")
        k.e(f"v_subrev_u32 v{vt1}, s{sStampTmp}, v{St.v}")
        k.e(f"s_mov_b64 exec, 0xfffe")
        k.e(f"global_store_dword v{vt0}, v{vt1}, s[18:19]")
        k.e(f"s_mov_b64 exec, -1")
        k.label(L)
        return
    k.e(f"v_lshrrev_b32 v{vt0}, 6, v0")
    k.e(f"s_lshl_b32 s{sStampTmp}, s2, 2")
    k.e(f"v_add_u32 v{vt0}, s{sStampTmp}, v{vt0}")
    k.e(f"v_lshlrev_b32 v{vt0}, 7, v{vt0}")
    k.e(f"v_and_b32 v{vt1}, 63, v0")
    k.e(f"v_lshl_add_u32 v{vt0}, v{vt1}, 2, v{vt0}")
    k.e(f"s_mov_b32 s{sStampTmp}, {STAMPS}")
    k.e(f"s_mov_b32 exec_hi, 0")
    k.vm(f"buffer_store_dword v{St.v}, v{vt0}, {WS}, s{sStampTmp} offen")
    k.e(f"s_mov_b64 exec, -1")

def build_masks(k, vDiag, vEdge, vLane, t0, t1):
    k.e(f"v_and_b32 v{t0}, 31, v{vLane}")
    k.e(f"v_lshrrev_b32 v{t1}, 5, v{vLane}")
    k.e(f"v_lshlrev_b32 v{t1}, 2, v{t1}")
    k.e(f"v_sub_u32 v{t0}, v{t0}, v{t1}")
    k.e(f"v_mov_b32 v{t1}, {f2u(NEGBIG):#x}")
    prs = [sMk, sMk + 2, sMk + 4]
    def cmp(i):
        b = 8 * (i // 4) + (i % 4); p = prs[i % 3]
        k.e(f"v_cmp_le_i32_e64 s[{p}:{p+1}], {b}, v{t0}")
    cmp(0); cmp(1)
    for i in range(16):
        if i + 2 < 16: cmp(i + 2)
        else: k.nop(1)
        p = prs[i % 3]
        k.e(f"v_cndmask_b32_e64 v{vDiag+i}, v{t1}, 0, s[{p}:{p+1}]")
        k.e(f"v_cndmask_b32_e64 v{vEdge+i}, 0, v{t1}, s[{p}:{p+1}]")

def colmax(k, vS, vm, vt):
    k.e(f"v_max3_f32 v{vm}, v{vS}, v{vS+1}, v{vS+2}")
    k.e(f"v_max3_f32 v{vt}, v{vS+3}, v{vS+4}, v{vS+5}")
    k.e(f"v_max3_f32 v{vm}, v{vm}, v{vS+6}, v{vS+7}")
    k.e(f"v_max3_f32 v{vt}, v{vt}, v{vS+8}, v{vS+9}")
    k.e(f"v_max3_f32 v{vm}, v{vm}, v{vS+10}, v{vS+11}")
    k.e(f"v_max3_f32 v{vt}, v{vt}, v{vS+12}, v{vS+13}")
    k.e(f"v_max3_f32 v{vm}, v{vm}, v{vS+14}, v{vS+15}")
    k.e(f"v_max_f32 v{vm}, v{vm}, v{vt}")
    k.e(f"v_mov_b32 v{vt}, v{vm}")
    k.nop(2)
    k.e(f"v_permlane32_swap_b32 v{vm}, v{vt}")
    k.e(f"v_max_f32 v{vm}, v{vm}, v{vt}")

def shift_dwords(k, vm, t0, t1, t2):
    k.e(f"v_and_b32 v{t0}, 0xffff0000, v{vm}")
    k.e(f"v_sub_f32 v{t1}, v{vm}, v{t0}")
    k.e(f"v_and_b32 v{t2}, 0xffff0000, v{t1}")
    k.e(f"v_sub_f32 v{t1}, v{t1}, v{t2}")
    k.e(f"v_lshrrev_b32 v{t0}, 16, v{t0}")
    k.e(f"v_or_b32 v{t0}, v{t0}, v{t2}")
    k.e(f"v_xor_b32 v{t0}, 0x80008000, v{t0}")
    k.e(f"v_lshrrev_b32 v{t1}, 16, v{t1}")
    k.e(f"v_xor_b32 v{t1}, 0x8000, v{t1}")

def poll_flags(k, vAddr, vTmp, mask64, name):
    L = k.newlabel(name); Ld = k.newlabel(name + "d")
    k.e(f"s_mov_b32 s{sSpin}, 0")
    k.e(f"s_mov_b32 exec_hi, {(mask64 >> 32) & 0xffffffff:#x}")
    k.e(f"s_mov_b32 exec_lo, {mask64 & 0xffffffff:#x}")
    k.label(L)
    k.e(f"buffer_load_dword v{vTmp}, v{vAddr}, {WS}, 0 offen sc1")
    k.e(f"s_add_u32 s{sSpin}, s{sSpin}, 1")
    k.e(f"s_waitcnt vmcnt(0)")
    k.e(f"v_cmp_ne_u32 vcc, s{sNonce}, v{vTmp}")
    k.e(f"s_cmp_gt_u32 s{sSpin}, {SPIN_MAX}")
    k.e(f"s_cbranch_scc1 {Ld}")
    k.e(f"s_cbranch_vccnz {L}")
    k.label(Ld)
    k.e(f"s_mov_b64 exec, -1")
    k.vm_done = k.vm_n

def store_flag(k, vZero, vVal, s_off):
    k.e(f"v_mov_b32 v{vZero}, 0")
    k.e(f"v_mov_b32 v{vVal}, s{sNonce}")
    k.e(f"s_mov_b64 exec, 1")
    t = k.vm(f"buffer_store_dword v{vVal}, v{vZero}, {WS}, s{s_off} offen sc1")
    k.e(f"s_mov_b64 exec, -1")
    return t

def attn_pipeline(k, ops, vS, vP, hook=None):
    N = len(ops)
    def val(x): return x() if callable(x) else x
    def qk(n, part):
        o = ops[n]; S = vr(vS + 16 * (n % 2), 16)
        if part == 0:
            k.wait(vm=val(o.get("wK")), lg=val(o.get("lK")))
            mfma(k, S, o["K"][0], o["Q"][0], o["C"])
        else:
            mfma(k, S, o["K"][1], o["Q"][1], S)
    def pv(n, part):
        o = ops[n]; P = vP + 8 * (n % 2)
        if part == 0:
            k.wait(vm=val(o.get("wV")), lg=val(o.get("lV")))
            mfma(k, o["O"], o["V"][0], vr(P, 4), "0" if o["first"] else o["O"])
        else:
            mfma(k, o["O"], o["V"][1], vr(P + 4, 4), o["O"])
    def expgrp(n, g):
        S = vS + 16 * (n % 2); P = vP + 8 * (n % 2)
        for i in range(4):
            k.e(f"v_exp_f32 v{S+4*g+i}, v{S+4*g+i}")
        k.e(f"v_cvt_pk_bf16_f32 v{P+2*g}, v{S+4*g}, v{S+4*g+1}")
        k.e(f"v_cvt_pk_bf16_f32 v{P+2*g+1}, v{S+4*g+2}, v{S+4*g+3}")
    for n in range(-1, N + 1):
        has_exp = 0 <= n < N
        for g in range(4):
            if g < 2 and n + 1 < N: qk(n + 1, g)
            if g >= 2 and 0 <= n - 1: pv(n - 1, g - 2)
            if hook: hook(n, g)
            if has_exp: expgrp(n, g)
        if n == -1: k.nop(12)
        if n == N - 1: k.nop(2)

def finalize_o(k, vO, vt0, vt1, vOf):
    k.e(f"v_mov_b32 v{vt0}, v{vO+12}")
    k.e(f"v_mov_b32 v{vt1}, v{vO+12}")
    k.nop(2)
    k.e(f"v_permlane32_swap_b32 v{vt0}, v{vt1}")
    k.e(f"v_rcp_f32 v{vt1}, v{vt1}")
    k.nop(1)
    for i in range(16):
        k.e(f"v_mul_f32 v{vO+i}, v{vO+i}, v{vt1}")
    for i in range(8):
        k.e(f"v_cvt_pk_bf16_f32 v{vOf+i}, v{vO+2*i}, v{vO+2*i+1}")
    k.e("s_mov_b32 exec_lo, 0")
    k.e(f"v_mov_b32 v{vOf+6}, 0")
    k.e(f"v_mov_b32 v{vOf+7}, 0")
    k.e("s_mov_b32 exec_lo, -1")

def div6(k, dst, src, tmp):
    k.e(f"s_mul_i32 s{dst}, s{src}, 43")
    k.e(f"s_lshr_b32 s{dst}, s{dst}, 8")


def async_poll_issue(k, vAddr, vRes, mask64):
    k.e(f"s_mov_b32 exec_hi, {(mask64 >> 32) & 0xffffffff:#x}")
    k.e(f"s_mov_b32 exec_lo, {mask64 & 0xffffffff:#x}")
    t = k.vm(f"buffer_load_dword v{vRes}, v{vAddr}, {WS}, 0 offen sc1")
    k.e(f"s_mov_b64 exec, -1")
    return t

def async_poll_check(k, tok, vAddr, vRes, mask64, name):
    L = k.newlabel(name); Ld = k.newlabel(name + "d")
    k.wait(vm=tok)
    k.e(f"s_mov_b32 exec_hi, {(mask64 >> 32) & 0xffffffff:#x}")
    k.e(f"s_mov_b32 exec_lo, {mask64 & 0xffffffff:#x}")
    k.e(f"v_cmp_ne_u32 vcc, s{sNonce}, v{vRes}")
    k.e(f"s_mov_b32 s{sSpin}, 0")
    k.e(f"s_cbranch_vccz {Ld}")
    k.label(L)
    k.e(f"buffer_load_dword v{vRes}, v{vAddr}, {WS}, 0 offen sc1")
    k.e(f"s_add_u32 s{sSpin}, s{sSpin}, 1")
    k.e(f"s_waitcnt vmcnt(0)")
    k.e(f"v_cmp_ne_u32 vcc, s{sNonce}, v{vRes}")
    k.e(f"s_cmp_gt_u32 s{sSpin}, {SPIN_MAX}")
    k.e(f"s_cbranch_scc1 {Ld}")
    k.e(f"s_cbranch_vccnz {L}")
    k.label(Ld)
    k.e(f"s_mov_b64 exec, -1")

def chk4(k, vR, vT):
    k.e(f"v_xor_b32 v{vT}, s{sNonce}, v{vR}")
    k.e(f"v_xor_b32 v{vR+1}, s{sNonce}, v{vR+1}")
    k.e(f"v_xor_b32 v{vR+2}, s{sNonce}, v{vR+2}")
    k.e(f"v_xor_b32 v{vR+3}, s{sNonce}, v{vR+3}")
    k.e(f"v_or3_b32 v{vT}, v{vT}, v{vR+1}, v{vR+2}")
    k.e(f"v_or_b32 v{vT}, v{vT}, v{vR+3}")
    k.e(f"v_cmp_ne_u32 vcc, 0, v{vT}")

def poll4_issue(k, vAddr, vR, mask):
    k.e(f"s_mov_b64 exec, {mask:#x}")
    t = k.vm(f"buffer_load_dwordx4 v[{vR}:{vR+3}], v{vAddr}, {WS}, 0 offen sc1")
    k.e(f"s_mov_b64 exec, -1")
    return t

def poll4_finish(k, tok, vAddr, vR0, vR1, vT, mask, name):
    L = k.newlabel(name); Ld = k.newlabel(name + "d")
    k.wait(vm=tok)
    k.e(f"s_mov_b64 exec, {mask:#x}")
    chk4(k, vR0, vT)
    k.e(f"s_mov_b32 s{sSpin}, 0")
    k.e(f"s_cbranch_vccz {Ld}")
    k.e(f"buffer_load_dwordx4 v[{vR0}:{vR0+3}], v{vAddr}, {WS}, 0 offen sc1")
    k.label(L)
    k.e(f"buffer_load_dwordx4 v[{vR1}:{vR1+3}], v{vAddr}, {WS}, 0 offen sc1")
    k.e(f"s_waitcnt vmcnt(1)")
    chk4(k, vR0, vT)
    k.e(f"s_add_u32 s{sSpin}, s{sSpin}, 1")
    k.e(f"s_cbranch_vccz {Ld}")
    k.e(f"buffer_load_dwordx4 v[{vR0}:{vR0+3}], v{vAddr}, {WS}, 0 offen sc1")
    k.e(f"s_waitcnt vmcnt(1)")
    chk4(k, vR1, vT)
    k.e(f"s_cmp_gt_u32 s{sSpin}, {SPIN_MAX}")
    k.e(f"s_cbranch_scc1 {Ld}")
    k.e(f"s_cbranch_vccnz {L}")
    k.label(Ld)
    k.e(f"s_mov_b64 exec, -1")

def div3(k, dst, src):
    k.e(f"s_mul_i32 s{dst}, s{src}, 43")
    k.e(f"s_lshr_b32 s{dst}, s{dst}, 7")


BARS = eval(os.environ.get('BARS', '(0, 1, 6)'))
DBG = os.environ.get('DBG', '')
sXcc, sFast = 100, 95

def gen():
    k = Emit()
    St.n = 0; St.names = []
    k.e("s_cmp_ge_u32 s2, 256")
    k.e("s_cbranch_scc1 L_end")
    k.e(f"s_load_dwordx16 s[{S_PTR}:{S_PTR+15}], s[0:1], 0")
    k.e(f"s_load_dwordx2 s[20:21], s[0:1], 64")
    G = V(1, 15)
    vLane = G.a(); vSt = G.a(); vt0 = G.a(); vt1 = G.a(); vt2 = G.a(); vt3 = G.a(); vWoD = G.a()
    vFlB = G.a(); vFlA = G.a(); vVpad = G.a(); vCen = G.a(); vP3a = G.a()
    SRD_X, SRD_W = SRD_XB, SRD_WB
    stamp(k, "start"); stamp(k, "rt", True)
    k.e(f"v_and_b32 v{vLane}, 63, v0")
    k.e(f"v_lshrrev_b32 v{vt0}, 6, v0")
    k.e(f"s_and_b32 s{sU}, s2, 7")
    k.e(f"v_readfirstlane_b32 s{sW}, v{vt0}")
    k.e(f"s_lshr_b32 s{sT2}, s2, 3")
    k.e(f"s_and_b32 s{sBeta}, s{sT2}, 1")
    k.e(f"s_lshr_b32 s{sR}, s{sT2}, 1")
    k.e(f"s_mul_i32 s{sOff}, s{sR}, 37")
    k.e(f"s_lshr_b32 s{sOff}, s{sOff}, 8")
    k.e(f"s_mul_i32 s{sOff}, s{sOff}, 7")
    k.e(f"s_sub_u32 s{sOff}, s{sR}, s{sOff}")
    k.e(f"s_mul_i32 s{sXbase}, s{sR}, {128*896}")
    k.e(f"s_mul_i32 s{sWcol}, s{sU}, 112")
    R = V(16, 256)
    vXo = R.a(4); vWo = R.a(2); vXr = R.a(4); vWr = R.a(4)
    vXf = R.a(8, 4); vWf = R.a(48, 4)
    acc = {(hh, nm): R.a(16, 4) for hh in range(2) for nm in "QKV"}
    vF = R.a(48, 4)
    vS1 = vWf
    vDiag = 240
    assert R.n <= 240, R.n
    XSLOT = 16640; WSLOT = 24576; WBASE = 3 * XSLOT
    k.e(f"v_lshrrev_b32 v{vt0}, 3, v{vLane}")
    k.e(f"v_bfe_u32 v{vt1}, v{vLane}, 4, 1")
    k.e(f"v_lshlrev_b32 v{vt1}, 2, v{vt1}")
    k.e(f"v_and_b32 v{vt2}, 7, v{vLane}")
    k.e(f"v_xor_b32 v{vt1}, v{vt1}, v{vt2}")
    k.e(f"v_lshrrev_b32 v{vt2}, 6, v0")
    k.e(f"v_lshl_add_u32 v{vt3}, v{vt2}, 5, v{vt0}")
    k.e(f"v_mul_u32_u24 v{vt3}, 896, v{vt3}")
    k.e(f"v_lshl_add_u32 v{vXo}, v{vt1}, 4, v{vt3}")
    for j in range(1, 4):
        k.e(f"v_add_u32 v{vXo+j}, {j*(8*896-1040)}, v{vXo}")
    k.e(f"v_lshl_add_u32 v{vt3}, v{vt2}, 4, v{vt0}")
    k.e(f"v_mul_u32_u24 v{vt3}, 2688, v{vt3}")
    k.e(f"v_lshl_add_u32 v{vWo}, v{vt1}, 4, v{vt3}")
    k.e(f"v_add_u32 v{vWo+1}, {8*2688-1024}, v{vWo}")
    k.e(f"s_mul_i32 s{sM0X}, s{sW}, 4160")
    k.e(f"s_mul_i32 s{sM0W}, s{sW}, 6144")
    k.e(f"s_add_u32 s{sM0W}, s{sM0W}, {WBASE}")
    k.e(f"s_getreg_b32 s{sXcc}, hwreg(HW_REG_XCC_ID)")
    k.e("s_waitcnt lgkmcnt(0)")
    k.e(f"s_cmp_eq_u32 s{sBeta}, 1")
    k.e(f"s_cselect_b32 s{SRD_X}, s4, s10")
    k.e(f"s_cselect_b32 s{SRD_X+1}, s5, s11")
    k.e(f"s_cselect_b32 s{SRD_W}, s6, s12")
    k.e(f"s_cselect_b32 s{SRD_W+1}, s7, s13")
    k.e(f"s_and_b32 s{SRD_X+1}, s{SRD_X+1}, 0xffff")
    k.e(f"s_and_b32 s{SRD_W+1}, s{SRD_W+1}, 0xffff")
    k.e(f"s_mov_b32 s{SRD_X+2}, {X_BYTES}")
    k.e(f"s_mov_b32 s{SRD_X+3}, 0x20000")
    k.e(f"s_mov_b32 s{SRD_W+2}, {W_BYTES}")
    k.e(f"s_mov_b32 s{SRD_W+3}, 0x20000")
    X = f"s[{SRD_X}:{SRD_X+3}]"; W = f"s[{SRD_W}:{SRD_W+3}]"
    dma_tok = {}
    def dma_list(g):
        slot = g % 3
        L = []
        def head():
            k.e(f"s_add_u32 s{sC}, s{sOff}, {g}")
            k.e(f"s_sub_u32 s{sT}, s{sC}, 7")
            k.e(f"s_min_u32 s{sC}, s{sC}, s{sT}")
            k.e(f"s_lshl_b32 s{sXo}, s{sC}, 7")
            k.e(f"s_add_u32 s{sXo}, s{sXo}, s{sXbase}")
            k.e(f"s_mul_i32 s{sWo}, s{sC}, {64*2688}")
            k.e(f"s_add_u32 s{sWo}, s{sWo}, s{sWcol}")
            k.e(f"s_add_u32 m0, s{sM0X}, {slot*XSLOT}")
            k.e("s_nop 0")
        def xj(j):
            def f():
                if j == 0: head()
                k.vm(f"buffer_load_dwordx4 v{vXo+j}, {X}, s{sXo} offen offset:{1040*j} lds")
            return f
        def wi(sec, half):
            def f():
                if half == 0:
                    k.e(f"s_add_u32 m0, s{sM0W}, {slot*WSLOT + sec*2048}")
                    k.e(f"s_add_u32 s{sWo2}, s{sWo}, {sec*896}")
                t = k.vm(f"buffer_load_dwordx4 v{vWo+half}, {W}, s{sWo2} offen offset:{1024*half} lds")
                if sec == 2 and half == 1: dma_tok[g] = t
            return f
        for j in range(4): L.append(xj(j))
        for sec in range(3):
            for half in range(2): L.append(wi(sec, half))
        return L
    stamp(k, "pre-dma")
    for f in dma_list(0): f()
    stamp(k, "dma0 issued")
    srd(k, SRD_WS, 20, WS_BYTES); srd(k, SRD_OUT, 16, OUT_BYTES)
    srd(k, SRD_XA, 14, WO_BYTES); srd(k, SRD_WA, 8, WO_BYTES)
    SRD_WOB, SRD_WOA = SRD_XA, SRD_WA
    k.e(f"v_lshlrev_b32 v{vSt}, 4, v{vLane}")
    Lnn = k.newlabel("nonce")
    k.e(f"s_or_b32 s{sT}, s2, s{sW}")
    k.e(f"s_cmp_lg_u32 s{sT}, 0")
    k.e(f"s_cbranch_scc1 {Lnn}")
    k.e(f"s_mov_b32 s{sT}, {NONCE_OFF}")
    k.e(f"v_mov_b32 v{vt0}, 0")
    k.e(f"buffer_load_dword v{vt1}, v{vt0}, {WS}, s{sT} offen sc1")
    k.e(f"s_waitcnt vmcnt(0)")
    k.e(f"v_add_u32 v{vt1}, 1, v{vt1}")
    k.e(f"v_max_u32 v{vt1}, 1, v{vt1}")
    k.e(f"s_mov_b64 exec, 1")
    k.e(f"global_store_dword v{vt0}, v{vt1}, s[18:19] sc1")
    k.e(f"buffer_store_dword v{vt1}, v{vt0}, {WS}, s{sT} offen sc1")
    k.e(f"s_mov_b64 exec, -1")
    k.label(Lnn)
    k.e(f"s_lshr_b32 s{sT2}, s2, 3")
    k.e(f"s_lshl_b32 s{sHead}, s{sU}, 1")
    k.e(f"s_add_u32 s{sHead}, s{sHead}, s{sBeta}")
    k.e(f"s_mov_b32 s{sRA}, s{sR}")
    k.e(f"s_mul_i32 s{sT3}, s{sT2}, 37")
    k.e(f"s_lshr_b32 s{sT3}, s{sT3}, 8")
    k.e(f"s_min_u32 s{sC}, s{sT3}, 3")
    k.e(f"s_lshl_b32 s{sP3T}, s{sU}, 2")
    k.e(f"s_add_u32 s{sP3T}, s{sP3T}, s{sC}")
    k.e(f"s_mul_i32 s{sT3}, s{sT3}, 7")
    k.e(f"s_sub_u32 s{sCT}, s{sT2}, s{sT3}")
    k.e(f"s_lshl_b32 s{sTT}, s{sR}, 2")
    k.e(f"s_add_u32 s{sTT}, s{sTT}, s{sW}")
    k.e(f"s_mov_b32 s{sTTA}, s{sTT}")
    dsts = [0, 1, 3, 22, 23, 101]
    for hh in range(2):
        k.e(f"s_lshl_b32 s{sT}, s{sU}, 1")
        k.e(f"s_add_u32 s{sT}, s{sT}, {hh}")
        k.e(f"s_lshl_b32 s{sT}, s{sT}, 6")
        k.e(f"s_add_u32 s{sT}, s{sT}, s{sTT}")
        k.e(f"s_lshl_b32 s{sT3}, s{sT}, 12")
        k.e(f"s_lshl_b32 s{sC}, s{sBeta}, 22")
        k.e(f"s_add_u32 s{dsts[3*hh]}, s{sT3}, s{sC}")
        k.e(f"s_add_u32 s{dsts[3*hh+1]}, s{dsts[3*hh]}, 2048")
        k.e(f"s_lshl_b32 s{sT3}, s{sT}, 11")
        k.e(f"s_lshl_b32 s{sC}, s{sBeta}, 21")
        k.e(f"s_add_u32 s{sT3}, s{sT3}, s{sC}")
        k.e(f"s_add_u32 s{dsts[3*hh+2]}, s{sT3}, {Q_OFF['B']}")
    k.e(f"v_and_b32 v{vt0}, 31, v{vLane}")
    k.e(f"v_lshrrev_b32 v{vt1}, 3, v{vt0}")
    k.e(f"v_mul_u32_u24 v{vt1}, 1040, v{vt1}")
    k.e(f"v_and_b32 v{vt2}, 7, v{vt0}")
    k.e(f"v_lshl_add_u32 v{vt1}, v{vt2}, 7, v{vt1}")
    k.e(f"v_add_u32 v{vt1}, s{sM0X}, v{vt1}")
    k.e(f"v_bfe_u32 v{vt2}, v{vLane}, 1, 1")
    k.e(f"v_lshlrev_b32 v{vt2}, 6, v{vt2}")
    k.e(f"v_lshrrev_b32 v{vt3}, 5, v{vLane}")
    k.e(f"v_lshlrev_b32 v{vt3}, 4, v{vt3}")
    k.e(f"v_add_u32 v{vt1}, v{vt1}, v{vt3}")
    for ks in range(4):
        k.e(f"v_xor_b32 v{vXr+ks}, {(ks >> 1) * 64}, v{vt2}")
        k.e(f"v_add_u32 v{vXr+ks}, {((2*ks) & 3) * 16}, v{vXr+ks}")
        k.e(f"v_add_u32 v{vXr+ks}, v{vXr+ks}, v{vt1}")
    k.e(f"v_lshrrev_b32 v{vt0}, 5, v{vLane}")
    k.e(f"v_lshlrev_b32 v{vt0}, 3, v{vt0}")
    k.e(f"v_bfe_u32 v{vt1}, v{vLane}, 2, 2")
    k.e(f"v_add_u32 v{vt0}, v{vt0}, v{vt1}")
    k.e(f"v_lshlrev_b32 v{vt0}, 7, v{vt0}")
    k.e(f"v_bfe_u32 v{vt1}, v{vLane}, 4, 1")
    k.e(f"v_lshlrev_b32 v{vt1}, 5, v{vt1}")
    k.e(f"v_and_b32 v{vt2}, 3, v{vLane}")
    k.e(f"v_lshl_add_u32 v{vt1}, v{vt2}, 3, v{vt1}")
    k.e(f"v_bfe_u32 v{vt2}, v{vLane}, 3, 1")
    k.e(f"v_lshlrev_b32 v{vt2}, 6, v{vt2}")
    for hh in range(2):
        k.e(f"v_add_u32 v{vt3}, {56*hh}, v{vt1}")
        k.e(f"v_xor_b32 v{vt3}, v{vt3}, v{vt2}")
        k.e(f"v_add_u32 v{vt3}, v{vt3}, v{vt0}")
        k.e(f"v_add_u32 v{vWr+hh}, {WBASE}, v{vt3}")
        k.e(f"v_add_u32 v{vWr+2+hh}, {WBASE + 2*WSLOT}, v{vt3}")
    for f in dma_list(1)[:5]: f()
    k.e(f"v_and_b32 v{vt0}, 31, v{vLane}")
    k.e(f"v_cmp_eq_u32 vcc, 28, v{vt0}")
    k.e(f"v_mov_b32 v{vt1}, 0x3f803f80")
    k.e(f"v_cmp_le_u32_e64 s[{sVmask}:{sVmask+1}], 28, v{vt0}")
    k.e(f"v_cndmask_b32_e64 v{vVpad}, 0, v{vt1}, vcc")
    k.e(f"v_lshrrev_b32 v{vt0}, 3, v{vLane}")
    k.e(f"v_bfe_u32 v{vt1}, v{vLane}, 4, 1")
    k.e(f"v_lshlrev_b32 v{vt1}, 2, v{vt1}")
    k.e(f"v_and_b32 v{vt2}, 7, v{vLane}")
    k.e(f"v_xor_b32 v{vt1}, v{vt1}, v{vt2}")
    k.e(f"v_mul_u32_u24 v{vt0}, 896, v{vt0}")
    k.e(f"v_lshl_add_u32 v{vWoD}, v{vt1}, 4, v{vt0}")
    k.e(f"v_lshrrev_b32 v{vt0}, 5, v{vLane}")
    k.e(f"v_lshlrev_b32 v{vt0}, 2, v{vt0}")
    k.e(f"v_bfe_u32 v{vt1}, v{vLane}, 2, 2")
    k.e(f"v_add_u32 v{vt0}, v{vt0}, v{vt1}")
    k.e(f"v_lshlrev_b32 v{vt0}, 7, v{vt0}")
    k.e(f"s_and_b32 s{sT}, s{sW}, 1")
    k.e(f"s_lshl_b32 s{sT}, s{sT}, 6")
    k.e(f"v_bfe_u32 v{vt1}, v{vLane}, 4, 1")
    k.e(f"v_lshlrev_b32 v{vt1}, 5, v{vt1}")
    k.e(f"v_and_b32 v{vt2}, 3, v{vLane}")
    k.e(f"v_lshl_add_u32 v{vt1}, v{vt2}, 3, v{vt1}")
    k.e(f"v_add_u32 v{vt1}, s{sT}, v{vt1}")
    k.e(f"v_bfe_u32 v{vt2}, v{vLane}, 3, 1")
    k.e(f"v_lshlrev_b32 v{vt2}, 6, v{vt2}")
    k.e(f"v_xor_b32 v{vt1}, v{vt1}, v{vt2}")
    k.e(f"v_add_u32 v{vP3a}, v{vt0}, v{vt1}")
    k.e(f"s_lshl_b32 s{sT}, s{sW}, 2")
    k.e(f"v_add_u32 v{vt0}, s{sT}, v{vLane}")
    k.e(f"v_cmp_eq_u32 vcc, 4, v{vLane}")
    k.e(f"v_mov_b32 v{vt1}, s{sRA}")
    k.e(f"s_sub_u32 s{sT}, s{sRA}, 7")
    k.e(f"v_cndmask_b32 v{vt0}, v{vt0}, v{vt1}, vcc")
    k.e(f"v_add_u32 v{vt1}, s{sT}, v{vLane}")
    k.e(f"v_max_i32 v{vt1}, 0, v{vt1}")
    k.e(f"v_add_u32 v{vt1}, 128, v{vt1}")
    k.e(f"v_cmp_lt_u32 vcc, 4, v{vLane}")
    k.e(f"s_lshl_b32 s{sT}, s{sU}, 4")
    k.e(f"s_nop 0")
    k.e(f"v_cndmask_b32 v{vt0}, v{vt0}, v{vt1}, vcc")
    k.e(f"v_add_u32 v{vt0}, s{sT}, v{vt0}")
    k.e(f"v_lshlrev_b32 v{vFlB}, 7, v{vt0}")
    k.e(f"v_add_u32 v{vFlB}, {FP1_OFF}, v{vFlB}")
    k.e(f"v_lshrrev_b32 v{vt0}, 3, v{vLane}")
    k.e(f"s_lshl_b32 s{sT}, s{sU}, 2")
    k.e(f"v_add_u32 v{vt0}, s{sT}, v{vt0}")
    k.e(f"v_lshlrev_b32 v{vt0}, 7, v{vt0}")
    k.e(f"v_and_b32 v{vt1}, 7, v{vLane}")
    k.e(f"v_lshl_add_u32 v{vt0}, v{vt1}, 2, v{vt0}")
    k.e(f"v_add_u32 v{vCen}, {CEN_OFF}, v{vt0}")
    k.e(f"s_lshl_b32 s{sKVB}, s{sHead}, 18")
    k.e(f"s_lshl_b32 s{sT}, s{sW}, 16")
    k.e(f"s_add_u32 s{sKVB}, s{sKVB}, s{sT}")
    k.e(f"s_and_b32 s{sRot}, s{sRA}, 7")
    k.e(f"s_lshl_b32 s{sRot}, s{sRot}, 1")
    k.e(f"v_and_b32 v{vt0}, 31, v{vLane}")
    k.e(f"v_lshrrev_b32 v{vt1}, 5, v{vLane}")
    k.e(f"v_lshlrev_b32 v{vt1}, 2, v{vt1}")
    k.e(f"v_sub_u32 v{vt0}, v{vt0}, v{vt1}")
    k.e(f"v_mov_b32 v{vt1}, {f2u(NEGBIG):#x}")
    prs = [sMk, sMk + 2, sMk + 4]
    def cmpm(i):
        b = 8 * (i // 4) + (i % 4); p = prs[i % 3]
        k.e(f"v_cmp_le_i32_e64 s[{p}:{p+1}], {b}, v{vt0}")
    cmpm(0); cmpm(1)
    for i in range(16):
        if i + 2 < 16: cmpm(i + 2)
        else: k.nop(1)
        p = prs[i % 3]
        k.e(f"v_cndmask_b32_e64 v{vDiag+i}, v{vt1}, 0, s[{p}:{p+1}]")
    rest1 = None
    L1 = dma_list(1)
    for f in L1[5:]: f()

    def rd_list(g, ks):
        slot = g % 3; par = ks % 2
        L = [f"ds_read_b128 v[{vXf+4*par}:{vXf+4*par+3}], v{vXr+ks} offset:{slot*XSLOT}"]
        for hh in range(2):
            for sec in range(3):
                areg = vWr + hh + (2 if slot == 2 else 0)
                base = (slot % 2 if slot < 2 else 0) * WSLOT + ks * 6144 + sec * 2048
                d = vWf + 24 * par + 12 * hh + 4 * sec
                L.append(f"ds_read_b64_tr_b16 v[{d}:{d+1}], v{areg} offset:{base}")
                L.append(f"ds_read_b64_tr_b16 v[{d+2}:{d+3}], v{areg} offset:{base+512}")
        return L
    def mf_list(g, ks):
        first = (g == 0 and ks == 0); par = ks % 2
        xf = vr(vXf + 4 * par, 4)
        L = []
        for hh in range(2):
            for sec, nm in enumerate("QKV"):
                wf = vr(vWf + 24 * par + 12 * hh + 4 * sec, 4)
                d = vr(acc[(hh, nm)], 16); c = "0" if first else d
                L.append(f"v_mfma_f32_32x32x16_bf16 {d}, {xf}, {wf}, {c}" if nm == "V" else f"v_mfma_f32_32x32x16_bf16 {d}, {wf}, {xf}, {c}")
        return L
    def interleave(mf, rds, tok_need, extra):
        k.wait(lg=tok_need)
        t = None; ri = 0
        for i, m in enumerate(mf):
            k.e(m)
            n = (len(rds) - ri + (len(mf) - i) - 1) // (len(mf) - i)
            for _ in range(n):
                t = k.lg(rds[ri]); ri += 1
            if extra and i % 2 == 1: extra.pop(0)()
        return t
    pend = None; nonce_tok = None
    for g in range(7):
        k.c(f"---- chunk {g}")
        k.wait(vm=dma_tok[g])
        k.wait_all(vm=False, lg=True)
        k.e("s_barrier")
        if g in BARS: stamp(k, f"bar{g}")
        ex = dma_list(g + 2) if g + 2 < 7 else []
        r0 = rd_list(g, 0)
        if pend is None:
            for r_ in r0: tok = k.lg(r_)
            ex.pop(0)()
        else:
            tok = interleave(mf_list(*pend), r0, None, ex)
        if g == 2:
            k.e(f"v_mov_b32 v{vt0}, 0")
            k.e(f"global_load_dword v{vt3}, v{vt0}, s[18:19] sc1")
            k.vm_n += 1; nonce_tok = k.vm_n
        if g == 3:
            Ln = k.newlabel("n"); Lnd = k.newlabel("nd"); Lc = k.newlabel("cen")
            k.wait(vm=nonce_tok)
            k.e(f"v_readfirstlane_b32 s{sNonce}, v{vt3}")
            k.e(f"s_mov_b32 s{sSpin}, 0")
            k.e(f"s_cmp_lg_u32 s{sNonce}, 0")
            k.e(f"s_cbranch_scc1 {Lnd}")
            k.label(Ln)
            k.e(f"global_load_dword v{vt3}, v{vt0}, s[18:19] sc1")
            k.e(f"s_add_u32 s{sSpin}, s{sSpin}, 1")
            k.e(f"s_waitcnt vmcnt(0)")
            k.e(f"v_readfirstlane_b32 s{sNonce}, v{vt3}")
            k.e(f"s_cmp_gt_u32 s{sSpin}, {SPIN_MAX}")
            k.e(f"s_cbranch_scc1 {Lnd}")
            k.e(f"s_cmp_eq_u32 s{sNonce}, 0")
            k.e(f"s_cbranch_scc1 {Ln}")
            k.label(Lnd)
            k.e(f"s_add_u32 s{sT}, s{sXcc}, 1")
            k.e(f"s_lshl_b32 s{sT}, s{sT}, 24")
            k.e(f"s_add_u32 s{sFast}, s{sNonce}, s{sT}")
            k.e(f"s_lshr_b32 s{sT}, s2, 3")
            k.e(f"s_lshr_b32 s{sT2}, s{sT}, 3")
            k.e(f"s_lshl_b32 s{sT3}, s{sU}, 2")
            k.e(f"s_add_u32 s{sT2}, s{sT2}, s{sT3}")
            k.e(f"s_lshl_b32 s{sT2}, s{sT2}, 7")
            k.e(f"s_and_b32 s{sT}, s{sT}, 7")
            k.e(f"s_lshl_b32 s{sT}, s{sT}, 2")
            k.e(f"s_add_u32 s{sT2}, s{sT2}, s{sT}")
            k.e(f"s_add_u32 s{sT2}, s{sT2}, {CEN_OFF}")
            k.e(f"s_cmp_eq_u32 s{sW}, 0")
            k.e(f"s_cselect_b32 s{sT2}, s{sT2}, {WS_BYTES}")
            k.e(f"v_mov_b32 v{vt0}, 0")
            k.e(f"v_mov_b32 v{vt1}, s{sFast}")
            k.e(f"s_mov_b64 exec, 1")
            k.vm(f"buffer_store_dword v{vt1}, v{vt0}, {WS}, s{sT2} offen sc1")
            k.e(f"s_mov_b64 exec, -1")
        if g == 4:
            poll4_issue(k, vFlB, 232, 0xff)
        if g == 6:
            k.e(f"s_mov_b64 exec, 0xffffffff")
            cen_tok = k.vm(f"buffer_load_dword v{vt3}, v{vCen}, {WS}, 0 offen sc1")
            k.e(f"s_mov_b64 exec, -1")
        for ks in range(3):
            tok = interleave(mf_list(g, ks), rd_list(g, ks + 1), tok, ex)
        while ex: ex.pop(0)()
        pend = (g, 3)
        ptok = tok
    k.wait(lg=ptok)
    for m in mf_list(*pend): k.e(m)
    stamp(k, "mfma done")
    def F(hh, nm): return vF + 24 * hh + 8 * "KVQ".index(nm)
    sQs = sMk + 2
    k.e(f"s_mov_b32 s{sQs}, {f2u(QSCALE):#x}")
    k.nop(2)
    k.wait(vm=cen_tok)
    k.e(f"s_mov_b64 exec, 0xffffffff")
    k.e(f"v_cmp_ne_u32 vcc, s{sFast}, v{vt3}")
    k.e(f"s_mov_b64 exec, -1")
    k.e(f"s_cmp_eq_u64 vcc, 0")
    k.e(f"s_cselect_b32 s{sFast}, 1, 0")
    if 'slow' in DBG: k.e(f"s_mov_b32 s{sFast}, 0")
    if STAMP: k.e(f"v_writelane_b32 v{St.v}, s{sFast}, 31")
    for hh in range(2):
        aK, aQ = acc[(hh, "K")], acc[(hh, "Q")]
        fK, fQ = F(hh, "K"), F(hh, "Q")
        for j in range(8): k.e(f"v_cvt_pk_bf16_f32 v{fK+j}, v{aK+2*j}, v{aK+2*j+1}")
        for j in range(0, 16, 2):
            k.e(f"v_pk_mul_f32 v[{aQ+j}:{aQ+j+1}], v[{aQ+j}:{aQ+j+1}], s[{sQs}:{sQs+1}] op_sel_hi:[1,0]")
        for j in range(8): k.e(f"v_cvt_pk_bf16_f32 v{fQ+j}, v{aQ+2*j}, v{aQ+2*j+1}")
        k.e("s_mov_b32 exec_lo, 0")
        k.e(f"v_mov_b32 v{fK+6}, 0x3f803f80")
        k.e(f"v_mov_b32 v{fK+7}, 0x00003f80")
        k.e(f"v_mov_b32 v{fQ+6}, 0")
        k.e(f"v_mov_b32 v{fQ+7}, 0")
        k.e("s_mov_b32 exec_lo, -1")
    k.e(f"s_cmp_eq_u32 s{sBeta}, 1")
    k.e(f"s_cselect_b32 s{sT}, 1.0, 0")
    for i in range(0, 16, 2):
        k.e(f"v_pk_mul_f32 v[{vS1+i}:{vS1+i+1}], v[{vDiag+i}:{vDiag+i+1}], s[{sT}:{sT+1}] op_sel_hi:[1,0]")
    k.nop(2)
    for hh in range(2):
        S = acc[(hh, "K")]
        mfma(k, vr(S, 16), vr(F(hh, "K"), 4), vr(F(hh, "Q"), 4), vr(vS1, 16))
        mfma(k, vr(S, 16), vr(F(hh, "K") + 4, 4), vr(F(hh, "Q") + 4, 4), vr(S, 16))
    for hh in range(2):
        aV = acc[(hh, "V")]; fV = F(hh, "V")
        for j in range(8): k.e(f"v_cvt_pk_bf16_f32 v{fV+j}, v{aV+2*j}, v{aV+2*j+1}")
        for j in range(8): k.e(f"v_cndmask_b32_e64 v{fV+j}, v{fV+j}, v{vVpad}, s[{sVmask}:{sVmask+1}]")
    for hh in range(2):
        S = acc[(hh, "K")]; fQ = F(hh, "Q")
        colmax(k, S, vt3, vt0)
        k.e(f"v_add_f32 v{vt3}, {f2u(MARGIN):#x}, v{vt3}")
        shift_dwords(k, vt3, vt0, vt1, vt2)
        k.e("s_mov_b32 exec_lo, 0")
        k.e(f"v_mov_b32 v{fQ+6}, v{vt0}")
        k.e(f"v_mov_b32 v{fQ+7}, v{vt1}")
        k.e("s_mov_b32 exec_lo, -1")
    stamp(k, "epilogue")
    k.e(f"s_lshl_b32 s{sT}, s{sBeta}, 3")
    k.e(f"s_add_u32 s{sT}, s{sT}, s{sU}")
    k.e(f"s_lshl_b32 s{sT}, s{sT}, 4")
    k.e(f"s_add_u32 s{sT}, s{sT}, s{sR}")
    k.e(f"s_lshl_b32 s{sT}, s{sT}, 7")
    k.e(f"s_lshl_b32 s{sT2}, s{sW}, 2")
    k.e(f"s_add_u32 s{sT}, s{sT}, s{sT2}")
    k.e(f"s_add_u32 s{sFOB}, s{sT}, {FP1_OFF}")
    Lslow = k.newlabel("slow"); Lst = k.newlabel("stored")
    k.e(f"s_cmp_eq_u32 s{sFast}, 0")
    k.e(f"s_cbranch_scc1 {Lslow}")
    def qkv_stores(flag):
        for hh in range(2):
            for nm in "KVQ":
                f = F(hh, nm); d = dsts[3 * hh + "KVQ".index(nm)]
                k.e(f"buffer_store_dwordx4 v[{f}:{f+3}], v{vSt}, {WS}, s{d} offen {flag}")
                k.e(f"buffer_store_dwordx4 v[{f+4}:{f+7}], v{vSt}, {WS}, s{d} offen offset:1024 {flag}")
        k.e(f"v_mov_b32 v{vt0}, 0")
        k.e(f"v_mov_b32 v{vt1}, s{sNonce}")
        k.e(f"s_waitcnt vmcnt(0)")
        k.e(f"s_mov_b64 exec, 1")
        k.e(f"buffer_store_dword v{vt1}, v{vt0}, {WS}, s{sFOB} offen {flag}")
        k.e(f"s_mov_b64 exec, -1")
    qkv_stores("")
    k.e(f"s_branch {Lst}")
    k.label(Lslow)
    qkv_stores("sc1")
    k.label(Lst)
    k.vm_n += 13; k.vm_done = k.vm_n - 1
    stamp(k, "flag stored")
    k.e("s_barrier")
    vRed, vRedR, vQA, vOf, vO01, vQ, vS, vP, vO23 = 16, 17, 20, 28, 36, 68, 100, 132, 148
    vPR0, vPR1, vPT = 180, 184, 188
    vTmp = vS
    def vOd(d): return (vO01 + 16 * d) if d < 2 else (vO23 + 16 * (d - 2))
    qtok = {}; ktok = {}; vtok = {}
    sTq = [0, 98, 99]
    def tile_items(i):
        def f(j):
            def g_():
                if j == 0 or j == 2:
                    k.e(f"s_add_u32 s{sT}, s{sRot}, {i}")
                    k.e(f"s_and_b32 s{sT}, s{sT}, 15")
                    k.e(f"s_lshl_b32 s{sT}, s{sT}, 12")
                    k.e(f"s_add_u32 s{sTq[1]}, s{sT}, s{sKVB}")
                t = k.vm(f"buffer_load_dwordx4 a[{16*i+4*j}:{16*i+4*j+3}], v{vSt}, {WS}, s{sTq[1]} offen offset:{1024*j} sc1")
                if j == 1: ktok[i] = t
                if j == 3: vtok[i] = t
            return g_
        return [f(j) for j in range(4)]
    def q_items(d):
        def f(j):
            def g_():
                if j == 0:
                    k.e(f"s_add_u32 s{sT}, s{sW}, {d}")
                    k.e(f"s_and_b32 s{sT}, s{sT}, 3")
                    k.e(f"s_lshl_b32 s{sT2}, s{sRA}, 2")
                    k.e(f"s_add_u32 s{sT}, s{sT}, s{sT2}")
                    k.e(f"s_lshl_b32 s{sT2}, s{sHead}, 6")
                    k.e(f"s_add_u32 s{sT}, s{sT}, s{sT2}")
                    k.e(f"s_lshl_b32 s{sTq[1]}, s{sT}, 11")
                    k.e(f"s_add_u32 s{sTq[1]}, s{sTq[1]}, {Q_OFF['B']}")
                t = k.vm(f"buffer_load_dwordx4 v[{vQ+8*d+4*j}:{vQ+8*d+4*j+3}], v{vSt}, {WS}, s{sTq[1]} offen offset:{1024*j} sc1")
                if j == 1: qtok[d] = t
            return g_
        return [f(0), f(1)]
    WOB_L, WOA_L = 0, 57344
    def wo_items(srdn, lbase):
        def one(j):
            def f():
                if j == 0:
                    k.e(f"s_lshl_b32 s{sMk}, s{sCT}, 7")
                    k.e(f"s_mul_i32 s{sMk+1}, s{sW}, {112*896}")
                    k.e(f"s_add_u32 s{sMk}, s{sMk}, s{sMk+1}")
                    k.e(f"s_mul_i32 s{sMk+1}, s{sW}, {112*128}")
                    k.e(f"s_add_u32 s{sMk+1}, s{sMk+1}, {lbase}")
                k.e(f"s_add_u32 m0, s{sMk+1}, {1024*j}")
                k.e(f"s_add_u32 s{sMk+4}, s{sMk}, {8*896*j}")
                return k.vm(f"buffer_load_dwordx4 v{vWoD}, s[{srdn}:{srdn+3}], s{sMk+4} offen lds")
            return f
        return [one(j) for j in range(14)]
    tp = poll4_issue(k, vFlB, vPR0, 0xff)
    poll4_finish(k, tp, vFlB, vPR0, vPR1, vPT, 0xff, "pb")
    stamp(k, "P1 flags")
    t0i = tile_items(0)
    for f in q_items(1) + t0i[:2] + q_items(2) + t0i[2:] + q_items(3) + q_items(0): f()
    vOA = 224; vEdge = 192
    kt = {}; vt = {}; st = {}
    def bop(i, d):
        return dict(K=(ar(16*i, 4), ar(16*i+4, 4)), V=(ar(16*i+8, 4), ar(16*i+12, 4)),
                    Q=(vr(vQ+8*d, 4), vr(vQ+8*d+4, 4)), O=vr(vOd(d), 16), C="0", first=(i == 0),
                    wK=(lambda i=i, d=d: max(ktok[i], qtok[d])), wV=(lambda i=i: vtok[i]))
    def aslot(j): return j % 3
    lk = {}; lv = {}
    def aop(j):
        a = aslot(j)
        C = vr(vEdge, 16) if j == 0 else vr(vDiag, 16) if j == 8 else "0"
        return dict(K=(ar(16*a, 4), ar(16*a+4, 4)), V=(ar(16*a+8, 4), ar(16*a+12, 4)), Q=(vr(vQA, 4), vr(vQA+4, 4)),
                    O=vr(vOA, 16), C=C, first=(j == 0), lK=(lambda j=j: lk[j]), lV=(lambda j=j: lv[j]))
    A0 = 12
    NT1 = A0 // 4
    ops = [bop(i, d) for i in range(NT1) for d in (1, 2, 3, 0)] + [aop(j) for j in range(9)] + [bop(i, d) for i in range(NT1, 16) for d in (1, 2, 3, 0)]
    N = len(ops)
    vKVr = 191
    def rdKa(j):
        a = aslot(j)
        k.lg(f"ds_read_b128 a[{16*a}:{16*a+3}], v{vKVr} offset:{j*4096}")
        lk[j] = k.lg(f"ds_read_b128 a[{16*a+4}:{16*a+7}], v{vKVr} offset:{j*4096+1024}")
    def rdVa(j):
        a = aslot(j)
        k.lg(f"ds_read_b128 a[{16*a+8}:{16*a+11}], v{vKVr} offset:{j*4096+2048}")
        lv[j] = k.lg(f"ds_read_b128 a[{16*a+12}:{16*a+15}], v{vKVr} offset:{j*4096+3072}")
    def a_dma_items():
        def f(i, q):
            def g_():
                if q == 0:
                    k.e(f"s_mul_i32 s{sT}, s{sW}, 3")
                    k.e(f"s_lshl_b32 s{sT2}, s{sRA}, 2")
                    k.e(f"s_add_u32 s{sT}, s{sT}, s{sT2}")
                    k.e(f"s_add_i32 s{sT2}, s{sT}, {i-8}")
                    k.e(f"s_lshl_b32 s{sTq[2]}, s{sT2}, 12")
                    k.e(f"s_add_u32 s{sTq[2]}, s{sTq[2]}, s{sKV}")
                    k.e(f"s_cmp_lt_i32 s{sT2}, 0")
                    k.e(f"s_cselect_b32 s{sTq[2]}, {WS_BYTES}, s{sTq[2]}")
                k.e(f"s_mul_i32 s{sT}, s{sW}, {3*4096}")
                k.e(f"s_add_u32 m0, s{sT}, {SCR + i*4096}")
                k.e("s_nop 0")
                st["ad"] = k.vm(f"buffer_load_dwordx4 v{vSt}, {WS}, s{sTq[2]} offen offset:{1024*q} sc1 lds")
            return g_
        return [f(i, q) for i in range(3) for q in range(4)]
    strB = []
    for i in range(1, 16):
        use = 4 * i if i < NT1 else 4 * i + 9
        for q, f in enumerate(tile_items(i)): strB.append((max(use - 8 + q, -1), f))
    strA = [(0, f) for f in a_dma_items()]
    strW = [(10 + j, f) for j, f in enumerate(wo_items(SRD_WOA, WOA_L))] + [(26 + j, f) for j, f in enumerate(wo_items(SRD_WOB, WOB_L))]
    strO = []
    at = {}
    vR1, vR2, vR3 = 189, 190, 191
    def red_addr():
        for d, vv in ((1, vR1), (2, vR2), (3, vR3)):
            k.e(f"s_add_u32 s{sT}, s{sW}, {d}")
            k.e(f"s_and_b32 s{sT}, s{sT}, 3")
            k.e(f"s_mul_i32 s{sT}, s{sT}, {3*4096}")
            k.e(f"s_add_u32 s{sT}, s{sT}, {SCR + (d-1)*4096}")
            k.e(f"v_add_u32 v{vv}, s{sT}, v{vSt}")
        k.e(f"s_mul_i32 s{sT}, s{sW}, {3*4096}")
        k.e(f"s_add_u32 s{sT}, s{sT}, {SCR}")
        k.e(f"v_add_u32 v{vRedR}, s{sT}, v{vSt}")
    def red_write(d, i):
        vv = {1: vR1, 2: vR2, 3: vR3}[d]
        k.lg(f"ds_write_b128 v{vv}, v[{vOd(d)+4*i}:{vOd(d)+4*i+3}] offset:{1024*i}")
    def o_flag_offsets():
        k.e(f"s_lshl_b32 s{sFOA}, s{sTTA}, 2")
        k.e(f"s_lshr_b32 s{sT}, s{sHead}, 2")
        k.e(f"s_add_u32 s{sFOA}, s{sFOA}, s{sT}")
        k.e(f"s_lshl_b32 s{sFOA}, s{sFOA}, 7")
        k.e(f"s_and_b32 s{sT}, s{sHead}, 3")
        k.e(f"s_lshl_b32 s{sT}, s{sT}, 2")
        k.e(f"s_add_u32 s{sFOA}, s{sFOA}, s{sT}")
        k.e(f"s_add_u32 s{sFOB}, s{sFOA}, {FO_OFF}")
        k.e(f"s_add_u32 s{sFOA}, s{sFOA}, {FO_OFF + 64*4*128}")
    def oa_items():
        def f(step):
            def g_():
                if step == 0:
                    k.e(f"s_lshl_b32 s{sT}, s{sP3T}, 1")
                    k.e(f"s_lshr_b32 s{sT2}, s{sW}, 1")
                    k.e(f"s_add_u32 s{sTT}, s{sT}, s{sT2}")
                    k.e(f"s_lshl_b32 s{sKV}, s{sTT}, 15")
                    k.e(f"s_add_u32 s{sKV}, s{sKV}, {O_OFF['A']}")
                if step % 4 == 0: k.e(f"s_add_u32 s{sTq[2]}, s{sKV}, {1024*step}")
                at[step] = k.vm(f"buffer_load_dwordx4 a[{4*step}:{4*step+3}], v{vSt}, {WS}, s{sTq[2]} offen offset:{1024*(step%4)} sc1")
            return g_
        return [f(step) for step in range(32)]
    SL = eval(os.environ.get("SLOTS", "()"))
    def hookB(n, g):
        if g == 0 and n in SL: stamp(k, f"slot{n}")
        if g == 0 and strB and strB[0][0] <= n: strB.pop(0)[1]()
        if n < 0:
            if g == 1:
                k.e(f"s_lshl_b32 s{sKV}, s{sHead}, 18")
                k.e(f"s_add_u32 s{sKV}, s{sKV}, {KV_OFF['A']}")
                k.e(f"s_lshl_b32 s{sT2}, s{sHead}, 6")
                k.e(f"s_add_u32 s{sT2}, s{sT2}, s{sTTA}")
                k.e(f"s_lshl_b32 s{sQo}, s{sT2}, 11")
                k.e(f"s_add_u32 s{sQo}, s{sQo}, {Q_OFF['A']}")
                k.vm(f"buffer_load_dwordx4 v[{vQA}:{vQA+3}], v{vSt}, {WS}, s{sQo} offen sc1")
                st["qa"] = k.vm(f"buffer_load_dwordx4 v[{vQA+4}:{vQA+7}], v{vSt}, {WS}, s{sQo} offen offset:1024 sc1")
            return
        if g == 3 and n < 6 and strB and strB[0][0] <= n: strB.pop(0)[1]()
        if g == 2:
            if strA and strA[0][0] <= n: strA.pop(0)[1]()
            elif strW and strW[0][0] <= n: st["wo"] = strW.pop(0)[1]()
        if g == 1 and strA and strA[0][0] <= n: strA.pop(0)[1]()
        if g == 3 and n >= 45 and strO: strO.pop(0)()
        if g == 1 and n == 8:
            assert not strA
            k.wait(vm=max(st["ad"], st["qa"]))
            k.e("s_barrier")
            k.e(f"s_lshl_b32 s{sT}, s{sW}, 12")
            k.e(f"s_add_u32 s{sT}, s{sT}, {SCR}")
            k.e(f"v_add_u32 v{vKVr}, s{sT}, v{vSt}")
            k.e(f"v_mov_b32 v{vt1}, {f2u(NEGBIG):#x}")
            for i in range(16): k.e(f"v_sub_f32 v{vEdge+i}, v{vt1}, v{vDiag+i}")
        for j in range(9):
            if g == 3 and n == A0 + j - 3: rdKa(j)
            if g == 3 and n == A0 + j - 1: rdVa(j)
        if g == 1 and n == A0 + 11:
            finalize_o(k, vOA, vt0, vt1, vOf)
            k.e(f"s_lshl_b32 s{sT}, s{sTTA}, 4")
            k.e(f"s_add_u32 s{sT}, s{sT}, s{sHead}")
            k.e(f"s_lshl_b32 s{sOo}, s{sT}, 11")
            k.e(f"s_add_u32 s{sOo}, s{sOo}, {O_OFF['A']}")
            k.vm(f"buffer_store_dwordx4 v[{vOf}:{vOf+3}], v{vSt}, {WS}, s{sOo} offen sc1")
            st["oa"] = k.vm(f"buffer_store_dwordx4 v[{vOf+4}:{vOf+7}], v{vSt}, {WS}, s{sOo} offen offset:1024 sc1")
            o_flag_offsets()
        if g == 1 and n == A0 + 19:
            k.wait(vm=st["oa"])
            store_flag(k, vt0, vt1, sFOA)
            k.e(f"s_lshl_b32 s{sT}, s{sP3T}, 3")
            k.e(f"v_add_u32 v{vFlB}, s{sT}, v{vLane}")
            k.e(f"v_lshlrev_b32 v{vFlB}, 7, v{vFlB}")
            k.e(f"v_add_u32 v{vFlA}, {FO_OFF + 64*4*128}, v{vFlB}")
            k.e(f"v_add_u32 v{vFlB}, {FO_OFF}, v{vFlB}")
        if g == 1 and n == 40:
            st["pOA"] = poll4_issue(k, vFlA, vPR0, 0xff)
        if g == 1 and n == 44:
            poll4_finish(k, st["pOA"], vFlA, vPR0, vPR1, vPT, 0xff, "poA")
            strO.extend(oa_items())
        if g == 1 and n == N - 8:
            red_addr()
        if n == N - 1: red_write(1, g)
        if n == N and g < 2:
            red_write(2, 2 * g); red_write(2, 2 * g + 1)
    attn_pipeline(k, ops, vS, vP, hookB)
    assert not strB and not strA and not strW, (len(strB), len(strA), len(strW))
    stamp(k, "attn done")
    k.nop(8)
    for i in range(4): red_write(3, i)
    k.wait_all(vm=False)
    k.e("s_barrier")
    for j in range(3):
        for i in range(4):
            k.lg(f"ds_read_b128 v[{vTmp+16*j+4*i}:{vTmp+16*j+4*i+3}], v{vRedR} offset:{4096*j+1024*i}")
    for j in range(3):
        k.wait(lg=k.lg_n - 4 * (2 - j))
        for i in range(0, 16, 2):
            k.e(f"v_pk_add_f32 v[{vOd(0)+i}:{vOd(0)+i+1}], v[{vOd(0)+i}:{vOd(0)+i+1}], v[{vTmp+16*j+i}:{vTmp+16*j+i+1}]")
    finalize_o(k, vOd(0), vt0, vt1, vOf)
    k.e(f"s_lshl_b32 s{sT}, s{sTTA}, 4")
    k.e(f"s_add_u32 s{sT}, s{sT}, s{sHead}")
    k.e(f"s_lshl_b32 s{sOo}, s{sT}, 11")
    k.e(f"s_add_u32 s{sOo}, s{sOo}, {O_OFF['B']}")
    k.vm(f"buffer_store_dwordx4 v[{vOf}:{vOf+3}], v{vSt}, {WS}, s{sOo} offen sc1")
    ob = k.vm(f"buffer_store_dwordx4 v[{vOf+4}:{vOf+7}], v{vSt}, {WS}, s{sOo} offen offset:1024 sc1")
    stamp(k, "O(B) stored")
    def cleanup():
        vC = 100
        for i in range(6):
            k.vm(f"buffer_load_dwordx4 v[{vC+8*i}:{vC+8*i+3}], v{vSt}, {WS}, s{dsts[i]} offen sc1")
            t = k.vm(f"buffer_load_dwordx4 v[{vC+8*i+4}:{vC+8*i+7}], v{vSt}, {WS}, s{dsts[i]} offen offset:1024 sc1")
        return vC, t
    def cleanup_stores(vC, t):
        k.wait(vm=t)
        for i in range(6):
            k.vm(f"buffer_store_dwordx4 v[{vC+8*i}:{vC+8*i+3}], v{vSt}, {WS}, s{dsts[i]} offen sc1")
            k.vm(f"buffer_store_dwordx4 v[{vC+8*i+4}:{vC+8*i+7}], v{vSt}, {WS}, s{dsts[i]} offen offset:1024 sc1")
    Lp3 = k.newlabel("p3")
    k.e(f"s_cmp_lt_u32 s2, 224")
    k.e(f"s_cbranch_scc1 {Lp3}")
    k.e("s_waitcnt vmcnt(0)")
    k.e(f"v_mov_b32 v{vt0}, 0")
    k.e(f"v_mov_b32 v{vt1}, s{sNonce}")
    k.e(f"s_mov_b64 exec, 1")
    k.e(f"buffer_store_dword v{vt1}, v{vt0}, {WS}, s{sFOB} offen sc1")
    k.e(f"s_mov_b64 exec, -1")
    if 'noclean' not in DBG:
        sv = (k.vm_n, k.vm_done)
        vC, tC = cleanup()
        k.e("s_waitcnt vmcnt(0)"); k.vm_done = k.vm_n
        cleanup_stores(vC, tC)
        k.vm_n, k.vm_done = sv
    k.e(f"s_endpgm")
    k.label(Lp3)
    vWrB, vWrA, vWrBc, vWrAc, vOr, vOut = 16, 17, 18, 19, 189, 190
    k.e(f"v_mov_b32 v{vWrB}, v{vP3a}")
    k.e(f"v_add_u32 v{vWrA}, {WOA_L}, v{vP3a}")
    k.e(f"v_lshrrev_b32 v{vt0}, 5, v{vLane}")
    k.e(f"v_lshlrev_b32 v{vt0}, 9, v{vt0}")
    k.e(f"v_sub_u32 v{vWrBc}, v{vWrB}, v{vt0}")
    k.e(f"v_sub_u32 v{vWrAc}, v{vWrA}, v{vt0}")
    k.e(f"v_and_b32 v{vt0}, 31, v{vLane}")
    k.e(f"v_mul_u32_u24 v{vt0}, 1792, v{vt0}")
    k.e(f"v_lshrrev_b32 v{vt1}, 5, v{vLane}")
    k.e(f"v_lshl_add_u32 v{vOut}, v{vt1}, 4, v{vt0}")
    cnt = 0
    while strO:
        strO.pop(0)(); cnt += 1
        if cnt == 8:
            k.wait(vm=ob)
            store_flag(k, vt0, vt1, sFOB)
    if cnt < 8:
        k.wait(vm=ob)
        store_flag(k, vt0, vt1, sFOB)
    stamp(k, "flag O(B)")
    NB = 4
    vA3, vB3, vD3, vPk = 36, 52, 68, 84
    def rdA(step, vW, vWc):
        hd, kk = step // 2, step % 2
        par = step % NB
        row = 28 * hd + 16 * kk
        a2 = vWc if (hd == 15 and kk == 1) else vW
        k.lg(f"ds_read_b64_tr_b16 v[{vA3+4*par}:{vA3+4*par+1}], v{vW} offset:{row*128}")
        return k.lg(f"ds_read_b64_tr_b16 v[{vA3+4*par+2}:{vA3+4*par+3}], v{a2} offset:{(row+8)*128}")
    def out_store(b):
        k.nop(12)
        for i in range(8): k.e(f"v_cvt_pk_bf16_f32 v{vPk+i}, v{vD3+2*i}, v{vD3+2*i+1}")
        k.e(f"s_lshl_b32 s{sT2}, s{sCT}, 1")
        k.e(f"s_and_b32 s{sT}, s{sW}, 1")
        k.e(f"s_add_u32 s{sT2}, s{sT2}, s{sT}")
        k.e(f"v_permlane32_swap_b32 v{vPk}, v{vPk+2}")
        k.e(f"v_permlane32_swap_b32 v{vPk+1}, v{vPk+3}")
        k.e(f"v_permlane32_swap_b32 v{vPk+4}, v{vPk+6}")
        k.e(f"v_permlane32_swap_b32 v{vPk+5}, v{vPk+7}")
        k.e(f"s_mul_i32 s{sOo}, s{sTT}, {32*1792}")
        k.e(f"s_lshl_b32 s{sT}, s{sT2}, 6")
        k.e(f"s_add_u32 s{sOo}, s{sOo}, s{sT}")
        if b == "B": k.e(f"s_add_u32 s{sOo}, s{sOo}, 896")
        k.vm(f"buffer_store_dwordx4 v[{vPk}:{vPk+3}], v{vOut}, s[{SRD_OUT}:{SRD_OUT+3}], s{sOo} offen nt")
        k.vm(f"buffer_store_dwordx4 v[{vPk+4}:{vPk+7}], v{vOut}, s[{SRD_OUT}:{SRD_OUT+3}], s{sOo} offen offset:32 nt")
    k.c("---- P3 A  (wo(A) was waited for long ago by later counted waits; make it explicit)")
    k.wait(vm=st["wo"])
    k.e("s_barrier")
    toks = {}
    for s_ in range(NB - 1): toks[s_] = rdA(s_, vWrA, vWrAc)
    for step in range(32):
        k.wait(vm=at[step], lg=toks[step])
        par = step % NB
        mfma(k, vr(vD3, 16), vr(vA3 + 4 * par, 4), ar(4 * step, 4), "0" if step == 0 else vr(vD3, 16))
        if step + NB - 1 < 32: toks[step + NB - 1] = rdA(step + NB - 1, vWrA, vWrAc)
    if 'noclean' not in DBG: vC, tC = cleanup()
    tpB = poll4_issue(k, vFlB, vPR0, 0xff)
    out_store("A")
    stamp(k, "P3A done")
    k.e("s_barrier")
    poll4_finish(k, tpB, vFlB, vPR0, vPR1, vPT, 0xff, "poB")
    stamp(k, "P3B flags")
    k.e(f"s_lshl_b32 s{sOo}, s{sP3T}, 16")
    k.e(f"s_add_u32 s{sOo}, s{sOo}, {O_OFF['B']}")
    k.e(f"s_lshl_b32 s{sT}, s{sW}, 14")
    k.e(f"s_add_u32 s{sOo}, s{sOo}, s{sT}")
    k.e(f"s_add_u32 s{sT2}, s{sT}, {WOA_L}")
    for j in range(16):
        if j % 4 == 0:
            k.e(f"s_add_u32 m0, s{sT2}, {1024*j}")
            k.e(f"s_add_u32 s{sT}, s{sOo}, {1024*j}")
        k.vm(f"buffer_load_dwordx4 v{vSt}, {WS}, s{sT} offen offset:{1024*(j%4)} sc1 lds")
    otB = k.vm_n
    if 'noclean' not in DBG: cleanup_stores(vC, tC)
    k.e(f"s_lshr_b32 s{sT}, s{sW}, 1")
    k.e(f"s_lshl_b32 s{sT}, s{sT}, 15")
    k.e(f"s_add_u32 s{sT}, s{sT}, {WOA_L}")
    k.e(f"v_add_u32 v{vOr}, s{sT}, v{vSt}")
    toks = {}
    for s_ in range(NB - 1): toks[s_] = rdA(s_, vWrB, vWrBc)
    k.wait(vm=otB)
    k.e("s_barrier")
    stamp(k, "P3B data")
    tb = {}
    def rdB(step):
        par = step % NB
        return k.lg(f"ds_read_b128 v[{vB3+4*par}:{vB3+4*par+3}], v{vOr} offset:{step*1024}")
    for s_ in range(NB - 1): tb[s_] = rdB(s_)
    for step in range(32):
        k.wait(lg=max(toks[step], tb[step]))
        par = step % NB
        mfma(k, vr(vD3, 16), vr(vA3 + 4 * par, 4), vr(vB3 + 4 * par, 4), "0" if step == 0 else vr(vD3, 16))
        if step + NB - 1 < 32:
            toks[step + NB - 1] = rdA(step + NB - 1, vWrB, vWrBc)
            tb[step + NB - 1] = rdB(step + NB - 1)
    out_store("B")
    stamp(k, "P3B done")
    stamp(k, "rt", True)
    stamp_flush(k, vt0, vt1)
    k.label("L_end")
    k.e("s_endpgm")
    return k

HEADER = open("cdna_kernels/" + NAME + ".s.ref").read().split("; Override")[0]

def main(out):
    k = gen()
    pr = check(k.L, "fused")
    for p in pr: print(p)
    print("instrs", len(k.L), "stamps", St.n, St.names)
    s = HEADER
    s += "; @launch grid=(256,1,1) block=(256,1,1) lds=163840\n"
    s += '.amdgcn_target "amdgcn-amd-amdhsa--gfx950"\n.text\n'
    s += f".globl {KNAME}\n.p2align 8\n.type {KNAME},@function\n{KNAME}:\n" + k.text()
    s += f""".section .rodata,"a"
.p2align 6
.amdhsa_kernel {KNAME}
  .amdhsa_next_free_vgpr 512
  .amdhsa_next_free_sgpr 102
  .amdhsa_accum_offset 256
  .amdhsa_group_segment_fixed_size 0
  .amdhsa_kernarg_size 72
  .amdhsa_user_sgpr_count 2
  .amdhsa_user_sgpr_kernarg_segment_ptr 1
  .amdhsa_system_sgpr_workgroup_id_x 1
.end_amdhsa_kernel
"""
    open(out, "w").write(s)

if __name__ == "__main__":
    main(sys.argv[1] if len(sys.argv) > 1 else "f3.s")
```

```python
import sys, math, struct, os
sys.path.insert(0, "gen")
from asmlib import Emit, check

NAME = "concat_heads__sliding_block__softmax_full_mha__prompt"
KNAME = NAME + "_kernel"
def f2u(x): return struct.unpack("<I", struct.pack("<f", x))[0]

KV_OFF = {"B": 0, "A": 4 << 20}
O_OFF = {"B": 8 << 20, "A": 10 << 20}
Q_OFF = {"B": 12 << 20, "A": 14 << 20}
FP1_OFF = 16 << 20
FO_OFF = (16 << 20) + (256 << 10)
NONCE_OFF = (16 << 20) + (768 << 10)
CEN_OFF = (16 << 20) + (800 << 10)
STAMPS = 17 << 20
WS_BYTES = 18 << 20
X_BYTES = 2048 * 896
W_BYTES = 448 * 2688
WO_BYTES = 448 * 896
OUT_BYTES = 2048 * 1792
QSCALE = (28 ** -0.5) * math.log2(math.e)
MARGIN = 64.0
NEGBIG = -1.0e30
MAPB = os.environ.get('MAPB', '0') == '1'
STAMP = os.environ.get("STAMP", "0") in ("1", "2")
STAMPDBG = os.environ.get("STAMP", "0") == "2"
DBGWG = int(os.environ.get("DBGWG", "100"))
SKIP = set(os.environ.get("SKIP", "").split(","))
SPIN_MAX = 1 << 18
SCR = 114688

class V:
    def __init__(self, lo, hi): self.n = lo; self.hi = hi
    def a(self, cnt=1, al=1):
        self.n = (self.n + al - 1) // al * al
        r = self.n; self.n += cnt
        assert self.n <= self.hi, "out of regs"
        return r

def vr(b, n=1): return f"v{b}" if n == 1 else f"v[{b}:{b+n-1}]"
def ar(b, n=1): return f"a{b}" if n == 1 else f"a[{b}:{b+n-1}]"
def mfma(k, d, a, b, c): k.e(f"v_mfma_f32_32x32x16_bf16 {d}, {a}, {b}, {c}")

S_PTR = 4
SRD_XB, SRD_WB, SRD_WS, SRD_OUT, SRD_XA, SRD_WA = 24, 28, 32, 36, 40, 44
SRD_WO = 4
sWmask = 96
sW, sBeta, sU, sR, sT, sT2, sT3 = 48, 49, 50, 51, 52, 53, 54
sOff, sXbase, sWcol, sM0X, sM0W, sC, sXo, sWo, sWo2 = 55, 56, 57, 58, 59, 60, 61, 62, 63
sVmask = 64
sNonce = 66
sHead, sTT, sKV, sTo, sQo, sOo, sSpin = 67, 68, 69, 70, 71, 72, 73
sCT, sP3T = 74, 75
sEx = 76
sStampTmp = 78
sRA = 80
sUQ, sUK, sUV = 81, 82, 83
sFOA, sFOB, sKVB, sRot, sOffU, sTTA = 84, 85, 86, 87, 88, 89
sMk = 90
sD0 = 22
WS = f"s[{SRD_WS}:{SRD_WS+3}]"

def srd(k, s, lo, size):
    k.e(f"s_mov_b32 s{s}, s{lo}")
    k.e(f"s_and_b32 s{s+1}, s{lo+1}, 0xffff")
    k.e(f"s_mov_b32 s{s+2}, {size}")
    k.e(f"s_mov_b32 s{s+3}, 0x20000")

class St:
    n = 0; v = 15; names = []
def stamp(k, name="", rt=False):
    if not STAMP: return
    if STAMPDBG and (rt or name in SKIP): return
    i = St.n; St.n += 1; St.names.append(name)
    assert i < 32
    k.e(f"{'s_memrealtime' if rt else 's_memtime'} s[{sStampTmp}:{sStampTmp+1}]")
    k.wait_all(vm=False, lg=True)
    k.e(f"v_writelane_b32 v{St.v}, s{sStampTmp}, {i}")
def stamp_flush(k, vt0, vt1):
    if not STAMP: return
    if STAMPDBG:
        L = k.newlabel("sf")
        k.e(f"s_lshl_b32 s{sStampTmp}, s2, 2")
        k.e(f"s_add_u32 s{sStampTmp}, s{sStampTmp}, s{sW}")
        k.e(f"s_cmp_lg_u32 s{sStampTmp}, {DBGWG*4}")
        k.e(f"s_cbranch_scc1 {L}")
        k.e(f"v_readlane_b32 s{sStampTmp}, v{St.v}, 0")
        k.e(f"v_and_b32 v{vt0}, 63, v0")
        k.e(f"v_lshlrev_b32 v{vt0}, 2, v{vt0}")
        k.e(f"v_subrev_u32 v{vt1}, s{sStampTmp}, v{St.v}")
        k.e(f"s_mov_b64 exec, 0xfffe")
        k.e(f"global_store_dword v{vt0}, v{vt1}, s[18:19]")
        k.e(f"s_mov_b64 exec, -1")
        k.label(L)
        return
    k.e(f"v_lshrrev_b32 v{vt0}, 6, v0")
    k.e(f"s_lshl_b32 s{sStampTmp}, s2, 2")
    k.e(f"v_add_u32 v{vt0}, s{sStampTmp}, v{vt0}")
    k.e(f"v_lshlrev_b32 v{vt0}, 7, v{vt0}")
    k.e(f"v_and_b32 v{vt1}, 63, v0")
    k.e(f"v_lshl_add_u32 v{vt0}, v{vt1}, 2, v{vt0}")
    k.e(f"s_mov_b32 s{sStampTmp}, {STAMPS}")
    k.e(f"s_mov_b32 exec_hi, 0")
    k.vm(f"buffer_store_dword v{St.v}, v{vt0}, {WS}, s{sStampTmp} offen")
    k.e(f"s_mov_b64 exec, -1")

def build_masks(k, vDiag, vEdge, vLane, t0, t1):
    k.e(f"v_and_b32 v{t0}, 31, v{vLane}")
    k.e(f"v_lshrrev_b32 v{t1}, 5, v{vLane}")
    k.e(f"v_lshlrev_b32 v{t1}, 2, v{t1}")
    k.e(f"v_sub_u32 v{t0}, v{t0}, v{t1}")
    k.e(f"v_mov_b32 v{t1}, {f2u(NEGBIG):#x}")
    prs = [sMk, sMk + 2, sMk + 4]
    def cmp(i):
        b = 8 * (i // 4) + (i % 4); p = prs[i % 3]
        k.e(f"v_cmp_le_i32_e64 s[{p}:{p+1}], {b}, v{t0}")
    cmp(0); cmp(1)
    for i in range(16):
        if i + 2 < 16: cmp(i + 2)
        else: k.nop(1)
        p = prs[i % 3]
        k.e(f"v_cndmask_b32_e64 v{vDiag+i}, v{t1}, 0, s[{p}:{p+1}]")
        k.e(f"v_cndmask_b32_e64 v{vEdge+i}, 0, v{t1}, s[{p}:{p+1}]")

def colmax(k, vS, vm, vt):
    k.e(f"v_max3_f32 v{vm}, v{vS}, v{vS+1}, v{vS+2}")
    k.e(f"v_max3_f32 v{vt}, v{vS+3}, v{vS+4}, v{vS+5}")
    k.e(f"v_max3_f32 v{vm}, v{vm}, v{vS+6}, v{vS+7}")
    k.e(f"v_max3_f32 v{vt}, v{vt}, v{vS+8}, v{vS+9}")
    k.e(f"v_max3_f32 v{vm}, v{vm}, v{vS+10}, v{vS+11}")
    k.e(f"v_max3_f32 v{vt}, v{vt}, v{vS+12}, v{vS+13}")
    k.e(f"v_max3_f32 v{vm}, v{vm}, v{vS+14}, v{vS+15}")
    k.e(f"v_max_f32 v{vm}, v{vm}, v{vt}")
    k.e(f"v_mov_b32 v{vt}, v{vm}")
    k.nop(2)
    k.e(f"v_permlane32_swap_b32 v{vm}, v{vt}")
    k.e(f"v_max_f32 v{vm}, v{vm}, v{vt}")

def shift_dwords(k, vm, t0, t1, t2):
    k.e(f"v_and_b32 v{t0}, 0xffff0000, v{vm}")
    k.e(f"v_sub_f32 v{t1}, v{vm}, v{t0}")
    k.e(f"v_and_b32 v{t2}, 0xffff0000, v{t1}")
    k.e(f"v_sub_f32 v{t1}, v{t1}, v{t2}")
    k.e(f"v_lshrrev_b32 v{t0}, 16, v{t0}")
    k.e(f"v_or_b32 v{t0}, v{t0}, v{t2}")
    k.e(f"v_xor_b32 v{t0}, 0x80008000, v{t0}")
    k.e(f"v_lshrrev_b32 v{t1}, 16, v{t1}")
    k.e(f"v_xor_b32 v{t1}, 0x8000, v{t1}")

def poll_flags(k, vAddr, vTmp, mask64, name):
    L = k.newlabel(name); Ld = k.newlabel(name + "d")
    k.e(f"s_mov_b32 s{sSpin}, 0")
    k.e(f"s_mov_b32 exec_hi, {(mask64 >> 32) & 0xffffffff:#x}")
    k.e(f"s_mov_b32 exec_lo, {mask64 & 0xffffffff:#x}")
    k.label(L)
    k.e(f"buffer_load_dword v{vTmp}, v{vAddr}, {WS}, 0 offen sc1")
    k.e(f"s_add_u32 s{sSpin}, s{sSpin}, 1")
    k.e(f"s_waitcnt vmcnt(0)")
    k.e(f"v_cmp_ne_u32 vcc, s{sNonce}, v{vTmp}")
    k.e(f"s_cmp_gt_u32 s{sSpin}, {SPIN_MAX}")
    k.e(f"s_cbranch_scc1 {Ld}")
    k.e(f"s_cbranch_vccnz {L}")
    k.label(Ld)
    k.e(f"s_mov_b64 exec, -1")
    k.vm_done = k.vm_n

def store_flag(k, vZero, vVal, s_off):
    k.e(f"v_mov_b32 v{vZero}, 0")
    k.e(f"v_mov_b32 v{vVal}, s{sNonce}")
    k.e(f"s_mov_b64 exec, 1")
    t = k.vm(f"buffer_store_dword v{vVal}, v{vZero}, {WS}, s{s_off} offen sc1")
    k.e(f"s_mov_b64 exec, -1")
    return t

def attn_pipeline(k, ops, vS, vP, hook=None):
    N = len(ops)
    def val(x): return x() if callable(x) else x
    def qk(n, part):
        o = ops[n]; S = vr(vS + 16 * (n % 2), 16)
        if part == 0:
            k.wait(vm=val(o.get("wK")), lg=val(o.get("lK")))
            mfma(k, S, o["K"][0], o["Q"][0], o["C"])
        else:
            mfma(k, S, o["K"][1], o["Q"][1], S)
    def pv(n, part):
        o = ops[n]; P = vP + 8 * (n % 2)
        if part == 0:
            k.wait(vm=val(o.get("wV")), lg=val(o.get("lV")))
            mfma(k, o["O"], o["V"][0], vr(P, 4), "0" if o["first"] else o["O"])
        else:
            mfma(k, o["O"], o["V"][1], vr(P + 4, 4), o["O"])
    def expgrp(n, g):
        S = vS + 16 * (n % 2); P = vP + 8 * (n % 2)
        for i in range(4):
            k.e(f"v_exp_f32 v{S+4*g+i}, v{S+4*g+i}")
        k.e(f"v_cvt_pk_bf16_f32 v{P+2*g}, v{S+4*g}, v{S+4*g+1}")
        k.e(f"v_cvt_pk_bf16_f32 v{P+2*g+1}, v{S+4*g+2}, v{S+4*g+3}")
    for n in range(-1, N + 1):
        has_exp = 0 <= n < N
        for g in range(4):
            if g < 2 and n + 1 < N: qk(n + 1, g)
            if g >= 2 and 0 <= n - 1: pv(n - 1, g - 2)
            if hook: hook(n, g)
            if has_exp: expgrp(n, g)
        if n == -1: k.nop(12)
        if n == N - 1: k.nop(2)

def finalize_o(k, vO, vt0, vt1, vOf):
    k.e(f"v_mov_b32 v{vt0}, v{vO+12}")
    k.e(f"v_mov_b32 v{vt1}, v{vO+12}")
    k.nop(2)
    k.e(f"v_permlane32_swap_b32 v{vt0}, v{vt1}")
    k.e(f"v_rcp_f32 v{vt1}, v{vt1}")
    k.nop(1)
    for i in range(16):
        k.e(f"v_mul_f32 v{vO+i}, v{vO+i}, v{vt1}")
    for i in range(8):
        k.e(f"v_cvt_pk_bf16_f32 v{vOf+i}, v{vO+2*i}, v{vO+2*i+1}")
    k.e("s_mov_b32 exec_lo, 0")
    k.e(f"v_mov_b32 v{vOf+6}, 0")
    k.e(f"v_mov_b32 v{vOf+7}, 0")
    k.e("s_mov_b32 exec_lo, -1")

def div6(k, dst, src, tmp):
    k.e(f"s_mul_i32 s{dst}, s{src}, 43")
    k.e(f"s_lshr_b32 s{dst}, s{dst}, 8")


def async_poll_issue(k, vAddr, vRes, mask64):
    k.e(f"s_mov_b32 exec_hi, {(mask64 >> 32) & 0xffffffff:#x}")
    k.e(f"s_mov_b32 exec_lo, {mask64 & 0xffffffff:#x}")
    t = k.vm(f"buffer_load_dword v{vRes}, v{vAddr}, {WS}, 0 offen sc1")
    k.e(f"s_mov_b64 exec, -1")
    return t

def async_poll_check(k, tok, vAddr, vRes, mask64, name):
    L = k.newlabel(name); Ld = k.newlabel(name + "d")
    k.wait(vm=tok)
    k.e(f"s_mov_b32 exec_hi, {(mask64 >> 32) & 0xffffffff:#x}")
    k.e(f"s_mov_b32 exec_lo, {mask64 & 0xffffffff:#x}")
    k.e(f"v_cmp_ne_u32 vcc, s{sNonce}, v{vRes}")
    k.e(f"s_mov_b32 s{sSpin}, 0")
    k.e(f"s_cbranch_vccz {Ld}")
    k.label(L)
    k.e(f"buffer_load_dword v{vRes}, v{vAddr}, {WS}, 0 offen sc1")
    k.e(f"s_add_u32 s{sSpin}, s{sSpin}, 1")
    k.e(f"s_waitcnt vmcnt(0)")
    k.e(f"v_cmp_ne_u32 vcc, s{sNonce}, v{vRes}")
    k.e(f"s_cmp_gt_u32 s{sSpin}, {SPIN_MAX}")
    k.e(f"s_cbranch_scc1 {Ld}")
    k.e(f"s_cbranch_vccnz {L}")
    k.label(Ld)
    k.e(f"s_mov_b64 exec, -1")

def chk4(k, vR, vT):
    k.e(f"v_xor_b32 v{vT}, s{sNonce}, v{vR}")
    k.e(f"v_xor_b32 v{vR+1}, s{sNonce}, v{vR+1}")
    k.e(f"v_xor_b32 v{vR+2}, s{sNonce}, v{vR+2}")
    k.e(f"v_xor_b32 v{vR+3}, s{sNonce}, v{vR+3}")
    k.e(f"v_or3_b32 v{vT}, v{vT}, v{vR+1}, v{vR+2}")
    k.e(f"v_or_b32 v{vT}, v{vT}, v{vR+3}")
    k.e(f"v_cmp_ne_u32 vcc, 0, v{vT}")

def poll4_issue(k, vAddr, vR, mask):
    k.e(f"s_mov_b64 exec, {mask:#x}")
    t = k.vm(f"buffer_load_dwordx4 v[{vR}:{vR+3}], v{vAddr}, {WS}, 0 offen sc1")
    k.e(f"s_mov_b64 exec, -1")
    return t

def poll4_finish(k, tok, vAddr, vR0, vR1, vT, mask, name):
    L = k.newlabel(name); Ld = k.newlabel(name + "d")
    k.wait(vm=tok)
    k.e(f"s_mov_b64 exec, {mask:#x}")
    chk4(k, vR0, vT)
    k.e(f"s_mov_b32 s{sSpin}, 0")
    k.e(f"s_cbranch_vccz {Ld}")
    k.e(f"buffer_load_dwordx4 v[{vR0}:{vR0+3}], v{vAddr}, {WS}, 0 offen sc1")
    k.label(L)
    k.e(f"buffer_load_dwordx4 v[{vR1}:{vR1+3}], v{vAddr}, {WS}, 0 offen sc1")
    k.e(f"s_waitcnt vmcnt(1)")
    chk4(k, vR0, vT)
    k.e(f"s_add_u32 s{sSpin}, s{sSpin}, 1")
    k.e(f"s_cbranch_vccz {Ld}")
    k.e(f"buffer_load_dwordx4 v[{vR0}:{vR0+3}], v{vAddr}, {WS}, 0 offen sc1")
    k.e(f"s_waitcnt vmcnt(1)")
    chk4(k, vR1, vT)
    k.e(f"s_cmp_gt_u32 s{sSpin}, {SPIN_MAX}")
    k.e(f"s_cbranch_scc1 {Ld}")
    k.e(f"s_cbranch_vccnz {L}")
    k.label(Ld)
    k.e(f"s_mov_b64 exec, -1")

def div3(k, dst, src):
    k.e(f"s_mul_i32 s{dst}, s{src}, 43")
    k.e(f"s_lshr_b32 s{dst}, s{dst}, 7")


BARS = eval(os.environ.get('BARS', '(0, 1, 6)'))
DBG = os.environ.get('DBG', '')
sXcc, sFast = 100, 95

def gen():
    k = Emit()
    St.n = 0; St.names = []
    k.e("s_cmp_ge_u32 s2, 256")
    k.e("s_cbranch_scc1 L_end")
    k.e(f"s_load_dwordx16 s[{S_PTR}:{S_PTR+15}], s[0:1], 0")
    k.e(f"s_load_dwordx2 s[20:21], s[0:1], 64")
    G = V(1, 15)
    vLane = G.a(); vSt = G.a(); vt0 = G.a(); vt1 = G.a(); vt2 = G.a(); vt3 = G.a(); vWoD = G.a()
    vFlB = G.a(); vFlA = G.a(); vVpad = G.a(); vCen = G.a(); vP3a = G.a()
    SRD_X, SRD_W = SRD_XB, SRD_WB
    stamp(k, "start"); stamp(k, "rt", True)
    k.e(f"v_and_b32 v{vLane}, 63, v0")
    k.e(f"v_lshrrev_b32 v{vt0}, 6, v0")
    k.e(f"s_and_b32 s{sU}, s2, 7")
    k.e(f"v_readfirstlane_b32 s{sW}, v{vt0}")
    k.e(f"s_lshr_b32 s{sT2}, s2, 3")
    k.e(f"s_and_b32 s{sBeta}, s{sT2}, 1")
    k.e(f"s_lshr_b32 s{sR}, s{sT2}, 1")
    k.e(f"s_mul_i32 s{sOff}, s{sR}, 37")
    k.e(f"s_lshr_b32 s{sOff}, s{sOff}, 8")
    k.e(f"s_mul_i32 s{sOff}, s{sOff}, 7")
    k.e(f"s_sub_u32 s{sOff}, s{sR}, s{sOff}")
    k.e(f"s_mul_i32 s{sXbase}, s{sR}, {128*896}")
    k.e(f"s_mul_i32 s{sWcol}, s{sU}, 112")
    R = V(16, 256)
    vXo = R.a(4); vWo = R.a(2); vXr = R.a(4); vWr = R.a(4)
    vXf = R.a(8, 4); vWf = R.a(48, 4)
    acc = {(hh, nm): R.a(16, 4) for hh in range(2) for nm in "QKV"}
    vF = R.a(48, 4)
    vS1 = vWf
    vDiag = 240
    assert R.n <= 240, R.n
    XSLOT = 16640; WSLOT = 24576; WBASE = 3 * XSLOT
    k.e(f"v_lshrrev_b32 v{vt0}, 3, v{vLane}")
    k.e(f"v_bfe_u32 v{vt1}, v{vLane}, 4, 1")
    k.e(f"v_lshlrev_b32 v{vt1}, 2, v{vt1}")
    k.e(f"v_and_b32 v{vt2}, 7, v{vLane}")
    k.e(f"v_xor_b32 v{vt1}, v{vt1}, v{vt2}")
    k.e(f"v_lshrrev_b32 v{vt2}, 6, v0")
    k.e(f"v_lshl_add_u32 v{vt3}, v{vt2}, 5, v{vt0}")
    k.e(f"v_mul_u32_u24 v{vt3}, 896, v{vt3}")
    k.e(f"v_lshl_add_u32 v{vXo}, v{vt1}, 4, v{vt3}")
    for j in range(1, 4):
        k.e(f"v_add_u32 v{vXo+j}, {j*(8*896-1040)}, v{vXo}")
    k.e(f"v_lshl_add_u32 v{vt3}, v{vt2}, 4, v{vt0}")
    k.e(f"v_mul_u32_u24 v{vt3}, 2688, v{vt3}")
    k.e(f"v_lshl_add_u32 v{vWo}, v{vt1}, 4, v{vt3}")
    k.e(f"v_add_u32 v{vWo+1}, {8*2688-1024}, v{vWo}")
    k.e(f"s_mul_i32 s{sM0X}, s{sW}, 4160")
    k.e(f"s_mul_i32 s{sM0W}, s{sW}, 6144")
    k.e(f"s_add_u32 s{sM0W}, s{sM0W}, {WBASE}")
    k.e(f"s_getreg_b32 s{sXcc}, hwreg(HW_REG_XCC_ID)")
    k.e("s_waitcnt lgkmcnt(0)")
    k.e(f"s_cmp_eq_u32 s{sBeta}, 1")
    k.e(f"s_cselect_b32 s{SRD_X}, s4, s10")
    k.e(f"s_cselect_b32 s{SRD_X+1}, s5, s11")
    k.e(f"s_cselect_b32 s{SRD_W}, s6, s12")
    k.e(f"s_cselect_b32 s{SRD_W+1}, s7, s13")
    k.e(f"s_and_b32 s{SRD_X+1}, s{SRD_X+1}, 0xffff")
    k.e(f"s_and_b32 s{SRD_W+1}, s{SRD_W+1}, 0xffff")
    k.e(f"s_mov_b32 s{SRD_X+2}, {X_BYTES}")
    k.e(f"s_mov_b32 s{SRD_X+3}, 0x20000")
    k.e(f"s_mov_b32 s{SRD_W+2}, {W_BYTES}")
    k.e(f"s_mov_b32 s{SRD_W+3}, 0x20000")
    X = f"s[{SRD_X}:{SRD_X+3}]"; W = f"s[{SRD_W}:{SRD_W+3}]"
    dma_tok = {}
    def dma_list(g):
        slot = g % 3
        L = []
        def head():
            k.e(f"s_add_u32 s{sC}, s{sOff}, {g}")
            k.e(f"s_sub_u32 s{sT}, s{sC}, 7")
            k.e(f"s_min_u32 s{sC}, s{sC}, s{sT}")
            k.e(f"s_lshl_b32 s{sXo}, s{sC}, 7")
            k.e(f"s_add_u32 s{sXo}, s{sXo}, s{sXbase}")
            k.e(f"s_mul_i32 s{sWo}, s{sC}, {64*2688}")
            k.e(f"s_add_u32 s{sWo}, s{sWo}, s{sWcol}")
            k.e(f"s_add_u32 m0, s{sM0X}, {slot*XSLOT}")
            k.e("s_nop 0")
        def xj(j):
            def f():
                if j == 0: head()
                k.vm(f"buffer_load_dwordx4 v{vXo+j}, {X}, s{sXo} offen offset:{1040*j} lds")
            return f
        def wi(sec, half):
            def f():
                if half == 0:
                    k.e(f"s_add_u32 m0, s{sM0W}, {slot*WSLOT + sec*2048}")
                    k.e(f"s_add_u32 s{sWo2}, s{sWo}, {sec*896}")
                t = k.vm(f"buffer_load_dwordx4 v{vWo+half}, {W}, s{sWo2} offen offset:{1024*half} lds")
                if sec == 2 and half == 1: dma_tok[g] = t
            return f
        for j in range(4): L.append(xj(j))
        for sec in range(3):
            for half in range(2): L.append(wi(sec, half))
        return L
    stamp(k, "pre-dma")
    for f in dma_list(0): f()
    stamp(k, "dma0 issued")
    srd(k, SRD_WS, 20, WS_BYTES); srd(k, SRD_OUT, 16, OUT_BYTES)
    srd(k, SRD_XA, 14, WO_BYTES); srd(k, SRD_WA, 8, WO_BYTES)
    SRD_WOB, SRD_WOA = SRD_XA, SRD_WA
    k.e(f"v_lshlrev_b32 v{vSt}, 4, v{vLane}")
    Lnn = k.newlabel("nonce")
    k.e(f"s_or_b32 s{sT}, s2, s{sW}")
    k.e(f"s_cmp_lg_u32 s{sT}, 0")
    k.e(f"s_cbranch_scc1 {Lnn}")
    k.e(f"s_mov_b32 s{sT}, {NONCE_OFF}")
    k.e(f"v_mov_b32 v{vt0}, 0")
    k.e(f"buffer_load_dword v{vt1}, v{vt0}, {WS}, s{sT} offen sc1")
    k.e(f"s_waitcnt vmcnt(0)")
    k.e(f"v_add_u32 v{vt1}, 1, v{vt1}")
    k.e(f"v_max_u32 v{vt1}, 1, v{vt1}")
    k.e(f"s_mov_b64 exec, 1")
    k.e(f"global_store_dword v{vt0}, v{vt1}, s[18:19] sc1")
    k.e(f"buffer_store_dword v{vt1}, v{vt0}, {WS}, s{sT} offen sc1")
    k.e(f"s_mov_b64 exec, -1")
    k.label(Lnn)
    k.e(f"s_lshr_b32 s{sT2}, s2, 3")
    k.e(f"s_lshl_b32 s{sHead}, s{sU}, 1")
    k.e(f"s_add_u32 s{sHead}, s{sHead}, s{sBeta}")
    k.e(f"s_mov_b32 s{sRA}, s{sR}")
    k.e(f"s_mul_i32 s{sT3}, s{sT2}, 37")
    k.e(f"s_lshr_b32 s{sT3}, s{sT3}, 8")
    k.e(f"s_min_u32 s{sC}, s{sT3}, 3")
    k.e(f"s_lshl_b32 s{sP3T}, s{sU}, 2")
    k.e(f"s_add_u32 s{sP3T}, s{sP3T}, s{sC}")
    k.e(f"s_mul_i32 s{sT3}, s{sT3}, 7")
    k.e(f"s_sub_u32 s{sCT}, s{sT2}, s{sT3}")
    k.e(f"s_lshl_b32 s{sTT}, s{sR}, 2")
    k.e(f"s_add_u32 s{sTT}, s{sTT}, s{sW}")
    k.e(f"s_mov_b32 s{sTTA}, s{sTT}")
    dsts = [0, 1, 3, 22, 23, 101]
    for hh in range(2):
        k.e(f"s_lshl_b32 s{sT}, s{sU}, 1")
        k.e(f"s_add_u32 s{sT}, s{sT}, {hh}")
        k.e(f"s_lshl_b32 s{sT}, s{sT}, 6")
        k.e(f"s_add_u32 s{sT}, s{sT}, s{sTT}")
        k.e(f"s_lshl_b32 s{sT3}, s{sT}, 12")
        k.e(f"s_lshl_b32 s{sC}, s{sBeta}, 22")
        k.e(f"s_add_u32 s{dsts[3*hh]}, s{sT3}, s{sC}")
        k.e(f"s_add_u32 s{dsts[3*hh+1]}, s{dsts[3*hh]}, 2048")
        k.e(f"s_lshl_b32 s{sT3}, s{sT}, 11")
        k.e(f"s_lshl_b32 s{sC}, s{sBeta}, 21")
        k.e(f"s_add_u32 s{sT3}, s{sT3}, s{sC}")
        k.e(f"s_add_u32 s{dsts[3*hh+2]}, s{sT3}, {Q_OFF['B']}")
    k.e(f"v_and_b32 v{vt0}, 31, v{vLane}")
    k.e(f"v_lshrrev_b32 v{vt1}, 3, v{vt0}")
    k.e(f"v_mul_u32_u24 v{vt1}, 1040, v{vt1}")
    k.e(f"v_and_b32 v{vt2}, 7, v{vt0}")
    k.e(f"v_lshl_add_u32 v{vt1}, v{vt2}, 7, v{vt1}")
    k.e(f"v_add_u32 v{vt1}, s{sM0X}, v{vt1}")
    k.e(f"v_bfe_u32 v{vt2}, v{vLane}, 1, 1")
    k.e(f"v_lshlrev_b32 v{vt2}, 6, v{vt2}")
    k.e(f"v_lshrrev_b32 v{vt3}, 5, v{vLane}")
    k.e(f"v_lshlrev_b32 v{vt3}, 4, v{vt3}")
    k.e(f"v_add_u32 v{vt1}, v{vt1}, v{vt3}")
    for ks in range(4):
        k.e(f"v_xor_b32 v{vXr+ks}, {(ks >> 1) * 64}, v{vt2}")
        k.e(f"v_add_u32 v{vXr+ks}, {((2*ks) & 3) * 16}, v{vXr+ks}")
        k.e(f"v_add_u32 v{vXr+ks}, v{vXr+ks}, v{vt1}")
    k.e(f"v_lshrrev_b32 v{vt0}, 5, v{vLane}")
    k.e(f"v_lshlrev_b32 v{vt0}, 3, v{vt0}")
    k.e(f"v_bfe_u32 v{vt1}, v{vLane}, 2, 2")
    k.e(f"v_add_u32 v{vt0}, v{vt0}, v{vt1}")
    k.e(f"v_lshlrev_b32 v{vt0}, 7, v{vt0}")
    k.e(f"v_bfe_u32 v{vt1}, v{vLane}, 4, 1")
    k.e(f"v_lshlrev_b32 v{vt1}, 5, v{vt1}")
    k.e(f"v_and_b32 v{vt2}, 3, v{vLane}")
    k.e(f"v_lshl_add_u32 v{vt1}, v{vt2}, 3, v{vt1}")
    k.e(f"v_bfe_u32 v{vt2}, v{vLane}, 3, 1")
    k.e(f"v_lshlrev_b32 v{vt2}, 6, v{vt2}")
    for hh in range(2):
        k.e(f"v_add_u32 v{vt3}, {56*hh}, v{vt1}")
        k.e(f"v_xor_b32 v{vt3}, v{vt3}, v{vt2}")
        k.e(f"v_add_u32 v{vt3}, v{vt3}, v{vt0}")
        k.e(f"v_add_u32 v{vWr+hh}, {WBASE}, v{vt3}")
        k.e(f"v_add_u32 v{vWr+2+hh}, {WBASE + 2*WSLOT}, v{vt3}")
    for f in dma_list(1)[:5]: f()
    k.e(f"v_and_b32 v{vt0}, 31, v{vLane}")
    k.e(f"v_cmp_eq_u32 vcc, 28, v{vt0}")
    k.e(f"v_mov_b32 v{vt1}, 0x3f803f80")
    k.e(f"v_cmp_le_u32_e64 s[{sVmask}:{sVmask+1}], 28, v{vt0}")
    k.e(f"v_cndmask_b32_e64 v{vVpad}, 0, v{vt1}, vcc")
    k.e(f"v_lshrrev_b32 v{vt0}, 3, v{vLane}")
    k.e(f"v_bfe_u32 v{vt1}, v{vLane}, 4, 1")
    k.e(f"v_lshlrev_b32 v{vt1}, 2, v{vt1}")
    k.e(f"v_and_b32 v{vt2}, 7, v{vLane}")
    k.e(f"v_xor_b32 v{vt1}, v{vt1}, v{vt2}")
    k.e(f"v_mul_u32_u24 v{vt0}, 896, v{vt0}")
    k.e(f"v_lshl_add_u32 v{vWoD}, v{vt1}, 4, v{vt0}")
    k.e(f"v_lshrrev_b32 v{vt0}, 5, v{vLane}")
    k.e(f"v_lshlrev_b32 v{vt0}, 2, v{vt0}")
    k.e(f"v_bfe_u32 v{vt1}, v{vLane}, 2, 2")
    k.e(f"v_add_u32 v{vt0}, v{vt0}, v{vt1}")
    k.e(f"v_lshlrev_b32 v{vt0}, 7, v{vt0}")
    k.e(f"s_and_b32 s{sT}, s{sW}, 1")
    k.e(f"s_lshl_b32 s{sT}, s{sT}, 6")
    k.e(f"v_bfe_u32 v{vt1}, v{vLane}, 4, 1")
    k.e(f"v_lshlrev_b32 v{vt1}, 5, v{vt1}")
    k.e(f"v_and_b32 v{vt2}, 3, v{vLane}")
    k.e(f"v_lshl_add_u32 v{vt1}, v{vt2}, 3, v{vt1}")
    k.e(f"v_add_u32 v{vt1}, s{sT}, v{vt1}")
    k.e(f"v_bfe_u32 v{vt2}, v{vLane}, 3, 1")
    k.e(f"v_lshlrev_b32 v{vt2}, 6, v{vt2}")
    k.e(f"v_xor_b32 v{vt1}, v{vt1}, v{vt2}")
    k.e(f"v_add_u32 v{vP3a}, v{vt0}, v{vt1}")
    k.e(f"s_lshl_b32 s{sT}, s{sW}, 2")
    k.e(f"v_add_u32 v{vt0}, s{sT}, v{vLane}")
    k.e(f"v_cmp_eq_u32 vcc, 4, v{vLane}")
    k.e(f"v_mov_b32 v{vt1}, s{sRA}")
    k.e(f"s_sub_u32 s{sT}, s{sRA}, 7")
    k.e(f"v_cndmask_b32 v{vt0}, v{vt0}, v{vt1}, vcc")
    k.e(f"v_add_u32 v{vt1}, s{sT}, v{vLane}")
    k.e(f"v_max_i32 v{vt1}, 0, v{vt1}")
    k.e(f"v_add_u32 v{vt1}, 128, v{vt1}")
    k.e(f"v_cmp_lt_u32 vcc, 4, v{vLane}")
    k.e(f"s_lshl_b32 s{sT}, s{sU}, 4")
    k.e(f"s_nop 0")
    k.e(f"v_cndmask_b32 v{vt0}, v{vt0}, v{vt1}, vcc")
    k.e(f"v_add_u32 v{vt0}, s{sT}, v{vt0}")
    k.e(f"v_lshlrev_b32 v{vFlB}, 7, v{vt0}")
    k.e(f"v_add_u32 v{vFlB}, {FP1_OFF}, v{vFlB}")
    k.e(f"v_lshrrev_b32 v{vt0}, 3, v{vLane}")
    k.e(f"s_lshl_b32 s{sT}, s{sU}, 2")
    k.e(f"v_add_u32 v{vt0}, s{sT}, v{vt0}")
    k.e(f"v_lshlrev_b32 v{vt0}, 7, v{vt0}")
    k.e(f"v_and_b32 v{vt1}, 7, v{vLane}")
    k.e(f"v_lshl_add_u32 v{vt0}, v{vt1}, 2, v{vt0}")
    k.e(f"v_add_u32 v{vCen}, {CEN_OFF}, v{vt0}")
    k.e(f"s_lshl_b32 s{sKVB}, s{sHead}, 18")
    k.e(f"s_lshl_b32 s{sT}, s{sW}, 16")
    k.e(f"s_add_u32 s{sKVB}, s{sKVB}, s{sT}")
    k.e(f"s_and_b32 s{sRot}, s{sRA}, 7")
    k.e(f"s_lshl_b32 s{sRot}, s{sRot}, 1")
    k.e(f"v_and_b32 v{vt0}, 31, v{vLane}")
    k.e(f"v_lshrrev_b32 v{vt1}, 5, v{vLane}")
    k.e(f"v_lshlrev_b32 v{vt1}, 2, v{vt1}")
    k.e(f"v_sub_u32 v{vt0}, v{vt0}, v{vt1}")
    k.e(f"v_mov_b32 v{vt1}, {f2u(NEGBIG):#x}")
    prs = [sMk, sMk + 2, sMk + 4]
    def cmpm(i):
        b = 8 * (i // 4) + (i % 4); p = prs[i % 3]
        k.e(f"v_cmp_le_i32_e64 s[{p}:{p+1}], {b}, v{vt0}")
    cmpm(0); cmpm(1)
    for i in range(16):
        if i + 2 < 16: cmpm(i + 2)
        else: k.nop(1)
        p = prs[i % 3]
        k.e(f"v_cndmask_b32_e64 v{vDiag+i}, v{vt1}, 0, s[{p}:{p+1}]")
    rest1 = None
    L1 = dma_list(1)
    for f in L1[5:]: f()

    def rd_list(g, ks):
        slot = g % 3; par = ks % 2
        L = [f"ds_read_b128 v[{vXf+4*par}:{vXf+4*par+3}], v{vXr+ks} offset:{slot*XSLOT}"]
        for hh in range(2):
            for sec in range(3):
                areg = vWr + hh + (2 if slot == 2 else 0)
                base = (slot % 2 if slot < 2 else 0) * WSLOT + ks * 6144 + sec * 2048
                d = vWf + 24 * par + 12 * hh + 4 * sec
                L.append(f"ds_read_b64_tr_b16 v[{d}:{d+1}], v{areg} offset:{base}")
                L.append(f"ds_read_b64_tr_b16 v[{d+2}:{d+3}], v{areg} offset:{base+512}")
        return L
    def mf_list(g, ks):
        first = (g == 0 and ks == 0); par = ks % 2
        xf = vr(vXf + 4 * par, 4)
        L = []
        for hh in range(2):
            for sec, nm in enumerate("QKV"):
                wf = vr(vWf + 24 * par + 12 * hh + 4 * sec, 4)
                d = vr(acc[(hh, nm)], 16); c = "0" if first else d
                L.append(f"v_mfma_f32_32x32x16_bf16 {d}, {xf}, {wf}, {c}" if nm == "V" else f"v_mfma_f32_32x32x16_bf16 {d}, {wf}, {xf}, {c}")
        return L
    def interleave(mf, rds, tok_need, extra):
        k.wait(lg=tok_need)
        t = None; ri = 0
        for i, m in enumerate(mf):
            k.e(m)
            n = (len(rds) - ri + (len(mf) - i) - 1) // (len(mf) - i)
            for _ in range(n):
                t = k.lg(rds[ri]); ri += 1
            if extra and i % 2 == 1: extra.pop(0)()
        return t
    pend = None; nonce_tok = None
    for g in range(7):
        k.c(f"---- chunk {g}")
        k.wait(vm=dma_tok[g])
        k.wait_all(vm=False, lg=True)
        k.e("s_barrier")
        if g in BARS: stamp(k, f"bar{g}")
        ex = dma_list(g + 2) if g + 2 < 7 else []
        r0 = rd_list(g, 0)
        if pend is None:
            for r_ in r0: tok = k.lg(r_)
            ex.pop(0)()
        else:
            tok = interleave(mf_list(*pend), r0, None, ex)
        if g == 2:
            k.e(f"v_mov_b32 v{vt0}, 0")
            k.e(f"global_load_dword v{vt3}, v{vt0}, s[18:19] sc1")
            k.vm_n += 1; nonce_tok = k.vm_n
        if g == 3:
            Ln = k.newlabel("n"); Lnd = k.newlabel("nd"); Lc = k.newlabel("cen")
            k.wait(vm=nonce_tok)
            k.e(f"v_readfirstlane_b32 s{sNonce}, v{vt3}")
            k.e(f"s_mov_b32 s{sSpin}, 0")
            k.e(f"s_cmp_lg_u32 s{sNonce}, 0")
            k.e(f"s_cbranch_scc1 {Lnd}")
            k.label(Ln)
            k.e(f"global_load_dword v{vt3}, v{vt0}, s[18:19] sc1")
            k.e(f"s_add_u32 s{sSpin}, s{sSpin}, 1")
            k.e(f"s_waitcnt vmcnt(0)")
            k.e(f"v_readfirstlane_b32 s{sNonce}, v{vt3}")
            k.e(f"s_cmp_gt_u32 s{sSpin}, {SPIN_MAX}")
            k.e(f"s_cbranch_scc1 {Lnd}")
            k.e(f"s_cmp_eq_u32 s{sNonce}, 0")
            k.e(f"s_cbranch_scc1 {Ln}")
            k.label(Lnd)
            k.e(f"s_add_u32 s{sT}, s{sXcc}, 1")
            k.e(f"s_lshl_b32 s{sT}, s{sT}, 24")
            k.e(f"s_add_u32 s{sFast}, s{sNonce}, s{sT}")
            k.e(f"s_lshr_b32 s{sT}, s2, 3")
            k.e(f"s_lshr_b32 s{sT2}, s{sT}, 3")
            k.e(f"s_lshl_b32 s{sT3}, s{sU}, 2")
            k.e(f"s_add_u32 s{sT2}, s{sT2}, s{sT3}")
            k.e(f"s_lshl_b32 s{sT2}, s{sT2}, 7")
            k.e(f"s_and_b32 s{sT}, s{sT}, 7")
            k.e(f"s_lshl_b32 s{sT}, s{sT}, 2")
            k.e(f"s_add_u32 s{sT2}, s{sT2}, s{sT}")
            k.e(f"s_add_u32 s{sT2}, s{sT2}, {CEN_OFF}")
            k.e(f"s_cmp_eq_u32 s{sW}, 0")
            k.e(f"s_cselect_b32 s{sT2}, s{sT2}, {WS_BYTES}")
            k.e(f"v_mov_b32 v{vt0}, 0")
            k.e(f"v_mov_b32 v{vt1}, s{sFast}")
            k.e(f"s_mov_b64 exec, 1")
            k.vm(f"buffer_store_dword v{vt1}, v{vt0}, {WS}, s{sT2} offen sc1")
            k.e(f"s_mov_b64 exec, -1")
        if g == 4:
            poll4_issue(k, vFlB, 232, 0xff)
        if g == 6:
            k.e(f"s_mov_b64 exec, 0xffffffff")
            cen_tok = k.vm(f"buffer_load_dword v{vt3}, v{vCen}, {WS}, 0 offen sc1")
            k.e(f"s_mov_b64 exec, -1")
        for ks in range(3):
            tok = interleave(mf_list(g, ks), rd_list(g, ks + 1), tok, ex)
        while ex: ex.pop(0)()
        pend = (g, 3)
        ptok = tok
    k.wait(lg=ptok)
    for m in mf_list(*pend): k.e(m)
    stamp(k, "mfma done")
    def F(hh, nm): return vF + 24 * hh + 8 * "KVQ".index(nm)
    sQs = sMk + 2
    k.e(f"s_mov_b32 s{sQs}, {f2u(QSCALE):#x}")
    k.nop(2)
    k.wait(vm=cen_tok)
    k.e(f"s_mov_b64 exec, 0xffffffff")
    k.e(f"v_cmp_ne_u32 vcc, s{sFast}, v{vt3}")
    k.e(f"s_mov_b64 exec, -1")
    k.e(f"s_cmp_eq_u64 vcc, 0")
    k.e(f"s_cselect_b32 s{sFast}, 1, 0")
    if 'slow' in DBG: k.e(f"s_mov_b32 s{sFast}, 0")
    if STAMP: k.e(f"v_writelane_b32 v{St.v}, s{sFast}, 31")
    for hh in range(2):
        aK, aQ = acc[(hh, "K")], acc[(hh, "Q")]
        fK, fQ = F(hh, "K"), F(hh, "Q")
        for j in range(8): k.e(f"v_cvt_pk_bf16_f32 v{fK+j}, v{aK+2*j}, v{aK+2*j+1}")
        for j in range(0, 16, 2):
            k.e(f"v_pk_mul_f32 v[{aQ+j}:{aQ+j+1}], v[{aQ+j}:{aQ+j+1}], s[{sQs}:{sQs+1}] op_sel_hi:[1,0]")
        for j in range(8): k.e(f"v_cvt_pk_bf16_f32 v{fQ+j}, v{aQ+2*j}, v{aQ+2*j+1}")
        k.e("s_mov_b32 exec_lo, 0")
        k.e(f"v_mov_b32 v{fK+6}, 0x3f803f80")
        k.e(f"v_mov_b32 v{fK+7}, 0x00003f80")
        k.e(f"v_mov_b32 v{fQ+6}, 0")
        k.e(f"v_mov_b32 v{fQ+7}, 0")
        k.e("s_mov_b32 exec_lo, -1")
    k.e(f"s_cmp_eq_u32 s{sBeta}, 1")
    k.e(f"s_cselect_b32 s{sT}, 1.0, 0")
    for i in range(0, 16, 2):
        k.e(f"v_pk_mul_f32 v[{vS1+i}:{vS1+i+1}], v[{vDiag+i}:{vDiag+i+1}], s[{sT}:{sT+1}] op_sel_hi:[1,0]")
    k.nop(2)
    for hh in range(2):
        S = acc[(hh, "K")]
        mfma(k, vr(S, 16), vr(F(hh, "K"), 4), vr(F(hh, "Q"), 4), vr(vS1, 16))
        mfma(k, vr(S, 16), vr(F(hh, "K") + 4, 4), vr(F(hh, "Q") + 4, 4), vr(S, 16))
    for hh in range(2):
        aV = acc[(hh, "V")]; fV = F(hh, "V")
        for j in range(8): k.e(f"v_cvt_pk_bf16_f32 v{fV+j}, v{aV+2*j}, v{aV+2*j+1}")
        for j in range(8): k.e(f"v_cndmask_b32_e64 v{fV+j}, v{fV+j}, v{vVpad}, s[{sVmask}:{sVmask+1}]")
    for hh in range(2):
        S = acc[(hh, "K")]; fQ = F(hh, "Q")
        colmax(k, S, vt3, vt0)
        k.e(f"v_add_f32 v{vt3}, {f2u(MARGIN):#x}, v{vt3}")
        shift_dwords(k, vt3, vt0, vt1, vt2)
        k.e("s_mov_b32 exec_lo, 0")
        k.e(f"v_mov_b32 v{fQ+6}, v{vt0}")
        k.e(f"v_mov_b32 v{fQ+7}, v{vt1}")
        k.e("s_mov_b32 exec_lo, -1")
    stamp(k, "epilogue")
    k.e(f"s_lshl_b32 s{sT}, s{sBeta}, 3")
    k.e(f"s_add_u32 s{sT}, s{sT}, s{sU}")
    k.e(f"s_lshl_b32 s{sT}, s{sT}, 4")
    k.e(f"s_add_u32 s{sT}, s{sT}, s{sR}")
    k.e(f"s_lshl_b32 s{sT}, s{sT}, 7")
    k.e(f"s_lshl_b32 s{sT2}, s{sW}, 2")
    k.e(f"s_add_u32 s{sT}, s{sT}, s{sT2}")
    k.e(f"s_add_u32 s{sFOB}, s{sT}, {FP1_OFF}")
    Lslow = k.newlabel("slow"); Lst = k.newlabel("stored")
    k.e(f"s_cmp_eq_u32 s{sFast}, 0")
    k.e(f"s_cbranch_scc1 {Lslow}")
    def qkv_stores(flag):
        for hh in range(2):
            for nm in "KVQ":
                f = F(hh, nm); d = dsts[3 * hh + "KVQ".index(nm)]
                k.e(f"buffer_store_dwordx4 v[{f}:{f+3}], v{vSt}, {WS}, s{d} offen {flag}")
                k.e(f"buffer_store_dwordx4 v[{f+4}:{f+7}], v{vSt}, {WS}, s{d} offen offset:1024 {flag}")
        k.e(f"v_mov_b32 v{vt0}, 0")
        k.e(f"v_mov_b32 v{vt1}, s{sNonce}")
        k.e(f"s_waitcnt vmcnt(0)")
        k.e(f"s_mov_b64 exec, 1")
        k.e(f"buffer_store_dword v{vt1}, v{vt0}, {WS}, s{sFOB} offen {flag}")
        k.e(f"s_mov_b64 exec, -1")
    qkv_stores("")
    k.e(f"s_branch {Lst}")
    k.label(Lslow)
    qkv_stores("sc1")
    k.label(Lst)
    k.vm_n += 13; k.vm_done = k.vm_n - 1
    stamp(k, "flag stored")
    k.e("s_barrier")
    vRed, vRedR, vQA, vOf, vO01, vQ, vS, vP, vO23 = 16, 17, 20, 28, 36, 68, 100, 132, 148
    vPR0, vPR1, vPT = 180, 184, 188
    vTmp = vS
    def vOd(d): return (vO01 + 16 * d) if d < 2 else (vO23 + 16 * (d - 2))
    qtok = {}; ktok = {}; vtok = {}
    sTq = [0, 98, 99]
    def tile_items(i):
        def f(j):
            def g_():
                if j == 0 or j == 2:
                    k.e(f"s_add_u32 s{sT}, s{sRot}, {i}")
                    k.e(f"s_and_b32 s{sT}, s{sT}, 15")
                    k.e(f"s_lshl_b32 s{sT}, s{sT}, 12")
                    k.e(f"s_add_u32 s{sTq[1]}, s{sT}, s{sKVB}")
                t = k.vm(f"buffer_load_dwordx4 a[{16*i+4*j}:{16*i+4*j+3}], v{vSt}, {WS}, s{sTq[1]} offen offset:{1024*j} sc1")
                if j == 1: ktok[i] = t
                if j == 3: vtok[i] = t
            return g_
        return [f(j) for j in range(4)]
    def q_items(d):
        def f(j):
            def g_():
                if j == 0:
                    k.e(f"s_add_u32 s{sT}, s{sW}, {d}")
                    k.e(f"s_and_b32 s{sT}, s{sT}, 3")
                    k.e(f"s_lshl_b32 s{sT2}, s{sRA}, 2")
                    k.e(f"s_add_u32 s{sT}, s{sT}, s{sT2}")
                    k.e(f"s_lshl_b32 s{sT2}, s{sHead}, 6")
                    k.e(f"s_add_u32 s{sT}, s{sT}, s{sT2}")
                    k.e(f"s_lshl_b32 s{sTq[1]}, s{sT}, 11")
                    k.e(f"s_add_u32 s{sTq[1]}, s{sTq[1]}, {Q_OFF['B']}")
                t = k.vm(f"buffer_load_dwordx4 v[{vQ+8*d+4*j}:{vQ+8*d+4*j+3}], v{vSt}, {WS}, s{sTq[1]} offen offset:{1024*j} sc1")
                if j == 1: qtok[d] = t
            return g_
        return [f(0), f(1)]
    WOB_L, WOA_L = 0, 57344
    def wo_items(srdn, lbase):
        def one(j):
            def f():
                if j == 0:
                    k.e(f"s_lshl_b32 s{sMk}, s{sCT}, 7")
                    k.e(f"s_mul_i32 s{sMk+1}, s{sW}, {112*896}")
                    k.e(f"s_add_u32 s{sMk}, s{sMk}, s{sMk+1}")
                    k.e(f"s_mul_i32 s{sMk+1}, s{sW}, {112*128}")
                    k.e(f"s_add_u32 s{sMk+1}, s{sMk+1}, {lbase}")
                k.e(f"s_add_u32 m0, s{sMk+1}, {1024*j}")
                k.e(f"s_add_u32 s{sMk+4}, s{sMk}, {8*896*j}")
                return k.vm(f"buffer_load_dwordx4 v{vWoD}, s[{srdn}:{srdn+3}], s{sMk+4} offen lds")
            return f
        return [one(j) for j in range(14)]
    tp = poll4_issue(k, vFlB, vPR0, 0xff)
    poll4_finish(k, tp, vFlB, vPR0, vPR1, vPT, 0xff, "pb")
    stamp(k, "P1 flags")
    t0i = tile_items(0)
    for f in q_items(1) + t0i[:2] + q_items(2) + t0i[2:] + q_items(3) + q_items(0): f()
    vOA = 224; vEdge = 192
    kt = {}; vt = {}; st = {}
    def bop(i, d):
        return dict(K=(ar(16*i, 4), ar(16*i+4, 4)), V=(ar(16*i+8, 4), ar(16*i+12, 4)),
                    Q=(vr(vQ+8*d, 4), vr(vQ+8*d+4, 4)), O=vr(vOd(d), 16), C="0", first=(i == 0),
                    wK=(lambda i=i, d=d: max(ktok[i], qtok[d])), wV=(lambda i=i: vtok[i]))
    def aslot(j): return j % 3
    lk = {}; lv = {}
    def aop(j):
        a = aslot(j)
        C = vr(vEdge, 16) if j == 0 else vr(vDiag, 16) if j == 8 else "0"
        return dict(K=(ar(16*a, 4), ar(16*a+4, 4)), V=(ar(16*a+8, 4), ar(16*a+12, 4)), Q=(vr(vQA, 4), vr(vQA+4, 4)),
                    O=vr(vOA, 16), C=C, first=(j == 0), lK=(lambda j=j: lk[j]), lV=(lambda j=j: lv[j]))
    A0 = 12
    NT1 = A0 // 4
    ops = [bop(i, d) for i in range(NT1) for d in (1, 2, 3, 0)] + [aop(j) for j in range(9)] + [bop(i, d) for i in range(NT1, 16) for d in (1, 2, 3, 0)]
    N = len(ops)
    vKVr = 191
    def rdKa(j):
        a = aslot(j)
        k.lg(f"ds_read_b128 a[{16*a}:{16*a+3}], v{vKVr} offset:{j*4096}")
        lk[j] = k.lg(f"ds_read_b128 a[{16*a+4}:{16*a+7}], v{vKVr} offset:{j*4096+1024}")
    def rdVa(j):
        a = aslot(j)
        k.lg(f"ds_read_b128 a[{16*a+8}:{16*a+11}], v{vKVr} offset:{j*4096+2048}")
        lv[j] = k.lg(f"ds_read_b128 a[{16*a+12}:{16*a+15}], v{vKVr} offset:{j*4096+3072}")
    def a_dma_items():
        def f(i, q):
            def g_():
                if q == 0:
                    k.e(f"s_mul_i32 s{sT}, s{sW}, 3")
                    k.e(f"s_lshl_b32 s{sT2}, s{sRA}, 2")
                    k.e(f"s_add_u32 s{sT}, s{sT}, s{sT2}")
                    k.e(f"s_add_i32 s{sT2}, s{sT}, {i-8}")
                    k.e(f"s_lshl_b32 s{sTq[2]}, s{sT2}, 12")
                    k.e(f"s_add_u32 s{sTq[2]}, s{sTq[2]}, s{sKV}")
                    k.e(f"s_cmp_lt_i32 s{sT2}, 0")
                    k.e(f"s_cselect_b32 s{sTq[2]}, {WS_BYTES}, s{sTq[2]}")
                k.e(f"s_mul_i32 s{sT}, s{sW}, {3*4096}")
                k.e(f"s_add_u32 m0, s{sT}, {SCR + i*4096}")
                k.e("s_nop 0")
                st["ad"] = k.vm(f"buffer_load_dwordx4 v{vSt}, {WS}, s{sTq[2]} offen offset:{1024*q} sc1 lds")
            return g_
        return [f(i, q) for i in range(3) for q in range(4)]
    strB = []
    for i in range(1, 16):
        use = 4 * i if i < NT1 else 4 * i + 9
        for q, f in enumerate(tile_items(i)): strB.append((max(use - 8 + q, -1), f))
    strA = [(0, f) for f in a_dma_items()]
    strW = [(10 + j, f) for j, f in enumerate(wo_items(SRD_WOA, WOA_L))] + [(26 + j, f) for j, f in enumerate(wo_items(SRD_WOB, WOB_L))]
    strO = []
    at = {}
    vR1, vR2, vR3 = 189, 190, 191
    def red_addr():
        for d, vv in ((1, vR1), (2, vR2), (3, vR3)):
            k.e(f"s_add_u32 s{sT}, s{sW}, {d}")
            k.e(f"s_and_b32 s{sT}, s{sT}, 3")
            k.e(f"s_mul_i32 s{sT}, s{sT}, {3*4096}")
            k.e(f"s_add_u32 s{sT}, s{sT}, {SCR + (d-1)*4096}")
            k.e(f"v_add_u32 v{vv}, s{sT}, v{vSt}")
        k.e(f"s_mul_i32 s{sT}, s{sW}, {3*4096}")
        k.e(f"s_add_u32 s{sT}, s{sT}, {SCR}")
        k.e(f"v_add_u32 v{vRedR}, s{sT}, v{vSt}")
    def red_write(d, i):
        vv = {1: vR1, 2: vR2, 3: vR3}[d]
        k.lg(f"ds_write_b128 v{vv}, v[{vOd(d)+4*i}:{vOd(d)+4*i+3}] offset:{1024*i}")
    def o_flag_offsets():
        k.e(f"s_lshl_b32 s{sFOA}, s{sTTA}, 2")
        k.e(f"s_lshr_b32 s{sT}, s{sHead}, 2")
        k.e(f"s_add_u32 s{sFOA}, s{sFOA}, s{sT}")
        k.e(f"s_lshl_b32 s{sFOA}, s{sFOA}, 7")
        k.e(f"s_and_b32 s{sT}, s{sHead}, 3")
        k.e(f"s_lshl_b32 s{sT}, s{sT}, 2")
        k.e(f"s_add_u32 s{sFOA}, s{sFOA}, s{sT}")
        k.e(f"s_add_u32 s{sFOB}, s{sFOA}, {FO_OFF}")
        k.e(f"s_add_u32 s{sFOA}, s{sFOA}, {FO_OFF + 64*4*128}")
    def oa_items():
        def f(step):
            def g_():
                if step == 0:
                    k.e(f"s_lshl_b32 s{sT}, s{sP3T}, 1")
                    k.e(f"s_lshr_b32 s{sT2}, s{sW}, 1")
                    k.e(f"s_add_u32 s{sTT}, s{sT}, s{sT2}")
                    k.e(f"s_lshl_b32 s{sKV}, s{sTT}, 15")
                    k.e(f"s_add_u32 s{sKV}, s{sKV}, {O_OFF['A']}")
                if step % 4 == 0: k.e(f"s_add_u32 s{sTq[2]}, s{sKV}, {1024*step}")
                at[step] = k.vm(f"buffer_load_dwordx4 a[{4*step}:{4*step+3}], v{vSt}, {WS}, s{sTq[2]} offen offset:{1024*(step%4)} sc1")
            return g_
        return [f(step) for step in range(32)]
    SL = eval(os.environ.get("SLOTS", "()"))
    def hookB(n, g):
        if g == 0 and n in SL: stamp(k, f"slot{n}")
        if g == 0 and strB and strB[0][0] <= n: strB.pop(0)[1]()
        if n < 0:
            if g == 1:
                k.e(f"s_lshl_b32 s{sKV}, s{sHead}, 18")
                k.e(f"s_add_u32 s{sKV}, s{sKV}, {KV_OFF['A']}")
                k.e(f"s_lshl_b32 s{sT2}, s{sHead}, 6")
                k.e(f"s_add_u32 s{sT2}, s{sT2}, s{sTTA}")
                k.e(f"s_lshl_b32 s{sQo}, s{sT2}, 11")
                k.e(f"s_add_u32 s{sQo}, s{sQo}, {Q_OFF['A']}")
                k.vm(f"buffer_load_dwordx4 v[{vQA}:{vQA+3}], v{vSt}, {WS}, s{sQo} offen sc1")
                st["qa"] = k.vm(f"buffer_load_dwordx4 v[{vQA+4}:{vQA+7}], v{vSt}, {WS}, s{sQo} offen offset:1024 sc1")
            return
        if g == 3 and n < 6 and strB and strB[0][0] <= n: strB.pop(0)[1]()
        if g == 2:
            if strA and strA[0][0] <= n: strA.pop(0)[1]()
            elif strW and strW[0][0] <= n: st["wo"] = strW.pop(0)[1]()
        if g == 1 and strA and strA[0][0] <= n: strA.pop(0)[1]()
        if g == 3 and n >= 45 and strO: strO.pop(0)()
        if g == 1 and n == 8:
            assert not strA
            k.wait(vm=max(st["ad"], st["qa"]))
            k.e("s_barrier")
            k.e(f"s_lshl_b32 s{sT}, s{sW}, 12")
            k.e(f"s_add_u32 s{sT}, s{sT}, {SCR}")
            k.e(f"v_add_u32 v{vKVr}, s{sT}, v{vSt}")
            k.e(f"v_mov_b32 v{vt1}, {f2u(NEGBIG):#x}")
            for i in range(16): k.e(f"v_sub_f32 v{vEdge+i}, v{vt1}, v{vDiag+i}")
        for j in range(9):
            if g == 3 and n == A0 + j - 3: rdKa(j)
            if g == 3 and n == A0 + j - 1: rdVa(j)
        if g == 1 and n == A0 + 11:
            finalize_o(k, vOA, vt0, vt1, vOf)
            k.e(f"s_lshl_b32 s{sT}, s{sTTA}, 4")
            k.e(f"s_add_u32 s{sT}, s{sT}, s{sHead}")
            k.e(f"s_lshl_b32 s{sOo}, s{sT}, 11")
            k.e(f"s_add_u32 s{sOo}, s{sOo}, {O_OFF['A']}")
            k.vm(f"buffer_store_dwordx4 v[{vOf}:{vOf+3}], v{vSt}, {WS}, s{sOo} offen sc1")
            st["oa"] = k.vm(f"buffer_store_dwordx4 v[{vOf+4}:{vOf+7}], v{vSt}, {WS}, s{sOo} offen offset:1024 sc1")
            o_flag_offsets()
        if g == 1 and n == A0 + 19:
            k.wait(vm=st["oa"])
            store_flag(k, vt0, vt1, sFOA)
            k.e(f"s_lshl_b32 s{sT}, s{sP3T}, 3")
            k.e(f"v_add_u32 v{vFlB}, s{sT}, v{vLane}")
            k.e(f"v_lshlrev_b32 v{vFlB}, 7, v{vFlB}")
            k.e(f"v_add_u32 v{vFlA}, {FO_OFF + 64*4*128}, v{vFlB}")
            k.e(f"v_add_u32 v{vFlB}, {FO_OFF}, v{vFlB}")
        if g == 1 and n == 40:
            st["pOA"] = poll4_issue(k, vFlA, vPR0, 0xff)
        if g == 1 and n == 44:
            poll4_finish(k, st["pOA"], vFlA, vPR0, vPR1, vPT, 0xff, "poA")
            strO.extend(oa_items())
        if g == 1 and n == N - 8:
            red_addr()
        if n == N - 1: red_write(1, g)
        if n == N and g < 2:
            red_write(2, 2 * g); red_write(2, 2 * g + 1)
    attn_pipeline(k, ops, vS, vP, hookB)
    assert not strB and not strA and not strW, (len(strB), len(strA), len(strW))
    stamp(k, "attn done")
    k.nop(8)
    for i in range(4): red_write(3, i)
    k.wait_all(vm=False)
    k.e("s_barrier")
    for j in range(3):
        for i in range(4):
            k.lg(f"ds_read_b128 v[{vTmp+16*j+4*i}:{vTmp+16*j+4*i+3}], v{vRedR} offset:{4096*j+1024*i}")
    for j in range(3):
        k.wait(lg=k.lg_n - 4 * (2 - j))
        for i in range(0, 16, 2):
            k.e(f"v_pk_add_f32 v[{vOd(0)+i}:{vOd(0)+i+1}], v[{vOd(0)+i}:{vOd(0)+i+1}], v[{vTmp+16*j+i}:{vTmp+16*j+i+1}]")
    finalize_o(k, vOd(0), vt0, vt1, vOf)
    k.e(f"s_lshl_b32 s{sT}, s{sTTA}, 4")
    k.e(f"s_add_u32 s{sT}, s{sT}, s{sHead}")
    k.e(f"s_lshl_b32 s{sOo}, s{sT}, 11")
    k.e(f"s_add_u32 s{sOo}, s{sOo}, {O_OFF['B']}")
    k.vm(f"buffer_store_dwordx4 v[{vOf}:{vOf+3}], v{vSt}, {WS}, s{sOo} offen sc1")
    ob = k.vm(f"buffer_store_dwordx4 v[{vOf+4}:{vOf+7}], v{vSt}, {WS}, s{sOo} offen offset:1024 sc1")
    stamp(k, "O(B) stored")
    def cleanup():
        vC = 100
        for i in range(6):
            k.vm(f"buffer_load_dwordx4 v[{vC+8*i}:{vC+8*i+3}], v{vSt}, {WS}, s{dsts[i]} offen sc1")
            t = k.vm(f"buffer_load_dwordx4 v[{vC+8*i+4}:{vC+8*i+7}], v{vSt}, {WS}, s{dsts[i]} offen offset:1024 sc1")
        return vC, t
    def cleanup_stores(vC, t):
        k.wait(vm=t)
        for i in range(6):
            k.vm(f"buffer_store_dwordx4 v[{vC+8*i}:{vC+8*i+3}], v{vSt}, {WS}, s{dsts[i]} offen sc1")
            k.vm(f"buffer_store_dwordx4 v[{vC+8*i+4}:{vC+8*i+7}], v{vSt}, {WS}, s{dsts[i]} offen offset:1024 sc1")
    Lp3 = k.newlabel("p3")
    k.e(f"s_cmp_lt_u32 s2, 224")
    k.e(f"s_cbranch_scc1 {Lp3}")
    k.e("s_waitcnt vmcnt(0)")
    k.e(f"v_mov_b32 v{vt0}, 0")
    k.e(f"v_mov_b32 v{vt1}, s{sNonce}")
    k.e(f"s_mov_b64 exec, 1")
    k.e(f"buffer_store_dword v{vt1}, v{vt0}, {WS}, s{sFOB} offen sc1")
    k.e(f"s_mov_b64 exec, -1")
    if 'wb' in DBG:
        Lw = k.newlabel("nowb")
        k.e(f"s_lshr_b32 s{sT}, s2, 3")
        k.e(f"s_lshl_b32 s{sT}, s{sT}, 2")
        k.e(f"s_add_u32 s{sT}, s{sT}, s{sW}")
        k.e(f"s_cmp_lg_u32 s{sT}, {28*4}")
        k.e(f"s_cbranch_scc1 {Lw}")
        k.e(f"s_waitcnt vmcnt(0)")
        k.e(f"buffer_wbl2 sc1")
        k.e(f"s_waitcnt vmcnt(0)")
        k.label(Lw)
    k.e(f"s_endpgm")
    k.label(Lp3)
    vWrB, vWrA, vWrBc, vWrAc, vOr, vOut = 16, 17, 18, 19, 189, 190
    k.e(f"v_mov_b32 v{vWrB}, v{vP3a}")
    k.e(f"v_add_u32 v{vWrA}, {WOA_L}, v{vP3a}")
    k.e(f"v_lshrrev_b32 v{vt0}, 5, v{vLane}")
    k.e(f"v_lshlrev_b32 v{vt0}, 9, v{vt0}")
    k.e(f"v_sub_u32 v{vWrBc}, v{vWrB}, v{vt0}")
    k.e(f"v_sub_u32 v{vWrAc}, v{vWrA}, v{vt0}")
    k.e(f"v_and_b32 v{vt0}, 31, v{vLane}")
    k.e(f"v_mul_u32_u24 v{vt0}, 1792, v{vt0}")
    k.e(f"v_lshrrev_b32 v{vt1}, 5, v{vLane}")
    k.e(f"v_lshl_add_u32 v{vOut}, v{vt1}, 4, v{vt0}")
    cnt = 0
    while strO:
        strO.pop(0)(); cnt += 1
        if cnt == 8:
            k.wait(vm=ob)
            store_flag(k, vt0, vt1, sFOB)
    if cnt < 8:
        k.wait(vm=ob)
        store_flag(k, vt0, vt1, sFOB)
    stamp(k, "flag O(B)")
    NB = 4
    vA3, vB3, vD3, vPk = 36, 52, 68, 84
    def rdA(step, vW, vWc):
        hd, kk = step // 2, step % 2
        par = step % NB
        row = 28 * hd + 16 * kk
        a2 = vWc if (hd == 15 and kk == 1) else vW
        k.lg(f"ds_read_b64_tr_b16 v[{vA3+4*par}:{vA3+4*par+1}], v{vW} offset:{row*128}")
        return k.lg(f"ds_read_b64_tr_b16 v[{vA3+4*par+2}:{vA3+4*par+3}], v{a2} offset:{(row+8)*128}")
    def out_store(b):
        k.nop(12)
        for i in range(8): k.e(f"v_cvt_pk_bf16_f32 v{vPk+i}, v{vD3+2*i}, v{vD3+2*i+1}")
        k.e(f"s_lshl_b32 s{sT2}, s{sCT}, 1")
        k.e(f"s_and_b32 s{sT}, s{sW}, 1")
        k.e(f"s_add_u32 s{sT2}, s{sT2}, s{sT}")
        k.e(f"v_permlane32_swap_b32 v{vPk}, v{vPk+2}")
        k.e(f"v_permlane32_swap_b32 v{vPk+1}, v{vPk+3}")
        k.e(f"v_permlane32_swap_b32 v{vPk+4}, v{vPk+6}")
        k.e(f"v_permlane32_swap_b32 v{vPk+5}, v{vPk+7}")
        k.e(f"s_mul_i32 s{sOo}, s{sTT}, {32*1792}")
        k.e(f"s_lshl_b32 s{sT}, s{sT2}, 6")
        k.e(f"s_add_u32 s{sOo}, s{sOo}, s{sT}")
        if b == "B": k.e(f"s_add_u32 s{sOo}, s{sOo}, 896")
        k.vm(f"buffer_store_dwordx4 v[{vPk}:{vPk+3}], v{vOut}, s[{SRD_OUT}:{SRD_OUT+3}], s{sOo} offen nt")
        k.vm(f"buffer_store_dwordx4 v[{vPk+4}:{vPk+7}], v{vOut}, s[{SRD_OUT}:{SRD_OUT+3}], s{sOo} offen offset:32 nt")
    k.c("---- P3 A  (wo(A) was waited for long ago by later counted waits; make it explicit)")
    k.wait(vm=st["wo"])
    k.e("s_barrier")
    toks = {}
    for s_ in range(NB - 1): toks[s_] = rdA(s_, vWrA, vWrAc)
    for step in range(32):
        k.wait(vm=at[step], lg=toks[step])
        par = step % NB
        mfma(k, vr(vD3, 16), vr(vA3 + 4 * par, 4), ar(4 * step, 4), "0" if step == 0 else vr(vD3, 16))
        if step + NB - 1 < 32: toks[step + NB - 1] = rdA(step + NB - 1, vWrA, vWrAc)
    if 'clean' in DBG: vC, tC = cleanup()
    tpB = poll4_issue(k, vFlB, vPR0, 0xff)
    out_store("A")
    stamp(k, "P3A done")
    k.e("s_barrier")
    poll4_finish(k, tpB, vFlB, vPR0, vPR1, vPT, 0xff, "poB")
    stamp(k, "P3B flags")
    k.e(f"s_lshl_b32 s{sOo}, s{sP3T}, 16")
    k.e(f"s_add_u32 s{sOo}, s{sOo}, {O_OFF['B']}")
    k.e(f"s_lshl_b32 s{sT}, s{sW}, 14")
    k.e(f"s_add_u32 s{sOo}, s{sOo}, s{sT}")
    k.e(f"s_add_u32 s{sT2}, s{sT}, {WOA_L}")
    for j in range(16):
        if j % 4 == 0:
            k.e(f"s_add_u32 m0, s{sT2}, {1024*j}")
            k.e(f"s_add_u32 s{sT}, s{sOo}, {1024*j}")
        k.vm(f"buffer_load_dwordx4 v{vSt}, {WS}, s{sT} offen offset:{1024*(j%4)} sc1 lds")
    otB = k.vm_n
    if 'clean' in DBG: cleanup_stores(vC, tC)
    k.e(f"s_lshr_b32 s{sT}, s{sW}, 1")
    k.e(f"s_lshl_b32 s{sT}, s{sT}, 15")
    k.e(f"s_add_u32 s{sT}, s{sT}, {WOA_L}")
    k.e(f"v_add_u32 v{vOr}, s{sT}, v{vSt}")
    toks = {}
    for s_ in range(NB - 1): toks[s_] = rdA(s_, vWrB, vWrBc)
    k.wait(vm=otB)
    k.e("s_barrier")
    stamp(k, "P3B data")
    tb = {}
    def rdB(step):
        par = step % NB
        return k.lg(f"ds_read_b128 v[{vB3+4*par}:{vB3+4*par+3}], v{vOr} offset:{step*1024}")
    for s_ in range(NB - 1): tb[s_] = rdB(s_)
    for step in range(32):
        k.wait(lg=max(toks[step], tb[step]))
        par = step % NB
        mfma(k, vr(vD3, 16), vr(vA3 + 4 * par, 4), vr(vB3 + 4 * par, 4), "0" if step == 0 else vr(vD3, 16))
        if step + NB - 1 < 32:
            toks[step + NB - 1] = rdA(step + NB - 1, vWrB, vWrBc)
            tb[step + NB - 1] = rdB(step + NB - 1)
    out_store("B")
    stamp(k, "P3B done")
    stamp(k, "rt", True)
    stamp_flush(k, vt0, vt1)
    k.label("L_end")
    k.e("s_endpgm")
    return k

HEADER = open("cdna_kernels/" + NAME + ".s.ref").read().split("; Override")[0]

def main(out):
    k = gen()
    pr = check(k.L, "fused")
    for p in pr: print(p)
    print("instrs", len(k.L), "stamps", St.n, St.names)
    s = HEADER
    s += "; @launch grid=(256,1,1) block=(256,1,1) lds=163840\n"
    s += '.amdgcn_target "amdgcn-amd-amdhsa--gfx950"\n.text\n'
    s += f".globl {KNAME}\n.p2align 8\n.type {KNAME},@function\n{KNAME}:\n" + k.text()
    s += f""".section .rodata,"a"
.p2align 6
.amdhsa_kernel {KNAME}
  .amdhsa_next_free_vgpr 512
  .amdhsa_next_free_sgpr 102
  .amdhsa_accum_offset 256
  .amdhsa_group_segment_fixed_size 0
  .amdhsa_kernarg_size 72
  .amdhsa_user_sgpr_count 2
  .amdhsa_user_sgpr_kernarg_segment_ptr 1
  .amdhsa_system_sgpr_workgroup_id_x 1
.end_amdhsa_kernel
"""
    open(out, "w").write(s)

if __name__ == "__main__":
    main(sys.argv[1] if len(sys.argv) > 1 else "f3.s")
```

```python
import sys, math, struct, os
sys.path.insert(0, "gen")
from asmlib import Emit, check

NAME = "concat_heads__sliding_block__softmax_full_mha__prompt"
KNAME = NAME + "_kernel"
def f2u(x): return struct.unpack("<I", struct.pack("<f", x))[0]

KV_OFF = {"B": 0, "A": 4 << 20}
O_OFF = {"B": 8 << 20, "A": 10 << 20}
Q_OFF = {"B": 12 << 20, "A": 14 << 20}
FP1_OFF = 16 << 20
FO_OFF = (16 << 20) + (256 << 10)
NONCE_OFF = (16 << 20) + (768 << 10)
CEN_OFF = (16 << 20) + (800 << 10)
STAMPS = 17 << 20
WS_BYTES = 18 << 20
X_BYTES = 2048 * 896
W_BYTES = 448 * 2688
WO_BYTES = 448 * 896
OUT_BYTES = 2048 * 1792
QSCALE = (28 ** -0.5) * math.log2(math.e)
MARGIN = 64.0
NEGBIG = -1.0e30
MAPB = os.environ.get('MAPB', '0') == '1'
STAMP = os.environ.get("STAMP", "0") in ("1", "2")
STAMPDBG = os.environ.get("STAMP", "0") == "2"
DBGWG = int(os.environ.get("DBGWG", "100"))
SKIP = set(os.environ.get("SKIP", "").split(","))
SPIN_MAX = 1 << 18
SCR = 114688

class V:
    def __init__(self, lo, hi): self.n = lo; self.hi = hi
    def a(self, cnt=1, al=1):
        self.n = (self.n + al - 1) // al * al
        r = self.n; self.n += cnt
        assert self.n <= self.hi, "out of regs"
        return r

def vr(b, n=1): return f"v{b}" if n == 1 else f"v[{b}:{b+n-1}]"
def ar(b, n=1): return f"a{b}" if n == 1 else f"a[{b}:{b+n-1}]"
def mfma(k, d, a, b, c): k.e(f"v_mfma_f32_32x32x16_bf16 {d}, {a}, {b}, {c}")

S_PTR = 4
SRD_XB, SRD_WB, SRD_WS, SRD_OUT, SRD_XA, SRD_WA = 24, 28, 32, 36, 40, 44
SRD_WO = 4
sWmask = 96
sW, sBeta, sU, sR, sT, sT2, sT3 = 48, 49, 50, 51, 52, 53, 54
sOff, sXbase, sWcol, sM0X, sM0W, sC, sXo, sWo, sWo2 = 55, 56, 57, 58, 59, 60, 61, 62, 63
sVmask = 64
sNonce = 66
sHead, sTT, sKV, sTo, sQo, sOo, sSpin = 67, 68, 69, 70, 71, 72, 73
sCT, sP3T = 74, 75
sEx = 76
sStampTmp = 78
sRA = 80
sUQ, sUK, sUV = 81, 82, 83
sFOA, sFOB, sKVB, sRot, sOffU, sTTA = 84, 85, 86, 87, 88, 89
sMk = 90
sD0 = 22
WS = f"s[{SRD_WS}:{SRD_WS+3}]"

def srd(k, s, lo, size):
    k.e(f"s_mov_b32 s{s}, s{lo}")
    k.e(f"s_and_b32 s{s+1}, s{lo+1}, 0xffff")
    k.e(f"s_mov_b32 s{s+2}, {size}")
    k.e(f"s_mov_b32 s{s+3}, 0x20000")

class St:
    n = 0; v = 15; names = []
def stamp(k, name="", rt=False):
    if not STAMP: return
    if STAMPDBG and (rt or name in SKIP): return
    i = St.n; St.n += 1; St.names.append(name)
    assert i < 32
    k.e(f"{'s_memrealtime' if rt else 's_memtime'} s[{sStampTmp}:{sStampTmp+1}]")
    k.wait_all(vm=False, lg=True)
    k.e(f"v_writelane_b32 v{St.v}, s{sStampTmp}, {i}")
def stamp_flush(k, vt0, vt1):
    if not STAMP: return
    if STAMPDBG:
        L = k.newlabel("sf")
        k.e(f"s_lshl_b32 s{sStampTmp}, s2, 2")
        k.e(f"s_add_u32 s{sStampTmp}, s{sStampTmp}, s{sW}")
        k.e(f"s_cmp_lg_u32 s{sStampTmp}, {DBGWG*4}")
        k.e(f"s_cbranch_scc1 {L}")
        k.e(f"v_readlane_b32 s{sStampTmp}, v{St.v}, 0")
        k.e(f"v_and_b32 v{vt0}, 63, v0")
        k.e(f"v_lshlrev_b32 v{vt0}, 2, v{vt0}")
        k.e(f"v_subrev_u32 v{vt1}, s{sStampTmp}, v{St.v}")
        k.e(f"s_mov_b64 exec, 0xfffe")
        k.e(f"global_store_dword v{vt0}, v{vt1}, s[18:19]")
        k.e(f"s_mov_b64 exec, -1")
        k.label(L)
        return
    k.e(f"v_lshrrev_b32 v{vt0}, 6, v0")
    k.e(f"s_lshl_b32 s{sStampTmp}, s2, 2")
    k.e(f"v_add_u32 v{vt0}, s{sStampTmp}, v{vt0}")
    k.e(f"v_lshlrev_b32 v{vt0}, 7, v{vt0}")
    k.e(f"v_and_b32 v{vt1}, 63, v0")
    k.e(f"v_lshl_add_u32 v{vt0}, v{vt1}, 2, v{vt0}")
    k.e(f"s_mov_b32 s{sStampTmp}, {STAMPS}")
    k.e(f"s_mov_b32 exec_hi, 0")
    k.vm(f"buffer_store_dword v{St.v}, v{vt0}, {WS}, s{sStampTmp} offen")
    k.e(f"s_mov_b64 exec, -1")

def build_masks(k, vDiag, vEdge, vLane, t0, t1):
    k.e(f"v_and_b32 v{t0}, 31, v{vLane}")
    k.e(f"v_lshrrev_b32 v{t1}, 5, v{vLane}")
    k.e(f"v_lshlrev_b32 v{t1}, 2, v{t1}")
    k.e(f"v_sub_u32 v{t0}, v{t0}, v{t1}")
    k.e(f"v_mov_b32 v{t1}, {f2u(NEGBIG):#x}")
    prs = [sMk, sMk + 2, sMk + 4]
    def cmp(i):
        b = 8 * (i // 4) + (i % 4); p = prs[i % 3]
        k.e(f"v_cmp_le_i32_e64 s[{p}:{p+1}], {b}, v{t0}")
    cmp(0); cmp(1)
    for i in range(16):
        if i + 2 < 16: cmp(i + 2)
        else: k.nop(1)
        p = prs[i % 3]
        k.e(f"v_cndmask_b32_e64 v{vDiag+i}, v{t1}, 0, s[{p}:{p+1}]")
        k.e(f"v_cndmask_b32_e64 v{vEdge+i}, 0, v{t1}, s[{p}:{p+1}]")

def colmax(k, vS, vm, vt):
    k.e(f"v_max3_f32 v{vm}, v{vS}, v{vS+1}, v{vS+2}")
    k.e(f"v_max3_f32 v{vt}, v{vS+3}, v{vS+4}, v{vS+5}")
    k.e(f"v_max3_f32 v{vm}, v{vm}, v{vS+6}, v{vS+7}")
    k.e(f"v_max3_f32 v{vt}, v{vt}, v{vS+8}, v{vS+9}")
    k.e(f"v_max3_f32 v{vm}, v{vm}, v{vS+10}, v{vS+11}")
    k.e(f"v_max3_f32 v{vt}, v{vt}, v{vS+12}, v{vS+13}")
    k.e(f"v_max3_f32 v{vm}, v{vm}, v{vS+14}, v{vS+15}")
    k.e(f"v_max_f32 v{vm}, v{vm}, v{vt}")
    k.e(f"v_mov_b32 v{vt}, v{vm}")
    k.nop(2)
    k.e(f"v_permlane32_swap_b32 v{vm}, v{vt}")
    k.e(f"v_max_f32 v{vm}, v{vm}, v{vt}")

def shift_dwords(k, vm, t0, t1, t2):
    k.e(f"v_and_b32 v{t0}, 0xffff0000, v{vm}")
    k.e(f"v_sub_f32 v{t1}, v{vm}, v{t0}")
    k.e(f"v_and_b32 v{t2}, 0xffff0000, v{t1}")
    k.e(f"v_sub_f32 v{t1}, v{t1}, v{t2}")
    k.e(f"v_lshrrev_b32 v{t0}, 16, v{t0}")
    k.e(f"v_or_b32 v{t0}, v{t0}, v{t2}")
    k.e(f"v_xor_b32 v{t0}, 0x80008000, v{t0}")
    k.e(f"v_lshrrev_b32 v{t1}, 16, v{t1}")
    k.e(f"v_xor_b32 v{t1}, 0x8000, v{t1}")

def poll_flags(k, vAddr, vTmp, mask64, name):
    L = k.newlabel(name); Ld = k.newlabel(name + "d")
    k.e(f"s_mov_b32 s{sSpin}, 0")
    k.e(f"s_mov_b32 exec_hi, {(mask64 >> 32) & 0xffffffff:#x}")
    k.e(f"s_mov_b32 exec_lo, {mask64 & 0xffffffff:#x}")
    k.label(L)
    k.e(f"buffer_load_dword v{vTmp}, v{vAddr}, {WS}, 0 offen sc1")
    k.e(f"s_add_u32 s{sSpin}, s{sSpin}, 1")
    k.e(f"s_waitcnt vmcnt(0)")
    k.e(f"v_cmp_ne_u32 vcc, s{sNonce}, v{vTmp}")
    k.e(f"s_cmp_gt_u32 s{sSpin}, {SPIN_MAX}")
    k.e(f"s_cbranch_scc1 {Ld}")
    k.e(f"s_cbranch_vccnz {L}")
    k.label(Ld)
    k.e(f"s_mov_b64 exec, -1")
    k.vm_done = k.vm_n

def store_flag(k, vZero, vVal, s_off):
    k.e(f"v_mov_b32 v{vZero}, 0")
    k.e(f"v_mov_b32 v{vVal}, s{sNonce}")
    k.e(f"s_mov_b64 exec, 1")
    t = k.vm(f"buffer_store_dword v{vVal}, v{vZero}, {WS}, s{s_off} offen sc1")
    k.e(f"s_mov_b64 exec, -1")
    return t

def attn_pipeline(k, ops, vS, vP, hook=None, post=None):
    N = len(ops)
    def val(x): return x() if callable(x) else x
    def qk(n, part):
        o = ops[n]; S = vr(vS + 16 * (n % 2), 16)
        if part == 0:
            k.wait(vm=val(o.get("wK")), lg=val(o.get("lK")))
            mfma(k, S, o["K"][0], o["Q"][0], o["C"])
        else:
            mfma(k, S, o["K"][1], o["Q"][1], S)
    def pv(n, part):
        o = ops[n]; P = vP + 8 * (n % 2)
        if part == 0:
            k.wait(vm=val(o.get("wV")), lg=val(o.get("lV")))
            mfma(k, o["O"], o["V"][0], vr(P, 4), "0" if o["first"] else o["O"])
        else:
            mfma(k, o["O"], o["V"][1], vr(P + 4, 4), o["O"])
    def expgrp(n, g):
        S = vS + 16 * (n % 2); P = vP + 8 * (n % 2)
        for i in range(4):
            k.e(f"v_exp_f32 v{S+4*g+i}, v{S+4*g+i}")
        k.e(f"v_cvt_pk_bf16_f32 v{P+2*g}, v{S+4*g}, v{S+4*g+1}")
        k.e(f"v_cvt_pk_bf16_f32 v{P+2*g+1}, v{S+4*g+2}, v{S+4*g+3}")
    for n in range(-1, N + 1):
        has_exp = 0 <= n < N
        for g in range(4):
            if g < 2 and n + 1 < N: qk(n + 1, g)
            if g >= 2 and 0 <= n - 1: pv(n - 1, g - 2)
            if hook: hook(n, g)
            if has_exp: expgrp(n, g)
            if post: post(n, g)
        if n == -1: k.nop(12)
        if n == N - 1: k.nop(2)

def finalize_o(k, vO, vt0, vt1, vOf):
    k.e(f"v_mov_b32 v{vt0}, v{vO+12}")
    k.e(f"v_mov_b32 v{vt1}, v{vO+12}")
    k.nop(2)
    k.e(f"v_permlane32_swap_b32 v{vt0}, v{vt1}")
    k.e(f"v_rcp_f32 v{vt1}, v{vt1}")
    k.nop(1)
    for i in range(16):
        k.e(f"v_mul_f32 v{vO+i}, v{vO+i}, v{vt1}")
    for i in range(8):
        k.e(f"v_cvt_pk_bf16_f32 v{vOf+i}, v{vO+2*i}, v{vO+2*i+1}")
    k.e("s_mov_b32 exec_lo, 0")
    k.e(f"v_mov_b32 v{vOf+6}, 0")
    k.e(f"v_mov_b32 v{vOf+7}, 0")
    k.e("s_mov_b32 exec_lo, -1")

def div6(k, dst, src, tmp):
    k.e(f"s_mul_i32 s{dst}, s{src}, 43")
    k.e(f"s_lshr_b32 s{dst}, s{dst}, 8")


def async_poll_issue(k, vAddr, vRes, mask64):
    k.e(f"s_mov_b32 exec_hi, {(mask64 >> 32) & 0xffffffff:#x}")
    k.e(f"s_mov_b32 exec_lo, {mask64 & 0xffffffff:#x}")
    t = k.vm(f"buffer_load_dword v{vRes}, v{vAddr}, {WS}, 0 offen sc1")
    k.e(f"s_mov_b64 exec, -1")
    return t

def async_poll_check(k, tok, vAddr, vRes, mask64, name):
    L = k.newlabel(name); Ld = k.newlabel(name + "d")
    k.wait(vm=tok)
    k.e(f"s_mov_b32 exec_hi, {(mask64 >> 32) & 0xffffffff:#x}")
    k.e(f"s_mov_b32 exec_lo, {mask64 & 0xffffffff:#x}")
    k.e(f"v_cmp_ne_u32 vcc, s{sNonce}, v{vRes}")
    k.e(f"s_mov_b32 s{sSpin}, 0")
    k.e(f"s_cbranch_vccz {Ld}")
    k.label(L)
    k.e(f"buffer_load_dword v{vRes}, v{vAddr}, {WS}, 0 offen sc1")
    k.e(f"s_add_u32 s{sSpin}, s{sSpin}, 1")
    k.e(f"s_waitcnt vmcnt(0)")
    k.e(f"v_cmp_ne_u32 vcc, s{sNonce}, v{vRes}")
    k.e(f"s_cmp_gt_u32 s{sSpin}, {SPIN_MAX}")
    k.e(f"s_cbranch_scc1 {Ld}")
    k.e(f"s_cbranch_vccnz {L}")
    k.label(Ld)
    k.e(f"s_mov_b64 exec, -1")

def chk4(k, vR, vT):
    k.e(f"v_xor_b32 v{vT}, s{sNonce}, v{vR}")
    k.e(f"v_xor_b32 v{vR+1}, s{sNonce}, v{vR+1}")
    k.e(f"v_xor_b32 v{vR+2}, s{sNonce}, v{vR+2}")
    k.e(f"v_xor_b32 v{vR+3}, s{sNonce}, v{vR+3}")
    k.e(f"v_or3_b32 v{vT}, v{vT}, v{vR+1}, v{vR+2}")
    k.e(f"v_or_b32 v{vT}, v{vT}, v{vR+3}")
    k.e(f"v_cmp_ne_u32 vcc, 0, v{vT}")

def poll4_issue(k, vAddr, vR, mask):
    k.e(f"s_mov_b64 exec, {mask:#x}")
    t = k.vm(f"buffer_load_dwordx4 v[{vR}:{vR+3}], v{vAddr}, {WS}, 0 offen sc1")
    k.e(f"s_mov_b64 exec, -1")
    return t

def poll4_finish(k, tok, vAddr, vR0, vR1, vT, mask, name):
    L = k.newlabel(name); Ld = k.newlabel(name + "d")
    k.wait(vm=tok)
    k.e(f"s_mov_b64 exec, {mask:#x}")
    chk4(k, vR0, vT)
    k.e(f"s_mov_b32 s{sSpin}, 0")
    k.e(f"s_cbranch_vccz {Ld}")
    k.e(f"buffer_load_dwordx4 v[{vR0}:{vR0+3}], v{vAddr}, {WS}, 0 offen sc1")
    k.label(L)
    k.e(f"buffer_load_dwordx4 v[{vR1}:{vR1+3}], v{vAddr}, {WS}, 0 offen sc1")
    k.e(f"s_waitcnt vmcnt(1)")
    chk4(k, vR0, vT)
    k.e(f"s_add_u32 s{sSpin}, s{sSpin}, 1")
    k.e(f"s_cbranch_vccz {Ld}")
    k.e(f"buffer_load_dwordx4 v[{vR0}:{vR0+3}], v{vAddr}, {WS}, 0 offen sc1")
    k.e(f"s_waitcnt vmcnt(1)")
    chk4(k, vR1, vT)
    k.e(f"s_cmp_gt_u32 s{sSpin}, {SPIN_MAX}")
    k.e(f"s_cbranch_scc1 {Ld}")
    k.e(f"s_cbranch_vccnz {L}")
    k.label(Ld)
    k.e(f"s_mov_b64 exec, -1")

def div3(k, dst, src):
    k.e(f"s_mul_i32 s{dst}, s{src}, 43")
    k.e(f"s_lshr_b32 s{dst}, s{dst}, 7")


BARS = eval(os.environ.get('BARS', '(0, 1, 6)'))
DBG = os.environ.get('DBG', '')
sXcc, sFast = 100, 95

def gen():
    k = Emit()
    St.n = 0; St.names = []
    k.e("s_cmp_ge_u32 s2, 256")
    k.e("s_cbranch_scc1 L_end")
    k.e(f"s_load_dwordx16 s[{S_PTR}:{S_PTR+15}], s[0:1], 0")
    k.e(f"s_load_dwordx2 s[20:21], s[0:1], 64")
    G = V(1, 15)
    vLane = G.a(); vSt = G.a(); vt0 = G.a(); vt1 = G.a(); vt2 = G.a(); vt3 = G.a(); vWoD = G.a()
    vFlB = G.a(); vFlA = G.a(); vVpad = G.a(); vCen = G.a(); vP3a = G.a()
    SRD_X, SRD_W = SRD_XB, SRD_WB
    stamp(k, "start"); stamp(k, "rt", True)
    k.e(f"v_and_b32 v{vLane}, 63, v0")
    k.e(f"v_lshrrev_b32 v{vt0}, 6, v0")
    k.e(f"s_and_b32 s{sU}, s2, 7")
    k.e(f"v_readfirstlane_b32 s{sW}, v{vt0}")
    k.e(f"s_lshr_b32 s{sT2}, s2, 3")
    k.e(f"s_and_b32 s{sBeta}, s{sT2}, 1")
    k.e(f"s_lshr_b32 s{sR}, s{sT2}, 1")
    k.e(f"s_mul_i32 s{sOff}, s{sR}, 37")
    k.e(f"s_lshr_b32 s{sOff}, s{sOff}, 8")
    k.e(f"s_mul_i32 s{sOff}, s{sOff}, 7")
    k.e(f"s_sub_u32 s{sOff}, s{sR}, s{sOff}")
    k.e(f"s_mul_i32 s{sXbase}, s{sR}, {128*896}")
    k.e(f"s_mul_i32 s{sWcol}, s{sU}, 112")
    R = V(16, 256)
    vXo = R.a(4); vWo = R.a(2); vXr = R.a(4); vWr = R.a(4)
    vXf = R.a(8, 4); vWf = R.a(48, 4)
    acc = {(hh, nm): R.a(16, 4) for hh in range(2) for nm in "QKV"}
    vF = R.a(48, 4)
    vS1 = vWf
    vDiag = 240
    assert R.n <= 240, R.n
    XSLOT = 16640; WSLOT = 24576; WBASE = 3 * XSLOT
    k.e(f"v_lshrrev_b32 v{vt0}, 3, v{vLane}")
    k.e(f"v_bfe_u32 v{vt1}, v{vLane}, 4, 1")
    k.e(f"v_lshlrev_b32 v{vt1}, 2, v{vt1}")
    k.e(f"v_and_b32 v{vt2}, 7, v{vLane}")
    k.e(f"v_xor_b32 v{vt1}, v{vt1}, v{vt2}")
    k.e(f"v_lshrrev_b32 v{vt2}, 6, v0")
    k.e(f"v_lshl_add_u32 v{vt3}, v{vt2}, 5, v{vt0}")
    k.e(f"v_mul_u32_u24 v{vt3}, 896, v{vt3}")
    k.e(f"v_lshl_add_u32 v{vXo}, v{vt1}, 4, v{vt3}")
    for j in range(1, 4):
        k.e(f"v_add_u32 v{vXo+j}, {j*(8*896-1040)}, v{vXo}")
    k.e(f"v_lshl_add_u32 v{vt3}, v{vt2}, 4, v{vt0}")
    k.e(f"v_mul_u32_u24 v{vt3}, 2688, v{vt3}")
    k.e(f"v_lshl_add_u32 v{vWo}, v{vt1}, 4, v{vt3}")
    k.e(f"v_add_u32 v{vWo+1}, {8*2688-1024}, v{vWo}")
    k.e(f"s_mul_i32 s{sM0X}, s{sW}, 4160")
    k.e(f"s_mul_i32 s{sM0W}, s{sW}, 6144")
    k.e(f"s_add_u32 s{sM0W}, s{sM0W}, {WBASE}")
    k.e(f"s_getreg_b32 s{sXcc}, hwreg(HW_REG_XCC_ID)")
    k.e("s_waitcnt lgkmcnt(0)")
    k.e(f"s_cmp_eq_u32 s{sBeta}, 1")
    k.e(f"s_cselect_b32 s{SRD_X}, s4, s10")
    k.e(f"s_cselect_b32 s{SRD_X+1}, s5, s11")
    k.e(f"s_cselect_b32 s{SRD_W}, s6, s12")
    k.e(f"s_cselect_b32 s{SRD_W+1}, s7, s13")
    k.e(f"s_and_b32 s{SRD_X+1}, s{SRD_X+1}, 0xffff")
    k.e(f"s_and_b32 s{SRD_W+1}, s{SRD_W+1}, 0xffff")
    k.e(f"s_mov_b32 s{SRD_X+2}, {X_BYTES}")
    k.e(f"s_mov_b32 s{SRD_X+3}, 0x20000")
    k.e(f"s_mov_b32 s{SRD_W+2}, {W_BYTES}")
    k.e(f"s_mov_b32 s{SRD_W+3}, 0x20000")
    X = f"s[{SRD_X}:{SRD_X+3}]"; W = f"s[{SRD_W}:{SRD_W+3}]"
    dma_tok = {}
    def dma_list(g):
        slot = g % 3
        L = []
        def head():
            k.e(f"s_add_u32 s{sC}, s{sOff}, {g}")
            k.e(f"s_sub_u32 s{sT}, s{sC}, 7")
            k.e(f"s_min_u32 s{sC}, s{sC}, s{sT}")
            k.e(f"s_lshl_b32 s{sXo}, s{sC}, 7")
            k.e(f"s_add_u32 s{sXo}, s{sXo}, s{sXbase}")
            k.e(f"s_mul_i32 s{sWo}, s{sC}, {64*2688}")
            k.e(f"s_add_u32 s{sWo}, s{sWo}, s{sWcol}")
            k.e(f"s_add_u32 m0, s{sM0X}, {slot*XSLOT}")
            k.e("s_nop 0")
        def xj(j):
            def f():
                if j == 0: head()
                k.vm(f"buffer_load_dwordx4 v{vXo+j}, {X}, s{sXo} offen offset:{1040*j} lds")
            return f
        def wi(sec, half):
            def f():
                if half == 0:
                    k.e(f"s_add_u32 m0, s{sM0W}, {slot*WSLOT + sec*2048}")
                    k.e(f"s_add_u32 s{sWo2}, s{sWo}, {sec*896}")
                t = k.vm(f"buffer_load_dwordx4 v{vWo+half}, {W}, s{sWo2} offen offset:{1024*half} lds")
                if sec == 2 and half == 1: dma_tok[g] = t
            return f
        for j in range(4): L.append(xj(j))
        for sec in range(3):
            for half in range(2): L.append(wi(sec, half))
        return L
    stamp(k, "pre-dma")
    for f in dma_list(0): f()
    stamp(k, "dma0 issued")
    srd(k, SRD_WS, 20, WS_BYTES); srd(k, SRD_OUT, 16, OUT_BYTES)
    srd(k, SRD_XA, 14, WO_BYTES); srd(k, SRD_WA, 8, WO_BYTES)
    SRD_WOB, SRD_WOA = SRD_XA, SRD_WA
    k.e(f"v_lshlrev_b32 v{vSt}, 4, v{vLane}")
    Lnn = k.newlabel("nonce")
    k.e(f"s_or_b32 s{sT}, s2, s{sW}")
    k.e(f"s_cmp_lg_u32 s{sT}, 0")
    k.e(f"s_cbranch_scc1 {Lnn}")
    k.e(f"s_mov_b32 s{sT}, {NONCE_OFF}")
    k.e(f"v_mov_b32 v{vt0}, 0")
    k.e(f"buffer_load_dword v{vt1}, v{vt0}, {WS}, s{sT} offen sc1")
    k.e(f"s_waitcnt vmcnt(0)")
    k.e(f"v_add_u32 v{vt1}, 1, v{vt1}")
    k.e(f"v_max_u32 v{vt1}, 1, v{vt1}")
    k.e(f"s_mov_b64 exec, 1")
    k.e(f"global_store_dword v{vt0}, v{vt1}, s[18:19] sc1")
    k.e(f"buffer_store_dword v{vt1}, v{vt0}, {WS}, s{sT} offen sc1")
    k.e(f"s_mov_b64 exec, -1")
    k.label(Lnn)
    k.e(f"s_lshr_b32 s{sT2}, s2, 3")
    k.e(f"s_lshl_b32 s{sHead}, s{sU}, 1")
    k.e(f"s_add_u32 s{sHead}, s{sHead}, s{sBeta}")
    k.e(f"s_mov_b32 s{sRA}, s{sR}")
    k.e(f"s_mul_i32 s{sT3}, s{sT2}, 37")
    k.e(f"s_lshr_b32 s{sT3}, s{sT3}, 8")
    k.e(f"s_min_u32 s{sC}, s{sT3}, 3")
    k.e(f"s_lshl_b32 s{sP3T}, s{sU}, 2")
    k.e(f"s_add_u32 s{sP3T}, s{sP3T}, s{sC}")
    k.e(f"s_mul_i32 s{sT3}, s{sT3}, 7")
    k.e(f"s_sub_u32 s{sCT}, s{sT2}, s{sT3}")
    k.e(f"s_lshl_b32 s{sTT}, s{sR}, 2")
    k.e(f"s_add_u32 s{sTT}, s{sTT}, s{sW}")
    k.e(f"s_mov_b32 s{sTTA}, s{sTT}")
    dsts = [0, 1, 3, 22, 23, 101]
    for hh in range(2):
        k.e(f"s_lshl_b32 s{sT}, s{sU}, 1")
        k.e(f"s_add_u32 s{sT}, s{sT}, {hh}")
        k.e(f"s_lshl_b32 s{sT}, s{sT}, 6")
        k.e(f"s_add_u32 s{sT}, s{sT}, s{sTT}")
        k.e(f"s_lshl_b32 s{sT3}, s{sT}, 12")
        k.e(f"s_lshl_b32 s{sC}, s{sBeta}, 22")
        k.e(f"s_add_u32 s{dsts[3*hh]}, s{sT3}, s{sC}")
        k.e(f"s_add_u32 s{dsts[3*hh+1]}, s{dsts[3*hh]}, 2048")
        k.e(f"s_lshl_b32 s{sT3}, s{sT}, 11")
        k.e(f"s_lshl_b32 s{sC}, s{sBeta}, 21")
        k.e(f"s_add_u32 s{sT3}, s{sT3}, s{sC}")
        k.e(f"s_add_u32 s{dsts[3*hh+2]}, s{sT3}, {Q_OFF['B']}")
    k.e(f"v_and_b32 v{vt0}, 31, v{vLane}")
    k.e(f"v_lshrrev_b32 v{vt1}, 3, v{vt0}")
    k.e(f"v_mul_u32_u24 v{vt1}, 1040, v{vt1}")
    k.e(f"v_and_b32 v{vt2}, 7, v{vt0}")
    k.e(f"v_lshl_add_u32 v{vt1}, v{vt2}, 7, v{vt1}")
    k.e(f"v_add_u32 v{vt1}, s{sM0X}, v{vt1}")
    k.e(f"v_bfe_u32 v{vt2}, v{vLane}, 1, 1")
    k.e(f"v_lshlrev_b32 v{vt2}, 6, v{vt2}")
    k.e(f"v_lshrrev_b32 v{vt3}, 5, v{vLane}")
    k.e(f"v_lshlrev_b32 v{vt3}, 4, v{vt3}")
    k.e(f"v_add_u32 v{vt1}, v{vt1}, v{vt3}")
    for ks in range(4):
        k.e(f"v_xor_b32 v{vXr+ks}, {(ks >> 1) * 64}, v{vt2}")
        k.e(f"v_add_u32 v{vXr+ks}, {((2*ks) & 3) * 16}, v{vXr+ks}")
        k.e(f"v_add_u32 v{vXr+ks}, v{vXr+ks}, v{vt1}")
    k.e(f"v_lshrrev_b32 v{vt0}, 5, v{vLane}")
    k.e(f"v_lshlrev_b32 v{vt0}, 3, v{vt0}")
    k.e(f"v_bfe_u32 v{vt1}, v{vLane}, 2, 2")
    k.e(f"v_add_u32 v{vt0}, v{vt0}, v{vt1}")
    k.e(f"v_lshlrev_b32 v{vt0}, 7, v{vt0}")
    k.e(f"v_bfe_u32 v{vt1}, v{vLane}, 4, 1")
    k.e(f"v_lshlrev_b32 v{vt1}, 5, v{vt1}")
    k.e(f"v_and_b32 v{vt2}, 3, v{vLane}")
    k.e(f"v_lshl_add_u32 v{vt1}, v{vt2}, 3, v{vt1}")
    k.e(f"v_bfe_u32 v{vt2}, v{vLane}, 3, 1")
    k.e(f"v_lshlrev_b32 v{vt2}, 6, v{vt2}")
    for hh in range(2):
        k.e(f"v_add_u32 v{vt3}, {56*hh}, v{vt1}")
        k.e(f"v_xor_b32 v{vt3}, v{vt3}, v{vt2}")
        k.e(f"v_add_u32 v{vt3}, v{vt3}, v{vt0}")
        k.e(f"v_add_u32 v{vWr+hh}, {WBASE}, v{vt3}")
        k.e(f"v_add_u32 v{vWr+2+hh}, {WBASE + 2*WSLOT}, v{vt3}")
    for f in dma_list(1)[:5]: f()
    k.e(f"v_and_b32 v{vt0}, 31, v{vLane}")
    k.e(f"v_cmp_eq_u32 vcc, 28, v{vt0}")
    k.e(f"v_mov_b32 v{vt1}, 0x3f803f80")
    k.e(f"v_cmp_le_u32_e64 s[{sVmask}:{sVmask+1}], 28, v{vt0}")
    k.e(f"v_cndmask_b32_e64 v{vVpad}, 0, v{vt1}, vcc")
    k.e(f"v_lshrrev_b32 v{vt0}, 3, v{vLane}")
    k.e(f"v_bfe_u32 v{vt1}, v{vLane}, 4, 1")
    k.e(f"v_lshlrev_b32 v{vt1}, 2, v{vt1}")
    k.e(f"v_and_b32 v{vt2}, 7, v{vLane}")
    k.e(f"v_xor_b32 v{vt1}, v{vt1}, v{vt2}")
    k.e(f"v_mul_u32_u24 v{vt0}, 896, v{vt0}")
    k.e(f"v_lshl_add_u32 v{vWoD}, v{vt1}, 4, v{vt0}")
    k.e(f"v_lshrrev_b32 v{vt0}, 5, v{vLane}")
    k.e(f"v_lshlrev_b32 v{vt0}, 2, v{vt0}")
    k.e(f"v_bfe_u32 v{vt1}, v{vLane}, 2, 2")
    k.e(f"v_add_u32 v{vt0}, v{vt0}, v{vt1}")
    k.e(f"v_lshlrev_b32 v{vt0}, 7, v{vt0}")
    k.e(f"s_and_b32 s{sT}, s{sW}, 1")
    k.e(f"s_lshl_b32 s{sT}, s{sT}, 6")
    k.e(f"v_bfe_u32 v{vt1}, v{vLane}, 4, 1")
    k.e(f"v_lshlrev_b32 v{vt1}, 5, v{vt1}")
    k.e(f"v_and_b32 v{vt2}, 3, v{vLane}")
    k.e(f"v_lshl_add_u32 v{vt1}, v{vt2}, 3, v{vt1}")
    k.e(f"v_add_u32 v{vt1}, s{sT}, v{vt1}")
    k.e(f"v_bfe_u32 v{vt2}, v{vLane}, 3, 1")
    k.e(f"v_lshlrev_b32 v{vt2}, 6, v{vt2}")
    k.e(f"v_xor_b32 v{vt1}, v{vt1}, v{vt2}")
    k.e(f"v_add_u32 v{vP3a}, v{vt0}, v{vt1}")
    k.e(f"s_lshl_b32 s{sT}, s{sW}, 2")
    k.e(f"v_add_u32 v{vt0}, s{sT}, v{vLane}")
    k.e(f"v_cmp_eq_u32 vcc, 4, v{vLane}")
    k.e(f"v_mov_b32 v{vt1}, s{sRA}")
    k.e(f"s_sub_u32 s{sT}, s{sRA}, 7")
    k.e(f"v_cndmask_b32 v{vt0}, v{vt0}, v{vt1}, vcc")
    k.e(f"v_add_u32 v{vt1}, s{sT}, v{vLane}")
    k.e(f"v_max_i32 v{vt1}, 0, v{vt1}")
    k.e(f"v_add_u32 v{vt1}, 128, v{vt1}")
    k.e(f"v_cmp_lt_u32 vcc, 4, v{vLane}")
    k.e(f"s_lshl_b32 s{sT}, s{sU}, 4")
    k.e(f"s_nop 0")
    k.e(f"v_cndmask_b32 v{vt0}, v{vt0}, v{vt1}, vcc")
    k.e(f"v_add_u32 v{vt0}, s{sT}, v{vt0}")
    k.e(f"v_lshlrev_b32 v{vFlB}, 7, v{vt0}")
    k.e(f"v_add_u32 v{vFlB}, {FP1_OFF}, v{vFlB}")
    k.e(f"v_lshrrev_b32 v{vt0}, 3, v{vLane}")
    k.e(f"s_lshl_b32 s{sT}, s{sU}, 2")
    k.e(f"v_add_u32 v{vt0}, s{sT}, v{vt0}")
    k.e(f"v_lshlrev_b32 v{vt0}, 7, v{vt0}")
    k.e(f"v_and_b32 v{vt1}, 7, v{vLane}")
    k.e(f"v_lshl_add_u32 v{vt0}, v{vt1}, 2, v{vt0}")
    k.e(f"v_add_u32 v{vCen}, {CEN_OFF}, v{vt0}")
    k.e(f"s_lshl_b32 s{sKVB}, s{sHead}, 18")
    k.e(f"s_lshl_b32 s{sT}, s{sW}, 16")
    k.e(f"s_add_u32 s{sKVB}, s{sKVB}, s{sT}")
    k.e(f"s_and_b32 s{sRot}, s{sRA}, 7")
    k.e(f"s_lshl_b32 s{sRot}, s{sRot}, 1")
    k.e(f"v_and_b32 v{vt0}, 31, v{vLane}")
    k.e(f"v_lshrrev_b32 v{vt1}, 5, v{vLane}")
    k.e(f"v_lshlrev_b32 v{vt1}, 2, v{vt1}")
    k.e(f"v_sub_u32 v{vt0}, v{vt0}, v{vt1}")
    k.e(f"v_mov_b32 v{vt1}, {f2u(NEGBIG):#x}")
    prs = [sMk, sMk + 2, sMk + 4]
    def cmpm(i):
        b = 8 * (i // 4) + (i % 4); p = prs[i % 3]
        k.e(f"v_cmp_le_i32_e64 s[{p}:{p+1}], {b}, v{vt0}")
    cmpm(0); cmpm(1)
    for i in range(16):
        if i + 2 < 16: cmpm(i + 2)
        else: k.nop(1)
        p = prs[i % 3]
        k.e(f"v_cndmask_b32_e64 v{vDiag+i}, v{vt1}, 0, s[{p}:{p+1}]")
    rest1 = None
    L1 = dma_list(1)
    for f in L1[5:]: f()

    def rd_list(g, ks):
        slot = g % 3; par = ks % 2
        L = [f"ds_read_b128 v[{vXf+4*par}:{vXf+4*par+3}], v{vXr+ks} offset:{slot*XSLOT}"]
        for hh in range(2):
            for sec in range(3):
                areg = vWr + hh + (2 if slot == 2 else 0)
                base = (slot % 2 if slot < 2 else 0) * WSLOT + ks * 6144 + sec * 2048
                d = vWf + 24 * par + 12 * hh + 4 * sec
                L.append(f"ds_read_b64_tr_b16 v[{d}:{d+1}], v{areg} offset:{base}")
                L.append(f"ds_read_b64_tr_b16 v[{d+2}:{d+3}], v{areg} offset:{base+512}")
        return L
    def mf_list(g, ks):
        first = (g == 0 and ks == 0); par = ks % 2
        xf = vr(vXf + 4 * par, 4)
        L = []
        for hh in range(2):
            for sec, nm in enumerate("QKV"):
                wf = vr(vWf + 24 * par + 12 * hh + 4 * sec, 4)
                d = vr(acc[(hh, nm)], 16); c = "0" if first else d
                L.append(f"v_mfma_f32_32x32x16_bf16 {d}, {xf}, {wf}, {c}" if nm == "V" else f"v_mfma_f32_32x32x16_bf16 {d}, {wf}, {xf}, {c}")
        return L
    def interleave(mf, rds, tok_need, extra):
        k.wait(lg=tok_need)
        t = None; ri = 0
        for i, m in enumerate(mf):
            k.e(m)
            n = (len(rds) - ri + (len(mf) - i) - 1) // (len(mf) - i)
            for _ in range(n):
                t = k.lg(rds[ri]); ri += 1
            if extra and i % 2 == 1: extra.pop(0)()
        return t
    pend = None; nonce_tok = None
    for g in range(7):
        k.c(f"---- chunk {g}")
        k.wait(vm=dma_tok[g])
        k.wait_all(vm=False, lg=True)
        k.e("s_barrier")
        if g in BARS: stamp(k, f"bar{g}")
        ex = dma_list(g + 2) if g + 2 < 7 else []
        r0 = rd_list(g, 0)
        if pend is None:
            for r_ in r0: tok = k.lg(r_)
            ex.pop(0)()
        else:
            tok = interleave(mf_list(*pend), r0, None, ex)
        if g == 2:
            k.e(f"v_mov_b32 v{vt0}, 0")
            k.e(f"global_load_dword v{vt3}, v{vt0}, s[18:19] sc1")
            k.vm_n += 1; nonce_tok = k.vm_n
        if g == 3:
            Ln = k.newlabel("n"); Lnd = k.newlabel("nd"); Lc = k.newlabel("cen")
            k.wait(vm=nonce_tok)
            k.e(f"v_readfirstlane_b32 s{sNonce}, v{vt3}")
            k.e(f"s_mov_b32 s{sSpin}, 0")
            k.e(f"s_cmp_lg_u32 s{sNonce}, 0")
            k.e(f"s_cbranch_scc1 {Lnd}")
            k.label(Ln)
            k.e(f"global_load_dword v{vt3}, v{vt0}, s[18:19] sc1")
            k.e(f"s_add_u32 s{sSpin}, s{sSpin}, 1")
            k.e(f"s_waitcnt vmcnt(0)")
            k.e(f"v_readfirstlane_b32 s{sNonce}, v{vt3}")
            k.e(f"s_cmp_gt_u32 s{sSpin}, {SPIN_MAX}")
            k.e(f"s_cbranch_scc1 {Lnd}")
            k.e(f"s_cmp_eq_u32 s{sNonce}, 0")
            k.e(f"s_cbranch_scc1 {Ln}")
            k.label(Lnd)
            k.e(f"s_add_u32 s{sT}, s{sXcc}, 1")
            k.e(f"s_lshl_b32 s{sT}, s{sT}, 24")
            k.e(f"s_add_u32 s{sFast}, s{sNonce}, s{sT}")
            k.e(f"s_lshr_b32 s{sT}, s2, 3")
            k.e(f"s_lshr_b32 s{sT2}, s{sT}, 3")
            k.e(f"s_lshl_b32 s{sT3}, s{sU}, 2")
            k.e(f"s_add_u32 s{sT2}, s{sT2}, s{sT3}")
            k.e(f"s_lshl_b32 s{sT2}, s{sT2}, 7")
            k.e(f"s_and_b32 s{sT}, s{sT}, 7")
            k.e(f"s_lshl_b32 s{sT}, s{sT}, 2")
            k.e(f"s_add_u32 s{sT2}, s{sT2}, s{sT}")
            k.e(f"s_add_u32 s{sT2}, s{sT2}, {CEN_OFF}")
            k.e(f"s_cmp_eq_u32 s{sW}, 0")
            k.e(f"s_cselect_b32 s{sT2}, s{sT2}, {WS_BYTES}")
            k.e(f"v_mov_b32 v{vt0}, 0")
            k.e(f"v_mov_b32 v{vt1}, s{sFast}")
            k.e(f"s_mov_b64 exec, 1")
            k.vm(f"buffer_store_dword v{vt1}, v{vt0}, {WS}, s{sT2} offen sc1")
            k.e(f"s_mov_b64 exec, -1")
        if g == 4:
            poll4_issue(k, vFlB, 232, 0xff)
        if g == 6:
            k.e(f"s_mov_b64 exec, 0xffffffff")
            cen_tok = k.vm(f"buffer_load_dword v{vt3}, v{vCen}, {WS}, 0 offen sc1")
            k.e(f"s_mov_b64 exec, -1")
        for ks in range(3):
            tok = interleave(mf_list(g, ks), rd_list(g, ks + 1), tok, ex)
        while ex: ex.pop(0)()
        pend = (g, 3)
        ptok = tok
    k.wait(lg=ptok)
    for m in mf_list(*pend): k.e(m)
    stamp(k, "mfma done")
    def F(hh, nm): return vF + 24 * hh + 8 * "KVQ".index(nm)
    sQs = sMk + 2
    k.e(f"s_mov_b32 s{sQs}, {f2u(QSCALE):#x}")
    k.nop(2)
    k.wait(vm=cen_tok)
    k.e(f"s_mov_b64 exec, 0xffffffff")
    k.e(f"v_cmp_ne_u32 vcc, s{sFast}, v{vt3}")
    k.e(f"s_mov_b64 exec, -1")
    k.e(f"s_cmp_eq_u64 vcc, 0")
    k.e(f"s_cselect_b32 s{sFast}, 1, 0")
    if 'slow' in DBG: k.e(f"s_mov_b32 s{sFast}, 0")
    if STAMP: k.e(f"v_writelane_b32 v{St.v}, s{sFast}, 31")
    for hh in range(2):
        aK, aQ = acc[(hh, "K")], acc[(hh, "Q")]
        fK, fQ = F(hh, "K"), F(hh, "Q")
        for j in range(8): k.e(f"v_cvt_pk_bf16_f32 v{fK+j}, v{aK+2*j}, v{aK+2*j+1}")
        for j in range(0, 16, 2):
            k.e(f"v_pk_mul_f32 v[{aQ+j}:{aQ+j+1}], v[{aQ+j}:{aQ+j+1}], s[{sQs}:{sQs+1}] op_sel_hi:[1,0]")
        for j in range(8): k.e(f"v_cvt_pk_bf16_f32 v{fQ+j}, v{aQ+2*j}, v{aQ+2*j+1}")
        k.e("s_mov_b32 exec_lo, 0")
        k.e(f"v_mov_b32 v{fK+6}, 0x3f803f80")
        k.e(f"v_mov_b32 v{fK+7}, 0x00003f80")
        k.e(f"v_mov_b32 v{fQ+6}, 0")
        k.e(f"v_mov_b32 v{fQ+7}, 0")
        k.e("s_mov_b32 exec_lo, -1")
    k.e(f"s_cmp_eq_u32 s{sBeta}, 1")
    k.e(f"s_cselect_b32 s{sT}, 1.0, 0")
    for i in range(0, 16, 2):
        k.e(f"v_pk_mul_f32 v[{vS1+i}:{vS1+i+1}], v[{vDiag+i}:{vDiag+i+1}], s[{sT}:{sT+1}] op_sel_hi:[1,0]")
    k.nop(2)
    for hh in range(2):
        S = acc[(hh, "K")]
        mfma(k, vr(S, 16), vr(F(hh, "K"), 4), vr(F(hh, "Q"), 4), vr(vS1, 16))
        mfma(k, vr(S, 16), vr(F(hh, "K") + 4, 4), vr(F(hh, "Q") + 4, 4), vr(S, 16))
    for hh in range(2):
        aV = acc[(hh, "V")]; fV = F(hh, "V")
        for j in range(8): k.e(f"v_cvt_pk_bf16_f32 v{fV+j}, v{aV+2*j}, v{aV+2*j+1}")
        for j in range(8): k.e(f"v_cndmask_b32_e64 v{fV+j}, v{fV+j}, v{vVpad}, s[{sVmask}:{sVmask+1}]")
    for hh in range(2):
        S = acc[(hh, "K")]; fQ = F(hh, "Q")
        colmax(k, S, vt3, vt0)
        k.e(f"v_add_f32 v{vt3}, {f2u(MARGIN):#x}, v{vt3}")
        shift_dwords(k, vt3, vt0, vt1, vt2)
        k.e("s_mov_b32 exec_lo, 0")
        k.e(f"v_mov_b32 v{fQ+6}, v{vt0}")
        k.e(f"v_mov_b32 v{fQ+7}, v{vt1}")
        k.e("s_mov_b32 exec_lo, -1")
    stamp(k, "epilogue")
    k.e(f"s_lshl_b32 s{sT}, s{sBeta}, 3")
    k.e(f"s_add_u32 s{sT}, s{sT}, s{sU}")
    k.e(f"s_lshl_b32 s{sT}, s{sT}, 4")
    k.e(f"s_add_u32 s{sT}, s{sT}, s{sR}")
    k.e(f"s_lshl_b32 s{sT}, s{sT}, 7")
    k.e(f"s_lshl_b32 s{sT2}, s{sW}, 2")
    k.e(f"s_add_u32 s{sT}, s{sT}, s{sT2}")
    k.e(f"s_add_u32 s{sFOB}, s{sT}, {FP1_OFF}")
    Lslow = k.newlabel("slow"); Lst = k.newlabel("stored")
    k.e(f"s_cmp_eq_u32 s{sFast}, 0")
    k.e(f"s_cbranch_scc1 {Lslow}")
    def qkv_stores(flag):
        for hh in range(2):
            for nm in "KVQ":
                f = F(hh, nm); d = dsts[3 * hh + "KVQ".index(nm)]
                k.e(f"buffer_store_dwordx4 v[{f}:{f+3}], v{vSt}, {WS}, s{d} offen {flag}")
                k.e(f"buffer_store_dwordx4 v[{f+4}:{f+7}], v{vSt}, {WS}, s{d} offen offset:1024 {flag}")
        k.e(f"v_mov_b32 v{vt0}, 0")
        k.e(f"v_mov_b32 v{vt1}, s{sNonce}")
        k.e(f"s_waitcnt vmcnt(0)")
        k.e(f"s_mov_b64 exec, 1")
        k.e(f"buffer_store_dword v{vt1}, v{vt0}, {WS}, s{sFOB} offen {flag}")
        k.e(f"s_mov_b64 exec, -1")
    if 'ant' in DBG:
        Lnt = k.newlabel("ant")
        k.e(f"s_cmp_eq_u32 s{sBeta}, 1")
        k.e(f"s_cbranch_scc1 {Lnt}")
        qkv_stores("")
        k.e(f"s_branch {Lst}")
        k.label(Lnt)
        qkv_stores("nt")
    else:
        qkv_stores("")
    k.e(f"s_branch {Lst}")
    k.label(Lslow)
    qkv_stores("sc1")
    k.label(Lst)
    k.vm_n += 13; k.vm_done = k.vm_n - 1
    stamp(k, "flag stored")
    k.e("s_barrier")
    vRed, vRedR, vQA, vOf, vO01, vQ, vS, vP, vO23 = 16, 17, 20, 28, 36, 68, 100, 132, 148
    vPR0, vPR1, vPT = 180, 184, 188
    vTmp = vS
    def vOd(d): return (vO01 + 16 * d) if d < 2 else (vO23 + 16 * (d - 2))
    qtok = {}; ktok = {}; vtok = {}
    sTq = [0, 98, 99]
    def tile_items(i):
        def f(j):
            def g_():
                if j == 0 or j == 2:
                    k.e(f"s_add_u32 s{sT}, s{sRot}, {i}")
                    k.e(f"s_and_b32 s{sT}, s{sT}, 15")
                    k.e(f"s_lshl_b32 s{sT}, s{sT}, 12")
                    k.e(f"s_add_u32 s{sTq[1]}, s{sT}, s{sKVB}")
                t = k.vm(f"buffer_load_dwordx4 a[{16*i+4*j}:{16*i+4*j+3}], v{vSt}, {WS}, s{sTq[1]} offen offset:{1024*j} sc1")
                if j == 1: ktok[i] = t
                if j == 3: vtok[i] = t
            return g_
        return [f(j) for j in range(4)]
    def q_items(d):
        def f(j):
            def g_():
                if j == 0:
                    k.e(f"s_add_u32 s{sT}, s{sW}, {d}")
                    k.e(f"s_and_b32 s{sT}, s{sT}, 3")
                    k.e(f"s_lshl_b32 s{sT2}, s{sRA}, 2")
                    k.e(f"s_add_u32 s{sT}, s{sT}, s{sT2}")
                    k.e(f"s_lshl_b32 s{sT2}, s{sHead}, 6")
                    k.e(f"s_add_u32 s{sT}, s{sT}, s{sT2}")
                    k.e(f"s_lshl_b32 s{sTq[1]}, s{sT}, 11")
                    k.e(f"s_add_u32 s{sTq[1]}, s{sTq[1]}, {Q_OFF['B']}")
                t = k.vm(f"buffer_load_dwordx4 v[{vQ+8*d+4*j}:{vQ+8*d+4*j+3}], v{vSt}, {WS}, s{sTq[1]} offen offset:{1024*j} sc1")
                if j == 1: qtok[d] = t
            return g_
        return [f(0), f(1)]
    WOB_L, WOA_L = 0, 57344
    def wo_items(srdn, lbase):
        def one(j):
            def f():
                if j == 0:
                    k.e(f"s_lshl_b32 s{sMk}, s{sCT}, 7")
                    k.e(f"s_mul_i32 s{sMk+1}, s{sW}, {112*896}")
                    k.e(f"s_add_u32 s{sMk}, s{sMk}, s{sMk+1}")
                    k.e(f"s_mul_i32 s{sMk+1}, s{sW}, {112*128}")
                    k.e(f"s_add_u32 s{sMk+1}, s{sMk+1}, {lbase}")
                k.e(f"s_add_u32 m0, s{sMk+1}, {1024*j}")
                k.e(f"s_add_u32 s{sMk+4}, s{sMk}, {8*896*j}")
                return k.vm(f"buffer_load_dwordx4 v{vWoD}, s[{srdn}:{srdn+3}], s{sMk+4} offen lds")
            return f
        return [one(j) for j in range(14)]
    tp = poll4_issue(k, vFlB, vPR0, 0xff)
    poll4_finish(k, tp, vFlB, vPR0, vPR1, vPT, 0xff, "pb")
    stamp(k, "P1 flags")
    t0i = tile_items(0)
    for f in q_items(1) + t0i[:2] + q_items(2) + t0i[2:] + q_items(3) + q_items(0): f()
    vOA = 224; vEdge = 192
    kt = {}; vt = {}; st = {}
    def bop(i, d):
        return dict(K=(ar(16*i, 4), ar(16*i+4, 4)), V=(ar(16*i+8, 4), ar(16*i+12, 4)),
                    Q=(vr(vQ+8*d, 4), vr(vQ+8*d+4, 4)), O=vr(vOd(d), 16), C="0", first=(i == 0),
                    wK=(lambda i=i, d=d: max(ktok[i], qtok[d])), wV=(lambda i=i: vtok[i]))
    def aslot(j): return j % 3
    lk = {}; lv = {}
    def aop(j):
        a = aslot(j)
        C = vr(vEdge, 16) if j == 0 else vr(vDiag, 16) if j == 8 else "0"
        return dict(K=(ar(16*a, 4), ar(16*a+4, 4)), V=(ar(16*a+8, 4), ar(16*a+12, 4)), Q=(vr(vQA, 4), vr(vQA+4, 4)),
                    O=vr(vOA, 16), C=C, first=(j == 0), lK=(lambda j=j: lk[j]), lV=(lambda j=j: lv[j]))
    A0 = int(os.environ.get('A0', '12'))
    NT1 = A0 // 4
    ops = [bop(i, d) for i in range(NT1) for d in (1, 2, 3, 0)] + [aop(j) for j in range(9)] + [bop(i, d) for i in range(NT1, 16) for d in (1, 2, 3, 0)]
    N = len(ops)
    vKVr = 191
    def rdKa(j):
        a = aslot(j)
        k.lg(f"ds_read_b128 a[{16*a}:{16*a+3}], v{vKVr} offset:{j*4096}")
        lk[j] = k.lg(f"ds_read_b128 a[{16*a+4}:{16*a+7}], v{vKVr} offset:{j*4096+1024}")
    def rdVa(j):
        a = aslot(j)
        k.lg(f"ds_read_b128 a[{16*a+8}:{16*a+11}], v{vKVr} offset:{j*4096+2048}")
        lv[j] = k.lg(f"ds_read_b128 a[{16*a+12}:{16*a+15}], v{vKVr} offset:{j*4096+3072}")
    sP = sTq[1]
    vWoD2 = 208
    k.e(f"v_add_u32 v{vWoD2}, {8*896-1024}, v{vWoD}")
    def b_pair(i, h):
        def prep():
            k.e(f"s_add_u32 s{sT}, s{sRot}, {i}")
            k.e(f"s_and_b32 s{sT}, s{sT}, 15")
            k.e(f"s_lshl_b32 s{sT}, s{sT}, 12")
            k.e(f"s_add_u32 s{sP}, s{sT}, s{sKVB}")
        def issue():
            k.vm(f"buffer_load_dwordx4 a[{16*i+8*h}:{16*i+8*h+3}], v{vSt}, {WS}, s{sP} offen offset:{2048*h} sc1")
            t = k.vm(f"buffer_load_dwordx4 a[{16*i+8*h+4}:{16*i+8*h+7}], v{vSt}, {WS}, s{sP} offen offset:{2048*h+1024} sc1")
            (ktok if h == 0 else vtok)[i] = t
        return prep, issue
    def a_pair(i, h):
        def prep():
            k.e(f"s_mul_i32 s{sT}, s{sW}, 3")
            k.e(f"s_lshl_b32 s{sT2}, s{sRA}, 2")
            k.e(f"s_add_u32 s{sT}, s{sT}, s{sT2}")
            k.e(f"s_add_i32 s{sT2}, s{sT}, {i-8}")
            k.e(f"s_lshl_b32 s{sP}, s{sT2}, 12")
            k.e(f"s_add_u32 s{sP}, s{sP}, s{sKV}")
            k.e(f"s_cmp_lt_i32 s{sT2}, 0")
            k.e(f"s_cselect_b32 s{sP}, {WS_BYTES}, s{sP}")
            k.e(f"s_mul_i32 s{sT}, s{sW}, {3*4096}")
            k.e(f"s_add_u32 m0, s{sT}, {SCR + i*4096}")
        def issue():
            k.vm(f"buffer_load_dwordx4 v{vSt}, {WS}, s{sP} offen offset:{2048*h} sc1 lds")
            st["ad"] = k.vm(f"buffer_load_dwordx4 v{vSt}, {WS}, s{sP} offen offset:{2048*h+1024} sc1 lds")
        return prep, issue
    def qa_pair():
        def prep():
            k.e(f"s_lshl_b32 s{sT2}, s{sHead}, 6")
            k.e(f"s_add_u32 s{sT2}, s{sT2}, s{sTTA}")
            k.e(f"s_lshl_b32 s{sP}, s{sT2}, 11")
            k.e(f"s_add_u32 s{sP}, s{sP}, {Q_OFF['A']}")
        def issue():
            k.vm(f"buffer_load_dwordx4 v[{vQA}:{vQA+3}], v{vSt}, {WS}, s{sP} offen sc1")
            st["qa"] = k.vm(f"buffer_load_dwordx4 v[{vQA+4}:{vQA+7}], v{vSt}, {WS}, s{sP} offen offset:1024 sc1")
        return prep, issue
    def wo_pair(srdn, lbase, j):
        def prep():
            k.e(f"s_lshl_b32 s{sT}, s{sCT}, 7")
            k.e(f"s_mul_i32 s{sT2}, s{sW}, {112*896}")
            k.e(f"s_add_u32 s{sT}, s{sT}, s{sT2}")
            k.e(f"s_add_u32 s{sP}, s{sT}, {16*896*j}")
            k.e(f"s_mul_i32 s{sT2}, s{sW}, {112*128}")
            k.e(f"s_add_u32 m0, s{sT2}, {lbase + 2048*j}")
        def issue():
            k.vm(f"buffer_load_dwordx4 v{vWoD}, s[{srdn}:{srdn+3}], s{sP} offen lds")
            st["wo"] = k.vm(f"buffer_load_dwordx4 v{vWoD2}, s[{srdn}:{srdn+3}], s{sP} offen offset:1024 lds")
        return prep, issue
    at = {}
    def oa_pair(p):
        def prep():
            k.e(f"s_lshl_b32 s{sT}, s{sP3T}, 1")
            k.e(f"s_lshr_b32 s{sT2}, s{sW}, 1")
            k.e(f"s_add_u32 s{sTT}, s{sT}, s{sT2}")
            k.e(f"s_lshl_b32 s{sP}, s{sTT}, 15")
            k.e(f"s_add_u32 s{sP}, s{sP}, {O_OFF['A'] + 2048*p}")
        def issue():
            at[2*p] = k.vm(f"buffer_load_dwordx4 a[{8*p}:{8*p+3}], v{vSt}, {WS}, s{sP} offen sc1")
            at[2*p+1] = k.vm(f"buffer_load_dwordx4 a[{8*p+4}:{8*p+7}], v{vSt}, {WS}, s{sP} offen offset:1024 sc1")
        return prep, issue
    strB = []
    strB.append((-1,) + b_pair(1, 0)); strB.append((0,) + b_pair(1, 1))
    for i in range(2, 16):
        use = 4 * i if i < NT1 else 4 * i + 9
        strB.append((max(use - 9, 0),) + b_pair(i, 0)); strB.append((max(use - 8, 0),) + b_pair(i, 1))
    strA = [(0,) + qa_pair()] + [(0,) + a_pair(i, h) for i in range(3) for h in range(2)]
    strW = [(10 + 2 * j,) + wo_pair(SRD_WOA, WOA_L, j) for j in range(7)] + [(26 + 2 * j,) + wo_pair(SRD_WOB, WOB_L, j) for j in range(7)]
    strO = []
    cur = {"item": None}
    def pick(n, g):
        for q in (strB, strA, strW, strO):
            if q and q[0][0] <= n:
                if q is strB or True:
                    return q.pop(0)
        return None
    vR1, vR2, vR3 = 189, 190, 191
    def red_addr():
        for d, vv in ((1, vR1), (2, vR2), (3, vR3)):
            k.e(f"s_add_u32 s{sT}, s{sW}, {d}")
            k.e(f"s_and_b32 s{sT}, s{sT}, 3")
            k.e(f"s_mul_i32 s{sT}, s{sT}, {3*4096}")
            k.e(f"s_add_u32 s{sT}, s{sT}, {SCR + (d-1)*4096}")
            k.e(f"v_add_u32 v{vv}, s{sT}, v{vSt}")
        k.e(f"s_mul_i32 s{sT}, s{sW}, {3*4096}")
        k.e(f"s_add_u32 s{sT}, s{sT}, {SCR}")
        k.e(f"v_add_u32 v{vRedR}, s{sT}, v{vSt}")
    def red_write(d, i):
        vv = {1: vR1, 2: vR2, 3: vR3}[d]
        k.lg(f"ds_write_b128 v{vv}, v[{vOd(d)+4*i}:{vOd(d)+4*i+3}] offset:{1024*i}")
    def o_flag_offsets():
        k.e(f"s_lshl_b32 s{sFOA}, s{sTTA}, 2")
        k.e(f"s_lshr_b32 s{sT}, s{sHead}, 2")
        k.e(f"s_add_u32 s{sFOA}, s{sFOA}, s{sT}")
        k.e(f"s_lshl_b32 s{sFOA}, s{sFOA}, 7")
        k.e(f"s_and_b32 s{sT}, s{sHead}, 3")
        k.e(f"s_lshl_b32 s{sT}, s{sT}, 2")
        k.e(f"s_add_u32 s{sFOA}, s{sFOA}, s{sT}")
        k.e(f"s_add_u32 s{sFOB}, s{sFOA}, {FO_OFF}")
        k.e(f"s_add_u32 s{sFOA}, s{sFOA}, {FO_OFF + 64*4*128}")
    SL = eval(os.environ.get("SLOTS", "()"))
    k.e(f"s_lshl_b32 s{sKV}, s{sHead}, 18")
    k.e(f"s_add_u32 s{sKV}, s{sKV}, {KV_OFF['A']}")
    def postB(n, g):
        ng, nn = (g + 1) % 4, n + (1 if g == 3 else 0)
        ok = ng in (0, 2) or (nn < 4)
        if ng in (0, 1) and nn + 1 >= N: ok = False
        if ng in (2, 3) and nn < 1: ok = False
        if nn > N: ok = False
        if ok and cur["item"] is None:
            it = pick(nn, ng)
            if it:
                it[1](); cur["item"] = it
    def hookB(n, g):
        if cur["item"] is not None:
            cur["item"][2](); cur["item"] = None
        if g == 0 and n in SL: stamp(k, f"slot{n}")
        if n < 0: return
        if g == 1 and n == A0 - 3:
            assert not strA
            k.wait(vm=max(st["ad"], st["qa"]))
            k.e("s_barrier")
            k.e(f"s_lshl_b32 s{sT}, s{sW}, 12")
            k.e(f"s_add_u32 s{sT}, s{sT}, {SCR}")
            k.e(f"v_add_u32 v{vKVr}, s{sT}, v{vSt}")
            rdKa(0)
            k.e(f"v_mov_b32 v{vt1}, {f2u(NEGBIG):#x}")
            for i in range(16): k.e(f"v_sub_f32 v{vEdge+i}, v{vt1}, v{vDiag+i}")
        for j in range(9):
            if j > 0 and g == 3 and n == A0 + j - 3: rdKa(j)
            if g == 1 and n == A0 + j: rdVa(j)
        if g == 1 and n == A0 + 11:
            finalize_o(k, vOA, vt0, vt1, vOf)
            k.e(f"s_lshl_b32 s{sT}, s{sTTA}, 4")
            k.e(f"s_add_u32 s{sT}, s{sT}, s{sHead}")
            k.e(f"s_lshl_b32 s{sOo}, s{sT}, 11")
            k.e(f"s_add_u32 s{sOo}, s{sOo}, {O_OFF['A']}")
            k.vm(f"buffer_store_dwordx4 v[{vOf}:{vOf+3}], v{vSt}, {WS}, s{sOo} offen sc1")
            st["oa"] = k.vm(f"buffer_store_dwordx4 v[{vOf+4}:{vOf+7}], v{vSt}, {WS}, s{sOo} offen offset:1024 sc1")
            o_flag_offsets()
        if g == 1 and n == A0 + 19:
            k.wait(vm=st["oa"])
            store_flag(k, vt0, vt1, sFOA)
            k.e(f"s_lshl_b32 s{sT}, s{sP3T}, 3")
            k.e(f"v_add_u32 v{vFlB}, s{sT}, v{vLane}")
            k.e(f"v_lshlrev_b32 v{vFlB}, 7, v{vFlB}")
            k.e(f"v_add_u32 v{vFlA}, {FO_OFF + 64*4*128}, v{vFlB}")
            k.e(f"v_add_u32 v{vFlB}, {FO_OFF}, v{vFlB}")
        if g == 1 and n == max(42, A0 + 28):
            st["pOA"] = poll4_issue(k, vFlA, vPR0, 0xff)
        if g == 1 and n == max(47, A0 + 33):
            poll4_finish(k, st["pOA"], vFlA, vPR0, vPR1, vPT, 0xff, "poA")
            strO.extend([(n + 1,) + oa_pair(p) for p in range(16)])
        if g == 1 and n == N - 8:
            red_addr()
        if n == N - 1: red_write(1, g)
        if n == N and g < 2:
            red_write(2, 2 * g); red_write(2, 2 * g + 1)
    it = pick(-1, 0); it[1](); cur["item"] = it
    attn_pipeline(k, ops, vS, vP, hookB, postB)
    assert cur['item'] is None
    assert not strB and not strA and not strW and not strO, (len(strB), len(strA), len(strW), len(strO))
    stamp(k, "attn done")
    k.nop(8)
    for i in range(4): red_write(3, i)
    k.wait_all(vm=False)
    k.e("s_barrier")
    for j in range(3):
        for i in range(4):
            k.lg(f"ds_read_b128 v[{vTmp+16*j+4*i}:{vTmp+16*j+4*i+3}], v{vRedR} offset:{4096*j+1024*i}")
    for j in range(3):
        k.wait(lg=k.lg_n - 4 * (2 - j))
        for i in range(0, 16, 2):
            k.e(f"v_pk_add_f32 v[{vOd(0)+i}:{vOd(0)+i+1}], v[{vOd(0)+i}:{vOd(0)+i+1}], v[{vTmp+16*j+i}:{vTmp+16*j+i+1}]")
    finalize_o(k, vOd(0), vt0, vt1, vOf)
    k.e(f"s_lshl_b32 s{sT}, s{sTTA}, 4")
    k.e(f"s_add_u32 s{sT}, s{sT}, s{sHead}")
    k.e(f"s_lshl_b32 s{sOo}, s{sT}, 11")
    k.e(f"s_add_u32 s{sOo}, s{sOo}, {O_OFF['B']}")
    k.vm(f"buffer_store_dwordx4 v[{vOf}:{vOf+3}], v{vSt}, {WS}, s{sOo} offen sc1")
    ob = k.vm(f"buffer_store_dwordx4 v[{vOf+4}:{vOf+7}], v{vSt}, {WS}, s{sOo} offen offset:1024 sc1")
    stamp(k, "O(B) stored")
    def cleanup():
        vC = 100
        for i in range(6):
            k.vm(f"buffer_load_dwordx4 v[{vC+8*i}:{vC+8*i+3}], v{vSt}, {WS}, s{dsts[i]} offen sc1")
            t = k.vm(f"buffer_load_dwordx4 v[{vC+8*i+4}:{vC+8*i+7}], v{vSt}, {WS}, s{dsts[i]} offen offset:1024 sc1")
        return vC, t
    def cleanup_stores(vC, t):
        k.wait(vm=t)
        for i in range(6):
            k.vm(f"buffer_store_dwordx4 v[{vC+8*i}:{vC+8*i+3}], v{vSt}, {WS}, s{dsts[i]} offen sc1")
            k.vm(f"buffer_store_dwordx4 v[{vC+8*i+4}:{vC+8*i+7}], v{vSt}, {WS}, s{dsts[i]} offen offset:1024 sc1")
    Lp3 = k.newlabel("p3")
    k.e(f"s_cmp_lt_u32 s2, 224")
    k.e(f"s_cbranch_scc1 {Lp3}")
    k.e("s_waitcnt vmcnt(0)")
    k.e(f"v_mov_b32 v{vt0}, 0")
    k.e(f"v_mov_b32 v{vt1}, s{sNonce}")
    k.e(f"s_mov_b64 exec, 1")
    k.e(f"buffer_store_dword v{vt1}, v{vt0}, {WS}, s{sFOB} offen sc1")
    k.e(f"s_mov_b64 exec, -1")
    if 'wb' in DBG:
        Lw = k.newlabel("nowb")
        k.e(f"s_lshr_b32 s{sT}, s2, 3")
        k.e(f"s_lshl_b32 s{sT}, s{sT}, 2")
        k.e(f"s_add_u32 s{sT}, s{sT}, s{sW}")
        k.e(f"s_cmp_lg_u32 s{sT}, {28*4}")
        k.e(f"s_cbranch_scc1 {Lw}")
        k.e(f"s_waitcnt vmcnt(0)")
        k.e(f"buffer_wbl2 sc1")
        k.e(f"s_waitcnt vmcnt(0)")
        k.label(Lw)
    k.e(f"s_endpgm")
    k.label(Lp3)
    vWrB, vWrA, vWrBc, vWrAc, vOr, vOut = 16, 17, 18, 19, 189, 190
    k.e(f"v_mov_b32 v{vWrB}, v{vP3a}")
    k.e(f"v_add_u32 v{vWrA}, {WOA_L}, v{vP3a}")
    k.e(f"v_lshrrev_b32 v{vt0}, 5, v{vLane}")
    k.e(f"v_lshlrev_b32 v{vt0}, 9, v{vt0}")
    k.e(f"v_sub_u32 v{vWrBc}, v{vWrB}, v{vt0}")
    k.e(f"v_sub_u32 v{vWrAc}, v{vWrA}, v{vt0}")
    k.e(f"v_and_b32 v{vt0}, 31, v{vLane}")
    k.e(f"v_mul_u32_u24 v{vt0}, 1792, v{vt0}")
    k.e(f"v_lshrrev_b32 v{vt1}, 5, v{vLane}")
    k.e(f"v_lshl_add_u32 v{vOut}, v{vt1}, 4, v{vt0}")
    NB = 4
    vA3, vB3, vD3, vPk = 36, 52, 68, 84
    def rdA(step, vW, vWc):
        hd, kk = step // 2, step % 2
        par = step % NB
        row = 28 * hd + 16 * kk
        a2 = vWc if (hd == 15 and kk == 1) else vW
        k.lg(f"ds_read_b64_tr_b16 v[{vA3+4*par}:{vA3+4*par+1}], v{vW} offset:{row*128}")
        return k.lg(f"ds_read_b64_tr_b16 v[{vA3+4*par+2}:{vA3+4*par+3}], v{a2} offset:{(row+8)*128}")
    def out_store(b):
        k.nop(12)
        for i in range(8): k.e(f"v_cvt_pk_bf16_f32 v{vPk+i}, v{vD3+2*i}, v{vD3+2*i+1}")
        k.e(f"s_lshl_b32 s{sT2}, s{sCT}, 1")
        k.e(f"s_and_b32 s{sT}, s{sW}, 1")
        k.e(f"s_add_u32 s{sT2}, s{sT2}, s{sT}")
        k.e(f"v_permlane32_swap_b32 v{vPk}, v{vPk+2}")
        k.e(f"v_permlane32_swap_b32 v{vPk+1}, v{vPk+3}")
        k.e(f"v_permlane32_swap_b32 v{vPk+4}, v{vPk+6}")
        k.e(f"v_permlane32_swap_b32 v{vPk+5}, v{vPk+7}")
        k.e(f"s_mul_i32 s{sOo}, s{sTT}, {32*1792}")
        k.e(f"s_lshl_b32 s{sT}, s{sT2}, 6")
        k.e(f"s_add_u32 s{sOo}, s{sOo}, s{sT}")
        if b == "B": k.e(f"s_add_u32 s{sOo}, s{sOo}, 896")
        k.vm(f"buffer_store_dwordx4 v[{vPk}:{vPk+3}], v{vOut}, s[{SRD_OUT}:{SRD_OUT+3}], s{sOo} offen nt")
        k.vm(f"buffer_store_dwordx4 v[{vPk+4}:{vPk+7}], v{vOut}, s[{SRD_OUT}:{SRD_OUT+3}], s{sOo} offen offset:32 nt")
    k.c("---- P3 A  (wo(A) was waited for long ago by later counted waits; make it explicit)")
    k.wait(vm=st["wo"])
    k.e("s_barrier")
    toks = {}
    for s_ in range(NB - 1): toks[s_] = rdA(s_, vWrA, vWrAc)
    for step in range(32):
        k.wait(vm=at[step], lg=toks[step])
        par = step % NB
        mfma(k, vr(vD3, 16), vr(vA3 + 4 * par, 4), ar(4 * step, 4), "0" if step == 0 else vr(vD3, 16))
        if step + NB - 1 < 32: toks[step + NB - 1] = rdA(step + NB - 1, vWrA, vWrAc)
    k.wait(vm=ob)
    store_flag(k, vt0, vt1, sFOB)
    tpB = poll4_issue(k, vFlB, vPR0, 0xff)
    out_store("A")
    stamp(k, "P3A done")
    k.e("s_barrier")
    poll4_finish(k, tpB, vFlB, vPR0, vPR1, vPT, 0xff, "poB")
    stamp(k, "P3B flags")
    k.e(f"s_lshl_b32 s{sOo}, s{sP3T}, 16")
    k.e(f"s_add_u32 s{sOo}, s{sOo}, {O_OFF['B']}")
    k.e(f"s_lshl_b32 s{sT}, s{sW}, 14")
    k.e(f"s_add_u32 s{sOo}, s{sOo}, s{sT}")
    k.e(f"s_add_u32 s{sT2}, s{sT}, {WOA_L}")
    for j in range(16):
        if j % 4 == 0:
            k.e(f"s_add_u32 m0, s{sT2}, {1024*j}")
            k.e(f"s_add_u32 s{sT}, s{sOo}, {1024*j}")
        k.vm(f"buffer_load_dwordx4 v{vSt}, {WS}, s{sT} offen offset:{1024*(j%4)} sc1 lds")
    otB = k.vm_n
    if 'clean' in DBG: cleanup_stores(vC, tC)
    k.e(f"s_lshr_b32 s{sT}, s{sW}, 1")
    k.e(f"s_lshl_b32 s{sT}, s{sT}, 15")
    k.e(f"s_add_u32 s{sT}, s{sT}, {WOA_L}")
    k.e(f"v_add_u32 v{vOr}, s{sT}, v{vSt}")
    toks = {}
    for s_ in range(NB - 1): toks[s_] = rdA(s_, vWrB, vWrBc)
    k.wait(vm=otB)
    k.e("s_barrier")
    stamp(k, "P3B data")
    tb = {}
    def rdB(step):
        par = step % NB
        return k.lg(f"ds_read_b128 v[{vB3+4*par}:{vB3+4*par+3}], v{vOr} offset:{step*1024}")
    for s_ in range(NB - 1): tb[s_] = rdB(s_)
    for step in range(32):
        k.wait(lg=max(toks[step], tb[step]))
        par = step % NB
        mfma(k, vr(vD3, 16), vr(vA3 + 4 * par, 4), vr(vB3 + 4 * par, 4), "0" if step == 0 else vr(vD3, 16))
        if step + NB - 1 < 32:
            toks[step + NB - 1] = rdA(step + NB - 1, vWrB, vWrBc)
            tb[step + NB - 1] = rdB(step + NB - 1)
    out_store("B")
    stamp(k, "P3B done")
    stamp(k, "rt", True)
    stamp_flush(k, vt0, vt1)
    k.label("L_end")
    k.e("s_endpgm")
    return k

HEADER = open("cdna_kernels/" + NAME + ".s.ref").read().split("; Override")[0]

def main(out):
    k = gen()
    pr = check(k.L, "fused")
    for p in pr: print(p)
    print("instrs", len(k.L), "stamps", St.n, St.names)
    s = HEADER
    s += "; @launch grid=(256,1,1) block=(256,1,1) lds=163840\n"
    s += '.amdgcn_target "amdgcn-amd-amdhsa--gfx950"\n.text\n'
    s += f".globl {KNAME}\n.p2align 8\n.type {KNAME},@function\n{KNAME}:\n" + k.text()
    s += f""".section .rodata,"a"
.p2align 6
.amdhsa_kernel {KNAME}
  .amdhsa_next_free_vgpr 512
  .amdhsa_next_free_sgpr 102
  .amdhsa_accum_offset 256
  .amdhsa_group_segment_fixed_size 0
  .amdhsa_kernarg_size 72
  .amdhsa_user_sgpr_count 2
  .amdhsa_user_sgpr_kernarg_segment_ptr 1
  .amdhsa_system_sgpr_workgroup_id_x 1
.end_amdhsa_kernel
"""
    open(out, "w").write(s)

if __name__ == "__main__":
    main(sys.argv[1] if len(sys.argv) > 1 else "f3.s")
```

```python
import sys, math, struct, os
sys.path.insert(0, "gen")
from asmlib import Emit, check

NAME = "concat_heads__sliding_block__softmax_full_mha__prompt"
KNAME = NAME + "_kernel"
def f2u(x): return struct.unpack("<I", struct.pack("<f", x))[0]

KV_OFF = {"B": 0, "A": 4 << 20}
O_OFF = {"B": 8 << 20, "A": 10 << 20}
Q_OFF = {"B": 12 << 20, "A": 14 << 20}
FP1_OFF = 16 << 20
FO_OFF = (16 << 20) + (256 << 10)
NONCE_OFF = (16 << 20) + (768 << 10)
CEN_OFF = (16 << 20) + (800 << 10)
STAMPS = 17 << 20
WS_BYTES = 18 << 20
X_BYTES = 2048 * 896
W_BYTES = 448 * 2688
WO_BYTES = 448 * 896
OUT_BYTES = 2048 * 1792
QSCALE = (28 ** -0.5) * math.log2(math.e)
MARGIN = 64.0
NEGBIG = -1.0e30
MAPB = os.environ.get('MAPB', '0') == '1'
STAMP = os.environ.get("STAMP", "0") in ("1", "2")
STAMPDBG = os.environ.get("STAMP", "0") == "2"
DBGWG = int(os.environ.get("DBGWG", "100"))
SKIP = set(os.environ.get("SKIP", "").split(","))
SPIN_MAX = 1 << 18
SCR = 114688

class V:
    def __init__(self, lo, hi): self.n = lo; self.hi = hi
    def a(self, cnt=1, al=1):
        self.n = (self.n + al - 1) // al * al
        r = self.n; self.n += cnt
        assert self.n <= self.hi, "out of regs"
        return r

def vr(b, n=1): return f"v{b}" if n == 1 else f"v[{b}:{b+n-1}]"
def ar(b, n=1): return f"a{b}" if n == 1 else f"a[{b}:{b+n-1}]"
def mfma(k, d, a, b, c): k.e(f"v_mfma_f32_32x32x16_bf16 {d}, {a}, {b}, {c}")

S_PTR = 4
SRD_XB, SRD_WB, SRD_WS, SRD_OUT, SRD_XA, SRD_WA = 24, 28, 32, 36, 40, 44
SRD_WO = 4
sWmask = 96
sW, sBeta, sU, sR, sT, sT2, sT3 = 48, 49, 50, 51, 52, 53, 54
sOff, sXbase, sWcol, sM0X, sM0W, sC, sXo, sWo, sWo2 = 55, 56, 57, 58, 59, 60, 61, 62, 63
sVmask = 64
sNonce = 66
sHead, sTT, sKV, sTo, sQo, sOo, sSpin = 67, 68, 69, 70, 71, 72, 73
sCT, sP3T = 74, 75
sEx = 76
sStampTmp = 78
sRA = 80
sUQ, sUK, sUV = 81, 82, 83
sFOA, sFOB, sKVB, sRot, sOffU, sTTA = 84, 85, 86, 87, 88, 89
sMk = 90
sD0 = 22
WS = f"s[{SRD_WS}:{SRD_WS+3}]"

def srd(k, s, lo, size):
    k.e(f"s_mov_b32 s{s}, s{lo}")
    k.e(f"s_and_b32 s{s+1}, s{lo+1}, 0xffff")
    k.e(f"s_mov_b32 s{s+2}, {size}")
    k.e(f"s_mov_b32 s{s+3}, 0x20000")

class St:
    n = 0; v = 15; names = []
def stamp(k, name="", rt=False):
    if not STAMP: return
    if STAMPDBG and (rt or name in SKIP): return
    i = St.n; St.n += 1; St.names.append(name)
    assert i < 32
    k.e(f"{'s_memrealtime' if rt else 's_memtime'} s[{sStampTmp}:{sStampTmp+1}]")
    k.wait_all(vm=False, lg=True)
    k.e(f"v_writelane_b32 v{St.v}, s{sStampTmp}, {i}")
def stamp_flush(k, vt0, vt1):
    if not STAMP: return
    if STAMPDBG:
        L = k.newlabel("sf")
        k.e(f"s_lshl_b32 s{sStampTmp}, s2, 2")
        k.e(f"s_add_u32 s{sStampTmp}, s{sStampTmp}, s{sW}")
        k.e(f"s_cmp_lg_u32 s{sStampTmp}, {DBGWG*4}")
        k.e(f"s_cbranch_scc1 {L}")
        k.e(f"v_readlane_b32 s{sStampTmp}, v{St.v}, 0")
        k.e(f"v_and_b32 v{vt0}, 63, v0")
        k.e(f"v_lshlrev_b32 v{vt0}, 2, v{vt0}")
        k.e(f"v_subrev_u32 v{vt1}, s{sStampTmp}, v{St.v}")
        k.e(f"s_mov_b64 exec, 0xfffe")
        k.e(f"global_store_dword v{vt0}, v{vt1}, s[18:19]")
        k.e(f"s_mov_b64 exec, -1")
        k.label(L)
        return
    k.e(f"v_lshrrev_b32 v{vt0}, 6, v0")
    k.e(f"s_lshl_b32 s{sStampTmp}, s2, 2")
    k.e(f"v_add_u32 v{vt0}, s{sStampTmp}, v{vt0}")
    k.e(f"v_lshlrev_b32 v{vt0}, 7, v{vt0}")
    k.e(f"v_and_b32 v{vt1}, 63, v0")
    k.e(f"v_lshl_add_u32 v{vt0}, v{vt1}, 2, v{vt0}")
    k.e(f"s_mov_b32 s{sStampTmp}, {STAMPS}")
    k.e(f"s_mov_b32 exec_hi, 0")
    k.vm(f"buffer_store_dword v{St.v}, v{vt0}, {WS}, s{sStampTmp} offen")
    k.e(f"s_mov_b64 exec, -1")

def build_masks(k, vDiag, vEdge, vLane, t0, t1):
    k.e(f"v_and_b32 v{t0}, 31, v{vLane}")
    k.e(f"v_lshrrev_b32 v{t1}, 5, v{vLane}")
    k.e(f"v_lshlrev_b32 v{t1}, 2, v{t1}")
    k.e(f"v_sub_u32 v{t0}, v{t0}, v{t1}")
    k.e(f"v_mov_b32 v{t1}, {f2u(NEGBIG):#x}")
    prs = [sMk, sMk + 2, sMk + 4]
    def cmp(i):
        b = 8 * (i // 4) + (i % 4); p = prs[i % 3]
        k.e(f"v_cmp_le_i32_e64 s[{p}:{p+1}], {b}, v{t0}")
    cmp(0); cmp(1)
    for i in range(16):
        if i + 2 < 16: cmp(i + 2)
        else: k.nop(1)
        p = prs[i % 3]
        k.e(f"v_cndmask_b32_e64 v{vDiag+i}, v{t1}, 0, s[{p}:{p+1}]")
        k.e(f"v_cndmask_b32_e64 v{vEdge+i}, 0, v{t1}, s[{p}:{p+1}]")

def colmax(k, vS, vm, vt):
    k.e(f"v_max3_f32 v{vm}, v{vS}, v{vS+1}, v{vS+2}")
    k.e(f"v_max3_f32 v{vt}, v{vS+3}, v{vS+4}, v{vS+5}")
    k.e(f"v_max3_f32 v{vm}, v{vm}, v{vS+6}, v{vS+7}")
    k.e(f"v_max3_f32 v{vt}, v{vt}, v{vS+8}, v{vS+9}")
    k.e(f"v_max3_f32 v{vm}, v{vm}, v{vS+10}, v{vS+11}")
    k.e(f"v_max3_f32 v{vt}, v{vt}, v{vS+12}, v{vS+13}")
    k.e(f"v_max3_f32 v{vm}, v{vm}, v{vS+14}, v{vS+15}")
    k.e(f"v_max_f32 v{vm}, v{vm}, v{vt}")
    k.e(f"v_mov_b32 v{vt}, v{vm}")
    k.nop(2)
    k.e(f"v_permlane32_swap_b32 v{vm}, v{vt}")
    k.e(f"v_max_f32 v{vm}, v{vm}, v{vt}")

def shift_dwords(k, vm, t0, t1, t2):
    k.e(f"v_and_b32 v{t0}, 0xffff0000, v{vm}")
    k.e(f"v_sub_f32 v{t1}, v{vm}, v{t0}")
    k.e(f"v_and_b32 v{t2}, 0xffff0000, v{t1}")
    k.e(f"v_sub_f32 v{t1}, v{t1}, v{t2}")
    k.e(f"v_lshrrev_b32 v{t0}, 16, v{t0}")
    k.e(f"v_or_b32 v{t0}, v{t0}, v{t2}")
    k.e(f"v_xor_b32 v{t0}, 0x80008000, v{t0}")
    k.e(f"v_lshrrev_b32 v{t1}, 16, v{t1}")
    k.e(f"v_xor_b32 v{t1}, 0x8000, v{t1}")

def poll_flags(k, vAddr, vTmp, mask64, name):
    L = k.newlabel(name); Ld = k.newlabel(name + "d")
    k.e(f"s_mov_b32 s{sSpin}, 0")
    k.e(f"s_mov_b32 exec_hi, {(mask64 >> 32) & 0xffffffff:#x}")
    k.e(f"s_mov_b32 exec_lo, {mask64 & 0xffffffff:#x}")
    k.label(L)
    k.e(f"buffer_load_dword v{vTmp}, v{vAddr}, {WS}, 0 offen sc1")
    k.e(f"s_add_u32 s{sSpin}, s{sSpin}, 1")
    k.e(f"s_waitcnt vmcnt(0)")
    k.e(f"v_cmp_ne_u32 vcc, s{sNonce}, v{vTmp}")
    k.e(f"s_cmp_gt_u32 s{sSpin}, {SPIN_MAX}")
    k.e(f"s_cbranch_scc1 {Ld}")
    k.e(f"s_cbranch_vccnz {L}")
    k.label(Ld)
    k.e(f"s_mov_b64 exec, -1")
    k.vm_done = k.vm_n

def store_flag(k, vZero, vVal, s_off):
    k.e(f"v_mov_b32 v{vZero}, 0")
    k.e(f"v_mov_b32 v{vVal}, s{sNonce}")
    k.e(f"s_mov_b64 exec, 1")
    t = k.vm(f"buffer_store_dword v{vVal}, v{vZero}, {WS}, s{s_off} offen sc1")
    k.e(f"s_mov_b64 exec, -1")
    return t

def attn_pipeline(k, ops, vS, vP, shadow, extra):
    N = len(ops)
    def val(x): return x() if callable(x) else x
    def waitK(n):
        if 0 <= n < N:
            o = ops[n]; k.wait(vm=val(o.get("wK")), lg=val(o.get("lK")))
    def waitV(n):
        if 0 <= n < N:
            o = ops[n]; k.wait(vm=val(o.get("wV")), lg=val(o.get("lV")))
    def qk(n, part):
        o = ops[n]; S = vr(vS + 16 * (n % 2), 16)
        if part == 0: mfma(k, S, o["K"][0], o["Q"][0], o["C"])
        else: mfma(k, S, o["K"][1], o["Q"][1], S)
    def pv(n, part):
        o = ops[n]; P = vP + 8 * (n % 2)
        if part == 0: mfma(k, o["O"], o["V"][0], vr(P, 4), "0" if o["first"] else o["O"])
        else: mfma(k, o["O"], o["V"][1], vr(P + 4, 4), o["O"])
    def expgrp(n, g):
        S = vS + 16 * (n % 2); P = vP + 8 * (n % 2)
        for i in range(4):
            k.e(f"v_exp_f32 v{S+4*g+i}, v{S+4*g+i}")
        k.e(f"v_cvt_pk_bf16_f32 v{P+2*g}, v{S+4*g}, v{S+4*g+1}")
        k.e(f"v_cvt_pk_bf16_f32 v{P+2*g+1}, v{S+4*g+2}, v{S+4*g+3}")
    waitK(0)
    for n in range(-1, N + 1):
        has_exp = 0 <= n < N
        for g in range(4):
            if g < 2 and n + 1 < N: qk(n + 1, g)
            if g >= 2 and 0 <= n - 1: pv(n - 1, g - 2)
            if g == 1: waitV(n - 1)
            if g == 3: waitK(n + 2)
            shadow(n, g)
            if has_exp: expgrp(n, g)
            extra(n, g)
        if n == -1: k.nop(12)
        if n == N - 1: k.nop(2)

def finalize_o(k, vO, vt0, vt1, vOf):
    k.e(f"v_mov_b32 v{vt0}, v{vO+12}")
    k.e(f"v_mov_b32 v{vt1}, v{vO+12}")
    k.nop(2)
    k.e(f"v_permlane32_swap_b32 v{vt0}, v{vt1}")
    k.e(f"v_rcp_f32 v{vt1}, v{vt1}")
    k.nop(1)
    for i in range(16):
        k.e(f"v_mul_f32 v{vO+i}, v{vO+i}, v{vt1}")
    for i in range(8):
        k.e(f"v_cvt_pk_bf16_f32 v{vOf+i}, v{vO+2*i}, v{vO+2*i+1}")
    k.e("s_mov_b32 exec_lo, 0")
    k.e(f"v_mov_b32 v{vOf+6}, 0")
    k.e(f"v_mov_b32 v{vOf+7}, 0")
    k.e("s_mov_b32 exec_lo, -1")

def div6(k, dst, src, tmp):
    k.e(f"s_mul_i32 s{dst}, s{src}, 43")
    k.e(f"s_lshr_b32 s{dst}, s{dst}, 8")


def async_poll_issue(k, vAddr, vRes, mask64):
    k.e(f"s_mov_b32 exec_hi, {(mask64 >> 32) & 0xffffffff:#x}")
    k.e(f"s_mov_b32 exec_lo, {mask64 & 0xffffffff:#x}")
    t = k.vm(f"buffer_load_dword v{vRes}, v{vAddr}, {WS}, 0 offen sc1")
    k.e(f"s_mov_b64 exec, -1")
    return t

def async_poll_check(k, tok, vAddr, vRes, mask64, name):
    L = k.newlabel(name); Ld = k.newlabel(name + "d")
    k.wait(vm=tok)
    k.e(f"s_mov_b32 exec_hi, {(mask64 >> 32) & 0xffffffff:#x}")
    k.e(f"s_mov_b32 exec_lo, {mask64 & 0xffffffff:#x}")
    k.e(f"v_cmp_ne_u32 vcc, s{sNonce}, v{vRes}")
    k.e(f"s_mov_b32 s{sSpin}, 0")
    k.e(f"s_cbranch_vccz {Ld}")
    k.label(L)
    k.e(f"buffer_load_dword v{vRes}, v{vAddr}, {WS}, 0 offen sc1")
    k.e(f"s_add_u32 s{sSpin}, s{sSpin}, 1")
    k.e(f"s_waitcnt vmcnt(0)")
    k.e(f"v_cmp_ne_u32 vcc, s{sNonce}, v{vRes}")
    k.e(f"s_cmp_gt_u32 s{sSpin}, {SPIN_MAX}")
    k.e(f"s_cbranch_scc1 {Ld}")
    k.e(f"s_cbranch_vccnz {L}")
    k.label(Ld)
    k.e(f"s_mov_b64 exec, -1")

def chk4(k, vR, vT):
    k.e(f"v_xor_b32 v{vT}, s{sNonce}, v{vR}")
    k.e(f"v_xor_b32 v{vR+1}, s{sNonce}, v{vR+1}")
    k.e(f"v_xor_b32 v{vR+2}, s{sNonce}, v{vR+2}")
    k.e(f"v_xor_b32 v{vR+3}, s{sNonce}, v{vR+3}")
    k.e(f"v_or3_b32 v{vT}, v{vT}, v{vR+1}, v{vR+2}")
    k.e(f"v_or_b32 v{vT}, v{vT}, v{vR+3}")
    k.e(f"v_cmp_ne_u32 vcc, 0, v{vT}")

def poll4_issue(k, vAddr, vR, mask):
    k.e(f"s_mov_b64 exec, {mask:#x}")
    t = k.vm(f"buffer_load_dwordx4 v[{vR}:{vR+3}], v{vAddr}, {WS}, 0 offen sc1")
    k.e(f"s_mov_b64 exec, -1")
    return t

def poll4_finish(k, tok, vAddr, vR0, vR1, vT, mask, name):
    L = k.newlabel(name); Ld = k.newlabel(name + "d")
    k.wait(vm=tok)
    k.e(f"s_mov_b64 exec, {mask:#x}")
    chk4(k, vR0, vT)
    k.e(f"s_mov_b32 s{sSpin}, 0")
    k.e(f"s_cbranch_vccz {Ld}")
    k.e(f"buffer_load_dwordx4 v[{vR0}:{vR0+3}], v{vAddr}, {WS}, 0 offen sc1")
    k.label(L)
    k.e(f"buffer_load_dwordx4 v[{vR1}:{vR1+3}], v{vAddr}, {WS}, 0 offen sc1")
    k.e(f"s_waitcnt vmcnt(1)")
    chk4(k, vR0, vT)
    k.e(f"s_add_u32 s{sSpin}, s{sSpin}, 1")
    k.e(f"s_cbranch_vccz {Ld}")
    k.e(f"buffer_load_dwordx4 v[{vR0}:{vR0+3}], v{vAddr}, {WS}, 0 offen sc1")
    k.e(f"s_waitcnt vmcnt(1)")
    chk4(k, vR1, vT)
    k.e(f"s_cmp_gt_u32 s{sSpin}, {SPIN_MAX}")
    k.e(f"s_cbranch_scc1 {Ld}")
    k.e(f"s_cbranch_vccnz {L}")
    k.label(Ld)
    k.e(f"s_mov_b64 exec, -1")

def div3(k, dst, src):
    k.e(f"s_mul_i32 s{dst}, s{src}, 43")
    k.e(f"s_lshr_b32 s{dst}, s{dst}, 7")


BARS = eval(os.environ.get('BARS', '(0, 1, 6)'))
DBG = os.environ.get('DBG', '')
sXcc, sFast = 100, 95

def gen():
    k = Emit()
    St.n = 0; St.names = []
    k.e("s_cmp_ge_u32 s2, 256")
    k.e("s_cbranch_scc1 L_end")
    k.e(f"s_load_dwordx16 s[{S_PTR}:{S_PTR+15}], s[0:1], 0")
    k.e(f"s_load_dwordx2 s[20:21], s[0:1], 64")
    G = V(1, 15)
    vLane = G.a(); vSt = G.a(); vt0 = G.a(); vt1 = G.a(); vt2 = G.a(); vt3 = G.a(); vWoD = G.a()
    vFlB = G.a(); vFlA = G.a(); vVpad = G.a(); vCen = G.a(); vP3a = G.a()
    SRD_X, SRD_W = SRD_XB, SRD_WB
    stamp(k, "start"); stamp(k, "rt", True)
    k.e(f"v_and_b32 v{vLane}, 63, v0")
    k.e(f"v_lshrrev_b32 v{vt0}, 6, v0")
    k.e(f"s_and_b32 s{sU}, s2, 7")
    k.e(f"v_readfirstlane_b32 s{sW}, v{vt0}")
    k.e(f"s_lshr_b32 s{sT2}, s2, 3")
    k.e(f"s_and_b32 s{sBeta}, s{sT2}, 1")
    k.e(f"s_lshr_b32 s{sR}, s{sT2}, 1")
    k.e(f"s_mul_i32 s{sOff}, s{sR}, 37")
    k.e(f"s_lshr_b32 s{sOff}, s{sOff}, 8")
    k.e(f"s_mul_i32 s{sOff}, s{sOff}, 7")
    k.e(f"s_sub_u32 s{sOff}, s{sR}, s{sOff}")
    k.e(f"s_mul_i32 s{sXbase}, s{sR}, {128*896}")
    k.e(f"s_mul_i32 s{sWcol}, s{sU}, 112")
    R = V(16, 256)
    vXo = R.a(4); vWo = R.a(2); vXr = R.a(4); vWr = R.a(4)
    vXf = R.a(8, 4); vWf = R.a(48, 4)
    acc = {(hh, nm): R.a(16, 4) for hh in range(2) for nm in "QKV"}
    vF = R.a(48, 4)
    vS1 = vWf
    vDiag = 240
    assert R.n <= 240, R.n
    XSLOT = 16640; WSLOT = 24576; WBASE = 3 * XSLOT
    k.e(f"v_lshrrev_b32 v{vt0}, 3, v{vLane}")
    k.e(f"v_bfe_u32 v{vt1}, v{vLane}, 4, 1")
    k.e(f"v_lshlrev_b32 v{vt1}, 2, v{vt1}")
    k.e(f"v_and_b32 v{vt2}, 7, v{vLane}")
    k.e(f"v_xor_b32 v{vt1}, v{vt1}, v{vt2}")
    k.e(f"v_lshrrev_b32 v{vt2}, 6, v0")
    k.e(f"v_lshl_add_u32 v{vt3}, v{vt2}, 5, v{vt0}")
    k.e(f"v_mul_u32_u24 v{vt3}, 896, v{vt3}")
    k.e(f"v_lshl_add_u32 v{vXo}, v{vt1}, 4, v{vt3}")
    for j in range(1, 4):
        k.e(f"v_add_u32 v{vXo+j}, {j*(8*896-1040)}, v{vXo}")
    k.e(f"v_lshl_add_u32 v{vt3}, v{vt2}, 4, v{vt0}")
    k.e(f"v_mul_u32_u24 v{vt3}, 2688, v{vt3}")
    k.e(f"v_lshl_add_u32 v{vWo}, v{vt1}, 4, v{vt3}")
    k.e(f"v_add_u32 v{vWo+1}, {8*2688-1024}, v{vWo}")
    k.e(f"s_mul_i32 s{sM0X}, s{sW}, 4160")
    k.e(f"s_mul_i32 s{sM0W}, s{sW}, 6144")
    k.e(f"s_add_u32 s{sM0W}, s{sM0W}, {WBASE}")
    k.e(f"s_getreg_b32 s{sXcc}, hwreg(HW_REG_XCC_ID)")
    k.e("s_waitcnt lgkmcnt(0)")
    k.e(f"s_cmp_eq_u32 s{sBeta}, 1")
    k.e(f"s_cselect_b32 s{SRD_X}, s4, s10")
    k.e(f"s_cselect_b32 s{SRD_X+1}, s5, s11")
    k.e(f"s_cselect_b32 s{SRD_W}, s6, s12")
    k.e(f"s_cselect_b32 s{SRD_W+1}, s7, s13")
    k.e(f"s_and_b32 s{SRD_X+1}, s{SRD_X+1}, 0xffff")
    k.e(f"s_and_b32 s{SRD_W+1}, s{SRD_W+1}, 0xffff")
    k.e(f"s_mov_b32 s{SRD_X+2}, {X_BYTES}")
    k.e(f"s_mov_b32 s{SRD_X+3}, 0x20000")
    k.e(f"s_mov_b32 s{SRD_W+2}, {W_BYTES}")
    k.e(f"s_mov_b32 s{SRD_W+3}, 0x20000")
    X = f"s[{SRD_X}:{SRD_X+3}]"; W = f"s[{SRD_W}:{SRD_W+3}]"
    dma_tok = {}
    def dma_list(g):
        slot = g % 3
        L = []
        def head():
            k.e(f"s_add_u32 s{sC}, s{sOff}, {g}")
            k.e(f"s_sub_u32 s{sT}, s{sC}, 7")
            k.e(f"s_min_u32 s{sC}, s{sC}, s{sT}")
            k.e(f"s_lshl_b32 s{sXo}, s{sC}, 7")
            k.e(f"s_add_u32 s{sXo}, s{sXo}, s{sXbase}")
            k.e(f"s_mul_i32 s{sWo}, s{sC}, {64*2688}")
            k.e(f"s_add_u32 s{sWo}, s{sWo}, s{sWcol}")
            k.e(f"s_add_u32 m0, s{sM0X}, {slot*XSLOT}")
            k.e("s_nop 0")
        def xj(j):
            def f():
                if j == 0: head()
                k.vm(f"buffer_load_dwordx4 v{vXo+j}, {X}, s{sXo} offen offset:{1040*j} lds")
            return f
        def wi(sec, half):
            def f():
                if half == 0:
                    k.e(f"s_add_u32 m0, s{sM0W}, {slot*WSLOT + sec*2048}")
                    k.e(f"s_add_u32 s{sWo2}, s{sWo}, {sec*896}")
                t = k.vm(f"buffer_load_dwordx4 v{vWo+half}, {W}, s{sWo2} offen offset:{1024*half} lds")
                if sec == 2 and half == 1: dma_tok[g] = t
            return f
        for j in range(4): L.append(xj(j))
        for sec in range(3):
            for half in range(2): L.append(wi(sec, half))
        return L
    stamp(k, "pre-dma")
    for f in dma_list(0): f()
    stamp(k, "dma0 issued")
    srd(k, SRD_WS, 20, WS_BYTES); srd(k, SRD_OUT, 16, OUT_BYTES)
    srd(k, SRD_XA, 14, WO_BYTES); srd(k, SRD_WA, 8, WO_BYTES)
    SRD_WOB, SRD_WOA = SRD_XA, SRD_WA
    k.e(f"v_lshlrev_b32 v{vSt}, 4, v{vLane}")
    Lnn = k.newlabel("nonce")
    k.e(f"s_or_b32 s{sT}, s2, s{sW}")
    k.e(f"s_cmp_lg_u32 s{sT}, 0")
    k.e(f"s_cbranch_scc1 {Lnn}")
    k.e(f"s_mov_b32 s{sT}, {NONCE_OFF}")
    k.e(f"v_mov_b32 v{vt0}, 0")
    k.e(f"buffer_load_dword v{vt1}, v{vt0}, {WS}, s{sT} offen sc1")
    k.e(f"s_waitcnt vmcnt(0)")
    k.e(f"v_add_u32 v{vt1}, 1, v{vt1}")
    k.e(f"v_max_u32 v{vt1}, 1, v{vt1}")
    k.e(f"s_mov_b64 exec, 1")
    k.e(f"global_store_dword v{vt0}, v{vt1}, s[18:19] sc1")
    k.e(f"buffer_store_dword v{vt1}, v{vt0}, {WS}, s{sT} offen sc1")
    k.e(f"s_mov_b64 exec, -1")
    k.label(Lnn)
    k.e(f"s_lshr_b32 s{sT2}, s2, 3")
    k.e(f"s_lshl_b32 s{sHead}, s{sU}, 1")
    k.e(f"s_add_u32 s{sHead}, s{sHead}, s{sBeta}")
    k.e(f"s_mov_b32 s{sRA}, s{sR}")
    k.e(f"s_mul_i32 s{sT3}, s{sT2}, 37")
    k.e(f"s_lshr_b32 s{sT3}, s{sT3}, 8")
    k.e(f"s_min_u32 s{sC}, s{sT3}, 3")
    k.e(f"s_lshl_b32 s{sP3T}, s{sU}, 2")
    k.e(f"s_add_u32 s{sP3T}, s{sP3T}, s{sC}")
    k.e(f"s_mul_i32 s{sT3}, s{sT3}, 7")
    k.e(f"s_sub_u32 s{sCT}, s{sT2}, s{sT3}")
    k.e(f"s_lshl_b32 s{sTT}, s{sR}, 2")
    k.e(f"s_add_u32 s{sTT}, s{sTT}, s{sW}")
    k.e(f"s_mov_b32 s{sTTA}, s{sTT}")
    dsts = [0, 1, 3, 22, 23, 101]
    for hh in range(2):
        k.e(f"s_lshl_b32 s{sT}, s{sU}, 1")
        k.e(f"s_add_u32 s{sT}, s{sT}, {hh}")
        k.e(f"s_lshl_b32 s{sT}, s{sT}, 6")
        k.e(f"s_add_u32 s{sT}, s{sT}, s{sTT}")
        k.e(f"s_lshl_b32 s{sT3}, s{sT}, 12")
        k.e(f"s_lshl_b32 s{sC}, s{sBeta}, 22")
        k.e(f"s_add_u32 s{dsts[3*hh]}, s{sT3}, s{sC}")
        k.e(f"s_add_u32 s{dsts[3*hh+1]}, s{dsts[3*hh]}, 2048")
        k.e(f"s_lshl_b32 s{sT3}, s{sT}, 11")
        k.e(f"s_lshl_b32 s{sC}, s{sBeta}, 21")
        k.e(f"s_add_u32 s{sT3}, s{sT3}, s{sC}")
        k.e(f"s_add_u32 s{dsts[3*hh+2]}, s{sT3}, {Q_OFF['B']}")
    k.e(f"v_and_b32 v{vt0}, 31, v{vLane}")
    k.e(f"v_lshrrev_b32 v{vt1}, 3, v{vt0}")
    k.e(f"v_mul_u32_u24 v{vt1}, 1040, v{vt1}")
    k.e(f"v_and_b32 v{vt2}, 7, v{vt0}")
    k.e(f"v_lshl_add_u32 v{vt1}, v{vt2}, 7, v{vt1}")
    k.e(f"v_add_u32 v{vt1}, s{sM0X}, v{vt1}")
    k.e(f"v_bfe_u32 v{vt2}, v{vLane}, 1, 1")
    k.e(f"v_lshlrev_b32 v{vt2}, 6, v{vt2}")
    k.e(f"v_lshrrev_b32 v{vt3}, 5, v{vLane}")
    k.e(f"v_lshlrev_b32 v{vt3}, 4, v{vt3}")
    k.e(f"v_add_u32 v{vt1}, v{vt1}, v{vt3}")
    for ks in range(4):
        k.e(f"v_xor_b32 v{vXr+ks}, {(ks >> 1) * 64}, v{vt2}")
        k.e(f"v_add_u32 v{vXr+ks}, {((2*ks) & 3) * 16}, v{vXr+ks}")
        k.e(f"v_add_u32 v{vXr+ks}, v{vXr+ks}, v{vt1}")
    k.e(f"v_lshrrev_b32 v{vt0}, 5, v{vLane}")
    k.e(f"v_lshlrev_b32 v{vt0}, 3, v{vt0}")
    k.e(f"v_bfe_u32 v{vt1}, v{vLane}, 2, 2")
    k.e(f"v_add_u32 v{vt0}, v{vt0}, v{vt1}")
    k.e(f"v_lshlrev_b32 v{vt0}, 7, v{vt0}")
    k.e(f"v_bfe_u32 v{vt1}, v{vLane}, 4, 1")
    k.e(f"v_lshlrev_b32 v{vt1}, 5, v{vt1}")
    k.e(f"v_and_b32 v{vt2}, 3, v{vLane}")
    k.e(f"v_lshl_add_u32 v{vt1}, v{vt2}, 3, v{vt1}")
    k.e(f"v_bfe_u32 v{vt2}, v{vLane}, 3, 1")
    k.e(f"v_lshlrev_b32 v{vt2}, 6, v{vt2}")
    for hh in range(2):
        k.e(f"v_add_u32 v{vt3}, {56*hh}, v{vt1}")
        k.e(f"v_xor_b32 v{vt3}, v{vt3}, v{vt2}")
        k.e(f"v_add_u32 v{vt3}, v{vt3}, v{vt0}")
        k.e(f"v_add_u32 v{vWr+hh}, {WBASE}, v{vt3}")
        k.e(f"v_add_u32 v{vWr+2+hh}, {WBASE + 2*WSLOT}, v{vt3}")
    for f in dma_list(1)[:5]: f()
    k.e(f"v_and_b32 v{vt0}, 31, v{vLane}")
    k.e(f"v_cmp_eq_u32 vcc, 28, v{vt0}")
    k.e(f"v_mov_b32 v{vt1}, 0x3f803f80")
    k.e(f"v_cmp_le_u32_e64 s[{sVmask}:{sVmask+1}], 28, v{vt0}")
    k.e(f"v_cndmask_b32_e64 v{vVpad}, 0, v{vt1}, vcc")
    k.e(f"v_lshrrev_b32 v{vt0}, 3, v{vLane}")
    k.e(f"v_bfe_u32 v{vt1}, v{vLane}, 4, 1")
    k.e(f"v_lshlrev_b32 v{vt1}, 2, v{vt1}")
    k.e(f"v_and_b32 v{vt2}, 7, v{vLane}")
    k.e(f"v_xor_b32 v{vt1}, v{vt1}, v{vt2}")
    k.e(f"v_mul_u32_u24 v{vt0}, 896, v{vt0}")
    k.e(f"v_lshl_add_u32 v{vWoD}, v{vt1}, 4, v{vt0}")
    k.e(f"v_lshrrev_b32 v{vt0}, 5, v{vLane}")
    k.e(f"v_lshlrev_b32 v{vt0}, 2, v{vt0}")
    k.e(f"v_bfe_u32 v{vt1}, v{vLane}, 2, 2")
    k.e(f"v_add_u32 v{vt0}, v{vt0}, v{vt1}")
    k.e(f"v_lshlrev_b32 v{vt0}, 7, v{vt0}")
    k.e(f"s_and_b32 s{sT}, s{sW}, 1")
    k.e(f"s_lshl_b32 s{sT}, s{sT}, 6")
    k.e(f"v_bfe_u32 v{vt1}, v{vLane}, 4, 1")
    k.e(f"v_lshlrev_b32 v{vt1}, 5, v{vt1}")
    k.e(f"v_and_b32 v{vt2}, 3, v{vLane}")
    k.e(f"v_lshl_add_u32 v{vt1}, v{vt2}, 3, v{vt1}")
    k.e(f"v_add_u32 v{vt1}, s{sT}, v{vt1}")
    k.e(f"v_bfe_u32 v{vt2}, v{vLane}, 3, 1")
    k.e(f"v_lshlrev_b32 v{vt2}, 6, v{vt2}")
    k.e(f"v_xor_b32 v{vt1}, v{vt1}, v{vt2}")
    k.e(f"v_add_u32 v{vP3a}, v{vt0}, v{vt1}")
    k.e(f"s_lshl_b32 s{sT}, s{sW}, 2")
    k.e(f"v_add_u32 v{vt0}, s{sT}, v{vLane}")
    k.e(f"v_cmp_eq_u32 vcc, 4, v{vLane}")
    k.e(f"v_mov_b32 v{vt1}, s{sRA}")
    k.e(f"s_sub_u32 s{sT}, s{sRA}, 7")
    k.e(f"v_cndmask_b32 v{vt0}, v{vt0}, v{vt1}, vcc")
    k.e(f"v_add_u32 v{vt1}, s{sT}, v{vLane}")
    k.e(f"v_max_i32 v{vt1}, 0, v{vt1}")
    k.e(f"v_add_u32 v{vt1}, 128, v{vt1}")
    k.e(f"v_cmp_lt_u32 vcc, 4, v{vLane}")
    k.e(f"s_lshl_b32 s{sT}, s{sU}, 4")
    k.e(f"s_nop 0")
    k.e(f"v_cndmask_b32 v{vt0}, v{vt0}, v{vt1}, vcc")
    k.e(f"v_add_u32 v{vt0}, s{sT}, v{vt0}")
    k.e(f"v_lshlrev_b32 v{vFlB}, 7, v{vt0}")
    k.e(f"v_add_u32 v{vFlB}, {FP1_OFF}, v{vFlB}")
    k.e(f"v_lshrrev_b32 v{vt0}, 3, v{vLane}")
    k.e(f"s_lshl_b32 s{sT}, s{sU}, 2")
    k.e(f"v_add_u32 v{vt0}, s{sT}, v{vt0}")
    k.e(f"v_lshlrev_b32 v{vt0}, 7, v{vt0}")
    k.e(f"v_and_b32 v{vt1}, 7, v{vLane}")
    k.e(f"v_lshl_add_u32 v{vt0}, v{vt1}, 2, v{vt0}")
    k.e(f"v_add_u32 v{vCen}, {CEN_OFF}, v{vt0}")
    k.e(f"s_lshl_b32 s{sKVB}, s{sHead}, 18")
    k.e(f"s_lshl_b32 s{sT}, s{sW}, 16")
    k.e(f"s_add_u32 s{sKVB}, s{sKVB}, s{sT}")
    k.e(f"s_mov_b32 s{sRot}, 0")
    k.e(f"v_and_b32 v{vt0}, 31, v{vLane}")
    k.e(f"v_lshrrev_b32 v{vt1}, 5, v{vLane}")
    k.e(f"v_lshlrev_b32 v{vt1}, 2, v{vt1}")
    k.e(f"v_sub_u32 v{vt0}, v{vt0}, v{vt1}")
    k.e(f"v_mov_b32 v{vt1}, {f2u(NEGBIG):#x}")
    prs = [sMk, sMk + 2, sMk + 4]
    def cmpm(i):
        b = 8 * (i // 4) + (i % 4); p = prs[i % 3]
        k.e(f"v_cmp_le_i32_e64 s[{p}:{p+1}], {b}, v{vt0}")
    cmpm(0); cmpm(1)
    for i in range(16):
        if i + 2 < 16: cmpm(i + 2)
        else: k.nop(1)
        p = prs[i % 3]
        k.e(f"v_cndmask_b32_e64 v{vDiag+i}, v{vt1}, 0, s[{p}:{p+1}]")
    rest1 = None
    L1 = dma_list(1)
    for f in L1[5:]: f()

    def rd_list(g, ks):
        slot = g % 3; par = ks % 2
        L = [f"ds_read_b128 v[{vXf+4*par}:{vXf+4*par+3}], v{vXr+ks} offset:{slot*XSLOT}"]
        for hh in range(2):
            for sec in range(3):
                areg = vWr + hh + (2 if slot == 2 else 0)
                base = (slot % 2 if slot < 2 else 0) * WSLOT + ks * 6144 + sec * 2048
                d = vWf + 24 * par + 12 * hh + 4 * sec
                L.append(f"ds_read_b64_tr_b16 v[{d}:{d+1}], v{areg} offset:{base}")
                L.append(f"ds_read_b64_tr_b16 v[{d+2}:{d+3}], v{areg} offset:{base+512}")
        return L
    def mf_list(g, ks):
        first = (g == 0 and ks == 0); par = ks % 2
        xf = vr(vXf + 4 * par, 4)
        L = []
        for hh in range(2):
            for sec, nm in enumerate("QKV"):
                wf = vr(vWf + 24 * par + 12 * hh + 4 * sec, 4)
                d = vr(acc[(hh, nm)], 16); c = "0" if first else d
                L.append(f"v_mfma_f32_32x32x16_bf16 {d}, {xf}, {wf}, {c}" if nm == "V" else f"v_mfma_f32_32x32x16_bf16 {d}, {wf}, {xf}, {c}")
        return L
    def interleave(mf, rds, tok_need, extra):
        k.wait(lg=tok_need)
        t = None; ri = 0
        for i, m in enumerate(mf):
            k.e(m)
            n = (len(rds) - ri + (len(mf) - i) - 1) // (len(mf) - i)
            for _ in range(n):
                t = k.lg(rds[ri]); ri += 1
            if extra and i % 2 == 1: extra.pop(0)()
        return t
    pend = None; nonce_tok = None
    for g in range(7):
        k.c(f"---- chunk {g}")
        k.wait(vm=dma_tok[g])
        k.wait_all(vm=False, lg=True)
        k.e("s_barrier")
        if g in BARS: stamp(k, f"bar{g}")
        ex = dma_list(g + 2) if g + 2 < 7 else []
        r0 = rd_list(g, 0)
        if pend is None:
            for r_ in r0: tok = k.lg(r_)
            ex.pop(0)()
        else:
            tok = interleave(mf_list(*pend), r0, None, ex)
        if g == 2:
            k.e(f"v_mov_b32 v{vt0}, 0")
            k.e(f"global_load_dword v{vt3}, v{vt0}, s[18:19] sc1")
            k.vm_n += 1; nonce_tok = k.vm_n
        if g == 3:
            Ln = k.newlabel("n"); Lnd = k.newlabel("nd"); Lc = k.newlabel("cen")
            k.wait(vm=nonce_tok)
            k.e(f"v_readfirstlane_b32 s{sNonce}, v{vt3}")
            k.e(f"s_mov_b32 s{sSpin}, 0")
            k.e(f"s_cmp_lg_u32 s{sNonce}, 0")
            k.e(f"s_cbranch_scc1 {Lnd}")
            k.label(Ln)
            k.e(f"global_load_dword v{vt3}, v{vt0}, s[18:19] sc1")
            k.e(f"s_add_u32 s{sSpin}, s{sSpin}, 1")
            k.e(f"s_waitcnt vmcnt(0)")
            k.e(f"v_readfirstlane_b32 s{sNonce}, v{vt3}")
            k.e(f"s_cmp_gt_u32 s{sSpin}, {SPIN_MAX}")
            k.e(f"s_cbranch_scc1 {Lnd}")
            k.e(f"s_cmp_eq_u32 s{sNonce}, 0")
            k.e(f"s_cbranch_scc1 {Ln}")
            k.label(Lnd)
            k.e(f"s_add_u32 s{sT}, s{sXcc}, 1")
            k.e(f"s_lshl_b32 s{sT}, s{sT}, 24")
            k.e(f"s_add_u32 s{sFast}, s{sNonce}, s{sT}")
            k.e(f"s_lshr_b32 s{sT}, s2, 3")
            k.e(f"s_lshr_b32 s{sT2}, s{sT}, 3")
            k.e(f"s_lshl_b32 s{sT3}, s{sU}, 2")
            k.e(f"s_add_u32 s{sT2}, s{sT2}, s{sT3}")
            k.e(f"s_lshl_b32 s{sT2}, s{sT2}, 7")
            k.e(f"s_and_b32 s{sT}, s{sT}, 7")
            k.e(f"s_lshl_b32 s{sT}, s{sT}, 2")
            k.e(f"s_add_u32 s{sT2}, s{sT2}, s{sT}")
            k.e(f"s_add_u32 s{sT2}, s{sT2}, {CEN_OFF}")
            k.e(f"s_cmp_eq_u32 s{sW}, 0")
            k.e(f"s_cselect_b32 s{sT2}, s{sT2}, {WS_BYTES}")
            k.e(f"v_mov_b32 v{vt0}, 0")
            k.e(f"v_mov_b32 v{vt1}, s{sFast}")
            k.e(f"s_mov_b64 exec, 1")
            k.vm(f"buffer_store_dword v{vt1}, v{vt0}, {WS}, s{sT2} offen sc1")
            k.e(f"s_mov_b64 exec, -1")
        if g == 4:
            poll4_issue(k, vFlB, 232, 0xff)
        if g == 6:
            k.e(f"s_mov_b64 exec, 0xffffffff")
            cen_tok = k.vm(f"buffer_load_dword v{vt3}, v{vCen}, {WS}, 0 offen sc1")
            k.e(f"s_mov_b64 exec, -1")
        for ks in range(3):
            tok = interleave(mf_list(g, ks), rd_list(g, ks + 1), tok, ex)
        while ex: ex.pop(0)()
        pend = (g, 3)
        ptok = tok
    k.wait(lg=ptok)
    for m in mf_list(*pend): k.e(m)
    stamp(k, "mfma done")
    def F(hh, nm): return vF + 24 * hh + 8 * "KVQ".index(nm)
    sQs = sMk + 2
    k.e(f"s_mov_b32 s{sQs}, {f2u(QSCALE):#x}")
    k.nop(2)
    k.wait(vm=cen_tok)
    k.e(f"s_mov_b64 exec, 0xffffffff")
    k.e(f"v_cmp_ne_u32 vcc, s{sFast}, v{vt3}")
    k.e(f"s_mov_b64 exec, -1")
    k.e(f"s_cmp_eq_u64 vcc, 0")
    k.e(f"s_cselect_b32 s{sFast}, 1, 0")
    if 'slow' in DBG: k.e(f"s_mov_b32 s{sFast}, 0")
    if STAMP: k.e(f"v_writelane_b32 v{St.v}, s{sFast}, 31")
    for hh in range(2):
        aK, aQ = acc[(hh, "K")], acc[(hh, "Q")]
        fK, fQ = F(hh, "K"), F(hh, "Q")
        for j in range(8): k.e(f"v_cvt_pk_bf16_f32 v{fK+j}, v{aK+2*j}, v{aK+2*j+1}")
        for j in range(0, 16, 2):
            k.e(f"v_pk_mul_f32 v[{aQ+j}:{aQ+j+1}], v[{aQ+j}:{aQ+j+1}], s[{sQs}:{sQs+1}] op_sel_hi:[1,0]")
        for j in range(8): k.e(f"v_cvt_pk_bf16_f32 v{fQ+j}, v{aQ+2*j}, v{aQ+2*j+1}")
        k.e("s_mov_b32 exec_lo, 0")
        k.e(f"v_mov_b32 v{fK+6}, 0x3f803f80")
        k.e(f"v_mov_b32 v{fK+7}, 0x00003f80")
        k.e(f"v_mov_b32 v{fQ+6}, 0")
        k.e(f"v_mov_b32 v{fQ+7}, 0")
        k.e("s_mov_b32 exec_lo, -1")
    k.e(f"s_cmp_eq_u32 s{sBeta}, 1")
    k.e(f"s_cselect_b32 s{sT}, 1.0, 0")
    for i in range(0, 16, 2):
        k.e(f"v_pk_mul_f32 v[{vS1+i}:{vS1+i+1}], v[{vDiag+i}:{vDiag+i+1}], s[{sT}:{sT+1}] op_sel_hi:[1,0]")
    k.nop(2)
    for hh in range(2):
        S = acc[(hh, "K")]
        mfma(k, vr(S, 16), vr(F(hh, "K"), 4), vr(F(hh, "Q"), 4), vr(vS1, 16))
        mfma(k, vr(S, 16), vr(F(hh, "K") + 4, 4), vr(F(hh, "Q") + 4, 4), vr(S, 16))
    for hh in range(2):
        aV = acc[(hh, "V")]; fV = F(hh, "V")
        for j in range(8): k.e(f"v_cvt_pk_bf16_f32 v{fV+j}, v{aV+2*j}, v{aV+2*j+1}")
        for j in range(8): k.e(f"v_cndmask_b32_e64 v{fV+j}, v{fV+j}, v{vVpad}, s[{sVmask}:{sVmask+1}]")
    for hh in range(2):
        S = acc[(hh, "K")]; fQ = F(hh, "Q")
        colmax(k, S, vt3, vt0)
        k.e(f"v_add_f32 v{vt3}, {f2u(MARGIN):#x}, v{vt3}")
        shift_dwords(k, vt3, vt0, vt1, vt2)
        k.e("s_mov_b32 exec_lo, 0")
        k.e(f"v_mov_b32 v{fQ+6}, v{vt0}")
        k.e(f"v_mov_b32 v{fQ+7}, v{vt1}")
        k.e("s_mov_b32 exec_lo, -1")
    stamp(k, "epilogue")
    k.e(f"s_lshl_b32 s{sT}, s{sBeta}, 3")
    k.e(f"s_add_u32 s{sT}, s{sT}, s{sU}")
    k.e(f"s_lshl_b32 s{sT}, s{sT}, 4")
    k.e(f"s_add_u32 s{sT}, s{sT}, s{sR}")
    k.e(f"s_lshl_b32 s{sT}, s{sT}, 7")
    k.e(f"s_lshl_b32 s{sT2}, s{sW}, 2")
    k.e(f"s_add_u32 s{sT}, s{sT}, s{sT2}")
    k.e(f"s_add_u32 s{sFOB}, s{sT}, {FP1_OFF}")
    Lslow = k.newlabel("slow"); Lst = k.newlabel("stored")
    k.e(f"s_cmp_eq_u32 s{sFast}, 0")
    k.e(f"s_cbranch_scc1 {Lslow}")
    def qkv_stores(flag):
        for hh in range(2):
            for nm in "KVQ":
                f = F(hh, nm); d = dsts[3 * hh + "KVQ".index(nm)]
                k.e(f"buffer_store_dwordx4 v[{f}:{f+3}], v{vSt}, {WS}, s{d} offen {flag}")
                k.e(f"buffer_store_dwordx4 v[{f+4}:{f+7}], v{vSt}, {WS}, s{d} offen offset:1024 {flag}")
        k.e(f"v_mov_b32 v{vt0}, 0")
        k.e(f"v_mov_b32 v{vt1}, s{sNonce}")
        k.e(f"s_waitcnt vmcnt(0)")
        k.e(f"s_mov_b64 exec, 1")
        k.e(f"buffer_store_dword v{vt1}, v{vt0}, {WS}, s{sFOB} offen {flag}")
        k.e(f"s_mov_b64 exec, -1")
    if 'ant' in DBG:
        Lnt = k.newlabel("ant")
        k.e(f"s_cmp_eq_u32 s{sBeta}, 1")
        k.e(f"s_cbranch_scc1 {Lnt}")
        qkv_stores("")
        k.e(f"s_branch {Lst}")
        k.label(Lnt)
        qkv_stores("nt")
    else:
        qkv_stores("")
    k.e(f"s_branch {Lst}")
    k.label(Lslow)
    qkv_stores("sc1")
    k.label(Lst)
    k.vm_n += 13; k.vm_done = k.vm_n - 1
    stamp(k, "flag stored")
    k.e("s_barrier")
    vRed, vRedR, vQA, vOf, vO01, vQ, vS, vP, vO23 = 16, 17, 20, 28, 36, 68, 100, 132, 148
    vPR0, vPR1, vPT = 180, 184, 188
    vTmp = vS
    def vOd(d): return (vO01 + 16 * d) if d < 2 else (vO23 + 16 * (d - 2))
    qtok = {}; ktok = {}; vtok = {}
    sTq = [0, 98, 99]
    def tile_items(i):
        def f(j):
            def g_():
                if j == 0 or j == 2:
                    k.e(f"s_add_u32 s{sT}, s{sRot}, {i}")
                    k.e(f"s_and_b32 s{sT}, s{sT}, 15")
                    k.e(f"s_lshl_b32 s{sT}, s{sT}, 12")
                    k.e(f"s_add_u32 s{sTq[1]}, s{sT}, s{sKVB}")
                t = k.vm(f"buffer_load_dwordx4 a[{16*i+4*j}:{16*i+4*j+3}], v{vSt}, {WS}, s{sTq[1]} offen offset:{1024*j} sc1")
                if j == 1: ktok[i] = t
                if j == 3: vtok[i] = t
            return g_
        return [f(j) for j in range(4)]
    def q_items(d):
        def f(j):
            def g_():
                if j == 0:
                    k.e(f"s_add_u32 s{sT}, s{sW}, {d}")
                    k.e(f"s_and_b32 s{sT}, s{sT}, 3")
                    k.e(f"s_lshl_b32 s{sT2}, s{sRA}, 2")
                    k.e(f"s_add_u32 s{sT}, s{sT}, s{sT2}")
                    k.e(f"s_lshl_b32 s{sT2}, s{sHead}, 6")
                    k.e(f"s_add_u32 s{sT}, s{sT}, s{sT2}")
                    k.e(f"s_lshl_b32 s{sTq[1]}, s{sT}, 11")
                    k.e(f"s_add_u32 s{sTq[1]}, s{sTq[1]}, {Q_OFF['B']}")
                t = k.vm(f"buffer_load_dwordx4 v[{vQ+8*d+4*j}:{vQ+8*d+4*j+3}], v{vSt}, {WS}, s{sTq[1]} offen offset:{1024*j} sc1")
                if j == 1: qtok[d] = t
            return g_
        return [f(0), f(1)]
    WOB_L, WOA_L = 0, 57344
    def wo_items(srdn, lbase):
        def one(j):
            def f():
                if j == 0:
                    k.e(f"s_lshl_b32 s{sMk}, s{sCT}, 7")
                    k.e(f"s_mul_i32 s{sMk+1}, s{sW}, {112*896}")
                    k.e(f"s_add_u32 s{sMk}, s{sMk}, s{sMk+1}")
                    k.e(f"s_mul_i32 s{sMk+1}, s{sW}, {112*128}")
                    k.e(f"s_add_u32 s{sMk+1}, s{sMk+1}, {lbase}")
                k.e(f"s_add_u32 m0, s{sMk+1}, {1024*j}")
                k.e(f"s_add_u32 s{sMk+4}, s{sMk}, {8*896*j}")
                return k.vm(f"buffer_load_dwordx4 v{vWoD}, s[{srdn}:{srdn+3}], s{sMk+4} offen lds")
            return f
        return [one(j) for j in range(14)]
    k.e(f"s_add_u32 s{SRD_XB}, s20, s{sKVB}")
    k.e(f"s_addc_u32 s{SRD_XB+1}, s21, 0")
    k.e(f"s_and_b32 s{SRD_XB+1}, s{SRD_XB+1}, 0xffff")
    tp = poll4_issue(k, vFlB, vPR0, 0xff)
    poll4_finish(k, tp, vFlB, vPR0, vPR1, vPT, 0xff, "pb")
    stamp(k, "P1 flags")
    k.e(f"s_mov_b32 s{SRD_XB+2}, 0x10000")
    k.e(f"s_mov_b32 s{SRD_XB+3}, 0x20000")
    t0i = tile_items(0)
    for f in q_items(1) + t0i[:2] + q_items(2) + t0i[2:] + q_items(3): f()
    vOA = 224; vEdge = 192
    kt = {}; vt = {}; st = {}
    def bop(i, d):
        return dict(K=(ar(16*i, 4), ar(16*i+4, 4)), V=(ar(16*i+8, 4), ar(16*i+12, 4)),
                    Q=(vr(vQ+8*d, 4), vr(vQ+8*d+4, 4)), O=vr(vOd(d), 16), C="0", first=(i == 0),
                    wK=(lambda i=i, d=d: max(ktok[i], qtok[d])), wV=(lambda i=i: vtok[i]))
    def aslot(j): return j % 3
    lk = {}; lv = {}
    def aop(j):
        a = aslot(j)
        C = vr(vEdge, 16) if j == 0 else vr(vDiag, 16) if j == 8 else "0"
        return dict(K=(ar(16*a, 4), ar(16*a+4, 4)), V=(ar(16*a+8, 4), ar(16*a+12, 4)), Q=(vr(vQA, 4), vr(vQA+4, 4)),
                    O=vr(vOA, 16), C=C, first=(j == 0), lK=(lambda j=j: lk[j]), lV=(lambda j=j: lv[j]))
    A0 = int(os.environ.get('A0', '12'))
    NT1 = A0 // 4
    ops = [bop(i, d) for i in range(NT1) for d in (1, 2, 3, 0)] + [aop(j) for j in range(9)] + [bop(i, d) for i in range(NT1, 16) for d in (1, 2, 3, 0)]
    N = len(ops)
    vKVr = 191
    def rdKa(j):
        a = aslot(j)
        k.lg(f"ds_read_b128 a[{16*a}:{16*a+3}], v{vKVr} offset:{j*4096}")
        lk[j] = k.lg(f"ds_read_b128 a[{16*a+4}:{16*a+7}], v{vKVr} offset:{j*4096+1024}")
    def rdVa(j):
        a = aslot(j)
        k.lg(f"ds_read_b128 a[{16*a+8}:{16*a+11}], v{vKVr} offset:{j*4096+2048}")
        lv[j] = k.lg(f"ds_read_b128 a[{16*a+12}:{16*a+15}], v{vKVr} offset:{j*4096+3072}")
    sPB, sPA, sPW, sPO, sMW = 98, 99, sMk, sMk + 1, sMk + 4
    SRD_KV = SRD_XB
    vWoD2 = 208
    k.e(f"v_add_u32 v{vWoD2}, {8*896-1024}, v{vWoD}")
    KVS = f"s[{SRD_KV}:{SRD_KV+3}]"
    def b_pair(i, h):
        def prep():
            if h == 0: k.e(f"s_mov_b32 s{sPB}, {4096*i}")
        def issue():
            k.vm(f"buffer_load_dwordx4 a[{16*i+8*h}:{16*i+8*h+3}], v{vSt}, {KVS}, s{sPB} offen offset:{2048*h} sc1")
            t = k.vm(f"buffer_load_dwordx4 a[{16*i+8*h+4}:{16*i+8*h+7}], v{vSt}, {KVS}, s{sPB} offen offset:{2048*h+1024} sc1")
            (ktok if h == 0 else vtok)[i] = t
        return prep, issue
    def a_pair(i, h):
        def prep():
            if h == 0:
                k.e(f"s_mul_i32 s{sT}, s{sW}, 3")
                k.e(f"s_lshl_b32 s{sT2}, s{sRA}, 2")
                k.e(f"s_add_u32 s{sT}, s{sT}, s{sT2}")
                k.e(f"s_add_i32 s{sT2}, s{sT}, {i-8}")
                k.e(f"s_lshl_b32 s{sPA}, s{sT2}, 12")
                k.e(f"s_add_u32 s{sPA}, s{sPA}, s{sKV}")
                k.e(f"s_cmp_lt_i32 s{sT2}, 0")
                k.e(f"s_cselect_b32 s{sPA}, {WS_BYTES}, s{sPA}")
            k.e(f"s_mul_i32 s{sT}, s{sW}, {3*4096}")
            k.e(f"s_add_u32 m0, s{sT}, {SCR + i*4096}")
        def issue():
            k.vm(f"buffer_load_dwordx4 v{vSt}, {WS}, s{sPA} offen offset:{2048*h} sc1 lds")
            st["ad"] = k.vm(f"buffer_load_dwordx4 v{vSt}, {WS}, s{sPA} offen offset:{2048*h+1024} sc1 lds")
        return prep, issue
    def qa_pair():
        def prep():
            k.e(f"s_lshl_b32 s{sT2}, s{sHead}, 6")
            k.e(f"s_add_u32 s{sT2}, s{sT2}, s{sTTA}")
            k.e(f"s_lshl_b32 s{sPA}, s{sT2}, 11")
            k.e(f"s_add_u32 s{sPA}, s{sPA}, {Q_OFF['A']}")
        def issue():
            k.vm(f"buffer_load_dwordx4 v[{vQA}:{vQA+3}], v{vSt}, {WS}, s{sPA} offen sc1")
            st["qa"] = k.vm(f"buffer_load_dwordx4 v[{vQA+4}:{vQA+7}], v{vSt}, {WS}, s{sPA} offen offset:1024 sc1")
        return prep, issue
    def wo_pair(srdn, lbase, j):
        def prep():
            if j == 0:
                k.e(f"s_lshl_b32 s{sT}, s{sCT}, 7")
                k.e(f"s_mul_i32 s{sT2}, s{sW}, {112*896}")
                k.e(f"s_add_u32 s{sPW}, s{sT}, s{sT2}")
                k.e(f"s_mul_i32 s{sMW}, s{sW}, {112*128}")
                k.e(f"s_add_u32 s{sMW}, s{sMW}, {lbase}")
            else:
                k.e(f"s_add_u32 s{sPW}, s{sPW}, {16*896}")
            k.e(f"s_add_u32 m0, s{sMW}, {2048*j}")
        def issue():
            k.vm(f"buffer_load_dwordx4 v{vWoD}, s[{srdn}:{srdn+3}], s{sPW} offen lds")
            st["wo"] = k.vm(f"buffer_load_dwordx4 v{vWoD2}, s[{srdn}:{srdn+3}], s{sPW} offen offset:1024 lds")
        return prep, issue
    at = {}
    def oa_pair(p):
        def prep():
            if p == 0:
                k.e(f"s_lshl_b32 s{sT}, s{sP3T}, 1")
                k.e(f"s_lshr_b32 s{sT2}, s{sW}, 1")
                k.e(f"s_add_u32 s{sTT}, s{sT}, s{sT2}")
                k.e(f"s_lshl_b32 s{sPO}, s{sTT}, 15")
                k.e(f"s_add_u32 s{sPO}, s{sPO}, {O_OFF['A']}")
            elif p % 2 == 0:
                k.e(f"s_add_u32 s{sPO}, s{sPO}, 4096")
        def issue():
            o = 2048 * (p % 2)
            at[2*p] = k.vm(f"buffer_load_dwordx4 a[{8*p}:{8*p+3}], v{vSt}, {WS}, s{sPO} offen offset:{o} sc1")
            at[2*p+1] = k.vm(f"buffer_load_dwordx4 a[{8*p+4}:{8*p+7}], v{vSt}, {WS}, s{sPO} offen offset:{o+1024} sc1")
        return prep, issue
    def q_pair(d):
        a, b = q_items(d)
        return (lambda: None), (lambda: (a(), b()))
    strB = []
    strB.append((-1,) + q_pair(0) + (-1,))
    for i in range(1, 16):
        use = 4 * i if i < NT1 else 4 * i + 9
        strB.append((max(use - 14, 0),) + b_pair(i, 0) + (use - 5,)); strB.append((max(use - 13, 0),) + b_pair(i, 1) + (use - 3,))
    strA = [(1,) + qa_pair() + (A0 - 12,)] + [(1,) + a_pair(i, h) + (A0 - 12 + 2 * i + h,) for i in range(3) for h in range(2)]
    strW = [(A0 - 2,) + wo_pair(SRD_WOA, WOA_L, j) + (55 + j,) for j in range(7)] + [(A0 - 2,) + wo_pair(SRD_WOB, WOB_L, j) + (62 + j,) for j in range(7)]
    strO = []
    if 'l1hit' in DBG:
        def b_pair(i, h):
            def prep(): pass
            def issue():
                k.vm(f"buffer_load_dwordx4 a[{16*i+8*h}:{16*i+8*h+3}], v{vSt}, {KVS}, 0 offen offset:0")
                t = k.vm(f"buffer_load_dwordx4 a[{16*i+8*h+4}:{16*i+8*h+7}], v{vSt}, {KVS}, 0 offen offset:1024")
                (ktok if h == 0 else vtok)[i] = t
            return prep, issue
        pass
    if 'nob' in DBG:
        for i in range(1, 16): ktok[i] = 0; vtok[i] = 0
        strB = [(-1, lambda: None, lambda: None, -1)]
    if 'nowo' in DBG:
        strW = []; st["wo"] = 0
    cur = {"item": None}
    def pick(n, g):
        cand = [q for q in (strB, strA, strW, strO) if q and q[0][0] <= n]
        if not cand: return None
        cand.sort(key=lambda q: q[0][3])
        q = cand[0]
        if g == 2 and q[0][3] > n + 2: return None
        return q.pop(0)
    vR1, vR2, vR3 = 189, 190, 191
    def red_addr():
        for d, vv in ((1, vR1), (2, vR2), (3, vR3)):
            k.e(f"s_add_u32 s{sT}, s{sW}, {d}")
            k.e(f"s_and_b32 s{sT}, s{sT}, 3")
            k.e(f"s_mul_i32 s{sT}, s{sT}, {3*4096}")
            k.e(f"s_add_u32 s{sT}, s{sT}, {SCR + (d-1)*4096}")
            k.e(f"v_add_u32 v{vv}, s{sT}, v{vSt}")
        k.e(f"s_mul_i32 s{sT}, s{sW}, {3*4096}")
        k.e(f"s_add_u32 s{sT}, s{sT}, {SCR}")
        k.e(f"v_add_u32 v{vRedR}, s{sT}, v{vSt}")
    def red_write(d, i):
        vv = {1: vR1, 2: vR2, 3: vR3}[d]
        k.lg(f"ds_write_b128 v{vv}, v[{vOd(d)+4*i}:{vOd(d)+4*i+3}] offset:{1024*i}")
    def o_flag_offsets():
        k.e(f"s_lshl_b32 s{sFOA}, s{sTTA}, 2")
        k.e(f"s_lshr_b32 s{sT}, s{sHead}, 2")
        k.e(f"s_add_u32 s{sFOA}, s{sFOA}, s{sT}")
        k.e(f"s_lshl_b32 s{sFOA}, s{sFOA}, 7")
        k.e(f"s_and_b32 s{sT}, s{sHead}, 3")
        k.e(f"s_lshl_b32 s{sT}, s{sT}, 2")
        k.e(f"s_add_u32 s{sFOA}, s{sFOA}, s{sT}")
        k.e(f"s_add_u32 s{sFOB}, s{sFOA}, {FO_OFF}")
        k.e(f"s_add_u32 s{sFOA}, s{sFOA}, {FO_OFF + 64*4*128}")
    SL = eval(os.environ.get("SLOTS", "()"))
    k.e(f"s_lshl_b32 s{sKV}, s{sHead}, 18")
    k.e(f"s_add_u32 s{sKV}, s{sKV}, {KV_OFF['A']}")
    def shadowB(n, g):
        if g % 2 == 0:
            if cur["item"] is not None:
                cur["item"][2](); cur["item"] = None
            if g == 0 and n in SL: stamp(k, f"slot{n}")
        else:
            ng, nn = (g + 1) % 4, n + (1 if g == 3 else 0)
            ok = True
            if ng == 0 and nn + 1 >= N: ok = False
            if ng == 2 and nn < 1: ok = False
            if nn > N: ok = False
            if ok and cur["item"] is None:
                it = pick(nn, ng)
                if it:
                    it[1](); cur["item"] = it
            if n >= 0:
                for j in range(9):
                    if j > 0 and g == 3 and n == A0 + j - 3: rdKa(j)
                    if g == 1 and n == A0 + j: rdVa(j)
                if n == N - 1: pass
    def extraB(n, g):
        if n < 0: return
        if g == 1 and n == A0 - 3:
            assert not strA
            k.wait(vm=max(st["ad"], st["qa"]))
            k.e("s_barrier")
            k.e(f"s_lshl_b32 s{sT}, s{sW}, 12")
            k.e(f"s_add_u32 s{sT}, s{sT}, {SCR}")
            k.e(f"v_add_u32 v{vKVr}, s{sT}, v{vSt}")
            rdKa(0)
            k.e(f"v_mov_b32 v{vt1}, {f2u(NEGBIG):#x}")
            for i in range(16): k.e(f"v_sub_f32 v{vEdge+i}, v{vt1}, v{vDiag+i}")
        if g == 1 and n == A0 + 11:
            finalize_o(k, vOA, vt0, vt1, vOf)
            k.e(f"s_lshl_b32 s{sT}, s{sTTA}, 4")
            k.e(f"s_add_u32 s{sT}, s{sT}, s{sHead}")
            k.e(f"s_lshl_b32 s{sOo}, s{sT}, 11")
            k.e(f"s_add_u32 s{sOo}, s{sOo}, {O_OFF['A']}")
            k.vm(f"buffer_store_dwordx4 v[{vOf}:{vOf+3}], v{vSt}, {WS}, s{sOo} offen sc1")
            st["oa"] = k.vm(f"buffer_store_dwordx4 v[{vOf+4}:{vOf+7}], v{vSt}, {WS}, s{sOo} offen offset:1024 sc1")
            o_flag_offsets()
        if g == 1 and n == A0 + 19:
            k.wait(vm=st["oa"])
            store_flag(k, vt0, vt1, sFOA)
            k.e(f"s_lshl_b32 s{sT}, s{sP3T}, 3")
            k.e(f"v_add_u32 v{vFlB}, s{sT}, v{vLane}")
            k.e(f"v_lshlrev_b32 v{vFlB}, 7, v{vFlB}")
            k.e(f"v_add_u32 v{vFlA}, {FO_OFF + 64*4*128}, v{vFlB}")
            k.e(f"v_add_u32 v{vFlB}, {FO_OFF}, v{vFlB}")
        if g == 1 and n == max(42, A0 + 28):
            st["pOA"] = poll4_issue(k, vFlA, vPR0, 0xff)
        if g == 1 and n == max(47, A0 + 33):
            poll4_finish(k, st["pOA"], vFlA, vPR0, vPR1, vPT, 0xff, "poA")
            if 'noo' in DBG:
                for p in range(32): at[p] = 0
                k.e(f"s_mov_b32 s{sTT}, 0")
            else: strO.extend([(n + 1,) + oa_pair(p) + (min(n + 4 + 2 * p, 72),) for p in range(16)])
        if g == 1 and n == N - 8:
            red_addr()
        if n == N - 1: red_write(1, g)
        if n == N and g < 2:
            red_write(2, 2 * g); red_write(2, 2 * g + 1)
    it = pick(-1, 0); it[1](); cur["item"] = it
    attn_pipeline(k, ops, vS, vP, shadowB, extraB)
    assert cur['item'] is None
    assert not strB and not strA and not strW and not strO, (len(strB), len(strA), len(strW), len(strO))
    stamp(k, "attn done")
    k.nop(8)
    for i in range(4): red_write(3, i)
    k.wait_all(vm=False)
    k.e("s_barrier")
    for j in range(3):
        for i in range(4):
            k.lg(f"ds_read_b128 v[{vTmp+16*j+4*i}:{vTmp+16*j+4*i+3}], v{vRedR} offset:{4096*j+1024*i}")
    for j in range(3):
        k.wait(lg=k.lg_n - 4 * (2 - j))
        for i in range(0, 16, 2):
            k.e(f"v_pk_add_f32 v[{vOd(0)+i}:{vOd(0)+i+1}], v[{vOd(0)+i}:{vOd(0)+i+1}], v[{vTmp+16*j+i}:{vTmp+16*j+i+1}]")
    finalize_o(k, vOd(0), vt0, vt1, vOf)
    k.e(f"s_lshl_b32 s{sT}, s{sTTA}, 4")
    k.e(f"s_add_u32 s{sT}, s{sT}, s{sHead}")
    k.e(f"s_lshl_b32 s{sOo}, s{sT}, 11")
    k.e(f"s_add_u32 s{sOo}, s{sOo}, {O_OFF['B']}")
    k.vm(f"buffer_store_dwordx4 v[{vOf}:{vOf+3}], v{vSt}, {WS}, s{sOo} offen sc1")
    ob = k.vm(f"buffer_store_dwordx4 v[{vOf+4}:{vOf+7}], v{vSt}, {WS}, s{sOo} offen offset:1024 sc1")
    stamp(k, "O(B) stored")
    def cleanup():
        vC = 100
        for i in range(6):
            k.vm(f"buffer_load_dwordx4 v[{vC+8*i}:{vC+8*i+3}], v{vSt}, {WS}, s{dsts[i]} offen sc1")
            t = k.vm(f"buffer_load_dwordx4 v[{vC+8*i+4}:{vC+8*i+7}], v{vSt}, {WS}, s{dsts[i]} offen offset:1024 sc1")
        return vC, t
    def cleanup_stores(vC, t):
        k.wait(vm=t)
        for i in range(6):
            k.vm(f"buffer_store_dwordx4 v[{vC+8*i}:{vC+8*i+3}], v{vSt}, {WS}, s{dsts[i]} offen sc1")
            k.vm(f"buffer_store_dwordx4 v[{vC+8*i+4}:{vC+8*i+7}], v{vSt}, {WS}, s{dsts[i]} offen offset:1024 sc1")
    Lp3 = k.newlabel("p3")
    k.e(f"s_cmp_lt_u32 s2, 224")
    k.e(f"s_cbranch_scc1 {Lp3}")
    k.e("s_waitcnt vmcnt(0)")
    k.e(f"v_mov_b32 v{vt0}, 0")
    k.e(f"v_mov_b32 v{vt1}, s{sNonce}")
    k.e(f"s_mov_b64 exec, 1")
    k.e(f"buffer_store_dword v{vt1}, v{vt0}, {WS}, s{sFOB} offen sc1")
    k.e(f"s_mov_b64 exec, -1")
    if 'wb' in DBG:
        Lw = k.newlabel("nowb")
        k.e(f"s_lshr_b32 s{sT}, s2, 3")
        k.e(f"s_lshl_b32 s{sT}, s{sT}, 2")
        k.e(f"s_add_u32 s{sT}, s{sT}, s{sW}")
        k.e(f"s_cmp_lg_u32 s{sT}, {28*4}")
        k.e(f"s_cbranch_scc1 {Lw}")
        k.e(f"s_waitcnt vmcnt(0)")
        k.e(f"buffer_wbl2 sc1")
        k.e(f"s_waitcnt vmcnt(0)")
        k.label(Lw)
    k.e(f"s_endpgm")
    k.label(Lp3)
    vWrB, vWrA, vWrBc, vWrAc, vOr, vOut = 16, 17, 18, 19, 189, 190
    k.e(f"v_mov_b32 v{vWrB}, v{vP3a}")
    k.e(f"v_add_u32 v{vWrA}, {WOA_L}, v{vP3a}")
    k.e(f"v_lshrrev_b32 v{vt0}, 5, v{vLane}")
    k.e(f"v_lshlrev_b32 v{vt0}, 9, v{vt0}")
    k.e(f"v_sub_u32 v{vWrBc}, v{vWrB}, v{vt0}")
    k.e(f"v_sub_u32 v{vWrAc}, v{vWrA}, v{vt0}")
    k.e(f"v_and_b32 v{vt0}, 31, v{vLane}")
    k.e(f"v_mul_u32_u24 v{vt0}, 1792, v{vt0}")
    k.e(f"v_lshrrev_b32 v{vt1}, 5, v{vLane}")
    k.e(f"v_lshl_add_u32 v{vOut}, v{vt1}, 4, v{vt0}")
    NB = 4
    vA3, vB3, vD3, vPk = 36, 52, 68, 84
    def rdA(step, vW, vWc):
        hd, kk = step // 2, step % 2
        par = step % NB
        row = 28 * hd + 16 * kk
        a2 = vWc if (hd == 15 and kk == 1) else vW
        k.lg(f"ds_read_b64_tr_b16 v[{vA3+4*par}:{vA3+4*par+1}], v{vW} offset:{row*128}")
        return k.lg(f"ds_read_b64_tr_b16 v[{vA3+4*par+2}:{vA3+4*par+3}], v{a2} offset:{(row+8)*128}")
    def out_store(b):
        k.nop(12)
        for i in range(8): k.e(f"v_cvt_pk_bf16_f32 v{vPk+i}, v{vD3+2*i}, v{vD3+2*i+1}")
        k.e(f"s_lshl_b32 s{sT2}, s{sCT}, 1")
        k.e(f"s_and_b32 s{sT}, s{sW}, 1")
        k.e(f"s_add_u32 s{sT2}, s{sT2}, s{sT}")
        k.e(f"v_permlane32_swap_b32 v{vPk}, v{vPk+2}")
        k.e(f"v_permlane32_swap_b32 v{vPk+1}, v{vPk+3}")
        k.e(f"v_permlane32_swap_b32 v{vPk+4}, v{vPk+6}")
        k.e(f"v_permlane32_swap_b32 v{vPk+5}, v{vPk+7}")
        k.e(f"s_mul_i32 s{sOo}, s{sTT}, {32*1792}")
        k.e(f"s_lshl_b32 s{sT}, s{sT2}, 6")
        k.e(f"s_add_u32 s{sOo}, s{sOo}, s{sT}")
        if b == "B": k.e(f"s_add_u32 s{sOo}, s{sOo}, 896")
        k.vm(f"buffer_store_dwordx4 v[{vPk}:{vPk+3}], v{vOut}, s[{SRD_OUT}:{SRD_OUT+3}], s{sOo} offen nt")
        k.vm(f"buffer_store_dwordx4 v[{vPk+4}:{vPk+7}], v{vOut}, s[{SRD_OUT}:{SRD_OUT+3}], s{sOo} offen offset:32 nt")
    k.c("---- P3 A  (wo(A) was waited for long ago by later counted waits; make it explicit)")
    k.wait(vm=st["wo"])
    k.e("s_barrier")
    toks = {}
    for s_ in range(NB - 1): toks[s_] = rdA(s_, vWrA, vWrAc)
    for step in range(32):
        k.wait(vm=at[step], lg=toks[step])
        par = step % NB
        mfma(k, vr(vD3, 16), vr(vA3 + 4 * par, 4), ar(4 * step, 4), "0" if step == 0 else vr(vD3, 16))
        if step + NB - 1 < 32: toks[step + NB - 1] = rdA(step + NB - 1, vWrA, vWrAc)
    k.wait(vm=ob)
    store_flag(k, vt0, vt1, sFOB)
    tpB = poll4_issue(k, vFlB, vPR0, 0xff)
    out_store("A")
    stamp(k, "P3A done")
    k.e("s_barrier")
    poll4_finish(k, tpB, vFlB, vPR0, vPR1, vPT, 0xff, "poB")
    stamp(k, "P3B flags")
    k.e(f"s_lshl_b32 s{sOo}, s{sP3T}, 16")
    k.e(f"s_add_u32 s{sOo}, s{sOo}, {O_OFF['B']}")
    k.e(f"s_lshl_b32 s{sT}, s{sW}, 14")
    k.e(f"s_add_u32 s{sOo}, s{sOo}, s{sT}")
    k.e(f"s_add_u32 s{sT2}, s{sT}, {WOA_L}")
    for j in range(16):
        if j % 4 == 0:
            k.e(f"s_add_u32 m0, s{sT2}, {1024*j}")
            k.e(f"s_add_u32 s{sT}, s{sOo}, {1024*j}")
        k.vm(f"buffer_load_dwordx4 v{vSt}, {WS}, s{sT} offen offset:{1024*(j%4)} sc1 lds")
    otB = k.vm_n
    if 'clean' in DBG: cleanup_stores(vC, tC)
    k.e(f"s_lshr_b32 s{sT}, s{sW}, 1")
    k.e(f"s_lshl_b32 s{sT}, s{sT}, 15")
    k.e(f"s_add_u32 s{sT}, s{sT}, {WOA_L}")
    k.e(f"v_add_u32 v{vOr}, s{sT}, v{vSt}")
    toks = {}
    for s_ in range(NB - 1): toks[s_] = rdA(s_, vWrB, vWrBc)
    k.wait(vm=otB)
    k.e("s_barrier")
    stamp(k, "P3B data")
    tb = {}
    def rdB(step):
        par = step % NB
        return k.lg(f"ds_read_b128 v[{vB3+4*par}:{vB3+4*par+3}], v{vOr} offset:{step*1024}")
    for s_ in range(NB - 1): tb[s_] = rdB(s_)
    for step in range(32):
        k.wait(lg=max(toks[step], tb[step]))
        par = step % NB
        mfma(k, vr(vD3, 16), vr(vA3 + 4 * par, 4), vr(vB3 + 4 * par, 4), "0" if step == 0 else vr(vD3, 16))
        if step + NB - 1 < 32:
            toks[step + NB - 1] = rdA(step + NB - 1, vWrB, vWrBc)
            tb[step + NB - 1] = rdB(step + NB - 1)
    out_store("B")
    stamp(k, "P3B done")
    stamp(k, "rt", True)
    stamp_flush(k, vt0, vt1)
    k.label("L_end")
    k.e("s_endpgm")
    return k

HEADER = open("cdna_kernels/" + NAME + ".s.ref").read().split("; Override")[0]

def main(out):
    k = gen()
    pr = check(k.L, "fused")
    for p in pr: print(p)
    print("instrs", len(k.L), "stamps", St.n, St.names)
    s = HEADER
    s += "; @launch grid=(256,1,1) block=(256,1,1) lds=163840\n"
    s += '.amdgcn_target "amdgcn-amd-amdhsa--gfx950"\n.text\n'
    s += f".globl {KNAME}\n.p2align 8\n.type {KNAME},@function\n{KNAME}:\n" + k.text()
    s += f""".section .rodata,"a"
.p2align 6
.amdhsa_kernel {KNAME}
  .amdhsa_next_free_vgpr 512
  .amdhsa_next_free_sgpr 102
  .amdhsa_accum_offset 256
  .amdhsa_group_segment_fixed_size 0
  .amdhsa_kernarg_size 72
  .amdhsa_user_sgpr_count 2
  .amdhsa_user_sgpr_kernarg_segment_ptr 1
  .amdhsa_system_sgpr_workgroup_id_x 1
.end_amdhsa_kernel
"""
    open(out, "w").write(s)

if __name__ == "__main__":
    main(sys.argv[1] if len(sys.argv) > 1 else "f3.s")
```

```python
import sys, math, struct, os
sys.path.insert(0, "gen")
from asmlib import Emit, check

NAME = "concat_heads__sliding_block__softmax_full_mha__prompt"
KNAME = NAME + "_kernel"
def f2u(x): return struct.unpack("<I", struct.pack("<f", x))[0]

KV_OFF = {"B": 0, "A": 4 << 20}
O_OFF = {"B": 8 << 20, "A": 10 << 20}
Q_OFF = {"B": 12 << 20, "A": 14 << 20}
FP1_OFF = 16 << 20
FO_OFF = (16 << 20) + (256 << 10)
NONCE_OFF = (16 << 20) + (768 << 10)
CEN_OFF = (16 << 20) + (800 << 10)
STAMPS = 17 << 20
WS_BYTES = 18 << 20
X_BYTES = 2048 * 896
W_BYTES = 448 * 2688
WO_BYTES = 448 * 896
OUT_BYTES = 2048 * 1792
QSCALE = (28 ** -0.5) * math.log2(math.e)
MARGIN = 64.0
NEGBIG = -1.0e30
MAPB = os.environ.get('MAPB', '0') == '1'
STAMP = os.environ.get("STAMP", "0") in ("1", "2")
STAMPDBG = os.environ.get("STAMP", "0") == "2"
DBGWG = int(os.environ.get("DBGWG", "100"))
SKIP = set(os.environ.get("SKIP", "").split(","))
SPIN_MAX = 1 << 18
SCR = 114688

class V:
    def __init__(self, lo, hi): self.n = lo; self.hi = hi
    def a(self, cnt=1, al=1):
        self.n = (self.n + al - 1) // al * al
        r = self.n; self.n += cnt
        assert self.n <= self.hi, "out of regs"
        return r

def vr(b, n=1): return f"v{b}" if n == 1 else f"v[{b}:{b+n-1}]"
def ar(b, n=1): return f"a{b}" if n == 1 else f"a[{b}:{b+n-1}]"
def mfma(k, d, a, b, c): k.e(f"v_mfma_f32_32x32x16_bf16 {d}, {a}, {b}, {c}")

S_PTR = 4
SRD_XB, SRD_WB, SRD_WS, SRD_OUT, SRD_XA, SRD_WA = 24, 28, 32, 36, 40, 44
SRD_WO = 4
sWmask = 96
sW, sBeta, sU, sR, sT, sT2, sT3 = 48, 49, 50, 51, 52, 53, 54
sOff, sXbase, sWcol, sM0X, sM0W, sC, sXo, sWo, sWo2 = 55, 56, 57, 58, 59, 60, 61, 62, 63
sVmask = 64
sNonce = 66
sHead, sTT, sKV, sTo, sQo, sOo, sSpin = 67, 68, 69, 70, 71, 72, 73
sCT, sP3T = 74, 75
sEx = 76
sStampTmp = 78
sRA = 80
sUQ, sUK, sUV = 81, 82, 83
sFOA, sFOB, sKVB, sRot, sOffU, sTTA = 84, 85, 86, 87, 88, 89
sMk = 90
sD0 = 22
WS = f"s[{SRD_WS}:{SRD_WS+3}]"

def srd(k, s, lo, size):
    k.e(f"s_mov_b32 s{s}, s{lo}")
    k.e(f"s_and_b32 s{s+1}, s{lo+1}, 0xffff")
    k.e(f"s_mov_b32 s{s+2}, {size}")
    k.e(f"s_mov_b32 s{s+3}, 0x20000")

class St:
    n = 0; v = 15; names = []
def stamp(k, name="", rt=False):
    if not STAMP: return
    if STAMPDBG and (rt or name in SKIP): return
    i = St.n; St.n += 1; St.names.append(name)
    assert i < 32
    k.e(f"{'s_memrealtime' if rt else 's_memtime'} s[{sStampTmp}:{sStampTmp+1}]")
    k.wait_all(vm=False, lg=True)
    k.e(f"v_writelane_b32 v{St.v}, s{sStampTmp}, {i}")
def stamp_flush(k, vt0, vt1):
    if not STAMP: return
    if STAMPDBG:
        L = k.newlabel("sf")
        k.e(f"s_lshl_b32 s{sStampTmp}, s2, 2")
        k.e(f"s_add_u32 s{sStampTmp}, s{sStampTmp}, s{sW}")
        k.e(f"s_cmp_lg_u32 s{sStampTmp}, {DBGWG*4}")
        k.e(f"s_cbranch_scc1 {L}")
        k.e(f"v_readlane_b32 s{sStampTmp}, v{St.v}, 0")
        k.e(f"v_and_b32 v{vt0}, 63, v0")
        k.e(f"v_lshlrev_b32 v{vt0}, 2, v{vt0}")
        k.e(f"v_subrev_u32 v{vt1}, s{sStampTmp}, v{St.v}")
        k.e(f"s_mov_b64 exec, 0xfffe")
        k.e(f"global_store_dword v{vt0}, v{vt1}, s[18:19]")
        k.e(f"s_mov_b64 exec, -1")
        k.label(L)
        return
    k.e(f"v_lshrrev_b32 v{vt0}, 6, v0")
    k.e(f"s_lshl_b32 s{sStampTmp}, s2, 2")
    k.e(f"v_add_u32 v{vt0}, s{sStampTmp}, v{vt0}")
    k.e(f"v_lshlrev_b32 v{vt0}, 7, v{vt0}")
    k.e(f"v_and_b32 v{vt1}, 63, v0")
    k.e(f"v_lshl_add_u32 v{vt0}, v{vt1}, 2, v{vt0}")
    k.e(f"s_mov_b32 s{sStampTmp}, {STAMPS}")
    k.e(f"s_mov_b32 exec_hi, 0")
    k.vm(f"buffer_store_dword v{St.v}, v{vt0}, {WS}, s{sStampTmp} offen")
    k.e(f"s_mov_b64 exec, -1")

def build_masks(k, vDiag, vEdge, vLane, t0, t1):
    k.e(f"v_and_b32 v{t0}, 31, v{vLane}")
    k.e(f"v_lshrrev_b32 v{t1}, 5, v{vLane}")
    k.e(f"v_lshlrev_b32 v{t1}, 2, v{t1}")
    k.e(f"v_sub_u32 v{t0}, v{t0}, v{t1}")
    k.e(f"v_mov_b32 v{t1}, {f2u(NEGBIG):#x}")
    prs = [sMk, sMk + 2, sMk + 4]
    def cmp(i):
        b = 8 * (i // 4) + (i % 4); p = prs[i % 3]
        k.e(f"v_cmp_le_i32_e64 s[{p}:{p+1}], {b}, v{t0}")
    cmp(0); cmp(1)
    for i in range(16):
        if i + 2 < 16: cmp(i + 2)
        else: k.nop(1)
        p = prs[i % 3]
        k.e(f"v_cndmask_b32_e64 v{vDiag+i}, v{t1}, 0, s[{p}:{p+1}]")
        k.e(f"v_cndmask_b32_e64 v{vEdge+i}, 0, v{t1}, s[{p}:{p+1}]")

def colmax(k, vS, vm, vt):
    k.e(f"v_max3_f32 v{vm}, v{vS}, v{vS+1}, v{vS+2}")
    k.e(f"v_max3_f32 v{vt}, v{vS+3}, v{vS+4}, v{vS+5}")
    k.e(f"v_max3_f32 v{vm}, v{vm}, v{vS+6}, v{vS+7}")
    k.e(f"v_max3_f32 v{vt}, v{vt}, v{vS+8}, v{vS+9}")
    k.e(f"v_max3_f32 v{vm}, v{vm}, v{vS+10}, v{vS+11}")
    k.e(f"v_max3_f32 v{vt}, v{vt}, v{vS+12}, v{vS+13}")
    k.e(f"v_max3_f32 v{vm}, v{vm}, v{vS+14}, v{vS+15}")
    k.e(f"v_max_f32 v{vm}, v{vm}, v{vt}")
    k.e(f"v_mov_b32 v{vt}, v{vm}")
    k.nop(2)
    k.e(f"v_permlane32_swap_b32 v{vm}, v{vt}")
    k.e(f"v_max_f32 v{vm}, v{vm}, v{vt}")

def shift_dwords(k, vm, t0, t1, t2):
    k.e(f"v_and_b32 v{t0}, 0xffff0000, v{vm}")
    k.e(f"v_sub_f32 v{t1}, v{vm}, v{t0}")
    k.e(f"v_and_b32 v{t2}, 0xffff0000, v{t1}")
    k.e(f"v_sub_f32 v{t1}, v{t1}, v{t2}")
    k.e(f"v_lshrrev_b32 v{t0}, 16, v{t0}")
    k.e(f"v_or_b32 v{t0}, v{t0}, v{t2}")
    k.e(f"v_xor_b32 v{t0}, 0x80008000, v{t0}")
    k.e(f"v_lshrrev_b32 v{t1}, 16, v{t1}")
    k.e(f"v_xor_b32 v{t1}, 0x8000, v{t1}")

def poll_flags(k, vAddr, vTmp, mask64, name):
    L = k.newlabel(name); Ld = k.newlabel(name + "d")
    k.e(f"s_mov_b32 s{sSpin}, 0")
    k.e(f"s_mov_b32 exec_hi, {(mask64 >> 32) & 0xffffffff:#x}")
    k.e(f"s_mov_b32 exec_lo, {mask64 & 0xffffffff:#x}")
    k.label(L)
    k.e(f"buffer_load_dword v{vTmp}, v{vAddr}, {WS}, 0 offen sc1")
    k.e(f"s_add_u32 s{sSpin}, s{sSpin}, 1")
    k.e(f"s_waitcnt vmcnt(0)")
    k.e(f"v_cmp_ne_u32 vcc, s{sNonce}, v{vTmp}")
    k.e(f"s_cmp_gt_u32 s{sSpin}, {SPIN_MAX}")
    k.e(f"s_cbranch_scc1 {Ld}")
    k.e(f"s_cbranch_vccnz {L}")
    k.label(Ld)
    k.e(f"s_mov_b64 exec, -1")
    k.vm_done = k.vm_n

def store_flag(k, vZero, vVal, s_off):
    k.e(f"v_mov_b32 v{vZero}, 0")
    k.e(f"v_mov_b32 v{vVal}, s{sNonce}")
    k.e(f"s_mov_b64 exec, 1")
    t = k.vm(f"buffer_store_dword v{vVal}, v{vZero}, {WS}, s{s_off} offen sc1")
    k.e(f"s_mov_b64 exec, -1")
    return t

def attn_pipeline(k, ops, vS, vP, shadow, extra):
    N = len(ops)
    def val(x): return x() if callable(x) else x
    def waitK(n):
        if 0 <= n < N:
            o = ops[n]; k.wait(vm=val(o.get("wK")), lg=val(o.get("lK")))
    def waitV(n):
        if 0 <= n < N:
            o = ops[n]; k.wait(vm=val(o.get("wV")), lg=val(o.get("lV")))
    def qk(n, part):
        o = ops[n]; S = vr(vS + 16 * (n % 2), 16)
        if part == 0: mfma(k, S, o["K"][0], o["Q"][0], o["C"])
        else: mfma(k, S, o["K"][1], o["Q"][1], S)
    def pv(n, part):
        o = ops[n]; P = vP + 8 * (n % 2)
        if part == 0: mfma(k, o["O"], o["V"][0], vr(P, 4), "0" if o["first"] else o["O"])
        else: mfma(k, o["O"], o["V"][1], vr(P + 4, 4), o["O"])
    def expgrp(n, g):
        S = vS + 16 * (n % 2); P = vP + 8 * (n % 2)
        for i in range(4):
            k.e(f"v_exp_f32 v{S+4*g+i}, v{S+4*g+i}")
        k.e(f"v_cvt_pk_bf16_f32 v{P+2*g}, v{S+4*g}, v{S+4*g+1}")
        k.e(f"v_cvt_pk_bf16_f32 v{P+2*g+1}, v{S+4*g+2}, v{S+4*g+3}")
    waitK(0)
    for n in range(-1, N + 1):
        has_exp = 0 <= n < N
        for g in range(4):
            if g < 2 and n + 1 < N: qk(n + 1, g)
            if g >= 2 and 0 <= n - 1: pv(n - 1, g - 2)
            if g == 1: waitV(n - 1)
            if g == 3: waitK(n + 2)
            shadow(n, g)
            if has_exp: expgrp(n, g)
            extra(n, g)
        if n == -1: k.nop(12)
        if n == N - 1: k.nop(2)

def finalize_o(k, vO, vt0, vt1, vOf):
    k.e(f"v_mov_b32 v{vt0}, v{vO+12}")
    k.e(f"v_mov_b32 v{vt1}, v{vO+12}")
    k.nop(2)
    k.e(f"v_permlane32_swap_b32 v{vt0}, v{vt1}")
    k.e(f"v_rcp_f32 v{vt1}, v{vt1}")
    k.nop(1)
    for i in range(16):
        k.e(f"v_mul_f32 v{vO+i}, v{vO+i}, v{vt1}")
    for i in range(8):
        k.e(f"v_cvt_pk_bf16_f32 v{vOf+i}, v{vO+2*i}, v{vO+2*i+1}")
    k.e("s_mov_b32 exec_lo, 0")
    k.e(f"v_mov_b32 v{vOf+6}, 0")
    k.e(f"v_mov_b32 v{vOf+7}, 0")
    k.e("s_mov_b32 exec_lo, -1")

def div6(k, dst, src, tmp):
    k.e(f"s_mul_i32 s{dst}, s{src}, 43")
    k.e(f"s_lshr_b32 s{dst}, s{dst}, 8")


def async_poll_issue(k, vAddr, vRes, mask64):
    k.e(f"s_mov_b32 exec_hi, {(mask64 >> 32) & 0xffffffff:#x}")
    k.e(f"s_mov_b32 exec_lo, {mask64 & 0xffffffff:#x}")
    t = k.vm(f"buffer_load_dword v{vRes}, v{vAddr}, {WS}, 0 offen sc1")
    k.e(f"s_mov_b64 exec, -1")
    return t

def async_poll_check(k, tok, vAddr, vRes, mask64, name):
    L = k.newlabel(name); Ld = k.newlabel(name + "d")
    k.wait(vm=tok)
    k.e(f"s_mov_b32 exec_hi, {(mask64 >> 32) & 0xffffffff:#x}")
    k.e(f"s_mov_b32 exec_lo, {mask64 & 0xffffffff:#x}")
    k.e(f"v_cmp_ne_u32 vcc, s{sNonce}, v{vRes}")
    k.e(f"s_mov_b32 s{sSpin}, 0")
    k.e(f"s_cbranch_vccz {Ld}")
    k.label(L)
    k.e(f"buffer_load_dword v{vRes}, v{vAddr}, {WS}, 0 offen sc1")
    k.e(f"s_add_u32 s{sSpin}, s{sSpin}, 1")
    k.e(f"s_waitcnt vmcnt(0)")
    k.e(f"v_cmp_ne_u32 vcc, s{sNonce}, v{vRes}")
    k.e(f"s_cmp_gt_u32 s{sSpin}, {SPIN_MAX}")
    k.e(f"s_cbranch_scc1 {Ld}")
    k.e(f"s_cbranch_vccnz {L}")
    k.label(Ld)
    k.e(f"s_mov_b64 exec, -1")

def chk4(k, vR, vT):
    k.e(f"v_xor_b32 v{vT}, s{sNonce}, v{vR}")
    k.e(f"v_xor_b32 v{vR+1}, s{sNonce}, v{vR+1}")
    k.e(f"v_xor_b32 v{vR+2}, s{sNonce}, v{vR+2}")
    k.e(f"v_xor_b32 v{vR+3}, s{sNonce}, v{vR+3}")
    k.e(f"v_or3_b32 v{vT}, v{vT}, v{vR+1}, v{vR+2}")
    k.e(f"v_or_b32 v{vT}, v{vT}, v{vR+3}")
    k.e(f"v_cmp_ne_u32 vcc, 0, v{vT}")

def poll4_issue(k, vAddr, vR, mask):
    k.e(f"s_mov_b64 exec, {mask:#x}")
    t = k.vm(f"buffer_load_dwordx4 v[{vR}:{vR+3}], v{vAddr}, {WS}, 0 offen sc1")
    k.e(f"s_mov_b64 exec, -1")
    return t

def poll4_finish(k, tok, vAddr, vR0, vR1, vT, mask, name):
    L = k.newlabel(name); Ld = k.newlabel(name + "d")
    k.wait(vm=tok)
    k.e(f"s_mov_b64 exec, {mask:#x}")
    chk4(k, vR0, vT)
    k.e(f"s_mov_b32 s{sSpin}, 0")
    k.e(f"s_cbranch_vccz {Ld}")
    k.e(f"buffer_load_dwordx4 v[{vR0}:{vR0+3}], v{vAddr}, {WS}, 0 offen sc1")
    k.label(L)
    k.e(f"buffer_load_dwordx4 v[{vR1}:{vR1+3}], v{vAddr}, {WS}, 0 offen sc1")
    k.e(f"s_waitcnt vmcnt(1)")
    chk4(k, vR0, vT)
    k.e(f"s_add_u32 s{sSpin}, s{sSpin}, 1")
    k.e(f"s_cbranch_vccz {Ld}")
    k.e(f"buffer_load_dwordx4 v[{vR0}:{vR0+3}], v{vAddr}, {WS}, 0 offen sc1")
    k.e(f"s_waitcnt vmcnt(1)")
    chk4(k, vR1, vT)
    k.e(f"s_cmp_gt_u32 s{sSpin}, {SPIN_MAX}")
    k.e(f"s_cbranch_scc1 {Ld}")
    k.e(f"s_cbranch_vccnz {L}")
    k.label(Ld)
    k.e(f"s_mov_b64 exec, -1")

def div3(k, dst, src):
    k.e(f"s_mul_i32 s{dst}, s{src}, 43")
    k.e(f"s_lshr_b32 s{dst}, s{dst}, 7")


BARS = eval(os.environ.get('BARS', '(0, 1, 6)'))
DBG = os.environ.get('DBG', '')
sXcc, sFast = 100, 95
SPAN = os.environ.get('SPAN', '0') == '1'
sSp = 86

def gen():
    k = Emit()
    St.n = 0; St.names = []
    k.e("s_cmp_ge_u32 s2, 256")
    k.e("s_cbranch_scc1 L_end")
    k.e(f"s_load_dwordx16 s[{S_PTR}:{S_PTR+15}], s[0:1], 0")
    k.e(f"s_load_dwordx2 s[20:21], s[0:1], 64")
    G = V(1, 15)
    vLane = G.a(); vSt = G.a(); vt0 = G.a(); vt1 = G.a(); vt2 = G.a(); vt3 = G.a(); vWoD = G.a()
    vFlB = G.a(); vFlA = G.a(); vVpad = G.a(); vCen = G.a(); vP3a = G.a()
    SRD_X, SRD_W = SRD_XB, SRD_WB
    stamp(k, "start"); stamp(k, "rt", True)
    if SPAN:
        k.e(f"s_memrealtime s[{sSp}:{sSp+1}]")
        k.e(f"s_memtime s[{sSp+2}:{sSp+3}]")
    if SPAN:
        k.e("s_waitcnt lgkmcnt(0)")
        k.e(f"v_writelane_b32 v15, s{sSp}, 0")
        k.e(f"v_writelane_b32 v15, s{sSp+2}, 1")
    k.e(f"v_and_b32 v{vLane}, 63, v0")
    k.e(f"v_lshrrev_b32 v{vt0}, 6, v0")
    k.e(f"s_and_b32 s{sU}, s2, 7")
    k.e(f"v_readfirstlane_b32 s{sW}, v{vt0}")
    k.e(f"s_lshr_b32 s{sT2}, s2, 3")
    k.e(f"s_and_b32 s{sBeta}, s{sT2}, 1")
    k.e(f"s_lshr_b32 s{sR}, s{sT2}, 1")
    k.e(f"s_mul_i32 s{sOff}, s{sR}, 37")
    k.e(f"s_lshr_b32 s{sOff}, s{sOff}, 8")
    k.e(f"s_mul_i32 s{sOff}, s{sOff}, 7")
    k.e(f"s_sub_u32 s{sOff}, s{sR}, s{sOff}")
    k.e(f"s_mul_i32 s{sXbase}, s{sR}, {128*896}")
    k.e(f"s_mul_i32 s{sWcol}, s{sU}, 112")
    R = V(16, 256)
    vXo = R.a(4); vWo = R.a(2); vXr = R.a(4); vWr = R.a(4)
    vXf = R.a(8, 4); vWf = R.a(48, 4)
    acc = {(hh, nm): R.a(16, 4) for hh in range(2) for nm in "QKV"}
    vF = R.a(48, 4)
    vS1 = vWf
    vDiag = 240
    assert R.n <= 240, R.n
    XSLOT = 16640; WSLOT = 24576; WBASE = 3 * XSLOT
    k.e(f"v_lshrrev_b32 v{vt0}, 3, v{vLane}")
    k.e(f"v_bfe_u32 v{vt1}, v{vLane}, 4, 1")
    k.e(f"v_lshlrev_b32 v{vt1}, 2, v{vt1}")
    k.e(f"v_and_b32 v{vt2}, 7, v{vLane}")
    k.e(f"v_xor_b32 v{vt1}, v{vt1}, v{vt2}")
    k.e(f"v_lshrrev_b32 v{vt2}, 6, v0")
    k.e(f"v_lshl_add_u32 v{vt3}, v{vt2}, 5, v{vt0}")
    k.e(f"v_mul_u32_u24 v{vt3}, 896, v{vt3}")
    k.e(f"v_lshl_add_u32 v{vXo}, v{vt1}, 4, v{vt3}")
    for j in range(1, 4):
        k.e(f"v_add_u32 v{vXo+j}, {j*(8*896-1040)}, v{vXo}")
    k.e(f"v_lshl_add_u32 v{vt3}, v{vt2}, 4, v{vt0}")
    k.e(f"v_mul_u32_u24 v{vt3}, 2688, v{vt3}")
    k.e(f"v_lshl_add_u32 v{vWo}, v{vt1}, 4, v{vt3}")
    k.e(f"v_add_u32 v{vWo+1}, {8*2688-1024}, v{vWo}")
    k.e(f"s_mul_i32 s{sM0X}, s{sW}, 4160")
    k.e(f"s_mul_i32 s{sM0W}, s{sW}, 6144")
    k.e(f"s_add_u32 s{sM0W}, s{sM0W}, {WBASE}")
    k.e(f"s_getreg_b32 s{sXcc}, hwreg(HW_REG_XCC_ID)")
    k.e("s_waitcnt lgkmcnt(0)")
    k.e(f"s_cmp_eq_u32 s{sBeta}, 1")
    k.e(f"s_cselect_b32 s{SRD_X}, s4, s10")
    k.e(f"s_cselect_b32 s{SRD_X+1}, s5, s11")
    k.e(f"s_cselect_b32 s{SRD_W}, s6, s12")
    k.e(f"s_cselect_b32 s{SRD_W+1}, s7, s13")
    k.e(f"s_and_b32 s{SRD_X+1}, s{SRD_X+1}, 0xffff")
    k.e(f"s_and_b32 s{SRD_W+1}, s{SRD_W+1}, 0xffff")
    k.e(f"s_mov_b32 s{SRD_X+2}, {X_BYTES}")
    k.e(f"s_mov_b32 s{SRD_X+3}, 0x20000")
    k.e(f"s_mov_b32 s{SRD_W+2}, {W_BYTES}")
    k.e(f"s_mov_b32 s{SRD_W+3}, 0x20000")
    X = f"s[{SRD_X}:{SRD_X+3}]"; W = f"s[{SRD_W}:{SRD_W+3}]"
    dma_tok = {}
    def dma_list(g):
        slot = g % 3
        L = []
        def head():
            k.e(f"s_add_u32 s{sC}, s{sOff}, {g}")
            k.e(f"s_sub_u32 s{sT}, s{sC}, 7")
            k.e(f"s_min_u32 s{sC}, s{sC}, s{sT}")
            k.e(f"s_lshl_b32 s{sXo}, s{sC}, 7")
            k.e(f"s_add_u32 s{sXo}, s{sXo}, s{sXbase}")
            k.e(f"s_mul_i32 s{sWo}, s{sC}, {64*2688}")
            k.e(f"s_add_u32 s{sWo}, s{sWo}, s{sWcol}")
            k.e(f"s_add_u32 m0, s{sM0X}, {slot*XSLOT}")
            k.e("s_nop 0")
        def xj(j):
            def f():
                if j == 0: head()
                k.vm(f"buffer_load_dwordx4 v{vXo+j}, {X}, s{sXo} offen offset:{1040*j} lds")
            return f
        def wi(sec, half):
            def f():
                if half == 0:
                    k.e(f"s_add_u32 m0, s{sM0W}, {slot*WSLOT + sec*2048}")
                    k.e(f"s_add_u32 s{sWo2}, s{sWo}, {sec*896}")
                t = k.vm(f"buffer_load_dwordx4 v{vWo+half}, {W}, s{sWo2} offen offset:{1024*half} lds")
                if sec == 2 and half == 1: dma_tok[g] = t
            return f
        for j in range(4): L.append(xj(j))
        for sec in range(3):
            for half in range(2): L.append(wi(sec, half))
        return L
    stamp(k, "pre-dma")
    for f in dma_list(0): f()
    stamp(k, "dma0 issued")
    srd(k, SRD_WS, 20, WS_BYTES); srd(k, SRD_OUT, 16, OUT_BYTES)
    srd(k, SRD_XA, 14, WO_BYTES); srd(k, SRD_WA, 8, WO_BYTES)
    SRD_WOB, SRD_WOA = SRD_XA, SRD_WA
    k.e(f"v_lshlrev_b32 v{vSt}, 4, v{vLane}")
    Lnn = k.newlabel("nonce")
    k.e(f"s_or_b32 s{sT}, s2, s{sW}")
    k.e(f"s_cmp_lg_u32 s{sT}, 0")
    k.e(f"s_cbranch_scc1 {Lnn}")
    k.e(f"s_mov_b32 s{sT}, {NONCE_OFF}")
    k.e(f"v_mov_b32 v{vt0}, 0")
    k.e(f"buffer_load_dword v{vt1}, v{vt0}, {WS}, s{sT} offen sc1")
    k.e(f"s_waitcnt vmcnt(0)")
    k.e(f"v_add_u32 v{vt1}, 1, v{vt1}")
    k.e(f"v_max_u32 v{vt1}, 1, v{vt1}")
    k.e(f"s_mov_b64 exec, 1")
    k.e(f"global_store_dword v{vt0}, v{vt1}, s[18:19] sc1")
    k.e(f"buffer_store_dword v{vt1}, v{vt0}, {WS}, s{sT} offen sc1")
    k.e(f"s_mov_b64 exec, -1")
    k.label(Lnn)
    k.e(f"s_lshr_b32 s{sT2}, s2, 3")
    k.e(f"s_lshl_b32 s{sHead}, s{sU}, 1")
    k.e(f"s_add_u32 s{sHead}, s{sHead}, s{sBeta}")
    k.e(f"s_mov_b32 s{sRA}, s{sR}")
    k.e(f"s_mul_i32 s{sT3}, s{sT2}, 37")
    k.e(f"s_lshr_b32 s{sT3}, s{sT3}, 8")
    k.e(f"s_min_u32 s{sC}, s{sT3}, 3")
    k.e(f"s_lshl_b32 s{sP3T}, s{sU}, 2")
    k.e(f"s_add_u32 s{sP3T}, s{sP3T}, s{sC}")
    k.e(f"s_mul_i32 s{sT3}, s{sT3}, 7")
    k.e(f"s_sub_u32 s{sCT}, s{sT2}, s{sT3}")
    k.e(f"s_lshl_b32 s{sTT}, s{sR}, 2")
    k.e(f"s_add_u32 s{sTT}, s{sTT}, s{sW}")
    k.e(f"s_mov_b32 s{sTTA}, s{sTT}")
    dsts = [0, 1, 3, 22, 23, 101]
    for hh in range(2):
        k.e(f"s_lshl_b32 s{sT}, s{sU}, 1")
        k.e(f"s_add_u32 s{sT}, s{sT}, {hh}")
        k.e(f"s_lshl_b32 s{sT}, s{sT}, 6")
        k.e(f"s_add_u32 s{sT}, s{sT}, s{sTT}")
        k.e(f"s_lshl_b32 s{sT3}, s{sT}, 12")
        k.e(f"s_lshl_b32 s{sC}, s{sBeta}, 22")
        k.e(f"s_add_u32 s{dsts[3*hh]}, s{sT3}, s{sC}")
        k.e(f"s_add_u32 s{dsts[3*hh+1]}, s{dsts[3*hh]}, 2048")
        k.e(f"s_lshl_b32 s{sT3}, s{sT}, 11")
        k.e(f"s_lshl_b32 s{sC}, s{sBeta}, 21")
        k.e(f"s_add_u32 s{sT3}, s{sT3}, s{sC}")
        k.e(f"s_add_u32 s{dsts[3*hh+2]}, s{sT3}, {Q_OFF['B']}")
    k.e(f"v_and_b32 v{vt0}, 31, v{vLane}")
    k.e(f"v_lshrrev_b32 v{vt1}, 3, v{vt0}")
    k.e(f"v_mul_u32_u24 v{vt1}, 1040, v{vt1}")
    k.e(f"v_and_b32 v{vt2}, 7, v{vt0}")
    k.e(f"v_lshl_add_u32 v{vt1}, v{vt2}, 7, v{vt1}")
    k.e(f"v_add_u32 v{vt1}, s{sM0X}, v{vt1}")
    k.e(f"v_bfe_u32 v{vt2}, v{vLane}, 1, 1")
    k.e(f"v_lshlrev_b32 v{vt2}, 6, v{vt2}")
    k.e(f"v_lshrrev_b32 v{vt3}, 5, v{vLane}")
    k.e(f"v_lshlrev_b32 v{vt3}, 4, v{vt3}")
    k.e(f"v_add_u32 v{vt1}, v{vt1}, v{vt3}")
    for ks in range(4):
        k.e(f"v_xor_b32 v{vXr+ks}, {(ks >> 1) * 64}, v{vt2}")
        k.e(f"v_add_u32 v{vXr+ks}, {((2*ks) & 3) * 16}, v{vXr+ks}")
        k.e(f"v_add_u32 v{vXr+ks}, v{vXr+ks}, v{vt1}")
    k.e(f"v_lshrrev_b32 v{vt0}, 5, v{vLane}")
    k.e(f"v_lshlrev_b32 v{vt0}, 3, v{vt0}")
    k.e(f"v_bfe_u32 v{vt1}, v{vLane}, 2, 2")
    k.e(f"v_add_u32 v{vt0}, v{vt0}, v{vt1}")
    k.e(f"v_lshlrev_b32 v{vt0}, 7, v{vt0}")
    k.e(f"v_bfe_u32 v{vt1}, v{vLane}, 4, 1")
    k.e(f"v_lshlrev_b32 v{vt1}, 5, v{vt1}")
    k.e(f"v_and_b32 v{vt2}, 3, v{vLane}")
    k.e(f"v_lshl_add_u32 v{vt1}, v{vt2}, 3, v{vt1}")
    k.e(f"v_bfe_u32 v{vt2}, v{vLane}, 3, 1")
    k.e(f"v_lshlrev_b32 v{vt2}, 6, v{vt2}")
    for hh in range(2):
        k.e(f"v_add_u32 v{vt3}, {56*hh}, v{vt1}")
        k.e(f"v_xor_b32 v{vt3}, v{vt3}, v{vt2}")
        k.e(f"v_add_u32 v{vt3}, v{vt3}, v{vt0}")
        k.e(f"v_add_u32 v{vWr+hh}, {WBASE}, v{vt3}")
        k.e(f"v_add_u32 v{vWr+2+hh}, {WBASE + 2*WSLOT}, v{vt3}")
    for f in dma_list(1)[:5]: f()
    k.e(f"v_and_b32 v{vt0}, 31, v{vLane}")
    k.e(f"v_cmp_eq_u32 vcc, 28, v{vt0}")
    k.e(f"v_mov_b32 v{vt1}, 0x3f803f80")
    k.e(f"v_cmp_le_u32_e64 s[{sVmask}:{sVmask+1}], 28, v{vt0}")
    k.e(f"v_cndmask_b32_e64 v{vVpad}, 0, v{vt1}, vcc")
    k.e(f"v_lshrrev_b32 v{vt0}, 3, v{vLane}")
    k.e(f"v_bfe_u32 v{vt1}, v{vLane}, 4, 1")
    k.e(f"v_lshlrev_b32 v{vt1}, 2, v{vt1}")
    k.e(f"v_and_b32 v{vt2}, 7, v{vLane}")
    k.e(f"v_xor_b32 v{vt1}, v{vt1}, v{vt2}")
    k.e(f"v_mul_u32_u24 v{vt0}, 896, v{vt0}")
    k.e(f"v_lshl_add_u32 v{vWoD}, v{vt1}, 4, v{vt0}")
    k.e(f"v_lshrrev_b32 v{vt0}, 5, v{vLane}")
    k.e(f"v_lshlrev_b32 v{vt0}, 2, v{vt0}")
    k.e(f"v_bfe_u32 v{vt1}, v{vLane}, 2, 2")
    k.e(f"v_add_u32 v{vt0}, v{vt0}, v{vt1}")
    k.e(f"v_lshlrev_b32 v{vt0}, 7, v{vt0}")
    k.e(f"s_and_b32 s{sT}, s{sW}, 1")
    k.e(f"s_lshl_b32 s{sT}, s{sT}, 6")
    k.e(f"v_bfe_u32 v{vt1}, v{vLane}, 4, 1")
    k.e(f"v_lshlrev_b32 v{vt1}, 5, v{vt1}")
    k.e(f"v_and_b32 v{vt2}, 3, v{vLane}")
    k.e(f"v_lshl_add_u32 v{vt1}, v{vt2}, 3, v{vt1}")
    k.e(f"v_add_u32 v{vt1}, s{sT}, v{vt1}")
    k.e(f"v_bfe_u32 v{vt2}, v{vLane}, 3, 1")
    k.e(f"v_lshlrev_b32 v{vt2}, 6, v{vt2}")
    k.e(f"v_xor_b32 v{vt1}, v{vt1}, v{vt2}")
    k.e(f"v_add_u32 v{vP3a}, v{vt0}, v{vt1}")
    k.e(f"s_lshl_b32 s{sT}, s{sW}, 2")
    k.e(f"v_add_u32 v{vt0}, s{sT}, v{vLane}")
    k.e(f"v_cmp_eq_u32 vcc, 4, v{vLane}")
    k.e(f"v_mov_b32 v{vt1}, s{sRA}")
    k.e(f"s_sub_u32 s{sT}, s{sRA}, 7")
    k.e(f"v_cndmask_b32 v{vt0}, v{vt0}, v{vt1}, vcc")
    k.e(f"v_add_u32 v{vt1}, s{sT}, v{vLane}")
    k.e(f"v_max_i32 v{vt1}, 0, v{vt1}")
    k.e(f"v_add_u32 v{vt1}, 128, v{vt1}")
    k.e(f"v_cmp_lt_u32 vcc, 4, v{vLane}")
    k.e(f"s_lshl_b32 s{sT}, s{sU}, 4")
    k.e(f"s_nop 0")
    k.e(f"v_cndmask_b32 v{vt0}, v{vt0}, v{vt1}, vcc")
    k.e(f"v_add_u32 v{vt0}, s{sT}, v{vt0}")
    k.e(f"v_lshlrev_b32 v{vFlB}, 7, v{vt0}")
    k.e(f"v_add_u32 v{vFlB}, {FP1_OFF}, v{vFlB}")
    k.e(f"v_lshrrev_b32 v{vt0}, 3, v{vLane}")
    k.e(f"s_lshl_b32 s{sT}, s{sU}, 2")
    k.e(f"v_add_u32 v{vt0}, s{sT}, v{vt0}")
    k.e(f"v_lshlrev_b32 v{vt0}, 7, v{vt0}")
    k.e(f"v_and_b32 v{vt1}, 7, v{vLane}")
    k.e(f"v_lshl_add_u32 v{vt0}, v{vt1}, 2, v{vt0}")
    k.e(f"v_add_u32 v{vCen}, {CEN_OFF}, v{vt0}")
    k.e(f"s_lshl_b32 s{sKVB}, s{sHead}, 18")
    k.e(f"s_lshl_b32 s{sT}, s{sW}, 16")
    k.e(f"s_add_u32 s{sKVB}, s{sKVB}, s{sT}")
    k.e(f"s_mov_b32 s{sRot}, 0")
    k.e(f"v_and_b32 v{vt0}, 31, v{vLane}")
    k.e(f"v_lshrrev_b32 v{vt1}, 5, v{vLane}")
    k.e(f"v_lshlrev_b32 v{vt1}, 2, v{vt1}")
    k.e(f"v_sub_u32 v{vt0}, v{vt0}, v{vt1}")
    k.e(f"v_mov_b32 v{vt1}, {f2u(NEGBIG):#x}")
    prs = [sMk, sMk + 2, sMk + 4]
    def cmpm(i):
        b = 8 * (i // 4) + (i % 4); p = prs[i % 3]
        k.e(f"v_cmp_le_i32_e64 s[{p}:{p+1}], {b}, v{vt0}")
    cmpm(0); cmpm(1)
    for i in range(16):
        if i + 2 < 16: cmpm(i + 2)
        else: k.nop(1)
        p = prs[i % 3]
        k.e(f"v_cndmask_b32_e64 v{vDiag+i}, v{vt1}, 0, s[{p}:{p+1}]")
    rest1 = None
    L1 = dma_list(1)
    for f in L1[5:]: f()

    def rd_list(g, ks):
        slot = g % 3; par = ks % 2
        L = [f"ds_read_b128 v[{vXf+4*par}:{vXf+4*par+3}], v{vXr+ks} offset:{slot*XSLOT}"]
        for hh in range(2):
            for sec in range(3):
                areg = vWr + hh + (2 if slot == 2 else 0)
                base = (slot % 2 if slot < 2 else 0) * WSLOT + ks * 6144 + sec * 2048
                d = vWf + 24 * par + 12 * hh + 4 * sec
                L.append(f"ds_read_b64_tr_b16 v[{d}:{d+1}], v{areg} offset:{base}")
                L.append(f"ds_read_b64_tr_b16 v[{d+2}:{d+3}], v{areg} offset:{base+512}")
        return L
    def mf_list(g, ks):
        first = (g == 0 and ks == 0); par = ks % 2
        xf = vr(vXf + 4 * par, 4)
        L = []
        for hh in range(2):
            for sec, nm in enumerate("QKV"):
                wf = vr(vWf + 24 * par + 12 * hh + 4 * sec, 4)
                d = vr(acc[(hh, nm)], 16); c = "0" if first else d
                L.append(f"v_mfma_f32_32x32x16_bf16 {d}, {xf}, {wf}, {c}" if nm == "V" else f"v_mfma_f32_32x32x16_bf16 {d}, {wf}, {xf}, {c}")
        return L
    def interleave(mf, rds, tok_need, extra):
        k.wait(lg=tok_need)
        t = None; ri = 0
        for i, m in enumerate(mf):
            k.e(m)
            n = (len(rds) - ri + (len(mf) - i) - 1) // (len(mf) - i)
            for _ in range(n):
                t = k.lg(rds[ri]); ri += 1
            if extra and i % 2 == 1: extra.pop(0)()
        return t
    pend = None; nonce_tok = None
    for g in range(7):
        k.c(f"---- chunk {g}")
        k.wait(vm=dma_tok[g])
        k.wait_all(vm=False, lg=True)
        k.e("s_barrier")
        if g in BARS: stamp(k, f"bar{g}")
        ex = dma_list(g + 2) if g + 2 < 7 else []
        r0 = rd_list(g, 0)
        if pend is None:
            for r_ in r0: tok = k.lg(r_)
            ex.pop(0)()
        else:
            tok = interleave(mf_list(*pend), r0, None, ex)
        if g == 2:
            k.e(f"v_mov_b32 v{vt0}, 0")
            k.e(f"global_load_dword v{vt3}, v{vt0}, s[18:19] sc1")
            k.vm_n += 1; nonce_tok = k.vm_n
        if g == 3:
            Ln = k.newlabel("n"); Lnd = k.newlabel("nd"); Lc = k.newlabel("cen")
            k.wait(vm=nonce_tok)
            k.e(f"v_readfirstlane_b32 s{sNonce}, v{vt3}")
            k.e(f"s_mov_b32 s{sSpin}, 0")
            k.e(f"s_cmp_lg_u32 s{sNonce}, 0")
            k.e(f"s_cbranch_scc1 {Lnd}")
            k.label(Ln)
            k.e(f"global_load_dword v{vt3}, v{vt0}, s[18:19] sc1")
            k.e(f"s_add_u32 s{sSpin}, s{sSpin}, 1")
            k.e(f"s_waitcnt vmcnt(0)")
            k.e(f"v_readfirstlane_b32 s{sNonce}, v{vt3}")
            k.e(f"s_cmp_gt_u32 s{sSpin}, {SPIN_MAX}")
            k.e(f"s_cbranch_scc1 {Lnd}")
            k.e(f"s_cmp_eq_u32 s{sNonce}, 0")
            k.e(f"s_cbranch_scc1 {Ln}")
            k.label(Lnd)
            k.e(f"s_add_u32 s{sT}, s{sXcc}, 1")
            k.e(f"s_lshl_b32 s{sT}, s{sT}, 24")
            k.e(f"s_add_u32 s{sFast}, s{sNonce}, s{sT}")
            k.e(f"s_lshr_b32 s{sT}, s2, 3")
            k.e(f"s_lshr_b32 s{sT2}, s{sT}, 3")
            k.e(f"s_lshl_b32 s{sT3}, s{sU}, 2")
            k.e(f"s_add_u32 s{sT2}, s{sT2}, s{sT3}")
            k.e(f"s_lshl_b32 s{sT2}, s{sT2}, 7")
            k.e(f"s_and_b32 s{sT}, s{sT}, 7")
            k.e(f"s_lshl_b32 s{sT}, s{sT}, 2")
            k.e(f"s_add_u32 s{sT2}, s{sT2}, s{sT}")
            k.e(f"s_add_u32 s{sT2}, s{sT2}, {CEN_OFF}")
            k.e(f"s_cmp_eq_u32 s{sW}, 0")
            k.e(f"s_cselect_b32 s{sT2}, s{sT2}, {WS_BYTES}")
            k.e(f"v_mov_b32 v{vt0}, 0")
            k.e(f"v_mov_b32 v{vt1}, s{sFast}")
            k.e(f"s_mov_b64 exec, 1")
            k.vm(f"buffer_store_dword v{vt1}, v{vt0}, {WS}, s{sT2} offen sc1")
            k.e(f"s_mov_b64 exec, -1")
        if g == 4:
            poll4_issue(k, vFlB, 232, 0xff)
        if g == 6:
            k.e(f"s_mov_b64 exec, 0xffffffff")
            cen_tok = k.vm(f"buffer_load_dword v{vt3}, v{vCen}, {WS}, 0 offen sc1")
            k.e(f"s_mov_b64 exec, -1")
        for ks in range(3):
            tok = interleave(mf_list(g, ks), rd_list(g, ks + 1), tok, ex)
        while ex: ex.pop(0)()
        pend = (g, 3)
        ptok = tok
    k.wait(lg=ptok)
    for m in mf_list(*pend): k.e(m)
    stamp(k, "mfma done")
    def F(hh, nm): return vF + 24 * hh + 8 * "KVQ".index(nm)
    sQs = sMk + 2
    k.e(f"s_mov_b32 s{sQs}, {f2u(QSCALE):#x}")
    k.nop(2)
    k.wait(vm=cen_tok)
    k.e(f"s_mov_b64 exec, 0xffffffff")
    k.e(f"v_cmp_ne_u32 vcc, s{sFast}, v{vt3}")
    k.e(f"s_mov_b64 exec, -1")
    k.e(f"s_cmp_eq_u64 vcc, 0")
    k.e(f"s_cselect_b32 s{sFast}, 1, 0")
    if 'slow' in DBG: k.e(f"s_mov_b32 s{sFast}, 0")
    if STAMP: k.e(f"v_writelane_b32 v{St.v}, s{sFast}, 31")
    for hh in range(2):
        aK, aQ = acc[(hh, "K")], acc[(hh, "Q")]
        fK, fQ = F(hh, "K"), F(hh, "Q")
        for j in range(8): k.e(f"v_cvt_pk_bf16_f32 v{fK+j}, v{aK+2*j}, v{aK+2*j+1}")
        for j in range(0, 16, 2):
            k.e(f"v_pk_mul_f32 v[{aQ+j}:{aQ+j+1}], v[{aQ+j}:{aQ+j+1}], s[{sQs}:{sQs+1}] op_sel_hi:[1,0]")
        for j in range(8): k.e(f"v_cvt_pk_bf16_f32 v{fQ+j}, v{aQ+2*j}, v{aQ+2*j+1}")
        k.e("s_mov_b32 exec_lo, 0")
        k.e(f"v_mov_b32 v{fK+6}, 0x3f803f80")
        k.e(f"v_mov_b32 v{fK+7}, 0x00003f80")
        k.e(f"v_mov_b32 v{fQ+6}, 0")
        k.e(f"v_mov_b32 v{fQ+7}, 0")
        k.e("s_mov_b32 exec_lo, -1")
    k.e(f"s_cmp_eq_u32 s{sBeta}, 1")
    k.e(f"s_cselect_b32 s{sT}, 1.0, 0")
    for i in range(0, 16, 2):
        k.e(f"v_pk_mul_f32 v[{vS1+i}:{vS1+i+1}], v[{vDiag+i}:{vDiag+i+1}], s[{sT}:{sT+1}] op_sel_hi:[1,0]")
    k.nop(2)
    for hh in range(2):
        S = acc[(hh, "K")]
        mfma(k, vr(S, 16), vr(F(hh, "K"), 4), vr(F(hh, "Q"), 4), vr(vS1, 16))
        mfma(k, vr(S, 16), vr(F(hh, "K") + 4, 4), vr(F(hh, "Q") + 4, 4), vr(S, 16))
    for hh in range(2):
        aV = acc[(hh, "V")]; fV = F(hh, "V")
        for j in range(8): k.e(f"v_cvt_pk_bf16_f32 v{fV+j}, v{aV+2*j}, v{aV+2*j+1}")
        for j in range(8): k.e(f"v_cndmask_b32_e64 v{fV+j}, v{fV+j}, v{vVpad}, s[{sVmask}:{sVmask+1}]")
    for hh in range(2):
        S = acc[(hh, "K")]; fQ = F(hh, "Q")
        colmax(k, S, vt3, vt0)
        k.e(f"v_add_f32 v{vt3}, {f2u(MARGIN):#x}, v{vt3}")
        shift_dwords(k, vt3, vt0, vt1, vt2)
        k.e("s_mov_b32 exec_lo, 0")
        k.e(f"v_mov_b32 v{fQ+6}, v{vt0}")
        k.e(f"v_mov_b32 v{fQ+7}, v{vt1}")
        k.e("s_mov_b32 exec_lo, -1")
    stamp(k, "epilogue")
    k.e(f"s_lshl_b32 s{sT}, s{sBeta}, 3")
    k.e(f"s_add_u32 s{sT}, s{sT}, s{sU}")
    k.e(f"s_lshl_b32 s{sT}, s{sT}, 4")
    k.e(f"s_add_u32 s{sT}, s{sT}, s{sR}")
    k.e(f"s_lshl_b32 s{sT}, s{sT}, 7")
    k.e(f"s_lshl_b32 s{sT2}, s{sW}, 2")
    k.e(f"s_add_u32 s{sT}, s{sT}, s{sT2}")
    k.e(f"s_add_u32 s{sFOB}, s{sT}, {FP1_OFF}")
    Lslow = k.newlabel("slow"); Lst = k.newlabel("stored")
    k.e(f"s_cmp_eq_u32 s{sFast}, 0")
    k.e(f"s_cbranch_scc1 {Lslow}")
    def qkv_stores(flag):
        for hh in range(2):
            for nm in "KVQ":
                f = F(hh, nm); d = dsts[3 * hh + "KVQ".index(nm)]
                k.e(f"buffer_store_dwordx4 v[{f}:{f+3}], v{vSt}, {WS}, s{d} offen {flag}")
                k.e(f"buffer_store_dwordx4 v[{f+4}:{f+7}], v{vSt}, {WS}, s{d} offen offset:1024 {flag}")
        k.e(f"v_mov_b32 v{vt0}, 0")
        k.e(f"v_mov_b32 v{vt1}, s{sNonce}")
        k.e(f"s_waitcnt vmcnt(0)")
        k.e(f"s_mov_b64 exec, 1")
        k.e(f"buffer_store_dword v{vt1}, v{vt0}, {WS}, s{sFOB} offen {flag}")
        k.e(f"s_mov_b64 exec, -1")
    if 'ant' in DBG:
        Lnt = k.newlabel("ant")
        k.e(f"s_cmp_eq_u32 s{sBeta}, 1")
        k.e(f"s_cbranch_scc1 {Lnt}")
        qkv_stores("")
        k.e(f"s_branch {Lst}")
        k.label(Lnt)
        qkv_stores("nt")
    else:
        qkv_stores("")
    k.e(f"s_branch {Lst}")
    k.label(Lslow)
    qkv_stores("sc1")
    k.label(Lst)
    k.vm_n += 13; k.vm_done = k.vm_n - 1
    stamp(k, "flag stored")
    k.e("s_barrier")
    vRed, vRedR, vQA, vOf, vO01, vQ, vS, vP, vO23 = 16, 17, 20, 28, 36, 68, 100, 132, 148
    vPR0, vPR1, vPT = 180, 184, 188
    vTmp = vS
    def vOd(d): return (vO01 + 16 * d) if d < 2 else (vO23 + 16 * (d - 2))
    qtok = {}; ktok = {}; vtok = {}
    sTq = [0, 98, 99]
    def tile_items(i):
        def f(j):
            def g_():
                if j == 0 or j == 2:
                    k.e(f"s_add_u32 s{sT}, s{sRot}, {i}")
                    k.e(f"s_and_b32 s{sT}, s{sT}, 15")
                    k.e(f"s_lshl_b32 s{sT}, s{sT}, 12")
                    k.e(f"s_add_u32 s{sTq[1]}, s{sT}, s{sKVB}")
                t = k.vm(f"buffer_load_dwordx4 a[{16*i+4*j}:{16*i+4*j+3}], v{vSt}, {WS}, s{sTq[1]} offen offset:{1024*j} sc1")
                if j == 1: ktok[i] = t
                if j == 3: vtok[i] = t
            return g_
        return [f(j) for j in range(4)]
    def q_items(d):
        def f(j):
            def g_():
                if j == 0:
                    k.e(f"s_add_u32 s{sT}, s{sW}, {d}")
                    k.e(f"s_and_b32 s{sT}, s{sT}, 3")
                    k.e(f"s_lshl_b32 s{sT2}, s{sRA}, 2")
                    k.e(f"s_add_u32 s{sT}, s{sT}, s{sT2}")
                    k.e(f"s_lshl_b32 s{sT2}, s{sHead}, 6")
                    k.e(f"s_add_u32 s{sT}, s{sT}, s{sT2}")
                    k.e(f"s_lshl_b32 s{sTq[1]}, s{sT}, 11")
                    k.e(f"s_add_u32 s{sTq[1]}, s{sTq[1]}, {Q_OFF['B']}")
                t = k.vm(f"buffer_load_dwordx4 v[{vQ+8*d+4*j}:{vQ+8*d+4*j+3}], v{vSt}, {WS}, s{sTq[1]} offen offset:{1024*j} sc1")
                if j == 1: qtok[d] = t
            return g_
        return [f(0), f(1)]
    WOB_L, WOA_L = 0, 57344
    def wo_items(srdn, lbase):
        def one(j):
            def f():
                if j == 0:
                    k.e(f"s_lshl_b32 s{sMk}, s{sCT}, 7")
                    k.e(f"s_mul_i32 s{sMk+1}, s{sW}, {112*896}")
                    k.e(f"s_add_u32 s{sMk}, s{sMk}, s{sMk+1}")
                    k.e(f"s_mul_i32 s{sMk+1}, s{sW}, {112*128}")
                    k.e(f"s_add_u32 s{sMk+1}, s{sMk+1}, {lbase}")
                k.e(f"s_add_u32 m0, s{sMk+1}, {1024*j}")
                k.e(f"s_add_u32 s{sMk+4}, s{sMk}, {8*896*j}")
                return k.vm(f"buffer_load_dwordx4 v{vWoD}, s[{srdn}:{srdn+3}], s{sMk+4} offen lds")
            return f
        return [one(j) for j in range(14)]
    k.e(f"s_add_u32 s{SRD_XB}, s20, s{sKVB}")
    k.e(f"s_addc_u32 s{SRD_XB+1}, s21, 0")
    k.e(f"s_and_b32 s{SRD_XB+1}, s{SRD_XB+1}, 0xffff")
    tp = poll4_issue(k, vFlB, vPR0, 0xff)
    poll4_finish(k, tp, vFlB, vPR0, vPR1, vPT, 0xff, "pb")
    stamp(k, "P1 flags")
    k.e(f"s_mov_b32 s{SRD_XB+2}, 0x10000")
    k.e(f"s_mov_b32 s{SRD_XB+3}, 0x20000")
    t0i = tile_items(0)
    for f in q_items(1) + t0i[:2] + q_items(2) + t0i[2:] + q_items(3): f()
    vOA = 224; vEdge = 192
    kt = {}; vt = {}; st = {}
    def bop(i, d):
        return dict(K=(ar(16*i, 4), ar(16*i+4, 4)), V=(ar(16*i+8, 4), ar(16*i+12, 4)),
                    Q=(vr(vQ+8*d, 4), vr(vQ+8*d+4, 4)), O=vr(vOd(d), 16), C="0", first=(i == 0),
                    wK=(lambda i=i, d=d: max(ktok[i], qtok[d])), wV=(lambda i=i: vtok[i]))
    def aslot(j): return j % 3
    lk = {}; lv = {}
    def aop(j):
        a = aslot(j)
        C = vr(vEdge, 16) if j == 0 else vr(vDiag, 16) if j == 8 else "0"
        return dict(K=(ar(16*a, 4), ar(16*a+4, 4)), V=(ar(16*a+8, 4), ar(16*a+12, 4)), Q=(vr(vQA, 4), vr(vQA+4, 4)),
                    O=vr(vOA, 16), C=C, first=(j == 0), lK=(lambda j=j: lk[j]), lV=(lambda j=j: lv[j]))
    A0 = int(os.environ.get('A0', '12'))
    NT1 = A0 // 4
    ops = [bop(i, d) for i in range(NT1) for d in (1, 2, 3, 0)] + [aop(j) for j in range(9)] + [bop(i, d) for i in range(NT1, 16) for d in (1, 2, 3, 0)]
    N = len(ops)
    vKVr = 191
    def rdKa(j):
        a = aslot(j)
        k.lg(f"ds_read_b128 a[{16*a}:{16*a+3}], v{vKVr} offset:{j*4096}")
        lk[j] = k.lg(f"ds_read_b128 a[{16*a+4}:{16*a+7}], v{vKVr} offset:{j*4096+1024}")
    def rdVa(j):
        a = aslot(j)
        k.lg(f"ds_read_b128 a[{16*a+8}:{16*a+11}], v{vKVr} offset:{j*4096+2048}")
        lv[j] = k.lg(f"ds_read_b128 a[{16*a+12}:{16*a+15}], v{vKVr} offset:{j*4096+3072}")
    sPB, sPA, sPW, sPO, sMW = 98, 99, sMk, sMk + 1, sMk + 4
    SRD_KV = SRD_XB
    vWoD2 = 208
    k.e(f"v_add_u32 v{vWoD2}, {8*896-1024}, v{vWoD}")
    KVS = f"s[{SRD_KV}:{SRD_KV+3}]"
    def b_pair(i, h):
        def prep():
            if h == 0: k.e(f"s_mov_b32 s{sPB}, {4096*i}")
        def issue():
            k.vm(f"buffer_load_dwordx4 a[{16*i+8*h}:{16*i+8*h+3}], v{vSt}, {KVS}, s{sPB} offen offset:{2048*h} sc1")
            t = k.vm(f"buffer_load_dwordx4 a[{16*i+8*h+4}:{16*i+8*h+7}], v{vSt}, {KVS}, s{sPB} offen offset:{2048*h+1024} sc1")
            (ktok if h == 0 else vtok)[i] = t
        return prep, issue
    def a_pair(i, h):
        def prep():
            if h == 0:
                k.e(f"s_mul_i32 s{sT}, s{sW}, 3")
                k.e(f"s_lshl_b32 s{sT2}, s{sRA}, 2")
                k.e(f"s_add_u32 s{sT}, s{sT}, s{sT2}")
                k.e(f"s_add_i32 s{sT2}, s{sT}, {i-8}")
                k.e(f"s_lshl_b32 s{sPA}, s{sT2}, 12")
                k.e(f"s_add_u32 s{sPA}, s{sPA}, s{sKV}")
                k.e(f"s_cmp_lt_i32 s{sT2}, 0")
                k.e(f"s_cselect_b32 s{sPA}, {WS_BYTES}, s{sPA}")
            k.e(f"s_mul_i32 s{sT}, s{sW}, {3*4096}")
            k.e(f"s_add_u32 m0, s{sT}, {SCR + i*4096}")
        def issue():
            k.vm(f"buffer_load_dwordx4 v{vSt}, {WS}, s{sPA} offen offset:{2048*h} sc1 lds")
            st["ad"] = k.vm(f"buffer_load_dwordx4 v{vSt}, {WS}, s{sPA} offen offset:{2048*h+1024} sc1 lds")
        return prep, issue
    def qa_pair():
        def prep():
            k.e(f"s_lshl_b32 s{sT2}, s{sHead}, 6")
            k.e(f"s_add_u32 s{sT2}, s{sT2}, s{sTTA}")
            k.e(f"s_lshl_b32 s{sPA}, s{sT2}, 11")
            k.e(f"s_add_u32 s{sPA}, s{sPA}, {Q_OFF['A']}")
        def issue():
            k.vm(f"buffer_load_dwordx4 v[{vQA}:{vQA+3}], v{vSt}, {WS}, s{sPA} offen sc1")
            st["qa"] = k.vm(f"buffer_load_dwordx4 v[{vQA+4}:{vQA+7}], v{vSt}, {WS}, s{sPA} offen offset:1024 sc1")
        return prep, issue
    def wo_pair(srdn, lbase, j):
        def prep():
            if j == 0:
                k.e(f"s_lshl_b32 s{sT}, s{sCT}, 7")
                k.e(f"s_mul_i32 s{sT2}, s{sW}, {112*896}")
                k.e(f"s_add_u32 s{sPW}, s{sT}, s{sT2}")
                k.e(f"s_mul_i32 s{sMW}, s{sW}, {112*128}")
                k.e(f"s_add_u32 s{sMW}, s{sMW}, {lbase}")
            else:
                k.e(f"s_add_u32 s{sPW}, s{sPW}, {16*896}")
            k.e(f"s_add_u32 m0, s{sMW}, {2048*j}")
        def issue():
            k.vm(f"buffer_load_dwordx4 v{vWoD}, s[{srdn}:{srdn+3}], s{sPW} offen lds")
            st["wo"] = k.vm(f"buffer_load_dwordx4 v{vWoD2}, s[{srdn}:{srdn+3}], s{sPW} offen offset:1024 lds")
        return prep, issue
    at = {}
    def oa_pair(p):
        def prep():
            if p == 0:
                k.e(f"s_lshl_b32 s{sT}, s{sP3T}, 1")
                k.e(f"s_lshr_b32 s{sT2}, s{sW}, 1")
                k.e(f"s_add_u32 s{sTT}, s{sT}, s{sT2}")
                k.e(f"s_lshl_b32 s{sPO}, s{sTT}, 15")
                k.e(f"s_add_u32 s{sPO}, s{sPO}, {O_OFF['A']}")
            elif p % 2 == 0:
                k.e(f"s_add_u32 s{sPO}, s{sPO}, 4096")
        def issue():
            o = 2048 * (p % 2)
            at[2*p] = k.vm(f"buffer_load_dwordx4 a[{8*p}:{8*p+3}], v{vSt}, {WS}, s{sPO} offen offset:{o} sc1")
            at[2*p+1] = k.vm(f"buffer_load_dwordx4 a[{8*p+4}:{8*p+7}], v{vSt}, {WS}, s{sPO} offen offset:{o+1024} sc1")
        return prep, issue
    def q_pair(d):
        a, b = q_items(d)
        return (lambda: None), (lambda: (a(), b()))
    strB = []
    strB.append((-1,) + q_pair(0) + (-1,))
    for i in range(1, 16):
        use = 4 * i if i < NT1 else 4 * i + 9
        strB.append((max(use - 14, 0),) + b_pair(i, 0) + (use - 5,)); strB.append((max(use - 13, 0),) + b_pair(i, 1) + (use - 3,))
    strA = [(1,) + qa_pair() + (A0 - 12,)] + [(1,) + a_pair(i, h) + (A0 - 12 + 2 * i + h,) for i in range(3) for h in range(2)]
    strW = [(A0 - 2,) + wo_pair(SRD_WOA, WOA_L, j) + (55 + j,) for j in range(7)] + [(A0 - 2,) + wo_pair(SRD_WOB, WOB_L, j) + (62 + j,) for j in range(7)]
    strO = []
    if 'l1hit' in DBG:
        def b_pair(i, h):
            def prep(): pass
            def issue():
                k.vm(f"buffer_load_dwordx4 a[{16*i+8*h}:{16*i+8*h+3}], v{vSt}, {KVS}, 0 offen offset:0")
                t = k.vm(f"buffer_load_dwordx4 a[{16*i+8*h+4}:{16*i+8*h+7}], v{vSt}, {KVS}, 0 offen offset:1024")
                (ktok if h == 0 else vtok)[i] = t
            return prep, issue
        pass
    if 'nob' in DBG:
        for i in range(1, 16): ktok[i] = 0; vtok[i] = 0
        strB = [(-1, lambda: None, lambda: None, -1)]
    if 'nowo' in DBG:
        strW = []; st["wo"] = 0
    cur = {"item": None}
    def pick(n, g):
        cand = [q for q in (strB, strA, strW, strO) if q and q[0][0] <= n]
        if not cand: return None
        cand.sort(key=lambda q: q[0][3])
        q = cand[0]
        if g == 2 and q[0][3] > n + 2: return None
        return q.pop(0)
    vR1, vR2, vR3 = 189, 190, 191
    def red_addr():
        for d, vv in ((1, vR1), (2, vR2), (3, vR3)):
            k.e(f"s_add_u32 s{sT}, s{sW}, {d}")
            k.e(f"s_and_b32 s{sT}, s{sT}, 3")
            k.e(f"s_mul_i32 s{sT}, s{sT}, {3*4096}")
            k.e(f"s_add_u32 s{sT}, s{sT}, {SCR + (d-1)*4096}")
            k.e(f"v_add_u32 v{vv}, s{sT}, v{vSt}")
        k.e(f"s_mul_i32 s{sT}, s{sW}, {3*4096}")
        k.e(f"s_add_u32 s{sT}, s{sT}, {SCR}")
        k.e(f"v_add_u32 v{vRedR}, s{sT}, v{vSt}")
    def red_write(d, i):
        vv = {1: vR1, 2: vR2, 3: vR3}[d]
        k.lg(f"ds_write_b128 v{vv}, v[{vOd(d)+4*i}:{vOd(d)+4*i+3}] offset:{1024*i}")
    def o_flag_offsets():
        k.e(f"s_lshl_b32 s{sFOA}, s{sTTA}, 2")
        k.e(f"s_lshr_b32 s{sT}, s{sHead}, 2")
        k.e(f"s_add_u32 s{sFOA}, s{sFOA}, s{sT}")
        k.e(f"s_lshl_b32 s{sFOA}, s{sFOA}, 7")
        k.e(f"s_and_b32 s{sT}, s{sHead}, 3")
        k.e(f"s_lshl_b32 s{sT}, s{sT}, 2")
        k.e(f"s_add_u32 s{sFOA}, s{sFOA}, s{sT}")
        k.e(f"s_add_u32 s{sFOB}, s{sFOA}, {FO_OFF}")
        k.e(f"s_add_u32 s{sFOA}, s{sFOA}, {FO_OFF + 64*4*128}")
    SL = eval(os.environ.get("SLOTS", "()"))
    k.e(f"s_lshl_b32 s{sKV}, s{sHead}, 18")
    k.e(f"s_add_u32 s{sKV}, s{sKV}, {KV_OFF['A']}")
    def shadowB(n, g):
        if g % 2 == 0:
            if cur["item"] is not None:
                cur["item"][2](); cur["item"] = None
            if g == 0 and n in SL: stamp(k, f"slot{n}")
        else:
            ng, nn = (g + 1) % 4, n + (1 if g == 3 else 0)
            ok = True
            if ng == 0 and nn + 1 >= N: ok = False
            if ng == 2 and nn < 1: ok = False
            if nn > N: ok = False
            if ok and cur["item"] is None:
                it = pick(nn, ng)
                if it:
                    it[1](); cur["item"] = it
            if n >= 0:
                for j in range(9):
                    if j > 0 and g == 3 and n == A0 + j - 3: rdKa(j)
                    if g == 1 and n == A0 + j: rdVa(j)
                if n == N - 1: pass
    def extraB(n, g):
        if n < 0: return
        if g == 1 and n == A0 - 3:
            assert not strA
            k.wait(vm=max(st["ad"], st["qa"]))
            k.e("s_barrier")
            k.e(f"s_lshl_b32 s{sT}, s{sW}, 12")
            k.e(f"s_add_u32 s{sT}, s{sT}, {SCR}")
            k.e(f"v_add_u32 v{vKVr}, s{sT}, v{vSt}")
            rdKa(0)
            k.e(f"v_mov_b32 v{vt1}, {f2u(NEGBIG):#x}")
            for i in range(16): k.e(f"v_sub_f32 v{vEdge+i}, v{vt1}, v{vDiag+i}")
        if g == 1 and n == A0 + 11:
            finalize_o(k, vOA, vt0, vt1, vOf)
            k.e(f"s_lshl_b32 s{sT}, s{sTTA}, 4")
            k.e(f"s_add_u32 s{sT}, s{sT}, s{sHead}")
            k.e(f"s_lshl_b32 s{sOo}, s{sT}, 11")
            k.e(f"s_add_u32 s{sOo}, s{sOo}, {O_OFF['A']}")
            k.vm(f"buffer_store_dwordx4 v[{vOf}:{vOf+3}], v{vSt}, {WS}, s{sOo} offen sc1")
            st["oa"] = k.vm(f"buffer_store_dwordx4 v[{vOf+4}:{vOf+7}], v{vSt}, {WS}, s{sOo} offen offset:1024 sc1")
            o_flag_offsets()
        if g == 1 and n == A0 + 19:
            k.wait(vm=st["oa"])
            store_flag(k, vt0, vt1, sFOA)
            k.e(f"s_lshl_b32 s{sT}, s{sP3T}, 3")
            k.e(f"v_add_u32 v{vFlB}, s{sT}, v{vLane}")
            k.e(f"v_lshlrev_b32 v{vFlB}, 7, v{vFlB}")
            k.e(f"v_add_u32 v{vFlA}, {FO_OFF + 64*4*128}, v{vFlB}")
            k.e(f"v_add_u32 v{vFlB}, {FO_OFF}, v{vFlB}")
        if g == 1 and n == max(42, A0 + 28):
            st["pOA"] = poll4_issue(k, vFlA, vPR0, 0xff)
        if g == 1 and n == max(47, A0 + 33):
            poll4_finish(k, st["pOA"], vFlA, vPR0, vPR1, vPT, 0xff, "poA")
            if 'noo' in DBG:
                for p in range(32): at[p] = 0
                k.e(f"s_mov_b32 s{sTT}, 0")
            else: strO.extend([(n + 1,) + oa_pair(p) + (min(n + 4 + 2 * p, 72),) for p in range(16)])
        if g == 1 and n == N - 8:
            red_addr()
        if n == N - 1: red_write(1, g)
        if n == N and g < 2:
            red_write(2, 2 * g); red_write(2, 2 * g + 1)
    it = pick(-1, 0); it[1](); cur["item"] = it
    attn_pipeline(k, ops, vS, vP, shadowB, extraB)
    assert cur['item'] is None
    assert not strB and not strA and not strW and not strO, (len(strB), len(strA), len(strW), len(strO))
    stamp(k, "attn done")
    k.nop(8)
    for i in range(4): red_write(3, i)
    k.wait_all(vm=False)
    k.e("s_barrier")
    for j in range(3):
        for i in range(4):
            k.lg(f"ds_read_b128 v[{vTmp+16*j+4*i}:{vTmp+16*j+4*i+3}], v{vRedR} offset:{4096*j+1024*i}")
    for j in range(3):
        k.wait(lg=k.lg_n - 4 * (2 - j))
        for i in range(0, 16, 2):
            k.e(f"v_pk_add_f32 v[{vOd(0)+i}:{vOd(0)+i+1}], v[{vOd(0)+i}:{vOd(0)+i+1}], v[{vTmp+16*j+i}:{vTmp+16*j+i+1}]")
    finalize_o(k, vOd(0), vt0, vt1, vOf)
    k.e(f"s_lshl_b32 s{sT}, s{sTTA}, 4")
    k.e(f"s_add_u32 s{sT}, s{sT}, s{sHead}")
    k.e(f"s_lshl_b32 s{sOo}, s{sT}, 11")
    k.e(f"s_add_u32 s{sOo}, s{sOo}, {O_OFF['B']}")
    k.vm(f"buffer_store_dwordx4 v[{vOf}:{vOf+3}], v{vSt}, {WS}, s{sOo} offen sc1")
    ob = k.vm(f"buffer_store_dwordx4 v[{vOf+4}:{vOf+7}], v{vSt}, {WS}, s{sOo} offen offset:1024 sc1")
    stamp(k, "O(B) stored")
    def cleanup():
        vC = 100
        for i in range(6):
            k.vm(f"buffer_load_dwordx4 v[{vC+8*i}:{vC+8*i+3}], v{vSt}, {WS}, s{dsts[i]} offen sc1")
            t = k.vm(f"buffer_load_dwordx4 v[{vC+8*i+4}:{vC+8*i+7}], v{vSt}, {WS}, s{dsts[i]} offen offset:1024 sc1")
        return vC, t
    def cleanup_stores(vC, t):
        k.wait(vm=t)
        for i in range(6):
            k.vm(f"buffer_store_dwordx4 v[{vC+8*i}:{vC+8*i+3}], v{vSt}, {WS}, s{dsts[i]} offen sc1")
            k.vm(f"buffer_store_dwordx4 v[{vC+8*i+4}:{vC+8*i+7}], v{vSt}, {WS}, s{dsts[i]} offen offset:1024 sc1")
    Lp3 = k.newlabel("p3")
    k.e(f"s_cmp_lt_u32 s2, 224")
    k.e(f"s_cbranch_scc1 {Lp3}")
    k.e("s_waitcnt vmcnt(0)")
    k.e(f"v_mov_b32 v{vt0}, 0")
    k.e(f"v_mov_b32 v{vt1}, s{sNonce}")
    k.e(f"s_mov_b64 exec, 1")
    k.e(f"buffer_store_dword v{vt1}, v{vt0}, {WS}, s{sFOB} offen sc1")
    k.e(f"s_mov_b64 exec, -1")
    if 'wb' in DBG:
        Lw = k.newlabel("nowb")
        k.e(f"s_lshr_b32 s{sT}, s2, 3")
        k.e(f"s_lshl_b32 s{sT}, s{sT}, 2")
        k.e(f"s_add_u32 s{sT}, s{sT}, s{sW}")
        k.e(f"s_cmp_lg_u32 s{sT}, {28*4}")
        k.e(f"s_cbranch_scc1 {Lw}")
        k.e(f"s_waitcnt vmcnt(0)")
        k.e(f"buffer_wbl2 sc1")
        k.e(f"s_waitcnt vmcnt(0)")
        k.label(Lw)
    k.e(f"s_endpgm")
    k.label(Lp3)
    vWrB, vWrA, vWrBc, vWrAc, vOr, vOut = 16, 17, 18, 19, 189, 190
    k.e(f"v_mov_b32 v{vWrB}, v{vP3a}")
    k.e(f"v_add_u32 v{vWrA}, {WOA_L}, v{vP3a}")
    k.e(f"v_lshrrev_b32 v{vt0}, 5, v{vLane}")
    k.e(f"v_lshlrev_b32 v{vt0}, 9, v{vt0}")
    k.e(f"v_sub_u32 v{vWrBc}, v{vWrB}, v{vt0}")
    k.e(f"v_sub_u32 v{vWrAc}, v{vWrA}, v{vt0}")
    k.e(f"v_and_b32 v{vt0}, 31, v{vLane}")
    k.e(f"v_mul_u32_u24 v{vt0}, 1792, v{vt0}")
    k.e(f"v_lshrrev_b32 v{vt1}, 5, v{vLane}")
    k.e(f"v_lshl_add_u32 v{vOut}, v{vt1}, 4, v{vt0}")
    NB = 4
    vA3, vB3, vD3, vPk = 36, 52, 68, 84
    def rdA(step, vW, vWc):
        hd, kk = step // 2, step % 2
        par = step % NB
        row = 28 * hd + 16 * kk
        a2 = vWc if (hd == 15 and kk == 1) else vW
        k.lg(f"ds_read_b64_tr_b16 v[{vA3+4*par}:{vA3+4*par+1}], v{vW} offset:{row*128}")
        return k.lg(f"ds_read_b64_tr_b16 v[{vA3+4*par+2}:{vA3+4*par+3}], v{a2} offset:{(row+8)*128}")
    def out_store(b):
        k.nop(12)
        for i in range(8): k.e(f"v_cvt_pk_bf16_f32 v{vPk+i}, v{vD3+2*i}, v{vD3+2*i+1}")
        k.e(f"s_lshl_b32 s{sT2}, s{sCT}, 1")
        k.e(f"s_and_b32 s{sT}, s{sW}, 1")
        k.e(f"s_add_u32 s{sT2}, s{sT2}, s{sT}")
        k.e(f"v_permlane32_swap_b32 v{vPk}, v{vPk+2}")
        k.e(f"v_permlane32_swap_b32 v{vPk+1}, v{vPk+3}")
        k.e(f"v_permlane32_swap_b32 v{vPk+4}, v{vPk+6}")
        k.e(f"v_permlane32_swap_b32 v{vPk+5}, v{vPk+7}")
        k.e(f"s_mul_i32 s{sOo}, s{sTT}, {32*1792}")
        k.e(f"s_lshl_b32 s{sT}, s{sT2}, 6")
        k.e(f"s_add_u32 s{sOo}, s{sOo}, s{sT}")
        if b == "B": k.e(f"s_add_u32 s{sOo}, s{sOo}, 896")
        k.vm(f"buffer_store_dwordx4 v[{vPk}:{vPk+3}], v{vOut}, s[{SRD_OUT}:{SRD_OUT+3}], s{sOo} offen nt")
        k.vm(f"buffer_store_dwordx4 v[{vPk+4}:{vPk+7}], v{vOut}, s[{SRD_OUT}:{SRD_OUT+3}], s{sOo} offen offset:32 nt")
    k.c("---- P3 A  (wo(A) was waited for long ago by later counted waits; make it explicit)")
    k.wait(vm=st["wo"])
    k.e("s_barrier")
    toks = {}
    for s_ in range(NB - 1): toks[s_] = rdA(s_, vWrA, vWrAc)
    for step in range(32):
        k.wait(vm=at[step], lg=toks[step])
        par = step % NB
        mfma(k, vr(vD3, 16), vr(vA3 + 4 * par, 4), ar(4 * step, 4), "0" if step == 0 else vr(vD3, 16))
        if step + NB - 1 < 32: toks[step + NB - 1] = rdA(step + NB - 1, vWrA, vWrAc)
    k.wait(vm=ob)
    store_flag(k, vt0, vt1, sFOB)
    tpB = poll4_issue(k, vFlB, vPR0, 0xff)
    out_store("A")
    stamp(k, "P3A done")
    k.e("s_barrier")
    poll4_finish(k, tpB, vFlB, vPR0, vPR1, vPT, 0xff, "poB")
    stamp(k, "P3B flags")
    k.e(f"s_lshl_b32 s{sOo}, s{sP3T}, 16")
    k.e(f"s_add_u32 s{sOo}, s{sOo}, {O_OFF['B']}")
    k.e(f"s_lshl_b32 s{sT}, s{sW}, 14")
    k.e(f"s_add_u32 s{sOo}, s{sOo}, s{sT}")
    k.e(f"s_add_u32 s{sT2}, s{sT}, {WOA_L}")
    for j in range(16):
        if j % 4 == 0:
            k.e(f"s_add_u32 m0, s{sT2}, {1024*j}")
            k.e(f"s_add_u32 s{sT}, s{sOo}, {1024*j}")
        k.vm(f"buffer_load_dwordx4 v{vSt}, {WS}, s{sT} offen offset:{1024*(j%4)} sc1 lds")
    otB = k.vm_n
    if 'clean' in DBG: cleanup_stores(vC, tC)
    k.e(f"s_lshr_b32 s{sT}, s{sW}, 1")
    k.e(f"s_lshl_b32 s{sT}, s{sT}, 15")
    k.e(f"s_add_u32 s{sT}, s{sT}, {WOA_L}")
    k.e(f"v_add_u32 v{vOr}, s{sT}, v{vSt}")
    toks = {}
    for s_ in range(NB - 1): toks[s_] = rdA(s_, vWrB, vWrBc)
    k.wait(vm=otB)
    k.e("s_barrier")
    stamp(k, "P3B data")
    tb = {}
    def rdB(step):
        par = step % NB
        return k.lg(f"ds_read_b128 v[{vB3+4*par}:{vB3+4*par+3}], v{vOr} offset:{step*1024}")
    for s_ in range(NB - 1): tb[s_] = rdB(s_)
    for step in range(32):
        k.wait(lg=max(toks[step], tb[step]))
        par = step % NB
        mfma(k, vr(vD3, 16), vr(vA3 + 4 * par, 4), vr(vB3 + 4 * par, 4), "0" if step == 0 else vr(vD3, 16))
        if step + NB - 1 < 32:
            toks[step + NB - 1] = rdA(step + NB - 1, vWrB, vWrBc)
            tb[step + NB - 1] = rdB(step + NB - 1)
    out_store("B")
    stamp(k, "P3B done")
    stamp(k, "rt", True)
    stamp_flush(k, vt0, vt1)
    if SPAN:
        k.e("s_waitcnt vmcnt(0)")
        k.e(f"s_memrealtime s[{sSp}:{sSp+1}]")
        k.e(f"s_memtime s[{sSp+2}:{sSp+3}]")
        k.e("s_waitcnt lgkmcnt(0)")
        k.e(f"v_readlane_b32 s{sT}, v15, 0")
        k.e(f"v_readlane_b32 s{sT2}, v15, 1")
        k.e(f"s_nop 3")
        k.e(f"s_not_b32 s{sT3}, s{sT}")
        k.e(f"s_sub_u32 s{sT2}, s{sSp+2}, s{sT2}")
        k.e(f"s_sub_u32 s{sT}, s{sSp}, s{sT}")
        k.e(f"v_mov_b32 v{vt0}, 0")
        k.e(f"v_mov_b32 v{vt1}, s{sT3}")
        k.e(f"v_mov_b32 v{vt2}, s{sSp}")
        k.e(f"s_mov_b64 exec, 1")
        k.e(f"global_atomic_umax v{vt0}, v{vt1}, s[18:19] offset:4")
        k.e(f"global_atomic_umax v{vt0}, v{vt2}, s[18:19] offset:8")
        k.e(f"v_mov_b32 v{vt1}, s{sT2}")
        k.e(f"v_mov_b32 v{vt2}, s{sT}")
        k.e(f"global_atomic_umax v{vt0}, v{vt1}, s[18:19] offset:12")
        k.e(f"global_atomic_umax v{vt0}, v{vt2}, s[18:19] offset:16")
    k.label("L_end")
    k.e("s_endpgm")
    return k

HEADER = open("cdna_kernels/" + NAME + ".s.ref").read().split("; Override")[0]

def main(out):
    k = gen()
    pr = check(k.L, "fused")
    for p in pr: print(p)
    print("instrs", len(k.L), "stamps", St.n, St.names)
    s = HEADER
    s += "; @launch grid=(256,1,1) block=(256,1,1) lds=163840\n"
    s += '.amdgcn_target "amdgcn-amd-amdhsa--gfx950"\n.text\n'
    s += f".globl {KNAME}\n.p2align 8\n.type {KNAME},@function\n{KNAME}:\n" + k.text()
    s += f""".section .rodata,"a"
.p2align 6
.amdhsa_kernel {KNAME}
  .amdhsa_next_free_vgpr 512
  .amdhsa_next_free_sgpr 102
  .amdhsa_accum_offset 256
  .amdhsa_group_segment_fixed_size 0
  .amdhsa_kernarg_size 72
  .amdhsa_user_sgpr_count 2
  .amdhsa_user_sgpr_kernarg_segment_ptr 1
  .amdhsa_system_sgpr_workgroup_id_x 1
.end_amdhsa_kernel
"""
    open(out, "w").write(s)

if __name__ == "__main__":
    main(sys.argv[1] if len(sys.argv) > 1 else "f3.s")
```

```python
import sys, math, struct, os
sys.path.insert(0, "gen")
from asmlib import Emit, check

NAME = "concat_heads__sliding_block__softmax_full_mha__prompt"
KNAME = NAME + "_kernel"
def f2u(x): return struct.unpack("<I", struct.pack("<f", x))[0]

KV_OFF = {"B": 0, "A": 4 << 20}
O_OFF = {"B": 8 << 20, "A": 10 << 20}
Q_OFF = {"B": 12 << 20, "A": 14 << 20}
FP1_OFF = 16 << 20
FO_OFF = (16 << 20) + (256 << 10)
NONCE_OFF = (16 << 20) + (768 << 10)
CEN_OFF = (16 << 20) + (800 << 10)
STAMPS = 17 << 20
WS_BYTES = 18 << 20
X_BYTES = 2048 * 896
W_BYTES = 448 * 2688
WO_BYTES = 448 * 896
OUT_BYTES = 2048 * 1792
QSCALE = (28 ** -0.5) * math.log2(math.e)
MARGIN = 64.0
NEGBIG = -1.0e30
MAPB = os.environ.get('MAPB', '0') == '1'
STAMP = os.environ.get("STAMP", "0") in ("1", "2")
STAMPDBG = os.environ.get("STAMP", "0") == "2"
DBGWG = int(os.environ.get("DBGWG", "100"))
SKIP = set(os.environ.get("SKIP", "").split(","))
SPIN_MAX = 1 << 18
SCR = 114688

class V:
    def __init__(self, lo, hi): self.n = lo; self.hi = hi
    def a(self, cnt=1, al=1):
        self.n = (self.n + al - 1) // al * al
        r = self.n; self.n += cnt
        assert self.n <= self.hi, "out of regs"
        return r

def vr(b, n=1): return f"v{b}" if n == 1 else f"v[{b}:{b+n-1}]"
def ar(b, n=1): return f"a{b}" if n == 1 else f"a[{b}:{b+n-1}]"
def mfma(k, d, a, b, c): k.e(f"v_mfma_f32_32x32x16_bf16 {d}, {a}, {b}, {c}")

S_PTR = 4
SRD_XB, SRD_WB, SRD_WS, SRD_OUT, SRD_XA, SRD_WA = 24, 28, 32, 36, 40, 44
SRD_WO = 4
sWmask = 96
sW, sBeta, sU, sR, sT, sT2, sT3 = 48, 49, 50, 51, 52, 53, 54
sOff, sXbase, sWcol, sM0X, sM0W, sC, sXo, sWo, sWo2 = 55, 56, 57, 58, 59, 60, 61, 62, 63
sVmask = 64
sNonce = 66
sHead, sTT, sKV, sTo, sQo, sOo, sSpin = 67, 68, 69, 70, 71, 72, 73
sCT, sP3T = 74, 75
sEx = 76
sStampTmp = 78
sRA = 80
sUQ, sUK, sUV = 81, 82, 83
sFOA, sFOB, sKVB, sRot, sOffU, sTTA = 84, 85, 86, 87, 88, 89
sMk = 90
sD0 = 22
WS = f"s[{SRD_WS}:{SRD_WS+3}]"

def srd(k, s, lo, size):
    k.e(f"s_mov_b32 s{s}, s{lo}")
    k.e(f"s_and_b32 s{s+1}, s{lo+1}, 0xffff")
    k.e(f"s_mov_b32 s{s+2}, {size}")
    k.e(f"s_mov_b32 s{s+3}, 0x20000")

class St:
    n = 0; v = 15; names = []
def stamp(k, name="", rt=False):
    if not STAMP: return
    if STAMPDBG and (rt or name in SKIP): return
    i = St.n; St.n += 1; St.names.append(name)
    assert i < 32
    k.e(f"{'s_memrealtime' if rt else 's_memtime'} s[{sStampTmp}:{sStampTmp+1}]")
    k.wait_all(vm=False, lg=True)
    k.e(f"v_writelane_b32 v{St.v}, s{sStampTmp}, {i}")
def stamp_flush(k, vt0, vt1):
    if not STAMP: return
    if STAMPDBG:
        L = k.newlabel("sf")
        k.e(f"s_lshl_b32 s{sStampTmp}, s2, 2")
        k.e(f"s_add_u32 s{sStampTmp}, s{sStampTmp}, s{sW}")
        k.e(f"s_cmp_lg_u32 s{sStampTmp}, {DBGWG*4}")
        k.e(f"s_cbranch_scc1 {L}")
        k.e(f"v_readlane_b32 s{sStampTmp}, v{St.v}, 0")
        k.e(f"v_and_b32 v{vt0}, 63, v0")
        k.e(f"v_lshlrev_b32 v{vt0}, 2, v{vt0}")
        k.e(f"v_subrev_u32 v{vt1}, s{sStampTmp}, v{St.v}")
        k.e(f"s_mov_b64 exec, 0xfffe")
        k.e(f"global_store_dword v{vt0}, v{vt1}, s[18:19]")
        k.e(f"s_mov_b64 exec, -1")
        k.label(L)
        return
    k.e(f"v_lshrrev_b32 v{vt0}, 6, v0")
    k.e(f"s_lshl_b32 s{sStampTmp}, s2, 2")
    k.e(f"v_add_u32 v{vt0}, s{sStampTmp}, v{vt0}")
    k.e(f"v_lshlrev_b32 v{vt0}, 7, v{vt0}")
    k.e(f"v_and_b32 v{vt1}, 63, v0")
    k.e(f"v_lshl_add_u32 v{vt0}, v{vt1}, 2, v{vt0}")
    k.e(f"s_mov_b32 s{sStampTmp}, {STAMPS}")
    k.e(f"s_mov_b32 exec_hi, 0")
    k.vm(f"buffer_store_dword v{St.v}, v{vt0}, {WS}, s{sStampTmp} offen")
    k.e(f"s_mov_b64 exec, -1")

def build_masks(k, vDiag, vEdge, vLane, t0, t1):
    k.e(f"v_and_b32 v{t0}, 31, v{vLane}")
    k.e(f"v_lshrrev_b32 v{t1}, 5, v{vLane}")
    k.e(f"v_lshlrev_b32 v{t1}, 2, v{t1}")
    k.e(f"v_sub_u32 v{t0}, v{t0}, v{t1}")
    k.e(f"v_mov_b32 v{t1}, {f2u(NEGBIG):#x}")
    prs = [sMk, sMk + 2, sMk + 4]
    def cmp(i):
        b = 8 * (i // 4) + (i % 4); p = prs[i % 3]
        k.e(f"v_cmp_le_i32_e64 s[{p}:{p+1}], {b}, v{t0}")
    cmp(0); cmp(1)
    for i in range(16):
        if i + 2 < 16: cmp(i + 2)
        else: k.nop(1)
        p = prs[i % 3]
        k.e(f"v_cndmask_b32_e64 v{vDiag+i}, v{t1}, 0, s[{p}:{p+1}]")
        k.e(f"v_cndmask_b32_e64 v{vEdge+i}, 0, v{t1}, s[{p}:{p+1}]")

def colmax(k, vS, vm, vt):
    k.e(f"v_max3_f32 v{vm}, v{vS}, v{vS+1}, v{vS+2}")
    k.e(f"v_max3_f32 v{vt}, v{vS+3}, v{vS+4}, v{vS+5}")
    k.e(f"v_max3_f32 v{vm}, v{vm}, v{vS+6}, v{vS+7}")
    k.e(f"v_max3_f32 v{vt}, v{vt}, v{vS+8}, v{vS+9}")
    k.e(f"v_max3_f32 v{vm}, v{vm}, v{vS+10}, v{vS+11}")
    k.e(f"v_max3_f32 v{vt}, v{vt}, v{vS+12}, v{vS+13}")
    k.e(f"v_max3_f32 v{vm}, v{vm}, v{vS+14}, v{vS+15}")
    k.e(f"v_max_f32 v{vm}, v{vm}, v{vt}")
    k.e(f"v_mov_b32 v{vt}, v{vm}")
    k.nop(2)
    k.e(f"v_permlane32_swap_b32 v{vm}, v{vt}")
    k.e(f"v_max_f32 v{vm}, v{vm}, v{vt}")

def shift_dwords(k, vm, t0, t1, t2):
    k.e(f"v_and_b32 v{t0}, 0xffff0000, v{vm}")
    k.e(f"v_sub_f32 v{t1}, v{vm}, v{t0}")
    k.e(f"v_and_b32 v{t2}, 0xffff0000, v{t1}")
    k.e(f"v_sub_f32 v{t1}, v{t1}, v{t2}")
    k.e(f"v_lshrrev_b32 v{t0}, 16, v{t0}")
    k.e(f"v_or_b32 v{t0}, v{t0}, v{t2}")
    k.e(f"v_xor_b32 v{t0}, 0x80008000, v{t0}")
    k.e(f"v_lshrrev_b32 v{t1}, 16, v{t1}")
    k.e(f"v_xor_b32 v{t1}, 0x8000, v{t1}")

def poll_flags(k, vAddr, vTmp, mask64, name):
    L = k.newlabel(name); Ld = k.newlabel(name + "d")
    k.e(f"s_mov_b32 s{sSpin}, 0")
    k.e(f"s_mov_b32 exec_hi, {(mask64 >> 32) & 0xffffffff:#x}")
    k.e(f"s_mov_b32 exec_lo, {mask64 & 0xffffffff:#x}")
    k.label(L)
    k.e(f"buffer_load_dword v{vTmp}, v{vAddr}, {WS}, 0 offen sc1")
    k.e(f"s_add_u32 s{sSpin}, s{sSpin}, 1")
    k.e(f"s_waitcnt vmcnt(0)")
    k.e(f"v_cmp_ne_u32 vcc, s{sNonce}, v{vTmp}")
    k.e(f"s_cmp_gt_u32 s{sSpin}, {SPIN_MAX}")
    k.e(f"s_cbranch_scc1 {Ld}")
    k.e(f"s_cbranch_vccnz {L}")
    k.label(Ld)
    k.e(f"s_mov_b64 exec, -1")
    k.vm_done = k.vm_n

def store_flag(k, vZero, vVal, s_off):
    k.e(f"v_mov_b32 v{vZero}, 0")
    k.e(f"v_mov_b32 v{vVal}, s{sNonce}")
    k.e(f"s_mov_b64 exec, 1")
    t = k.vm(f"buffer_store_dword v{vVal}, v{vZero}, {WS}, s{s_off} offen sc1")
    k.e(f"s_mov_b64 exec, -1")
    return t

def attn_pipeline(k, ops, vS, vP, shadow, extra):
    N = len(ops)
    def val(x): return x() if callable(x) else x
    def waitK(n):
        if 0 <= n < N:
            o = ops[n]; k.wait(vm=val(o.get("wK")), lg=val(o.get("lK")))
    def waitV(n):
        if 0 <= n < N:
            o = ops[n]; k.wait(vm=val(o.get("wV")), lg=val(o.get("lV")))
    def qk(n, part):
        o = ops[n]; S = vr(vS + 16 * (n % 2), 16)
        if part == 0: mfma(k, S, o["K"][0], o["Q"][0], o["C"])
        else: mfma(k, S, o["K"][1], o["Q"][1], S)
    def pv(n, part):
        o = ops[n]; P = vP + 8 * (n % 2)
        if part == 0: mfma(k, o["O"], o["V"][0], vr(P, 4), "0" if o["first"] else o["O"])
        else: mfma(k, o["O"], o["V"][1], vr(P + 4, 4), o["O"])
    def expgrp(n, g):
        S = vS + 16 * (n % 2); P = vP + 8 * (n % 2)
        for i in range(4):
            k.e(f"v_exp_f32 v{S+4*g+i}, v{S+4*g+i}")
        k.e(f"v_cvt_pk_bf16_f32 v{P+2*g}, v{S+4*g}, v{S+4*g+1}")
        k.e(f"v_cvt_pk_bf16_f32 v{P+2*g+1}, v{S+4*g+2}, v{S+4*g+3}")
    waitK(0)
    for n in range(-1, N + 1):
        has_exp = 0 <= n < N
        for g in range(4):
            if g < 2 and n + 1 < N: qk(n + 1, g)
            if g >= 2 and 0 <= n - 1: pv(n - 1, g - 2)
            if g == 1: waitV(n - 1)
            if g == 3: waitK(n + 2)
            shadow(n, g)
            if has_exp: expgrp(n, g)
            extra(n, g)
        if n == -1: k.nop(12)
        if n == N - 1: k.nop(2)

def finalize_o(k, vO, vt0, vt1, vOf):
    k.e(f"v_mov_b32 v{vt0}, v{vO+12}")
    k.e(f"v_mov_b32 v{vt1}, v{vO+12}")
    k.nop(2)
    k.e(f"v_permlane32_swap_b32 v{vt0}, v{vt1}")
    k.e(f"v_rcp_f32 v{vt1}, v{vt1}")
    k.nop(1)
    for i in range(16):
        k.e(f"v_mul_f32 v{vO+i}, v{vO+i}, v{vt1}")
    for i in range(8):
        k.e(f"v_cvt_pk_bf16_f32 v{vOf+i}, v{vO+2*i}, v{vO+2*i+1}")
    k.e("s_mov_b32 exec_lo, 0")
    k.e(f"v_mov_b32 v{vOf+6}, 0")
    k.e(f"v_mov_b32 v{vOf+7}, 0")
    k.e("s_mov_b32 exec_lo, -1")

def div6(k, dst, src, tmp):
    k.e(f"s_mul_i32 s{dst}, s{src}, 43")
    k.e(f"s_lshr_b32 s{dst}, s{dst}, 8")


def async_poll_issue(k, vAddr, vRes, mask64):
    k.e(f"s_mov_b32 exec_hi, {(mask64 >> 32) & 0xffffffff:#x}")
    k.e(f"s_mov_b32 exec_lo, {mask64 & 0xffffffff:#x}")
    t = k.vm(f"buffer_load_dword v{vRes}, v{vAddr}, {WS}, 0 offen sc1")
    k.e(f"s_mov_b64 exec, -1")
    return t

def async_poll_check(k, tok, vAddr, vRes, mask64, name):
    L = k.newlabel(name); Ld = k.newlabel(name + "d")
    k.wait(vm=tok)
    k.e(f"s_mov_b32 exec_hi, {(mask64 >> 32) & 0xffffffff:#x}")
    k.e(f"s_mov_b32 exec_lo, {mask64 & 0xffffffff:#x}")
    k.e(f"v_cmp_ne_u32 vcc, s{sNonce}, v{vRes}")
    k.e(f"s_mov_b32 s{sSpin}, 0")
    k.e(f"s_cbranch_vccz {Ld}")
    k.label(L)
    k.e(f"buffer_load_dword v{vRes}, v{vAddr}, {WS}, 0 offen sc1")
    k.e(f"s_add_u32 s{sSpin}, s{sSpin}, 1")
    k.e(f"s_waitcnt vmcnt(0)")
    k.e(f"v_cmp_ne_u32 vcc, s{sNonce}, v{vRes}")
    k.e(f"s_cmp_gt_u32 s{sSpin}, {SPIN_MAX}")
    k.e(f"s_cbranch_scc1 {Ld}")
    k.e(f"s_cbranch_vccnz {L}")
    k.label(Ld)
    k.e(f"s_mov_b64 exec, -1")

def chk4(k, vR, vT):
    k.e(f"v_xor_b32 v{vT}, s{sNonce}, v{vR}")
    k.e(f"v_xor_b32 v{vR+1}, s{sNonce}, v{vR+1}")
    k.e(f"v_xor_b32 v{vR+2}, s{sNonce}, v{vR+2}")
    k.e(f"v_xor_b32 v{vR+3}, s{sNonce}, v{vR+3}")
    k.e(f"v_or3_b32 v{vT}, v{vT}, v{vR+1}, v{vR+2}")
    k.e(f"v_or_b32 v{vT}, v{vT}, v{vR+3}")
    k.e(f"v_cmp_ne_u32 vcc, 0, v{vT}")

def poll4_issue(k, vAddr, vR, mask):
    k.e(f"s_mov_b64 exec, {mask:#x}")
    t = k.vm(f"buffer_load_dwordx4 v[{vR}:{vR+3}], v{vAddr}, {WS}, 0 offen sc1")
    k.e(f"s_mov_b64 exec, -1")
    return t

def poll4_finish(k, tok, vAddr, vR0, vR1, vT, mask, name):
    L = k.newlabel(name); Ld = k.newlabel(name + "d")
    k.wait(vm=tok)
    k.e(f"s_mov_b64 exec, {mask:#x}")
    chk4(k, vR0, vT)
    k.e(f"s_mov_b32 s{sSpin}, 0")
    k.e(f"s_cbranch_vccz {Ld}")
    k.e(f"buffer_load_dwordx4 v[{vR0}:{vR0+3}], v{vAddr}, {WS}, 0 offen sc1")
    k.label(L)
    k.e(f"buffer_load_dwordx4 v[{vR1}:{vR1+3}], v{vAddr}, {WS}, 0 offen sc1")
    k.e(f"s_waitcnt vmcnt(1)")
    chk4(k, vR0, vT)
    k.e(f"s_add_u32 s{sSpin}, s{sSpin}, 1")
    k.e(f"s_cbranch_vccz {Ld}")
    k.e(f"buffer_load_dwordx4 v[{vR0}:{vR0+3}], v{vAddr}, {WS}, 0 offen sc1")
    k.e(f"s_waitcnt vmcnt(1)")
    chk4(k, vR1, vT)
    k.e(f"s_cmp_gt_u32 s{sSpin}, {SPIN_MAX}")
    k.e(f"s_cbranch_scc1 {Ld}")
    k.e(f"s_cbranch_vccnz {L}")
    k.label(Ld)
    k.e(f"s_mov_b64 exec, -1")

def div3(k, dst, src):
    k.e(f"s_mul_i32 s{dst}, s{src}, 43")
    k.e(f"s_lshr_b32 s{dst}, s{dst}, 7")


BARS = eval(os.environ.get('BARS', '(0, 1, 6)'))
DBG = os.environ.get('DBG', '')
sXcc, sFast = 100, 95
SPAN = os.environ.get('SPAN', '0') == '1'
sSp = 86

def gen():
    k = Emit()
    St.n = 0; St.names = []
    k.e("s_cmp_ge_u32 s2, 256")
    k.e("s_cbranch_scc1 L_end")
    k.e(f"s_load_dwordx16 s[{S_PTR}:{S_PTR+15}], s[0:1], 0")
    k.e(f"s_load_dwordx2 s[20:21], s[0:1], 64")
    G = V(1, 15)
    vLane = G.a(); vSt = G.a(); vt0 = G.a(); vt1 = G.a(); vt2 = G.a(); vt3 = G.a(); vWoD = G.a()
    vFlB = G.a(); vFlA = G.a(); vVpad = G.a(); vCen = G.a(); vP3a = G.a()
    SRD_X, SRD_W = SRD_XB, SRD_WB
    stamp(k, "start"); stamp(k, "rt", True)
    if SPAN:
        k.e(f"s_memrealtime s[{sSp}:{sSp+1}]")
        k.e(f"s_memtime s[{sSp+2}:{sSp+3}]")
    if SPAN:
        k.e("s_waitcnt lgkmcnt(0)")
        k.e(f"v_writelane_b32 v15, s{sSp}, 0")
        k.e(f"v_writelane_b32 v15, s{sSp+2}, 1")
    k.e(f"v_and_b32 v{vLane}, 63, v0")
    k.e(f"v_lshrrev_b32 v{vt0}, 6, v0")
    k.e(f"s_and_b32 s{sU}, s2, 7")
    k.e(f"v_readfirstlane_b32 s{sW}, v{vt0}")
    k.e(f"s_lshr_b32 s{sT2}, s2, 3")
    k.e(f"s_and_b32 s{sBeta}, s{sT2}, 1")
    k.e(f"s_lshr_b32 s{sR}, s{sT2}, 1")
    k.e(f"s_mul_i32 s{sOff}, s{sR}, 37")
    k.e(f"s_lshr_b32 s{sOff}, s{sOff}, 8")
    k.e(f"s_mul_i32 s{sOff}, s{sOff}, 7")
    k.e(f"s_sub_u32 s{sOff}, s{sR}, s{sOff}")
    k.e(f"s_mul_i32 s{sXbase}, s{sR}, {128*896}")
    k.e(f"s_mul_i32 s{sWcol}, s{sU}, 112")
    R = V(16, 256)
    vXo = R.a(4); vWo = R.a(2); vXr = R.a(4); vWr = R.a(4)
    vXf = R.a(8, 4); vWf = R.a(48, 4)
    acc = {(hh, nm): R.a(16, 4) for hh in range(2) for nm in "QKV"}
    vF = R.a(48, 4)
    vS1 = vWf
    vDiag = 240
    assert R.n <= 240, R.n
    XSLOT = 16640; WSLOT = 24576; WBASE = 3 * XSLOT
    k.e(f"v_lshrrev_b32 v{vt0}, 3, v{vLane}")
    k.e(f"v_bfe_u32 v{vt1}, v{vLane}, 4, 1")
    k.e(f"v_lshlrev_b32 v{vt1}, 2, v{vt1}")
    k.e(f"v_and_b32 v{vt2}, 7, v{vLane}")
    k.e(f"v_xor_b32 v{vt1}, v{vt1}, v{vt2}")
    k.e(f"v_lshrrev_b32 v{vt2}, 6, v0")
    k.e(f"v_lshl_add_u32 v{vt3}, v{vt2}, 5, v{vt0}")
    k.e(f"v_mul_u32_u24 v{vt3}, 896, v{vt3}")
    k.e(f"v_lshl_add_u32 v{vXo}, v{vt1}, 4, v{vt3}")
    for j in range(1, 4):
        k.e(f"v_add_u32 v{vXo+j}, {j*(8*896-1040)}, v{vXo}")
    k.e(f"v_lshl_add_u32 v{vt3}, v{vt2}, 4, v{vt0}")
    k.e(f"v_mul_u32_u24 v{vt3}, 2688, v{vt3}")
    k.e(f"v_lshl_add_u32 v{vWo}, v{vt1}, 4, v{vt3}")
    k.e(f"v_add_u32 v{vWo+1}, {8*2688-1024}, v{vWo}")
    k.e(f"s_mul_i32 s{sM0X}, s{sW}, 4160")
    k.e(f"s_mul_i32 s{sM0W}, s{sW}, 6144")
    k.e(f"s_add_u32 s{sM0W}, s{sM0W}, {WBASE}")
    k.e(f"s_getreg_b32 s{sXcc}, hwreg(HW_REG_XCC_ID)")
    k.e("s_waitcnt lgkmcnt(0)")
    k.e(f"s_cmp_eq_u32 s{sBeta}, 1")
    k.e(f"s_cselect_b32 s{SRD_X}, s4, s10")
    k.e(f"s_cselect_b32 s{SRD_X+1}, s5, s11")
    k.e(f"s_cselect_b32 s{SRD_W}, s6, s12")
    k.e(f"s_cselect_b32 s{SRD_W+1}, s7, s13")
    k.e(f"s_and_b32 s{SRD_X+1}, s{SRD_X+1}, 0xffff")
    k.e(f"s_and_b32 s{SRD_W+1}, s{SRD_W+1}, 0xffff")
    k.e(f"s_mov_b32 s{SRD_X+2}, {X_BYTES}")
    k.e(f"s_mov_b32 s{SRD_X+3}, 0x20000")
    k.e(f"s_mov_b32 s{SRD_W+2}, {W_BYTES}")
    k.e(f"s_mov_b32 s{SRD_W+3}, 0x20000")
    X = f"s[{SRD_X}:{SRD_X+3}]"; W = f"s[{SRD_W}:{SRD_W+3}]"
    dma_tok = {}
    def dma_list(g):
        slot = g % 3
        L = []
        def head():
            k.e(f"s_add_u32 s{sC}, s{sOff}, {g}")
            k.e(f"s_sub_u32 s{sT}, s{sC}, 7")
            k.e(f"s_min_u32 s{sC}, s{sC}, s{sT}")
            k.e(f"s_lshl_b32 s{sXo}, s{sC}, 7")
            k.e(f"s_add_u32 s{sXo}, s{sXo}, s{sXbase}")
            k.e(f"s_mul_i32 s{sWo}, s{sC}, {64*2688}")
            k.e(f"s_add_u32 s{sWo}, s{sWo}, s{sWcol}")
            k.e(f"s_add_u32 m0, s{sM0X}, {slot*XSLOT}")
            k.e("s_nop 0")
        def xj(j):
            def f():
                if j == 0: head()
                k.vm(f"buffer_load_dwordx4 v{vXo+j}, {X}, s{sXo} offen offset:{1040*j} lds")
            return f
        def wi(sec, half):
            def f():
                if half == 0:
                    k.e(f"s_add_u32 m0, s{sM0W}, {slot*WSLOT + sec*2048}")
                    k.e(f"s_add_u32 s{sWo2}, s{sWo}, {sec*896}")
                t = k.vm(f"buffer_load_dwordx4 v{vWo+half}, {W}, s{sWo2} offen offset:{1024*half} lds")
                if sec == 2 and half == 1: dma_tok[g] = t
            return f
        for j in range(4): L.append(xj(j))
        for sec in range(3):
            for half in range(2): L.append(wi(sec, half))
        return L
    stamp(k, "pre-dma")
    for f in dma_list(0): f()
    stamp(k, "dma0 issued")
    srd(k, SRD_WS, 20, WS_BYTES); srd(k, SRD_OUT, 16, OUT_BYTES)
    srd(k, SRD_XA, 14, WO_BYTES); srd(k, SRD_WA, 8, WO_BYTES)
    SRD_WOB, SRD_WOA = SRD_XA, SRD_WA
    k.e(f"v_lshlrev_b32 v{vSt}, 4, v{vLane}")
    Lnn = k.newlabel("nonce")
    k.e(f"s_or_b32 s{sT}, s2, s{sW}")
    k.e(f"s_cmp_lg_u32 s{sT}, 0")
    k.e(f"s_cbranch_scc1 {Lnn}")
    k.e(f"s_mov_b32 s{sT}, {NONCE_OFF}")
    k.e(f"v_mov_b32 v{vt0}, 0")
    k.e(f"buffer_load_dword v{vt1}, v{vt0}, {WS}, s{sT} offen sc1")
    k.e(f"s_waitcnt vmcnt(0)")
    k.e(f"v_add_u32 v{vt1}, 1, v{vt1}")
    k.e(f"v_max_u32 v{vt1}, 1, v{vt1}")
    k.e(f"s_mov_b64 exec, 1")
    k.e(f"global_store_dword v{vt0}, v{vt1}, s[18:19] sc1")
    k.e(f"buffer_store_dword v{vt1}, v{vt0}, {WS}, s{sT} offen sc1")
    k.e(f"s_mov_b64 exec, -1")
    k.label(Lnn)
    k.e(f"s_lshr_b32 s{sT2}, s2, 3")
    k.e(f"s_lshl_b32 s{sHead}, s{sU}, 1")
    k.e(f"s_add_u32 s{sHead}, s{sHead}, s{sBeta}")
    k.e(f"s_mov_b32 s{sRA}, s{sR}")
    k.e(f"s_mul_i32 s{sT3}, s{sT2}, 37")
    k.e(f"s_lshr_b32 s{sT3}, s{sT3}, 8")
    k.e(f"s_min_u32 s{sC}, s{sT3}, 3")
    k.e(f"s_lshl_b32 s{sP3T}, s{sU}, 2")
    k.e(f"s_add_u32 s{sP3T}, s{sP3T}, s{sC}")
    k.e(f"s_mul_i32 s{sT3}, s{sT3}, 7")
    k.e(f"s_sub_u32 s{sCT}, s{sT2}, s{sT3}")
    k.e(f"s_lshl_b32 s{sTT}, s{sR}, 2")
    k.e(f"s_add_u32 s{sTT}, s{sTT}, s{sW}")
    k.e(f"s_mov_b32 s{sTTA}, s{sTT}")
    dsts = [0, 1, 3, 22, 23, 101]
    for hh in range(2):
        k.e(f"s_lshl_b32 s{sT}, s{sU}, 1")
        k.e(f"s_add_u32 s{sT}, s{sT}, {hh}")
        k.e(f"s_lshl_b32 s{sT}, s{sT}, 6")
        k.e(f"s_add_u32 s{sT}, s{sT}, s{sTT}")
        k.e(f"s_lshl_b32 s{sT3}, s{sT}, 12")
        k.e(f"s_lshl_b32 s{sC}, s{sBeta}, 22")
        k.e(f"s_add_u32 s{dsts[3*hh]}, s{sT3}, s{sC}")
        k.e(f"s_add_u32 s{dsts[3*hh+1]}, s{dsts[3*hh]}, 2048")
        k.e(f"s_lshl_b32 s{sT3}, s{sT}, 11")
        k.e(f"s_lshl_b32 s{sC}, s{sBeta}, 21")
        k.e(f"s_add_u32 s{sT3}, s{sT3}, s{sC}")
        k.e(f"s_add_u32 s{dsts[3*hh+2]}, s{sT3}, {Q_OFF['B']}")
    k.e(f"v_and_b32 v{vt0}, 31, v{vLane}")
    k.e(f"v_lshrrev_b32 v{vt1}, 3, v{vt0}")
    k.e(f"v_mul_u32_u24 v{vt1}, 1040, v{vt1}")
    k.e(f"v_and_b32 v{vt2}, 7, v{vt0}")
    k.e(f"v_lshl_add_u32 v{vt1}, v{vt2}, 7, v{vt1}")
    k.e(f"v_add_u32 v{vt1}, s{sM0X}, v{vt1}")
    k.e(f"v_bfe_u32 v{vt2}, v{vLane}, 1, 1")
    k.e(f"v_lshlrev_b32 v{vt2}, 6, v{vt2}")
    k.e(f"v_lshrrev_b32 v{vt3}, 5, v{vLane}")
    k.e(f"v_lshlrev_b32 v{vt3}, 4, v{vt3}")
    k.e(f"v_add_u32 v{vt1}, v{vt1}, v{vt3}")
    for ks in range(4):
        k.e(f"v_xor_b32 v{vXr+ks}, {(ks >> 1) * 64}, v{vt2}")
        k.e(f"v_add_u32 v{vXr+ks}, {((2*ks) & 3) * 16}, v{vXr+ks}")
        k.e(f"v_add_u32 v{vXr+ks}, v{vXr+ks}, v{vt1}")
    k.e(f"v_lshrrev_b32 v{vt0}, 5, v{vLane}")
    k.e(f"v_lshlrev_b32 v{vt0}, 3, v{vt0}")
    k.e(f"v_bfe_u32 v{vt1}, v{vLane}, 2, 2")
    k.e(f"v_add_u32 v{vt0}, v{vt0}, v{vt1}")
    k.e(f"v_lshlrev_b32 v{vt0}, 7, v{vt0}")
    k.e(f"v_bfe_u32 v{vt1}, v{vLane}, 4, 1")
    k.e(f"v_lshlrev_b32 v{vt1}, 5, v{vt1}")
    k.e(f"v_and_b32 v{vt2}, 3, v{vLane}")
    k.e(f"v_lshl_add_u32 v{vt1}, v{vt2}, 3, v{vt1}")
    k.e(f"v_bfe_u32 v{vt2}, v{vLane}, 3, 1")
    k.e(f"v_lshlrev_b32 v{vt2}, 6, v{vt2}")
    for hh in range(2):
        k.e(f"v_add_u32 v{vt3}, {56*hh}, v{vt1}")
        k.e(f"v_xor_b32 v{vt3}, v{vt3}, v{vt2}")
        k.e(f"v_add_u32 v{vt3}, v{vt3}, v{vt0}")
        k.e(f"v_add_u32 v{vWr+hh}, {WBASE}, v{vt3}")
        k.e(f"v_add_u32 v{vWr+2+hh}, {WBASE + 2*WSLOT}, v{vt3}")
    for f in dma_list(1)[:5]: f()
    k.e(f"v_and_b32 v{vt0}, 31, v{vLane}")
    k.e(f"v_cmp_eq_u32 vcc, 28, v{vt0}")
    k.e(f"v_mov_b32 v{vt1}, 0x3f803f80")
    k.e(f"v_cmp_le_u32_e64 s[{sVmask}:{sVmask+1}], 28, v{vt0}")
    k.e(f"v_cndmask_b32_e64 v{vVpad}, 0, v{vt1}, vcc")
    k.e(f"v_lshrrev_b32 v{vt0}, 3, v{vLane}")
    k.e(f"v_bfe_u32 v{vt1}, v{vLane}, 4, 1")
    k.e(f"v_lshlrev_b32 v{vt1}, 2, v{vt1}")
    k.e(f"v_and_b32 v{vt2}, 7, v{vLane}")
    k.e(f"v_xor_b32 v{vt1}, v{vt1}, v{vt2}")
    k.e(f"v_mul_u32_u24 v{vt0}, 896, v{vt0}")
    k.e(f"v_lshl_add_u32 v{vWoD}, v{vt1}, 4, v{vt0}")
    k.e(f"v_lshrrev_b32 v{vt0}, 5, v{vLane}")
    k.e(f"v_lshlrev_b32 v{vt0}, 2, v{vt0}")
    k.e(f"v_bfe_u32 v{vt1}, v{vLane}, 2, 2")
    k.e(f"v_add_u32 v{vt0}, v{vt0}, v{vt1}")
    k.e(f"v_lshlrev_b32 v{vt0}, 7, v{vt0}")
    k.e(f"s_and_b32 s{sT}, s{sW}, 1")
    k.e(f"s_lshl_b32 s{sT}, s{sT}, 6")
    k.e(f"v_bfe_u32 v{vt1}, v{vLane}, 4, 1")
    k.e(f"v_lshlrev_b32 v{vt1}, 5, v{vt1}")
    k.e(f"v_and_b32 v{vt2}, 3, v{vLane}")
    k.e(f"v_lshl_add_u32 v{vt1}, v{vt2}, 3, v{vt1}")
    k.e(f"v_add_u32 v{vt1}, s{sT}, v{vt1}")
    k.e(f"v_bfe_u32 v{vt2}, v{vLane}, 3, 1")
    k.e(f"v_lshlrev_b32 v{vt2}, 6, v{vt2}")
    k.e(f"v_xor_b32 v{vt1}, v{vt1}, v{vt2}")
    k.e(f"v_add_u32 v{vP3a}, v{vt0}, v{vt1}")
    k.e(f"s_lshl_b32 s{sT}, s{sW}, 2")
    k.e(f"v_add_u32 v{vt0}, s{sT}, v{vLane}")
    k.e(f"v_cmp_eq_u32 vcc, 4, v{vLane}")
    k.e(f"v_mov_b32 v{vt1}, s{sRA}")
    k.e(f"s_sub_u32 s{sT}, s{sRA}, 7")
    k.e(f"v_cndmask_b32 v{vt0}, v{vt0}, v{vt1}, vcc")
    k.e(f"v_add_u32 v{vt1}, s{sT}, v{vLane}")
    k.e(f"v_max_i32 v{vt1}, 0, v{vt1}")
    k.e(f"v_add_u32 v{vt1}, 128, v{vt1}")
    k.e(f"v_cmp_lt_u32 vcc, 4, v{vLane}")
    k.e(f"s_lshl_b32 s{sT}, s{sU}, 4")
    k.e(f"s_nop 0")
    k.e(f"v_cndmask_b32 v{vt0}, v{vt0}, v{vt1}, vcc")
    k.e(f"v_add_u32 v{vt0}, s{sT}, v{vt0}")
    k.e(f"v_lshlrev_b32 v{vFlB}, 7, v{vt0}")
    k.e(f"v_add_u32 v{vFlB}, {FP1_OFF}, v{vFlB}")
    k.e(f"v_lshrrev_b32 v{vt0}, 3, v{vLane}")
    k.e(f"s_lshl_b32 s{sT}, s{sU}, 2")
    k.e(f"v_add_u32 v{vt0}, s{sT}, v{vt0}")
    k.e(f"v_lshlrev_b32 v{vt0}, 7, v{vt0}")
    k.e(f"v_and_b32 v{vt1}, 7, v{vLane}")
    k.e(f"v_lshl_add_u32 v{vt0}, v{vt1}, 2, v{vt0}")
    k.e(f"v_add_u32 v{vCen}, {CEN_OFF}, v{vt0}")
    k.e(f"s_lshl_b32 s{sKVB}, s{sHead}, 18")
    k.e(f"s_lshl_b32 s{sT}, s{sW}, 16")
    k.e(f"s_add_u32 s{sKVB}, s{sKVB}, s{sT}")
    k.e(f"s_mov_b32 s{sRot}, 0")
    k.e(f"v_and_b32 v{vt0}, 31, v{vLane}")
    k.e(f"v_lshrrev_b32 v{vt1}, 5, v{vLane}")
    k.e(f"v_lshlrev_b32 v{vt1}, 2, v{vt1}")
    k.e(f"v_sub_u32 v{vt0}, v{vt0}, v{vt1}")
    k.e(f"v_mov_b32 v{vt1}, {f2u(NEGBIG):#x}")
    prs = [sMk, sMk + 2, sMk + 4]
    def cmpm(i):
        b = 8 * (i // 4) + (i % 4); p = prs[i % 3]
        k.e(f"v_cmp_le_i32_e64 s[{p}:{p+1}], {b}, v{vt0}")
    cmpm(0); cmpm(1)
    for i in range(16):
        if i + 2 < 16: cmpm(i + 2)
        else: k.nop(1)
        p = prs[i % 3]
        k.e(f"v_cndmask_b32_e64 v{vDiag+i}, v{vt1}, 0, s[{p}:{p+1}]")
    if 'nopf' not in DBG:
        k.e(f"s_lshr_b32 s{sT}, s2, 3")
        k.e(f"s_lshl_b32 s{sT}, s{sT}, 2")
        k.e(f"s_add_u32 s{sT}, s{sT}, s{sW}")
        k.e(f"s_mul_i32 s{sT2}, s{sT}, {25*128}")
        k.e(f"v_lshlrev_b32 v{vt0}, 7, v{vLane}")
        k.e(f"s_mov_b64 exec, 0x1ffffff")
        k.vm(f"buffer_load_dword v232, v{vt0}, s[{SRD_WOA}:{SRD_WOA+3}], s{sT2} offen")
        k.vm(f"buffer_load_dword v233, v{vt0}, s[{SRD_WOB}:{SRD_WOB+3}], s{sT2} offen")
        k.e(f"s_getpc_b64 s[{sEx}:{sEx+1}]")
        k.label("L_pc_anchor")
        k.e(f"s_sub_u32 s{sEx}, s{sEx}, L_pc_anchor-{KNAME}")
        k.e(f"s_subb_u32 s{sEx+1}, s{sEx+1}, 0")
        k.e(f"s_mul_i32 s{sT2}, s{sT}, {3*128}")
        k.e(f"v_add_u32 v{vt1}, s{sT2}, v{vt0}")
        k.e(f"v_min_u32 v{vt1}, L_end-{KNAME}, v{vt1}")
        k.e(f"s_mov_b64 exec, 7")
        k.vm(f"global_load_dword v234, v{vt1}, s[{sEx}:{sEx+1}]")
        k.e(f"v_lshlrev_b32 v{vt1}, 21, v{vLane}")
        k.e(f"s_mov_b64 exec, 0x1ff")
        k.vm(f"buffer_load_dword v235, v{vt1}, {WS}, 0 offen")
        k.e(f"s_mov_b64 exec, 3")
        k.vm(f"buffer_load_dword v236, v{vt1}, s[{SRD_OUT}:{SRD_OUT+3}], 0 offen")
        k.e(f"s_mov_b64 exec, -1")
    rest1 = None
    L1 = dma_list(1)
    for f in L1[5:]: f()

    def rd_list(g, ks):
        slot = g % 3; par = ks % 2
        L = [f"ds_read_b128 v[{vXf+4*par}:{vXf+4*par+3}], v{vXr+ks} offset:{slot*XSLOT}"]
        for hh in range(2):
            for sec in range(3):
                areg = vWr + hh + (2 if slot == 2 else 0)
                base = (slot % 2 if slot < 2 else 0) * WSLOT + ks * 6144 + sec * 2048
                d = vWf + 24 * par + 12 * hh + 4 * sec
                L.append(f"ds_read_b64_tr_b16 v[{d}:{d+1}], v{areg} offset:{base}")
                L.append(f"ds_read_b64_tr_b16 v[{d+2}:{d+3}], v{areg} offset:{base+512}")
        return L
    def mf_list(g, ks):
        first = (g == 0 and ks == 0); par = ks % 2
        xf = vr(vXf + 4 * par, 4)
        L = []
        for hh in range(2):
            for sec, nm in enumerate("QKV"):
                wf = vr(vWf + 24 * par + 12 * hh + 4 * sec, 4)
                d = vr(acc[(hh, nm)], 16); c = "0" if first else d
                L.append(f"v_mfma_f32_32x32x16_bf16 {d}, {xf}, {wf}, {c}" if nm == "V" else f"v_mfma_f32_32x32x16_bf16 {d}, {wf}, {xf}, {c}")
        return L
    def interleave(mf, rds, tok_need, extra):
        k.wait(lg=tok_need)
        t = None; ri = 0
        for i, m in enumerate(mf):
            k.e(m)
            n = (len(rds) - ri + (len(mf) - i) - 1) // (len(mf) - i)
            for _ in range(n):
                t = k.lg(rds[ri]); ri += 1
            if extra and i % 2 == 1: extra.pop(0)()
        return t
    pend = None; nonce_tok = None
    for g in range(7):
        k.c(f"---- chunk {g}")
        k.wait(vm=dma_tok[g])
        k.wait_all(vm=False, lg=True)
        k.e("s_barrier")
        if g in BARS: stamp(k, f"bar{g}")
        ex = dma_list(g + 2) if g + 2 < 7 else []
        r0 = rd_list(g, 0)
        if pend is None:
            for r_ in r0: tok = k.lg(r_)
            ex.pop(0)()
        else:
            tok = interleave(mf_list(*pend), r0, None, ex)
        if g == 2:
            k.e(f"v_mov_b32 v{vt0}, 0")
            k.e(f"global_load_dword v{vt3}, v{vt0}, s[18:19] sc1")
            k.vm_n += 1; nonce_tok = k.vm_n
        if g == 3:
            Ln = k.newlabel("n"); Lnd = k.newlabel("nd"); Lc = k.newlabel("cen")
            k.wait(vm=nonce_tok)
            k.e(f"v_readfirstlane_b32 s{sNonce}, v{vt3}")
            k.e(f"s_mov_b32 s{sSpin}, 0")
            k.e(f"s_cmp_lg_u32 s{sNonce}, 0")
            k.e(f"s_cbranch_scc1 {Lnd}")
            k.label(Ln)
            k.e(f"global_load_dword v{vt3}, v{vt0}, s[18:19] sc1")
            k.e(f"s_add_u32 s{sSpin}, s{sSpin}, 1")
            k.e(f"s_waitcnt vmcnt(0)")
            k.e(f"v_readfirstlane_b32 s{sNonce}, v{vt3}")
            k.e(f"s_cmp_gt_u32 s{sSpin}, {SPIN_MAX}")
            k.e(f"s_cbranch_scc1 {Lnd}")
            k.e(f"s_cmp_eq_u32 s{sNonce}, 0")
            k.e(f"s_cbranch_scc1 {Ln}")
            k.label(Lnd)
            k.e(f"s_add_u32 s{sT}, s{sXcc}, 1")
            k.e(f"s_lshl_b32 s{sT}, s{sT}, 24")
            k.e(f"s_add_u32 s{sFast}, s{sNonce}, s{sT}")
            k.e(f"s_lshr_b32 s{sT}, s2, 3")
            k.e(f"s_lshr_b32 s{sT2}, s{sT}, 3")
            k.e(f"s_lshl_b32 s{sT3}, s{sU}, 2")
            k.e(f"s_add_u32 s{sT2}, s{sT2}, s{sT3}")
            k.e(f"s_lshl_b32 s{sT2}, s{sT2}, 7")
            k.e(f"s_and_b32 s{sT}, s{sT}, 7")
            k.e(f"s_lshl_b32 s{sT}, s{sT}, 2")
            k.e(f"s_add_u32 s{sT2}, s{sT2}, s{sT}")
            k.e(f"s_add_u32 s{sT2}, s{sT2}, {CEN_OFF}")
            k.e(f"s_cmp_eq_u32 s{sW}, 0")
            k.e(f"s_cselect_b32 s{sT2}, s{sT2}, {WS_BYTES}")
            k.e(f"v_mov_b32 v{vt0}, 0")
            k.e(f"v_mov_b32 v{vt1}, s{sFast}")
            k.e(f"s_mov_b64 exec, 1")
            k.vm(f"buffer_store_dword v{vt1}, v{vt0}, {WS}, s{sT2} offen sc1")
            k.e(f"s_mov_b64 exec, -1")
        if g == 4:
            poll4_issue(k, vFlB, 232, 0xff)
        if g == 6:
            k.e(f"s_mov_b64 exec, 0xffffffff")
            cen_tok = k.vm(f"buffer_load_dword v{vt3}, v{vCen}, {WS}, 0 offen sc1")
            k.e(f"s_mov_b64 exec, -1")
        for ks in range(3):
            tok = interleave(mf_list(g, ks), rd_list(g, ks + 1), tok, ex)
        while ex: ex.pop(0)()
        pend = (g, 3)
        ptok = tok
    k.wait(lg=ptok)
    for m in mf_list(*pend): k.e(m)
    stamp(k, "mfma done")
    def F(hh, nm): return vF + 24 * hh + 8 * "KVQ".index(nm)
    sQs = sMk + 2
    k.e(f"s_mov_b32 s{sQs}, {f2u(QSCALE):#x}")
    k.nop(2)
    k.wait(vm=cen_tok)
    k.e(f"s_mov_b64 exec, 0xffffffff")
    k.e(f"v_cmp_ne_u32 vcc, s{sFast}, v{vt3}")
    k.e(f"s_mov_b64 exec, -1")
    k.e(f"s_cmp_eq_u64 vcc, 0")
    k.e(f"s_cselect_b32 s{sFast}, 1, 0")
    if 'slow' in DBG: k.e(f"s_mov_b32 s{sFast}, 0")
    if STAMP: k.e(f"v_writelane_b32 v{St.v}, s{sFast}, 31")
    for hh in range(2):
        aK, aQ = acc[(hh, "K")], acc[(hh, "Q")]
        fK, fQ = F(hh, "K"), F(hh, "Q")
        for j in range(8): k.e(f"v_cvt_pk_bf16_f32 v{fK+j}, v{aK+2*j}, v{aK+2*j+1}")
        for j in range(0, 16, 2):
            k.e(f"v_pk_mul_f32 v[{aQ+j}:{aQ+j+1}], v[{aQ+j}:{aQ+j+1}], s[{sQs}:{sQs+1}] op_sel_hi:[1,0]")
        for j in range(8): k.e(f"v_cvt_pk_bf16_f32 v{fQ+j}, v{aQ+2*j}, v{aQ+2*j+1}")
        k.e("s_mov_b32 exec_lo, 0")
        k.e(f"v_mov_b32 v{fK+6}, 0x3f803f80")
        k.e(f"v_mov_b32 v{fK+7}, 0x00003f80")
        k.e(f"v_mov_b32 v{fQ+6}, 0")
        k.e(f"v_mov_b32 v{fQ+7}, 0")
        k.e("s_mov_b32 exec_lo, -1")
    k.e(f"s_cmp_eq_u32 s{sBeta}, 1")
    k.e(f"s_cselect_b32 s{sT}, 1.0, 0")
    for i in range(0, 16, 2):
        k.e(f"v_pk_mul_f32 v[{vS1+i}:{vS1+i+1}], v[{vDiag+i}:{vDiag+i+1}], s[{sT}:{sT+1}] op_sel_hi:[1,0]")
    k.nop(2)
    for hh in range(2):
        S = acc[(hh, "K")]
        mfma(k, vr(S, 16), vr(F(hh, "K"), 4), vr(F(hh, "Q"), 4), vr(vS1, 16))
        mfma(k, vr(S, 16), vr(F(hh, "K") + 4, 4), vr(F(hh, "Q") + 4, 4), vr(S, 16))
    for hh in range(2):
        aV = acc[(hh, "V")]; fV = F(hh, "V")
        for j in range(8): k.e(f"v_cvt_pk_bf16_f32 v{fV+j}, v{aV+2*j}, v{aV+2*j+1}")
        for j in range(8): k.e(f"v_cndmask_b32_e64 v{fV+j}, v{fV+j}, v{vVpad}, s[{sVmask}:{sVmask+1}]")
    for hh in range(2):
        S = acc[(hh, "K")]; fQ = F(hh, "Q")
        colmax(k, S, vt3, vt0)
        k.e(f"v_add_f32 v{vt3}, {f2u(MARGIN):#x}, v{vt3}")
        shift_dwords(k, vt3, vt0, vt1, vt2)
        k.e("s_mov_b32 exec_lo, 0")
        k.e(f"v_mov_b32 v{fQ+6}, v{vt0}")
        k.e(f"v_mov_b32 v{fQ+7}, v{vt1}")
        k.e("s_mov_b32 exec_lo, -1")
    stamp(k, "epilogue")
    k.e(f"s_lshl_b32 s{sT}, s{sBeta}, 3")
    k.e(f"s_add_u32 s{sT}, s{sT}, s{sU}")
    k.e(f"s_lshl_b32 s{sT}, s{sT}, 4")
    k.e(f"s_add_u32 s{sT}, s{sT}, s{sR}")
    k.e(f"s_lshl_b32 s{sT}, s{sT}, 7")
    k.e(f"s_lshl_b32 s{sT2}, s{sW}, 2")
    k.e(f"s_add_u32 s{sT}, s{sT}, s{sT2}")
    k.e(f"s_add_u32 s{sFOB}, s{sT}, {FP1_OFF}")
    Lslow = k.newlabel("slow"); Lst = k.newlabel("stored")
    k.e(f"s_cmp_eq_u32 s{sFast}, 0")
    k.e(f"s_cbranch_scc1 {Lslow}")
    def qkv_stores(flag):
        for hh in range(2):
            for nm in "KVQ":
                f = F(hh, nm); d = dsts[3 * hh + "KVQ".index(nm)]
                k.e(f"buffer_store_dwordx4 v[{f}:{f+3}], v{vSt}, {WS}, s{d} offen {flag}")
                k.e(f"buffer_store_dwordx4 v[{f+4}:{f+7}], v{vSt}, {WS}, s{d} offen offset:1024 {flag}")
        k.e(f"v_mov_b32 v{vt0}, 0")
        k.e(f"v_mov_b32 v{vt1}, s{sNonce}")
        k.e(f"s_waitcnt vmcnt(0)")
        k.e(f"s_mov_b64 exec, 1")
        k.e(f"buffer_store_dword v{vt1}, v{vt0}, {WS}, s{sFOB} offen {flag}")
        k.e(f"s_mov_b64 exec, -1")
    if 'ant' in DBG:
        Lnt = k.newlabel("ant")
        k.e(f"s_cmp_eq_u32 s{sBeta}, 1")
        k.e(f"s_cbranch_scc1 {Lnt}")
        qkv_stores("")
        k.e(f"s_branch {Lst}")
        k.label(Lnt)
        qkv_stores("nt")
    else:
        qkv_stores("")
    k.e(f"s_branch {Lst}")
    k.label(Lslow)
    qkv_stores("sc1")
    k.label(Lst)
    k.vm_n += 13; k.vm_done = k.vm_n - 1
    stamp(k, "flag stored")
    k.e("s_barrier")
    vRed, vRedR, vQA, vOf, vO01, vQ, vS, vP, vO23 = 16, 17, 20, 28, 36, 68, 100, 132, 148
    vPR0, vPR1, vPT = 180, 184, 188
    vTmp = vS
    def vOd(d): return (vO01 + 16 * d) if d < 2 else (vO23 + 16 * (d - 2))
    qtok = {}; ktok = {}; vtok = {}
    sTq = [0, 98, 99]
    def tile_items(i):
        def f(j):
            def g_():
                if j == 0 or j == 2:
                    k.e(f"s_add_u32 s{sT}, s{sRot}, {i}")
                    k.e(f"s_and_b32 s{sT}, s{sT}, 15")
                    k.e(f"s_lshl_b32 s{sT}, s{sT}, 12")
                    k.e(f"s_add_u32 s{sTq[1]}, s{sT}, s{sKVB}")
                t = k.vm(f"buffer_load_dwordx4 a[{16*i+4*j}:{16*i+4*j+3}], v{vSt}, {WS}, s{sTq[1]} offen offset:{1024*j} sc1")
                if j == 1: ktok[i] = t
                if j == 3: vtok[i] = t
            return g_
        return [f(j) for j in range(4)]
    def q_items(d):
        def f(j):
            def g_():
                if j == 0:
                    k.e(f"s_add_u32 s{sT}, s{sW}, {d}")
                    k.e(f"s_and_b32 s{sT}, s{sT}, 3")
                    k.e(f"s_lshl_b32 s{sT2}, s{sRA}, 2")
                    k.e(f"s_add_u32 s{sT}, s{sT}, s{sT2}")
                    k.e(f"s_lshl_b32 s{sT2}, s{sHead}, 6")
                    k.e(f"s_add_u32 s{sT}, s{sT}, s{sT2}")
                    k.e(f"s_lshl_b32 s{sTq[1]}, s{sT}, 11")
                    k.e(f"s_add_u32 s{sTq[1]}, s{sTq[1]}, {Q_OFF['B']}")
                t = k.vm(f"buffer_load_dwordx4 v[{vQ+8*d+4*j}:{vQ+8*d+4*j+3}], v{vSt}, {WS}, s{sTq[1]} offen offset:{1024*j} sc1")
                if j == 1: qtok[d] = t
            return g_
        return [f(0), f(1)]
    WOB_L, WOA_L = 0, 57344
    def wo_items(srdn, lbase):
        def one(j):
            def f():
                if j == 0:
                    k.e(f"s_lshl_b32 s{sMk}, s{sCT}, 7")
                    k.e(f"s_mul_i32 s{sMk+1}, s{sW}, {112*896}")
                    k.e(f"s_add_u32 s{sMk}, s{sMk}, s{sMk+1}")
                    k.e(f"s_mul_i32 s{sMk+1}, s{sW}, {112*128}")
                    k.e(f"s_add_u32 s{sMk+1}, s{sMk+1}, {lbase}")
                k.e(f"s_add_u32 m0, s{sMk+1}, {1024*j}")
                k.e(f"s_add_u32 s{sMk+4}, s{sMk}, {8*896*j}")
                return k.vm(f"buffer_load_dwordx4 v{vWoD}, s[{srdn}:{srdn+3}], s{sMk+4} offen lds")
            return f
        return [one(j) for j in range(14)]
    k.e(f"s_add_u32 s{SRD_XB}, s20, s{sKVB}")
    k.e(f"s_addc_u32 s{SRD_XB+1}, s21, 0")
    k.e(f"s_and_b32 s{SRD_XB+1}, s{SRD_XB+1}, 0xffff")
    tp = poll4_issue(k, vFlB, vPR0, 0xff)
    poll4_finish(k, tp, vFlB, vPR0, vPR1, vPT, 0xff, "pb")
    stamp(k, "P1 flags")
    k.e(f"s_mov_b32 s{SRD_XB+2}, 0x10000")
    k.e(f"s_mov_b32 s{SRD_XB+3}, 0x20000")
    t0i = tile_items(0)
    for f in q_items(1) + t0i[:2] + q_items(2) + t0i[2:] + q_items(3): f()
    vOA = 224; vEdge = 192
    kt = {}; vt = {}; st = {}
    def bop(i, d):
        return dict(K=(ar(16*i, 4), ar(16*i+4, 4)), V=(ar(16*i+8, 4), ar(16*i+12, 4)),
                    Q=(vr(vQ+8*d, 4), vr(vQ+8*d+4, 4)), O=vr(vOd(d), 16), C="0", first=(i == 0),
                    wK=(lambda i=i, d=d: max(ktok[i], qtok[d])), wV=(lambda i=i: vtok[i]))
    def aslot(j): return j % 3
    lk = {}; lv = {}
    def aop(j):
        a = aslot(j)
        C = vr(vEdge, 16) if j == 0 else vr(vDiag, 16) if j == 8 else "0"
        return dict(K=(ar(16*a, 4), ar(16*a+4, 4)), V=(ar(16*a+8, 4), ar(16*a+12, 4)), Q=(vr(vQA, 4), vr(vQA+4, 4)),
                    O=vr(vOA, 16), C=C, first=(j == 0), lK=(lambda j=j: lk[j]), lV=(lambda j=j: lv[j]))
    A0 = int(os.environ.get('A0', '12'))
    NT1 = A0 // 4
    ops = [bop(i, d) for i in range(NT1) for d in (1, 2, 3, 0)] + [aop(j) for j in range(9)] + [bop(i, d) for i in range(NT1, 16) for d in (1, 2, 3, 0)]
    N = len(ops)
    vKVr = 191
    def rdKa(j):
        a = aslot(j)
        k.lg(f"ds_read_b128 a[{16*a}:{16*a+3}], v{vKVr} offset:{j*4096}")
        lk[j] = k.lg(f"ds_read_b128 a[{16*a+4}:{16*a+7}], v{vKVr} offset:{j*4096+1024}")
    def rdVa(j):
        a = aslot(j)
        k.lg(f"ds_read_b128 a[{16*a+8}:{16*a+11}], v{vKVr} offset:{j*4096+2048}")
        lv[j] = k.lg(f"ds_read_b128 a[{16*a+12}:{16*a+15}], v{vKVr} offset:{j*4096+3072}")
    sPB, sPA, sPW, sPO, sMW = 98, 99, sMk, sMk + 1, sMk + 4
    SRD_KV = SRD_XB
    vWoD2 = 208
    k.e(f"v_add_u32 v{vWoD2}, {8*896-1024}, v{vWoD}")
    KVS = f"s[{SRD_KV}:{SRD_KV+3}]"
    def b_pair(i, h):
        def prep():
            if h == 0: k.e(f"s_mov_b32 s{sPB}, {4096*i}")
        def issue():
            k.vm(f"buffer_load_dwordx4 a[{16*i+8*h}:{16*i+8*h+3}], v{vSt}, {KVS}, s{sPB} offen offset:{2048*h} sc1")
            t = k.vm(f"buffer_load_dwordx4 a[{16*i+8*h+4}:{16*i+8*h+7}], v{vSt}, {KVS}, s{sPB} offen offset:{2048*h+1024} sc1")
            (ktok if h == 0 else vtok)[i] = t
        return prep, issue
    def a_pair(i, h):
        def prep():
            if h == 0:
                k.e(f"s_mul_i32 s{sT}, s{sW}, 3")
                k.e(f"s_lshl_b32 s{sT2}, s{sRA}, 2")
                k.e(f"s_add_u32 s{sT}, s{sT}, s{sT2}")
                k.e(f"s_add_i32 s{sT2}, s{sT}, {i-8}")
                k.e(f"s_lshl_b32 s{sPA}, s{sT2}, 12")
                k.e(f"s_add_u32 s{sPA}, s{sPA}, s{sKV}")
                k.e(f"s_cmp_lt_i32 s{sT2}, 0")
                k.e(f"s_cselect_b32 s{sPA}, {WS_BYTES}, s{sPA}")
            k.e(f"s_mul_i32 s{sT}, s{sW}, {3*4096}")
            k.e(f"s_add_u32 m0, s{sT}, {SCR + i*4096}")
        def issue():
            k.vm(f"buffer_load_dwordx4 v{vSt}, {WS}, s{sPA} offen offset:{2048*h} sc1 lds")
            st["ad"] = k.vm(f"buffer_load_dwordx4 v{vSt}, {WS}, s{sPA} offen offset:{2048*h+1024} sc1 lds")
        return prep, issue
    def qa_pair():
        def prep():
            k.e(f"s_lshl_b32 s{sT2}, s{sHead}, 6")
            k.e(f"s_add_u32 s{sT2}, s{sT2}, s{sTTA}")
            k.e(f"s_lshl_b32 s{sPA}, s{sT2}, 11")
            k.e(f"s_add_u32 s{sPA}, s{sPA}, {Q_OFF['A']}")
        def issue():
            k.vm(f"buffer_load_dwordx4 v[{vQA}:{vQA+3}], v{vSt}, {WS}, s{sPA} offen sc1")
            st["qa"] = k.vm(f"buffer_load_dwordx4 v[{vQA+4}:{vQA+7}], v{vSt}, {WS}, s{sPA} offen offset:1024 sc1")
        return prep, issue
    def wo_pair(srdn, lbase, j):
        def prep():
            if j == 0:
                k.e(f"s_lshl_b32 s{sT}, s{sCT}, 7")
                k.e(f"s_mul_i32 s{sT2}, s{sW}, {112*896}")
                k.e(f"s_add_u32 s{sPW}, s{sT}, s{sT2}")
                k.e(f"s_mul_i32 s{sMW}, s{sW}, {112*128}")
                k.e(f"s_add_u32 s{sMW}, s{sMW}, {lbase}")
            else:
                k.e(f"s_add_u32 s{sPW}, s{sPW}, {16*896}")
            k.e(f"s_add_u32 m0, s{sMW}, {2048*j}")
        def issue():
            k.vm(f"buffer_load_dwordx4 v{vWoD}, s[{srdn}:{srdn+3}], s{sPW} offen lds")
            st["wo"] = k.vm(f"buffer_load_dwordx4 v{vWoD2}, s[{srdn}:{srdn+3}], s{sPW} offen offset:1024 lds")
        return prep, issue
    at = {}
    def oa_pair(p):
        def prep():
            if p == 0:
                k.e(f"s_lshl_b32 s{sT}, s{sP3T}, 1")
                k.e(f"s_lshr_b32 s{sT2}, s{sW}, 1")
                k.e(f"s_add_u32 s{sTT}, s{sT}, s{sT2}")
                k.e(f"s_lshl_b32 s{sPO}, s{sTT}, 15")
                k.e(f"s_add_u32 s{sPO}, s{sPO}, {O_OFF['A']}")
            elif p % 2 == 0:
                k.e(f"s_add_u32 s{sPO}, s{sPO}, 4096")
        def issue():
            o = 2048 * (p % 2)
            at[2*p] = k.vm(f"buffer_load_dwordx4 a[{8*p}:{8*p+3}], v{vSt}, {WS}, s{sPO} offen offset:{o} sc1")
            at[2*p+1] = k.vm(f"buffer_load_dwordx4 a[{8*p+4}:{8*p+7}], v{vSt}, {WS}, s{sPO} offen offset:{o+1024} sc1")
        return prep, issue
    def q_pair(d):
        a, b = q_items(d)
        return (lambda: None), (lambda: (a(), b()))
    strB = []
    strB.append((-1,) + q_pair(0) + (-1,))
    for i in range(1, 16):
        use = 4 * i if i < NT1 else 4 * i + 9
        strB.append((max(use - 14, 0),) + b_pair(i, 0) + (use - 5,)); strB.append((max(use - 13, 0),) + b_pair(i, 1) + (use - 3,))
    strA = [(1,) + qa_pair() + (A0 - 12,)] + [(1,) + a_pair(i, h) + (A0 - 12 + 2 * i + h,) for i in range(3) for h in range(2)]
    strW = [(A0 - 2,) + wo_pair(SRD_WOA, WOA_L, j) + (55 + j,) for j in range(7)] + [(A0 - 2,) + wo_pair(SRD_WOB, WOB_L, j) + (62 + j,) for j in range(7)]
    strO = []
    if 'l1hit' in DBG:
        def b_pair(i, h):
            def prep(): pass
            def issue():
                k.vm(f"buffer_load_dwordx4 a[{16*i+8*h}:{16*i+8*h+3}], v{vSt}, {KVS}, 0 offen offset:0")
                t = k.vm(f"buffer_load_dwordx4 a[{16*i+8*h+4}:{16*i+8*h+7}], v{vSt}, {KVS}, 0 offen offset:1024")
                (ktok if h == 0 else vtok)[i] = t
            return prep, issue
        pass
    if 'nob' in DBG:
        for i in range(1, 16): ktok[i] = 0; vtok[i] = 0
        strB = [(-1, lambda: None, lambda: None, -1)]
    if 'nowo' in DBG:
        strW = []; st["wo"] = 0
    cur = {"item": None}
    def pick(n, g):
        cand = [q for q in (strB, strA, strW, strO) if q and q[0][0] <= n]
        if not cand: return None
        cand.sort(key=lambda q: q[0][3])
        q = cand[0]
        if g == 2 and q[0][3] > n + 2: return None
        return q.pop(0)
    vR1, vR2, vR3 = 189, 190, 191
    def red_addr():
        for d, vv in ((1, vR1), (2, vR2), (3, vR3)):
            k.e(f"s_add_u32 s{sT}, s{sW}, {d}")
            k.e(f"s_and_b32 s{sT}, s{sT}, 3")
            k.e(f"s_mul_i32 s{sT}, s{sT}, {3*4096}")
            k.e(f"s_add_u32 s{sT}, s{sT}, {SCR + (d-1)*4096}")
            k.e(f"v_add_u32 v{vv}, s{sT}, v{vSt}")
        k.e(f"s_mul_i32 s{sT}, s{sW}, {3*4096}")
        k.e(f"s_add_u32 s{sT}, s{sT}, {SCR}")
        k.e(f"v_add_u32 v{vRedR}, s{sT}, v{vSt}")
    def red_write(d, i):
        vv = {1: vR1, 2: vR2, 3: vR3}[d]
        k.lg(f"ds_write_b128 v{vv}, v[{vOd(d)+4*i}:{vOd(d)+4*i+3}] offset:{1024*i}")
    def o_flag_offsets():
        k.e(f"s_lshl_b32 s{sFOA}, s{sTTA}, 2")
        k.e(f"s_lshr_b32 s{sT}, s{sHead}, 2")
        k.e(f"s_add_u32 s{sFOA}, s{sFOA}, s{sT}")
        k.e(f"s_lshl_b32 s{sFOA}, s{sFOA}, 7")
        k.e(f"s_and_b32 s{sT}, s{sHead}, 3")
        k.e(f"s_lshl_b32 s{sT}, s{sT}, 2")
        k.e(f"s_add_u32 s{sFOA}, s{sFOA}, s{sT}")
        k.e(f"s_add_u32 s{sFOB}, s{sFOA}, {FO_OFF}")
        k.e(f"s_add_u32 s{sFOA}, s{sFOA}, {FO_OFF + 64*4*128}")
    SL = eval(os.environ.get("SLOTS", "()"))
    k.e(f"s_lshl_b32 s{sKV}, s{sHead}, 18")
    k.e(f"s_add_u32 s{sKV}, s{sKV}, {KV_OFF['A']}")
    def shadowB(n, g):
        if g % 2 == 0:
            if cur["item"] is not None:
                cur["item"][2](); cur["item"] = None
            if g == 0 and n in SL: stamp(k, f"slot{n}")
        else:
            ng, nn = (g + 1) % 4, n + (1 if g == 3 else 0)
            ok = True
            if ng == 0 and nn + 1 >= N: ok = False
            if ng == 2 and nn < 1: ok = False
            if nn > N: ok = False
            if ok and cur["item"] is None:
                it = pick(nn, ng)
                if it:
                    it[1](); cur["item"] = it
            if n >= 0:
                for j in range(9):
                    if j > 0 and g == 3 and n == A0 + j - 3: rdKa(j)
                    if g == 1 and n == A0 + j: rdVa(j)
                if n == N - 1: pass
    def extraB(n, g):
        if n < 0: return
        if g == 1 and n == A0 - 3:
            assert not strA
            k.wait(vm=max(st["ad"], st["qa"]))
            k.e("s_barrier")
            k.e(f"s_lshl_b32 s{sT}, s{sW}, 12")
            k.e(f"s_add_u32 s{sT}, s{sT}, {SCR}")
            k.e(f"v_add_u32 v{vKVr}, s{sT}, v{vSt}")
            rdKa(0)
            k.e(f"v_mov_b32 v{vt1}, {f2u(NEGBIG):#x}")
            for i in range(16): k.e(f"v_sub_f32 v{vEdge+i}, v{vt1}, v{vDiag+i}")
        if g == 1 and n == A0 + 11:
            finalize_o(k, vOA, vt0, vt1, vOf)
            k.e(f"s_lshl_b32 s{sT}, s{sTTA}, 4")
            k.e(f"s_add_u32 s{sT}, s{sT}, s{sHead}")
            k.e(f"s_lshl_b32 s{sOo}, s{sT}, 11")
            k.e(f"s_add_u32 s{sOo}, s{sOo}, {O_OFF['A']}")
            k.vm(f"buffer_store_dwordx4 v[{vOf}:{vOf+3}], v{vSt}, {WS}, s{sOo} offen sc1")
            st["oa"] = k.vm(f"buffer_store_dwordx4 v[{vOf+4}:{vOf+7}], v{vSt}, {WS}, s{sOo} offen offset:1024 sc1")
            o_flag_offsets()
        if g == 1 and n == A0 + 19:
            k.wait(vm=st["oa"])
            store_flag(k, vt0, vt1, sFOA)
            k.e(f"s_lshl_b32 s{sT}, s{sP3T}, 3")
            k.e(f"v_add_u32 v{vFlB}, s{sT}, v{vLane}")
            k.e(f"v_lshlrev_b32 v{vFlB}, 7, v{vFlB}")
            k.e(f"v_add_u32 v{vFlA}, {FO_OFF + 64*4*128}, v{vFlB}")
            k.e(f"v_add_u32 v{vFlB}, {FO_OFF}, v{vFlB}")
        if g == 1 and n == max(42, A0 + 28):
            st["pOA"] = poll4_issue(k, vFlA, vPR0, 0xff)
        if g == 1 and n == max(47, A0 + 33):
            poll4_finish(k, st["pOA"], vFlA, vPR0, vPR1, vPT, 0xff, "poA")
            if 'noo' in DBG:
                for p in range(32): at[p] = 0
                k.e(f"s_mov_b32 s{sTT}, 0")
            else: strO.extend([(n + 1,) + oa_pair(p) + (min(n + 4 + 2 * p, 72),) for p in range(16)])
        if g == 1 and n == N - 8:
            red_addr()
        if n == N - 1: red_write(1, g)
        if n == N and g < 2:
            red_write(2, 2 * g); red_write(2, 2 * g + 1)
    it = pick(-1, 0); it[1](); cur["item"] = it
    attn_pipeline(k, ops, vS, vP, shadowB, extraB)
    assert cur['item'] is None
    assert not strB and not strA and not strW and not strO, (len(strB), len(strA), len(strW), len(strO))
    stamp(k, "attn done")
    k.nop(8)
    for i in range(4): red_write(3, i)
    k.wait_all(vm=False)
    k.e("s_barrier")
    for j in range(3):
        for i in range(4):
            k.lg(f"ds_read_b128 v[{vTmp+16*j+4*i}:{vTmp+16*j+4*i+3}], v{vRedR} offset:{4096*j+1024*i}")
    for j in range(3):
        k.wait(lg=k.lg_n - 4 * (2 - j))
        for i in range(0, 16, 2):
            k.e(f"v_pk_add_f32 v[{vOd(0)+i}:{vOd(0)+i+1}], v[{vOd(0)+i}:{vOd(0)+i+1}], v[{vTmp+16*j+i}:{vTmp+16*j+i+1}]")
    finalize_o(k, vOd(0), vt0, vt1, vOf)
    k.e(f"s_lshl_b32 s{sT}, s{sTTA}, 4")
    k.e(f"s_add_u32 s{sT}, s{sT}, s{sHead}")
    k.e(f"s_lshl_b32 s{sOo}, s{sT}, 11")
    k.e(f"s_add_u32 s{sOo}, s{sOo}, {O_OFF['B']}")
    k.vm(f"buffer_store_dwordx4 v[{vOf}:{vOf+3}], v{vSt}, {WS}, s{sOo} offen sc1")
    ob = k.vm(f"buffer_store_dwordx4 v[{vOf+4}:{vOf+7}], v{vSt}, {WS}, s{sOo} offen offset:1024 sc1")
    stamp(k, "O(B) stored")
    def cleanup():
        vC = 100
        for i in range(6):
            k.vm(f"buffer_load_dwordx4 v[{vC+8*i}:{vC+8*i+3}], v{vSt}, {WS}, s{dsts[i]} offen sc1")
            t = k.vm(f"buffer_load_dwordx4 v[{vC+8*i+4}:{vC+8*i+7}], v{vSt}, {WS}, s{dsts[i]} offen offset:1024 sc1")
        return vC, t
    def cleanup_stores(vC, t):
        k.wait(vm=t)
        for i in range(6):
            k.vm(f"buffer_store_dwordx4 v[{vC+8*i}:{vC+8*i+3}], v{vSt}, {WS}, s{dsts[i]} offen sc1")
            k.vm(f"buffer_store_dwordx4 v[{vC+8*i+4}:{vC+8*i+7}], v{vSt}, {WS}, s{dsts[i]} offen offset:1024 sc1")
    Lp3 = k.newlabel("p3")
    k.e(f"s_cmp_lt_u32 s2, 224")
    k.e(f"s_cbranch_scc1 {Lp3}")
    k.e("s_waitcnt vmcnt(0)")
    k.e(f"v_mov_b32 v{vt0}, 0")
    k.e(f"v_mov_b32 v{vt1}, s{sNonce}")
    k.e(f"s_mov_b64 exec, 1")
    k.e(f"buffer_store_dword v{vt1}, v{vt0}, {WS}, s{sFOB} offen sc1")
    k.e(f"s_mov_b64 exec, -1")
    if 'wb' in DBG:
        Lw = k.newlabel("nowb")
        k.e(f"s_lshr_b32 s{sT}, s2, 3")
        k.e(f"s_lshl_b32 s{sT}, s{sT}, 2")
        k.e(f"s_add_u32 s{sT}, s{sT}, s{sW}")
        k.e(f"s_cmp_lg_u32 s{sT}, {28*4}")
        k.e(f"s_cbranch_scc1 {Lw}")
        k.e(f"s_waitcnt vmcnt(0)")
        k.e(f"buffer_wbl2 sc1")
        k.e(f"s_waitcnt vmcnt(0)")
        k.label(Lw)
    k.e(f"s_endpgm")
    k.label(Lp3)
    vWrB, vWrA, vWrBc, vWrAc, vOr, vOut = 16, 17, 18, 19, 189, 190
    k.e(f"v_mov_b32 v{vWrB}, v{vP3a}")
    k.e(f"v_add_u32 v{vWrA}, {WOA_L}, v{vP3a}")
    k.e(f"v_lshrrev_b32 v{vt0}, 5, v{vLane}")
    k.e(f"v_lshlrev_b32 v{vt0}, 9, v{vt0}")
    k.e(f"v_sub_u32 v{vWrBc}, v{vWrB}, v{vt0}")
    k.e(f"v_sub_u32 v{vWrAc}, v{vWrA}, v{vt0}")
    k.e(f"v_and_b32 v{vt0}, 31, v{vLane}")
    k.e(f"v_mul_u32_u24 v{vt0}, 1792, v{vt0}")
    k.e(f"v_lshrrev_b32 v{vt1}, 5, v{vLane}")
    k.e(f"v_lshl_add_u32 v{vOut}, v{vt1}, 4, v{vt0}")
    NB = 4
    vA3, vB3, vD3, vPk = 36, 52, 68, 84
    def rdA(step, vW, vWc):
        hd, kk = step // 2, step % 2
        par = step % NB
        row = 28 * hd + 16 * kk
        a2 = vWc if (hd == 15 and kk == 1) else vW
        k.lg(f"ds_read_b64_tr_b16 v[{vA3+4*par}:{vA3+4*par+1}], v{vW} offset:{row*128}")
        return k.lg(f"ds_read_b64_tr_b16 v[{vA3+4*par+2}:{vA3+4*par+3}], v{a2} offset:{(row+8)*128}")
    def out_store(b):
        k.nop(12)
        for i in range(8): k.e(f"v_cvt_pk_bf16_f32 v{vPk+i}, v{vD3+2*i}, v{vD3+2*i+1}")
        k.e(f"s_lshl_b32 s{sT2}, s{sCT}, 1")
        k.e(f"s_and_b32 s{sT}, s{sW}, 1")
        k.e(f"s_add_u32 s{sT2}, s{sT2}, s{sT}")
        k.e(f"v_permlane32_swap_b32 v{vPk}, v{vPk+2}")
        k.e(f"v_permlane32_swap_b32 v{vPk+1}, v{vPk+3}")
        k.e(f"v_permlane32_swap_b32 v{vPk+4}, v{vPk+6}")
        k.e(f"v_permlane32_swap_b32 v{vPk+5}, v{vPk+7}")
        k.e(f"s_mul_i32 s{sOo}, s{sTT}, {32*1792}")
        k.e(f"s_lshl_b32 s{sT}, s{sT2}, 6")
        k.e(f"s_add_u32 s{sOo}, s{sOo}, s{sT}")
        if b == "B": k.e(f"s_add_u32 s{sOo}, s{sOo}, 896")
        k.vm(f"buffer_store_dwordx4 v[{vPk}:{vPk+3}], v{vOut}, s[{SRD_OUT}:{SRD_OUT+3}], s{sOo} offen nt")
        k.vm(f"buffer_store_dwordx4 v[{vPk+4}:{vPk+7}], v{vOut}, s[{SRD_OUT}:{SRD_OUT+3}], s{sOo} offen offset:32 nt")
    k.c("---- P3 A  (wo(A) was waited for long ago by later counted waits; make it explicit)")
    k.wait(vm=st["wo"])
    k.e("s_barrier")
    toks = {}
    for s_ in range(NB - 1): toks[s_] = rdA(s_, vWrA, vWrAc)
    for step in range(32):
        k.wait(vm=at[step], lg=toks[step])
        par = step % NB
        mfma(k, vr(vD3, 16), vr(vA3 + 4 * par, 4), ar(4 * step, 4), "0" if step == 0 else vr(vD3, 16))
        if step + NB - 1 < 32: toks[step + NB - 1] = rdA(step + NB - 1, vWrA, vWrAc)
    k.wait(vm=ob)
    store_flag(k, vt0, vt1, sFOB)
    tpB = poll4_issue(k, vFlB, vPR0, 0xff)
    out_store("A")
    stamp(k, "P3A done")
    k.e("s_barrier")
    poll4_finish(k, tpB, vFlB, vPR0, vPR1, vPT, 0xff, "poB")
    stamp(k, "P3B flags")
    k.e(f"s_lshl_b32 s{sOo}, s{sP3T}, 16")
    k.e(f"s_add_u32 s{sOo}, s{sOo}, {O_OFF['B']}")
    k.e(f"s_lshl_b32 s{sT}, s{sW}, 14")
    k.e(f"s_add_u32 s{sOo}, s{sOo}, s{sT}")
    k.e(f"s_add_u32 s{sT2}, s{sT}, {WOA_L}")
    for j in range(16):
        if j % 4 == 0:
            k.e(f"s_add_u32 m0, s{sT2}, {1024*j}")
            k.e(f"s_add_u32 s{sT}, s{sOo}, {1024*j}")
        k.vm(f"buffer_load_dwordx4 v{vSt}, {WS}, s{sT} offen offset:{1024*(j%4)} sc1 lds")
    otB = k.vm_n
    if 'clean' in DBG: cleanup_stores(vC, tC)
    k.e(f"s_lshr_b32 s{sT}, s{sW}, 1")
    k.e(f"s_lshl_b32 s{sT}, s{sT}, 15")
    k.e(f"s_add_u32 s{sT}, s{sT}, {WOA_L}")
    k.e(f"v_add_u32 v{vOr}, s{sT}, v{vSt}")
    toks = {}
    for s_ in range(NB - 1): toks[s_] = rdA(s_, vWrB, vWrBc)
    k.wait(vm=otB)
    k.e("s_barrier")
    stamp(k, "P3B data")
    tb = {}
    def rdB(step):
        par = step % NB
        return k.lg(f"ds_read_b128 v[{vB3+4*par}:{vB3+4*par+3}], v{vOr} offset:{step*1024}")
    for s_ in range(NB - 1): tb[s_] = rdB(s_)
    for step in range(32):
        k.wait(lg=max(toks[step], tb[step]))
        par = step % NB
        mfma(k, vr(vD3, 16), vr(vA3 + 4 * par, 4), vr(vB3 + 4 * par, 4), "0" if step == 0 else vr(vD3, 16))
        if step + NB - 1 < 32:
            toks[step + NB - 1] = rdA(step + NB - 1, vWrB, vWrBc)
            tb[step + NB - 1] = rdB(step + NB - 1)
    out_store("B")
    stamp(k, "P3B done")
    stamp(k, "rt", True)
    stamp_flush(k, vt0, vt1)
    if SPAN:
        k.e("s_waitcnt vmcnt(0)")
        k.e(f"s_memrealtime s[{sSp}:{sSp+1}]")
        k.e(f"s_memtime s[{sSp+2}:{sSp+3}]")
        k.e("s_waitcnt lgkmcnt(0)")
        k.e(f"v_readlane_b32 s{sT}, v15, 0")
        k.e(f"v_readlane_b32 s{sT2}, v15, 1")
        k.e(f"s_nop 3")
        k.e(f"s_not_b32 s{sT3}, s{sT}")
        k.e(f"s_sub_u32 s{sT2}, s{sSp+2}, s{sT2}")
        k.e(f"s_sub_u32 s{sT}, s{sSp}, s{sT}")
        k.e(f"v_mov_b32 v{vt0}, 0")
        k.e(f"v_mov_b32 v{vt1}, s{sT3}")
        k.e(f"v_mov_b32 v{vt2}, s{sSp}")
        k.e(f"s_mov_b64 exec, 1")
        k.e(f"global_atomic_umax v{vt0}, v{vt1}, s[18:19] offset:4")
        k.e(f"global_atomic_umax v{vt0}, v{vt2}, s[18:19] offset:8")
        k.e(f"v_mov_b32 v{vt1}, s{sT2}")
        k.e(f"v_mov_b32 v{vt2}, s{sT}")
        k.e(f"global_atomic_umax v{vt0}, v{vt1}, s[18:19] offset:12")
        k.e(f"global_atomic_umax v{vt0}, v{vt2}, s[18:19] offset:16")
    k.label("L_end")
    k.e("s_endpgm")
    return k

HEADER = open("cdna_kernels/" + NAME + ".s.ref").read().split("; Override")[0]

def main(out):
    k = gen()
    pr = check(k.L, "fused")
    for p in pr: print(p)
    print("instrs", len(k.L), "stamps", St.n, St.names)
    s = HEADER
    s += "; @launch grid=(256,1,1) block=(256,1,1) lds=163840\n"
    s += '.amdgcn_target "amdgcn-amd-amdhsa--gfx950"\n.text\n'
    s += f".globl {KNAME}\n.p2align 8\n.type {KNAME},@function\n{KNAME}:\n" + k.text()
    s += f""".section .rodata,"a"
.p2align 6
.amdhsa_kernel {KNAME}
  .amdhsa_next_free_vgpr 512
  .amdhsa_next_free_sgpr 102
  .amdhsa_accum_offset 256
  .amdhsa_group_segment_fixed_size 0
  .amdhsa_kernarg_size 72
  .amdhsa_user_sgpr_count 2
  .amdhsa_user_sgpr_kernarg_segment_ptr 1
  .amdhsa_system_sgpr_workgroup_id_x 1
.end_amdhsa_kernel
"""
    open(out, "w").write(s)

if __name__ == "__main__":
    main(sys.argv[1] if len(sys.argv) > 1 else "f3.s")
```

```python
import sys, math, struct, os
sys.path.insert(0, "gen")
from asmlib import Emit, check

NAME = "concat_heads__sliding_block__softmax_full_mha__prompt"
KNAME = NAME + "_kernel"
def f2u(x): return struct.unpack("<I", struct.pack("<f", x))[0]

KV_OFF = {"B": 0, "A": 4 << 20}
O_OFF = {"B": 8 << 20, "A": 10 << 20}
Q_OFF = {"B": 12 << 20, "A": 14 << 20}
FP1_OFF = 16 << 20
FO_OFF = (16 << 20) + (256 << 10)
NONCE_OFF = (16 << 20) + (768 << 10)
CEN_OFF = (16 << 20) + (800 << 10)
STAMPS = 17 << 20
WS_BYTES = 18 << 20
X_BYTES = 2048 * 896
W_BYTES = 448 * 2688
WO_BYTES = 448 * 896
OUT_BYTES = 2048 * 1792
QSCALE = (28 ** -0.5) * math.log2(math.e)
MARGIN = 64.0
NEGBIG = -1.0e30
MAPB = os.environ.get('MAPB', '0') == '1'
STAMP = os.environ.get("STAMP", "0") in ("1", "2")
STAMPDBG = os.environ.get("STAMP", "0") == "2"
DBGWG = int(os.environ.get("DBGWG", "100"))
SKIP = set(os.environ.get("SKIP", "").split(","))
SPIN_MAX = 1 << 18
SCR = 114688

class V:
    def __init__(self, lo, hi): self.n = lo; self.hi = hi
    def a(self, cnt=1, al=1):
        self.n = (self.n + al - 1) // al * al
        r = self.n; self.n += cnt
        assert self.n <= self.hi, "out of regs"
        return r

def vr(b, n=1): return f"v{b}" if n == 1 else f"v[{b}:{b+n-1}]"
def ar(b, n=1): return f"a{b}" if n == 1 else f"a[{b}:{b+n-1}]"
def mfma(k, d, a, b, c): k.e(f"v_mfma_f32_32x32x16_bf16 {d}, {a}, {b}, {c}")

S_PTR = 4
SRD_XB, SRD_WB, SRD_WS, SRD_OUT, SRD_XA, SRD_WA = 24, 28, 32, 36, 40, 44
SRD_WO = 4
sWmask = 96
sW, sBeta, sU, sR, sT, sT2, sT3 = 48, 49, 50, 51, 52, 53, 54
sOff, sXbase, sWcol, sM0X, sM0W, sC, sXo, sWo, sWo2 = 55, 56, 57, 58, 59, 60, 61, 62, 63
sVmask = 64
sNonce = 66
sHead, sTT, sKV, sTo, sQo, sOo, sSpin = 67, 68, 69, 70, 71, 72, 73
sCT, sP3T = 74, 75
sEx = 76
sStampTmp = 78
sRA = 80
sUQ, sUK, sUV = 81, 82, 83
sFOA, sFOB, sKVB, sRot, sOffU, sTTA = 84, 85, 86, 87, 88, 89
sMk = 90
sD0 = 22
WS = f"s[{SRD_WS}:{SRD_WS+3}]"

def srd(k, s, lo, size):
    k.e(f"s_mov_b32 s{s}, s{lo}")
    k.e(f"s_and_b32 s{s+1}, s{lo+1}, 0xffff")
    k.e(f"s_mov_b32 s{s+2}, {size}")
    k.e(f"s_mov_b32 s{s+3}, 0x20000")

class St:
    n = 0; v = 15; names = []
def stamp(k, name="", rt=False):
    if not STAMP: return
    if STAMPDBG and (rt or name in SKIP): return
    i = St.n; St.n += 1; St.names.append(name)
    assert i < 32
    k.e(f"{'s_memrealtime' if rt else 's_memtime'} s[{sStampTmp}:{sStampTmp+1}]")
    k.wait_all(vm=False, lg=True)
    k.e(f"v_writelane_b32 v{St.v}, s{sStampTmp}, {i}")
def stamp_flush(k, vt0, vt1):
    if not STAMP: return
    if STAMPDBG:
        L = k.newlabel("sf")
        k.e(f"s_lshl_b32 s{sStampTmp}, s2, 2")
        k.e(f"s_add_u32 s{sStampTmp}, s{sStampTmp}, s{sW}")
        k.e(f"s_cmp_lg_u32 s{sStampTmp}, {DBGWG*4}")
        k.e(f"s_cbranch_scc1 {L}")
        k.e(f"v_readlane_b32 s{sStampTmp}, v{St.v}, 0")
        k.e(f"v_and_b32 v{vt0}, 63, v0")
        k.e(f"v_lshlrev_b32 v{vt0}, 2, v{vt0}")
        k.e(f"v_subrev_u32 v{vt1}, s{sStampTmp}, v{St.v}")
        k.e(f"s_mov_b64 exec, 0xfffe")
        k.e(f"global_store_dword v{vt0}, v{vt1}, s[18:19]")
        k.e(f"s_mov_b64 exec, -1")
        k.label(L)
        return
    k.e(f"v_lshrrev_b32 v{vt0}, 6, v0")
    k.e(f"s_lshl_b32 s{sStampTmp}, s2, 2")
    k.e(f"v_add_u32 v{vt0}, s{sStampTmp}, v{vt0}")
    k.e(f"v_lshlrev_b32 v{vt0}, 7, v{vt0}")
    k.e(f"v_and_b32 v{vt1}, 63, v0")
    k.e(f"v_lshl_add_u32 v{vt0}, v{vt1}, 2, v{vt0}")
    k.e(f"s_mov_b32 s{sStampTmp}, {STAMPS}")
    k.e(f"s_mov_b32 exec_hi, 0")
    k.vm(f"buffer_store_dword v{St.v}, v{vt0}, {WS}, s{sStampTmp} offen")
    k.e(f"s_mov_b64 exec, -1")

def build_masks(k, vDiag, vEdge, vLane, t0, t1):
    k.e(f"v_and_b32 v{t0}, 31, v{vLane}")
    k.e(f"v_lshrrev_b32 v{t1}, 5, v{vLane}")
    k.e(f"v_lshlrev_b32 v{t1}, 2, v{t1}")
    k.e(f"v_sub_u32 v{t0}, v{t0}, v{t1}")
    k.e(f"v_mov_b32 v{t1}, {f2u(NEGBIG):#x}")
    prs = [sMk, sMk + 2, sMk + 4]
    def cmp(i):
        b = 8 * (i // 4) + (i % 4); p = prs[i % 3]
        k.e(f"v_cmp_le_i32_e64 s[{p}:{p+1}], {b}, v{t0}")
    cmp(0); cmp(1)
    for i in range(16):
        if i + 2 < 16: cmp(i + 2)
        else: k.nop(1)
        p = prs[i % 3]
        k.e(f"v_cndmask_b32_e64 v{vDiag+i}, v{t1}, 0, s[{p}:{p+1}]")
        k.e(f"v_cndmask_b32_e64 v{vEdge+i}, 0, v{t1}, s[{p}:{p+1}]")

def colmax(k, vS, vm, vt):
    k.e(f"v_max3_f32 v{vm}, v{vS}, v{vS+1}, v{vS+2}")
    k.e(f"v_max3_f32 v{vt}, v{vS+3}, v{vS+4}, v{vS+5}")
    k.e(f"v_max3_f32 v{vm}, v{vm}, v{vS+6}, v{vS+7}")
    k.e(f"v_max3_f32 v{vt}, v{vt}, v{vS+8}, v{vS+9}")
    k.e(f"v_max3_f32 v{vm}, v{vm}, v{vS+10}, v{vS+11}")
    k.e(f"v_max3_f32 v{vt}, v{vt}, v{vS+12}, v{vS+13}")
    k.e(f"v_max3_f32 v{vm}, v{vm}, v{vS+14}, v{vS+15}")
    k.e(f"v_max_f32 v{vm}, v{vm}, v{vt}")
    k.e(f"v_mov_b32 v{vt}, v{vm}")
    k.nop(2)
    k.e(f"v_permlane32_swap_b32 v{vm}, v{vt}")
    k.e(f"v_max_f32 v{vm}, v{vm}, v{vt}")

def shift_dwords(k, vm, t0, t1, t2):
    k.e(f"v_and_b32 v{t0}, 0xffff0000, v{vm}")
    k.e(f"v_sub_f32 v{t1}, v{vm}, v{t0}")
    k.e(f"v_and_b32 v{t2}, 0xffff0000, v{t1}")
    k.e(f"v_sub_f32 v{t1}, v{t1}, v{t2}")
    k.e(f"v_lshrrev_b32 v{t0}, 16, v{t0}")
    k.e(f"v_or_b32 v{t0}, v{t0}, v{t2}")
    k.e(f"v_xor_b32 v{t0}, 0x80008000, v{t0}")
    k.e(f"v_lshrrev_b32 v{t1}, 16, v{t1}")
    k.e(f"v_xor_b32 v{t1}, 0x8000, v{t1}")

def poll_flags(k, vAddr, vTmp, mask64, name):
    L = k.newlabel(name); Ld = k.newlabel(name + "d")
    k.e(f"s_mov_b32 s{sSpin}, 0")
    k.e(f"s_mov_b32 exec_hi, {(mask64 >> 32) & 0xffffffff:#x}")
    k.e(f"s_mov_b32 exec_lo, {mask64 & 0xffffffff:#x}")
    k.label(L)
    k.e(f"buffer_load_dword v{vTmp}, v{vAddr}, {WS}, 0 offen sc1")
    k.e(f"s_add_u32 s{sSpin}, s{sSpin}, 1")
    k.e(f"s_waitcnt vmcnt(0)")
    k.e(f"v_cmp_ne_u32 vcc, s{sNonce}, v{vTmp}")
    k.e(f"s_cmp_gt_u32 s{sSpin}, {SPIN_MAX}")
    k.e(f"s_cbranch_scc1 {Ld}")
    k.e(f"s_cbranch_vccnz {L}")
    k.label(Ld)
    k.e(f"s_mov_b64 exec, -1")
    k.vm_done = k.vm_n

def store_flag(k, vZero, vVal, s_off):
    k.e(f"v_mov_b32 v{vZero}, 0")
    k.e(f"v_mov_b32 v{vVal}, s{sNonce}")
    k.e(f"s_mov_b64 exec, 1")
    t = k.vm(f"buffer_store_dword v{vVal}, v{vZero}, {WS}, s{s_off} offen sc1")
    k.e(f"s_mov_b64 exec, -1")
    return t

def attn_pipeline(k, ops, vS, vP, shadow, extra):
    N = len(ops)
    def val(x): return x() if callable(x) else x
    def waitK(n):
        if 0 <= n < N:
            o = ops[n]; k.wait(vm=val(o.get("wK")), lg=val(o.get("lK")))
    def waitV(n):
        if 0 <= n < N:
            o = ops[n]; k.wait(vm=val(o.get("wV")), lg=val(o.get("lV")))
    def qk(n, part):
        o = ops[n]; S = vr(vS + 16 * (n % 2), 16)
        if part == 0: mfma(k, S, o["K"][0], o["Q"][0], o["C"])
        else: mfma(k, S, o["K"][1], o["Q"][1], S)
    def pv(n, part):
        o = ops[n]; P = vP + 8 * (n % 2)
        if part == 0: mfma(k, o["O"], o["V"][0], vr(P, 4), "0" if o["first"] else o["O"])
        else: mfma(k, o["O"], o["V"][1], vr(P + 4, 4), o["O"])
    def expgrp(n, g):
        S = vS + 16 * (n % 2); P = vP + 8 * (n % 2)
        for i in range(4):
            k.e(f"v_exp_f32 v{S+4*g+i}, v{S+4*g+i}")
        k.e(f"v_cvt_pk_bf16_f32 v{P+2*g}, v{S+4*g}, v{S+4*g+1}")
        k.e(f"v_cvt_pk_bf16_f32 v{P+2*g+1}, v{S+4*g+2}, v{S+4*g+3}")
    waitK(0)
    for n in range(-1, N + 1):
        has_exp = 0 <= n < N
        for g in range(4):
            if g < 2 and n + 1 < N: qk(n + 1, g)
            if g >= 2 and 0 <= n - 1: pv(n - 1, g - 2)
            if g == 1: waitV(n - 1)
            if g == 3: waitK(n + 2)
            shadow(n, g)
            if has_exp: expgrp(n, g)
            extra(n, g)
        if n == -1: k.nop(12)
        if n == N - 1: k.nop(2)

def finalize_o(k, vO, vt0, vt1, vOf):
    k.e(f"v_mov_b32 v{vt0}, v{vO+12}")
    k.e(f"v_mov_b32 v{vt1}, v{vO+12}")
    k.nop(2)
    k.e(f"v_permlane32_swap_b32 v{vt0}, v{vt1}")
    k.e(f"v_rcp_f32 v{vt1}, v{vt1}")
    k.nop(1)
    for i in range(16):
        k.e(f"v_mul_f32 v{vO+i}, v{vO+i}, v{vt1}")
    for i in range(8):
        k.e(f"v_cvt_pk_bf16_f32 v{vOf+i}, v{vO+2*i}, v{vO+2*i+1}")
    k.e("s_mov_b32 exec_lo, 0")
    k.e(f"v_mov_b32 v{vOf+6}, 0")
    k.e(f"v_mov_b32 v{vOf+7}, 0")
    k.e("s_mov_b32 exec_lo, -1")

sTry, sSlB, sSlN, sSlF, sSlI, sSlO, sRetSel, sCls = 4, 5, 6, 7, 10, 11, 12, 13
L_LO, L_HI = 2.0 ** -100, 2.0 ** 64

def finalize_chk(k, vO, vt0, vt1, vOf, tag, bit):
    k.label(f"L_fin{tag}")
    k.e(f"v_mov_b32 v{vt0}, v{vO+12}")
    k.e(f"v_mov_b32 v{vt1}, v{vO+12}")
    T = vOf
    k.e(f"v_pk_add_f32 v[{T}:{T+1}], v[{vO}:{vO+1}], v[{vO+2}:{vO+3}]")
    k.e(f"v_pk_add_f32 v[{T+2}:{T+3}], v[{vO+4}:{vO+5}], v[{vO+6}:{vO+7}]")
    k.e(f"v_permlane32_swap_b32 v{vt0}, v{vt1}")
    k.e(f"v_pk_add_f32 v[{T}:{T+1}], v[{T}:{T+1}], v[{vO+8}:{vO+9}]")
    k.e(f"v_pk_add_f32 v[{T+2}:{T+3}], v[{T+2}:{T+3}], v[{vO+10}:{vO+11}]")
    k.e(f"v_pk_add_f32 v[{T}:{T+1}], v[{T}:{T+1}], v[{vO+12}:{vO+13}]")
    k.e(f"v_pk_add_f32 v[{T+2}:{T+3}], v[{T+2}:{T+3}], v[{vO+14}:{vO+15}]")
    k.e(f"s_mov_b32 s{sCls}, 0x207")
    k.e(f"v_pk_add_f32 v[{T}:{T+1}], v[{T}:{T+1}], v[{T+2}:{T+3}]")
    k.e(f"v_cmp_nlt_f32 vcc, {f2u(L_LO):#x}, v{vt1}")
    k.e(f"v_add_f32 v{T}, v{T}, v{T+1}")
    k.e(f"s_mov_b64 s[{sMk+2}:{sMk+3}], vcc") if False else None
    k.e(f"v_cmp_ngt_f32_e64 s[{sEx}:{sEx+1}], s{sCls+3 if False else sSlO}, v{vt1}") if False else None
    k.e(f"s_mov_b32 s{sSlO}, {f2u(L_HI):#x}")
    k.e(f"v_cmp_ngt_f32_e64 s[{sEx}:{sEx+1}], s{sSlO}, v{vt1}")
    k.e(f"v_cmp_class_f32_e64 s[{sStampTmp}:{sStampTmp+1}], v{T}, s{sCls}")
    k.e(f"v_rcp_f32 v{vt1}, v{vt1}")
    k.e(f"s_or_b64 vcc, vcc, s[{sEx}:{sEx+1}]")
    k.e(f"s_or_b64 vcc, vcc, s[{sStampTmp}:{sStampTmp+1}]")
    k.e(f"s_bitcmp1_b32 s{sTry}, {bit}")
    k.e(f"s_cselect_b64 vcc, 0, vcc")
    k.e(f"s_cbranch_vccnz L_slow{tag}")
    for i in range(16):
        k.e(f"v_mul_f32 v{vO+i}, v{vO+i}, v{vt1}")
    for i in range(8):
        k.e(f"v_cvt_pk_bf16_f32 v{vOf+i}, v{vO+2*i}, v{vO+2*i+1}")
    k.e("s_mov_b32 exec_lo, 0")
    k.e(f"v_mov_b32 v{vOf+6}, 0")
    k.e(f"v_mov_b32 v{vOf+7}, 0")
    k.e("s_mov_b32 exec_lo, -1")

def div6(k, dst, src, tmp):
    k.e(f"s_mul_i32 s{dst}, s{src}, 43")
    k.e(f"s_lshr_b32 s{dst}, s{dst}, 8")


def async_poll_issue(k, vAddr, vRes, mask64):
    k.e(f"s_mov_b32 exec_hi, {(mask64 >> 32) & 0xffffffff:#x}")
    k.e(f"s_mov_b32 exec_lo, {mask64 & 0xffffffff:#x}")
    t = k.vm(f"buffer_load_dword v{vRes}, v{vAddr}, {WS}, 0 offen sc1")
    k.e(f"s_mov_b64 exec, -1")
    return t

def async_poll_check(k, tok, vAddr, vRes, mask64, name):
    L = k.newlabel(name); Ld = k.newlabel(name + "d")
    k.wait(vm=tok)
    k.e(f"s_mov_b32 exec_hi, {(mask64 >> 32) & 0xffffffff:#x}")
    k.e(f"s_mov_b32 exec_lo, {mask64 & 0xffffffff:#x}")
    k.e(f"v_cmp_ne_u32 vcc, s{sNonce}, v{vRes}")
    k.e(f"s_mov_b32 s{sSpin}, 0")
    k.e(f"s_cbranch_vccz {Ld}")
    k.label(L)
    k.e(f"buffer_load_dword v{vRes}, v{vAddr}, {WS}, 0 offen sc1")
    k.e(f"s_add_u32 s{sSpin}, s{sSpin}, 1")
    k.e(f"s_waitcnt vmcnt(0)")
    k.e(f"v_cmp_ne_u32 vcc, s{sNonce}, v{vRes}")
    k.e(f"s_cmp_gt_u32 s{sSpin}, {SPIN_MAX}")
    k.e(f"s_cbranch_scc1 {Ld}")
    k.e(f"s_cbranch_vccnz {L}")
    k.label(Ld)
    k.e(f"s_mov_b64 exec, -1")

def chk4(k, vR, vT):
    k.e(f"v_xor_b32 v{vT}, s{sNonce}, v{vR}")
    k.e(f"v_xor_b32 v{vR+1}, s{sNonce}, v{vR+1}")
    k.e(f"v_xor_b32 v{vR+2}, s{sNonce}, v{vR+2}")
    k.e(f"v_xor_b32 v{vR+3}, s{sNonce}, v{vR+3}")
    k.e(f"v_or3_b32 v{vT}, v{vT}, v{vR+1}, v{vR+2}")
    k.e(f"v_or_b32 v{vT}, v{vT}, v{vR+3}")
    k.e(f"v_cmp_ne_u32 vcc, 0, v{vT}")

def poll4_issue(k, vAddr, vR, mask):
    k.e(f"s_mov_b64 exec, {mask:#x}")
    t = k.vm(f"buffer_load_dwordx4 v[{vR}:{vR+3}], v{vAddr}, {WS}, 0 offen sc1")
    k.e(f"s_mov_b64 exec, -1")
    return t

def poll4_finish(k, tok, vAddr, vR0, vR1, vT, mask, name):
    L = k.newlabel(name); Ld = k.newlabel(name + "d")
    k.wait(vm=tok)
    k.e(f"s_mov_b64 exec, {mask:#x}")
    chk4(k, vR0, vT)
    k.e(f"s_mov_b32 s{sSpin}, 0")
    k.e(f"s_cbranch_vccz {Ld}")
    k.e(f"buffer_load_dwordx4 v[{vR0}:{vR0+3}], v{vAddr}, {WS}, 0 offen sc1")
    k.label(L)
    k.e(f"buffer_load_dwordx4 v[{vR1}:{vR1+3}], v{vAddr}, {WS}, 0 offen sc1")
    k.e(f"s_waitcnt vmcnt(1)")
    chk4(k, vR0, vT)
    k.e(f"s_add_u32 s{sSpin}, s{sSpin}, 1")
    k.e(f"s_cbranch_vccz {Ld}")
    k.e(f"buffer_load_dwordx4 v[{vR0}:{vR0+3}], v{vAddr}, {WS}, 0 offen sc1")
    k.e(f"s_waitcnt vmcnt(1)")
    chk4(k, vR1, vT)
    k.e(f"s_cmp_gt_u32 s{sSpin}, {SPIN_MAX}")
    k.e(f"s_cbranch_scc1 {Ld}")
    k.e(f"s_cbranch_vccnz {L}")
    k.label(Ld)
    k.e(f"s_mov_b64 exec, -1")

def div3(k, dst, src):
    k.e(f"s_mul_i32 s{dst}, s{src}, 43")
    k.e(f"s_lshr_b32 s{dst}, s{dst}, 7")


BARS = eval(os.environ.get('BARS', '(0, 1, 6)'))
DBG = os.environ.get('DBG', '')
sXcc, sFast = 100, 95
SPAN = os.environ.get('SPAN', '0') == '1'
sSp = 86

def gen():
    k = Emit()
    St.n = 0; St.names = []
    k.e("s_cmp_ge_u32 s2, 256")
    k.e("s_cbranch_scc1 L_end")
    k.e(f"s_load_dwordx16 s[{S_PTR}:{S_PTR+15}], s[0:1], 0")
    k.e(f"s_load_dwordx2 s[20:21], s[0:1], 64")
    G = V(1, 15)
    vLane = G.a(); vSt = G.a(); vt0 = G.a(); vt1 = G.a(); vt2 = G.a(); vt3 = G.a(); vWoD = G.a()
    vFlB = G.a(); vFlA = G.a(); vVpad = G.a(); vCen = G.a(); vP3a = G.a()
    SRD_X, SRD_W = SRD_XB, SRD_WB
    stamp(k, "start"); stamp(k, "rt", True)
    if SPAN:
        k.e(f"s_memrealtime s[{sSp}:{sSp+1}]")
        k.e(f"s_memtime s[{sSp+2}:{sSp+3}]")
    if SPAN:
        k.e("s_waitcnt lgkmcnt(0)")
        k.e(f"v_writelane_b32 v15, s{sSp}, 0")
        k.e(f"v_writelane_b32 v15, s{sSp+2}, 1")
    k.e(f"v_and_b32 v{vLane}, 63, v0")
    k.e(f"v_lshrrev_b32 v{vt0}, 6, v0")
    k.e(f"s_and_b32 s{sU}, s2, 7")
    k.e(f"v_readfirstlane_b32 s{sW}, v{vt0}")
    k.e(f"s_lshr_b32 s{sT2}, s2, 3")
    k.e(f"s_and_b32 s{sBeta}, s{sT2}, 1")
    k.e(f"s_lshr_b32 s{sR}, s{sT2}, 1")
    k.e(f"s_mul_i32 s{sOff}, s{sR}, 37")
    k.e(f"s_lshr_b32 s{sOff}, s{sOff}, 8")
    k.e(f"s_mul_i32 s{sOff}, s{sOff}, 7")
    k.e(f"s_sub_u32 s{sOff}, s{sR}, s{sOff}")
    k.e(f"s_mul_i32 s{sXbase}, s{sR}, {128*896}")
    k.e(f"s_mul_i32 s{sWcol}, s{sU}, 112")
    R = V(16, 256)
    vXo = R.a(4); vWo = R.a(2); vXr = R.a(4); vWr = R.a(4)
    vXf = R.a(8, 4); vWf = R.a(48, 4)
    acc = {(hh, nm): R.a(16, 4) for hh in range(2) for nm in "QKV"}
    vF = R.a(48, 4)
    vS1 = vWf
    vDiag = 240
    assert R.n <= 240, R.n
    XSLOT = 16640; WSLOT = 24576; WBASE = 3 * XSLOT
    k.e(f"v_lshrrev_b32 v{vt0}, 3, v{vLane}")
    k.e(f"v_bfe_u32 v{vt1}, v{vLane}, 4, 1")
    k.e(f"v_lshlrev_b32 v{vt1}, 2, v{vt1}")
    k.e(f"v_and_b32 v{vt2}, 7, v{vLane}")
    k.e(f"v_xor_b32 v{vt1}, v{vt1}, v{vt2}")
    k.e(f"v_lshrrev_b32 v{vt2}, 6, v0")
    k.e(f"v_lshl_add_u32 v{vt3}, v{vt2}, 5, v{vt0}")
    k.e(f"v_mul_u32_u24 v{vt3}, 896, v{vt3}")
    k.e(f"v_lshl_add_u32 v{vXo}, v{vt1}, 4, v{vt3}")
    for j in range(1, 4):
        k.e(f"v_add_u32 v{vXo+j}, {j*(8*896-1040)}, v{vXo}")
    k.e(f"v_lshl_add_u32 v{vt3}, v{vt2}, 4, v{vt0}")
    k.e(f"v_mul_u32_u24 v{vt3}, 2688, v{vt3}")
    k.e(f"v_lshl_add_u32 v{vWo}, v{vt1}, 4, v{vt3}")
    k.e(f"v_add_u32 v{vWo+1}, {8*2688-1024}, v{vWo}")
    k.e(f"s_mul_i32 s{sM0X}, s{sW}, 4160")
    k.e(f"s_mul_i32 s{sM0W}, s{sW}, 6144")
    k.e(f"s_add_u32 s{sM0W}, s{sM0W}, {WBASE}")
    k.e(f"s_getreg_b32 s{sXcc}, hwreg(HW_REG_XCC_ID)")
    k.e("s_waitcnt lgkmcnt(0)")
    k.e(f"s_cmp_eq_u32 s{sBeta}, 1")
    k.e(f"s_cselect_b32 s{SRD_X}, s4, s10")
    k.e(f"s_cselect_b32 s{SRD_X+1}, s5, s11")
    k.e(f"s_cselect_b32 s{SRD_W}, s6, s12")
    k.e(f"s_cselect_b32 s{SRD_W+1}, s7, s13")
    k.e(f"s_and_b32 s{SRD_X+1}, s{SRD_X+1}, 0xffff")
    k.e(f"s_and_b32 s{SRD_W+1}, s{SRD_W+1}, 0xffff")
    k.e(f"s_mov_b32 s{SRD_X+2}, {X_BYTES}")
    k.e(f"s_mov_b32 s{SRD_X+3}, 0x20000")
    k.e(f"s_mov_b32 s{SRD_W+2}, {W_BYTES}")
    k.e(f"s_mov_b32 s{SRD_W+3}, 0x20000")
    X = f"s[{SRD_X}:{SRD_X+3}]"; W = f"s[{SRD_W}:{SRD_W+3}]"
    dma_tok = {}
    def dma_list(g):
        slot = g % 3
        L = []
        def head():
            k.e(f"s_add_u32 s{sC}, s{sOff}, {g}")
            k.e(f"s_sub_u32 s{sT}, s{sC}, 7")
            k.e(f"s_min_u32 s{sC}, s{sC}, s{sT}")
            k.e(f"s_lshl_b32 s{sXo}, s{sC}, 7")
            k.e(f"s_add_u32 s{sXo}, s{sXo}, s{sXbase}")
            k.e(f"s_mul_i32 s{sWo}, s{sC}, {64*2688}")
            k.e(f"s_add_u32 s{sWo}, s{sWo}, s{sWcol}")
            k.e(f"s_add_u32 m0, s{sM0X}, {slot*XSLOT}")
            k.e("s_nop 0")
        def xj(j):
            def f():
                if j == 0: head()
                k.vm(f"buffer_load_dwordx4 v{vXo+j}, {X}, s{sXo} offen offset:{1040*j} lds")
            return f
        def wi(sec, half):
            def f():
                if half == 0:
                    k.e(f"s_add_u32 m0, s{sM0W}, {slot*WSLOT + sec*2048}")
                    k.e(f"s_add_u32 s{sWo2}, s{sWo}, {sec*896}")
                t = k.vm(f"buffer_load_dwordx4 v{vWo+half}, {W}, s{sWo2} offen offset:{1024*half} lds")
                if sec == 2 and half == 1: dma_tok[g] = t
            return f
        for j in range(4): L.append(xj(j))
        for sec in range(3):
            for half in range(2): L.append(wi(sec, half))
        return L
    stamp(k, "pre-dma")
    for f in dma_list(0): f()
    stamp(k, "dma0 issued")
    srd(k, SRD_WS, 20, WS_BYTES); srd(k, SRD_OUT, 16, OUT_BYTES)
    srd(k, SRD_XA, 14, WO_BYTES); srd(k, SRD_WA, 8, WO_BYTES)
    SRD_WOB, SRD_WOA = SRD_XA, SRD_WA
    k.e(f"v_lshlrev_b32 v{vSt}, 4, v{vLane}")
    Lnn = k.newlabel("nonce")
    k.e(f"s_or_b32 s{sT}, s2, s{sW}")
    k.e(f"s_cmp_lg_u32 s{sT}, 0")
    k.e(f"s_cbranch_scc1 {Lnn}")
    k.e(f"s_mov_b32 s{sT}, {NONCE_OFF}")
    k.e(f"v_mov_b32 v{vt0}, 0")
    k.e(f"buffer_load_dword v{vt1}, v{vt0}, {WS}, s{sT} offen sc1")
    k.e(f"s_waitcnt vmcnt(0)")
    k.e(f"v_add_u32 v{vt1}, 1, v{vt1}")
    k.e(f"v_max_u32 v{vt1}, 1, v{vt1}")
    k.e(f"s_mov_b64 exec, 1")
    k.e(f"global_store_dword v{vt0}, v{vt1}, s[18:19] sc1")
    k.e(f"buffer_store_dword v{vt1}, v{vt0}, {WS}, s{sT} offen sc1")
    k.e(f"s_mov_b64 exec, -1")
    k.label(Lnn)
    k.e(f"s_lshr_b32 s{sT2}, s2, 3")
    k.e(f"s_lshl_b32 s{sHead}, s{sU}, 1")
    k.e(f"s_add_u32 s{sHead}, s{sHead}, s{sBeta}")
    k.e(f"s_mov_b32 s{sRA}, s{sR}")
    k.e(f"s_mul_i32 s{sT3}, s{sT2}, 37")
    k.e(f"s_lshr_b32 s{sT3}, s{sT3}, 8")
    k.e(f"s_min_u32 s{sC}, s{sT3}, 3")
    k.e(f"s_lshl_b32 s{sP3T}, s{sU}, 2")
    k.e(f"s_add_u32 s{sP3T}, s{sP3T}, s{sC}")
    k.e(f"s_mul_i32 s{sT3}, s{sT3}, 7")
    k.e(f"s_sub_u32 s{sCT}, s{sT2}, s{sT3}")
    k.e(f"s_lshl_b32 s{sTT}, s{sR}, 2")
    k.e(f"s_add_u32 s{sTT}, s{sTT}, s{sW}")
    k.e(f"s_mov_b32 s{sTTA}, s{sTT}")
    dsts = [0, 1, 3, 22, 23, 101]
    for hh in range(2):
        k.e(f"s_lshl_b32 s{sT}, s{sU}, 1")
        k.e(f"s_add_u32 s{sT}, s{sT}, {hh}")
        k.e(f"s_lshl_b32 s{sT}, s{sT}, 6")
        k.e(f"s_add_u32 s{sT}, s{sT}, s{sTT}")
        k.e(f"s_lshl_b32 s{sT3}, s{sT}, 12")
        k.e(f"s_lshl_b32 s{sC}, s{sBeta}, 22")
        k.e(f"s_add_u32 s{dsts[3*hh]}, s{sT3}, s{sC}")
        k.e(f"s_add_u32 s{dsts[3*hh+1]}, s{dsts[3*hh]}, 2048")
        k.e(f"s_lshl_b32 s{sT3}, s{sT}, 11")
        k.e(f"s_lshl_b32 s{sC}, s{sBeta}, 21")
        k.e(f"s_add_u32 s{sT3}, s{sT3}, s{sC}")
        k.e(f"s_add_u32 s{dsts[3*hh+2]}, s{sT3}, {Q_OFF['B']}")
    k.e(f"v_and_b32 v{vt0}, 31, v{vLane}")
    k.e(f"v_lshrrev_b32 v{vt1}, 3, v{vt0}")
    k.e(f"v_mul_u32_u24 v{vt1}, 1040, v{vt1}")
    k.e(f"v_and_b32 v{vt2}, 7, v{vt0}")
    k.e(f"v_lshl_add_u32 v{vt1}, v{vt2}, 7, v{vt1}")
    k.e(f"v_add_u32 v{vt1}, s{sM0X}, v{vt1}")
    k.e(f"v_bfe_u32 v{vt2}, v{vLane}, 1, 1")
    k.e(f"v_lshlrev_b32 v{vt2}, 6, v{vt2}")
    k.e(f"v_lshrrev_b32 v{vt3}, 5, v{vLane}")
    k.e(f"v_lshlrev_b32 v{vt3}, 4, v{vt3}")
    k.e(f"v_add_u32 v{vt1}, v{vt1}, v{vt3}")
    for ks in range(4):
        k.e(f"v_xor_b32 v{vXr+ks}, {(ks >> 1) * 64}, v{vt2}")
        k.e(f"v_add_u32 v{vXr+ks}, {((2*ks) & 3) * 16}, v{vXr+ks}")
        k.e(f"v_add_u32 v{vXr+ks}, v{vXr+ks}, v{vt1}")
    k.e(f"v_lshrrev_b32 v{vt0}, 5, v{vLane}")
    k.e(f"v_lshlrev_b32 v{vt0}, 3, v{vt0}")
    k.e(f"v_bfe_u32 v{vt1}, v{vLane}, 2, 2")
    k.e(f"v_add_u32 v{vt0}, v{vt0}, v{vt1}")
    k.e(f"v_lshlrev_b32 v{vt0}, 7, v{vt0}")
    k.e(f"v_bfe_u32 v{vt1}, v{vLane}, 4, 1")
    k.e(f"v_lshlrev_b32 v{vt1}, 5, v{vt1}")
    k.e(f"v_and_b32 v{vt2}, 3, v{vLane}")
    k.e(f"v_lshl_add_u32 v{vt1}, v{vt2}, 3, v{vt1}")
    k.e(f"v_bfe_u32 v{vt2}, v{vLane}, 3, 1")
    k.e(f"v_lshlrev_b32 v{vt2}, 6, v{vt2}")
    for hh in range(2):
        k.e(f"v_add_u32 v{vt3}, {56*hh}, v{vt1}")
        k.e(f"v_xor_b32 v{vt3}, v{vt3}, v{vt2}")
        k.e(f"v_add_u32 v{vt3}, v{vt3}, v{vt0}")
        k.e(f"v_add_u32 v{vWr+hh}, {WBASE}, v{vt3}")
        k.e(f"v_add_u32 v{vWr+2+hh}, {WBASE + 2*WSLOT}, v{vt3}")
    for f in dma_list(1)[:5]: f()
    k.e(f"v_and_b32 v{vt0}, 31, v{vLane}")
    k.e(f"v_cmp_eq_u32 vcc, 28, v{vt0}")
    k.e(f"v_mov_b32 v{vt1}, 0x3f803f80")
    k.e(f"v_cmp_le_u32_e64 s[{sVmask}:{sVmask+1}], 28, v{vt0}")
    k.e(f"v_cndmask_b32_e64 v{vVpad}, 0, v{vt1}, vcc")
    k.e(f"v_lshrrev_b32 v{vt0}, 3, v{vLane}")
    k.e(f"v_bfe_u32 v{vt1}, v{vLane}, 4, 1")
    k.e(f"v_lshlrev_b32 v{vt1}, 2, v{vt1}")
    k.e(f"v_and_b32 v{vt2}, 7, v{vLane}")
    k.e(f"v_xor_b32 v{vt1}, v{vt1}, v{vt2}")
    k.e(f"v_mul_u32_u24 v{vt0}, 896, v{vt0}")
    k.e(f"v_lshl_add_u32 v{vWoD}, v{vt1}, 4, v{vt0}")
    k.e(f"v_lshrrev_b32 v{vt0}, 5, v{vLane}")
    k.e(f"v_lshlrev_b32 v{vt0}, 2, v{vt0}")
    k.e(f"v_bfe_u32 v{vt1}, v{vLane}, 2, 2")
    k.e(f"v_add_u32 v{vt0}, v{vt0}, v{vt1}")
    k.e(f"v_lshlrev_b32 v{vt0}, 7, v{vt0}")
    k.e(f"s_and_b32 s{sT}, s{sW}, 1")
    k.e(f"s_lshl_b32 s{sT}, s{sT}, 6")
    k.e(f"v_bfe_u32 v{vt1}, v{vLane}, 4, 1")
    k.e(f"v_lshlrev_b32 v{vt1}, 5, v{vt1}")
    k.e(f"v_and_b32 v{vt2}, 3, v{vLane}")
    k.e(f"v_lshl_add_u32 v{vt1}, v{vt2}, 3, v{vt1}")
    k.e(f"v_add_u32 v{vt1}, s{sT}, v{vt1}")
    k.e(f"v_bfe_u32 v{vt2}, v{vLane}, 3, 1")
    k.e(f"v_lshlrev_b32 v{vt2}, 6, v{vt2}")
    k.e(f"v_xor_b32 v{vt1}, v{vt1}, v{vt2}")
    k.e(f"v_add_u32 v{vP3a}, v{vt0}, v{vt1}")
    k.e(f"s_lshl_b32 s{sT}, s{sW}, 2")
    k.e(f"v_add_u32 v{vt0}, s{sT}, v{vLane}")
    k.e(f"v_cmp_eq_u32 vcc, 4, v{vLane}")
    k.e(f"v_mov_b32 v{vt1}, s{sRA}")
    k.e(f"s_sub_u32 s{sT}, s{sRA}, 7")
    k.e(f"v_cndmask_b32 v{vt0}, v{vt0}, v{vt1}, vcc")
    k.e(f"v_add_u32 v{vt1}, s{sT}, v{vLane}")
    k.e(f"v_max_i32 v{vt1}, 0, v{vt1}")
    k.e(f"v_add_u32 v{vt1}, 128, v{vt1}")
    k.e(f"v_cmp_lt_u32 vcc, 4, v{vLane}")
    k.e(f"s_lshl_b32 s{sT}, s{sU}, 4")
    k.e(f"s_nop 0")
    k.e(f"v_cndmask_b32 v{vt0}, v{vt0}, v{vt1}, vcc")
    k.e(f"v_add_u32 v{vt0}, s{sT}, v{vt0}")
    k.e(f"v_lshlrev_b32 v{vFlB}, 7, v{vt0}")
    k.e(f"v_add_u32 v{vFlB}, {FP1_OFF}, v{vFlB}")
    k.e(f"v_lshrrev_b32 v{vt0}, 3, v{vLane}")
    k.e(f"s_lshl_b32 s{sT}, s{sU}, 2")
    k.e(f"v_add_u32 v{vt0}, s{sT}, v{vt0}")
    k.e(f"v_lshlrev_b32 v{vt0}, 7, v{vt0}")
    k.e(f"v_and_b32 v{vt1}, 7, v{vLane}")
    k.e(f"v_lshl_add_u32 v{vt0}, v{vt1}, 2, v{vt0}")
    k.e(f"v_add_u32 v{vCen}, {CEN_OFF}, v{vt0}")
    k.e(f"s_lshl_b32 s{sKVB}, s{sHead}, 18")
    k.e(f"s_lshl_b32 s{sT}, s{sW}, 16")
    k.e(f"s_add_u32 s{sKVB}, s{sKVB}, s{sT}")
    k.e(f"s_mov_b32 s{sRot}, 0")
    k.e(f"v_and_b32 v{vt0}, 31, v{vLane}")
    k.e(f"v_lshrrev_b32 v{vt1}, 5, v{vLane}")
    k.e(f"v_lshlrev_b32 v{vt1}, 2, v{vt1}")
    k.e(f"v_sub_u32 v{vt0}, v{vt0}, v{vt1}")
    k.e(f"v_mov_b32 v{vt1}, {f2u(NEGBIG):#x}")
    prs = [sMk, sMk + 2, sMk + 4]
    def cmpm(i):
        b = 8 * (i // 4) + (i % 4); p = prs[i % 3]
        k.e(f"v_cmp_le_i32_e64 s[{p}:{p+1}], {b}, v{vt0}")
    cmpm(0); cmpm(1)
    for i in range(16):
        if i + 2 < 16: cmpm(i + 2)
        else: k.nop(1)
        p = prs[i % 3]
        k.e(f"v_cndmask_b32_e64 v{vDiag+i}, v{vt1}, 0, s[{p}:{p+1}]")
    if 'nopf' not in DBG:
        k.e(f"s_lshr_b32 s{sT}, s2, 3")
        k.e(f"s_lshl_b32 s{sT}, s{sT}, 2")
        k.e(f"s_add_u32 s{sT}, s{sT}, s{sW}")
        k.e(f"s_mul_i32 s{sT2}, s{sT}, {25*128}")
        k.e(f"v_lshlrev_b32 v{vt0}, 7, v{vLane}")
        k.e(f"s_mov_b64 exec, 0x1ffffff")
        k.vm(f"buffer_load_dword v232, v{vt0}, s[{SRD_WOA}:{SRD_WOA+3}], s{sT2} offen")
        k.vm(f"buffer_load_dword v233, v{vt0}, s[{SRD_WOB}:{SRD_WOB+3}], s{sT2} offen")
        k.e(f"s_getpc_b64 s[{sEx}:{sEx+1}]")
        k.label("L_pc_anchor")
        k.e(f"s_sub_u32 s{sEx}, s{sEx}, L_pc_anchor-{KNAME}")
        k.e(f"s_subb_u32 s{sEx+1}, s{sEx+1}, 0")
        k.e(f"s_mul_i32 s{sT2}, s{sT}, {3*128}")
        k.e(f"v_add_u32 v{vt1}, s{sT2}, v{vt0}")
        k.e(f"v_min_u32 v{vt1}, L_end-{KNAME}, v{vt1}")
        k.e(f"s_mov_b64 exec, 7")
        k.vm(f"global_load_dword v234, v{vt1}, s[{sEx}:{sEx+1}]")
        k.e(f"v_lshlrev_b32 v{vt1}, 21, v{vLane}")
        k.e(f"s_mov_b64 exec, 0x1ff")
        k.vm(f"buffer_load_dword v235, v{vt1}, {WS}, 0 offen")
        k.e(f"s_mov_b64 exec, 3")
        k.vm(f"buffer_load_dword v236, v{vt1}, s[{SRD_OUT}:{SRD_OUT+3}], 0 offen")
        k.e(f"s_mov_b64 exec, -1")
    rest1 = None
    L1 = dma_list(1)
    for f in L1[5:]: f()

    def rd_list(g, ks):
        slot = g % 3; par = ks % 2
        L = [f"ds_read_b128 v[{vXf+4*par}:{vXf+4*par+3}], v{vXr+ks} offset:{slot*XSLOT}"]
        for hh in range(2):
            for sec in range(3):
                areg = vWr + hh + (2 if slot == 2 else 0)
                base = (slot % 2 if slot < 2 else 0) * WSLOT + ks * 6144 + sec * 2048
                d = vWf + 24 * par + 12 * hh + 4 * sec
                L.append(f"ds_read_b64_tr_b16 v[{d}:{d+1}], v{areg} offset:{base}")
                L.append(f"ds_read_b64_tr_b16 v[{d+2}:{d+3}], v{areg} offset:{base+512}")
        return L
    def mf_list(g, ks):
        first = (g == 0 and ks == 0); par = ks % 2
        xf = vr(vXf + 4 * par, 4)
        L = []
        for hh in range(2):
            for sec, nm in enumerate("QKV"):
                wf = vr(vWf + 24 * par + 12 * hh + 4 * sec, 4)
                d = vr(acc[(hh, nm)], 16); c = "0" if first else d
                L.append(f"v_mfma_f32_32x32x16_bf16 {d}, {xf}, {wf}, {c}" if nm == "V" else f"v_mfma_f32_32x32x16_bf16 {d}, {wf}, {xf}, {c}")
        return L
    def interleave(mf, rds, tok_need, extra):
        k.wait(lg=tok_need)
        t = None; ri = 0
        for i, m in enumerate(mf):
            k.e(m)
            n = (len(rds) - ri + (len(mf) - i) - 1) // (len(mf) - i)
            for _ in range(n):
                t = k.lg(rds[ri]); ri += 1
            if extra and i % 2 == 1: extra.pop(0)()
        return t
    pend = None; nonce_tok = None
    for g in range(7):
        k.c(f"---- chunk {g}")
        k.wait(vm=dma_tok[g])
        k.wait_all(vm=False, lg=True)
        k.e("s_barrier")
        if g in BARS: stamp(k, f"bar{g}")
        ex = dma_list(g + 2) if g + 2 < 7 else []
        r0 = rd_list(g, 0)
        if pend is None:
            for r_ in r0: tok = k.lg(r_)
            ex.pop(0)()
        else:
            tok = interleave(mf_list(*pend), r0, None, ex)
        if g == 2:
            k.e(f"v_mov_b32 v{vt0}, 0")
            k.e(f"global_load_dword v{vt3}, v{vt0}, s[18:19] sc1")
            k.vm_n += 1; nonce_tok = k.vm_n
        if g == 3:
            Ln = k.newlabel("n"); Lnd = k.newlabel("nd"); Lc = k.newlabel("cen")
            k.wait(vm=nonce_tok)
            k.e(f"v_readfirstlane_b32 s{sNonce}, v{vt3}")
            k.e(f"s_mov_b32 s{sSpin}, 0")
            k.e(f"s_cmp_lg_u32 s{sNonce}, 0")
            k.e(f"s_cbranch_scc1 {Lnd}")
            k.label(Ln)
            k.e(f"global_load_dword v{vt3}, v{vt0}, s[18:19] sc1")
            k.e(f"s_add_u32 s{sSpin}, s{sSpin}, 1")
            k.e(f"s_waitcnt vmcnt(0)")
            k.e(f"v_readfirstlane_b32 s{sNonce}, v{vt3}")
            k.e(f"s_cmp_gt_u32 s{sSpin}, {SPIN_MAX}")
            k.e(f"s_cbranch_scc1 {Lnd}")
            k.e(f"s_cmp_eq_u32 s{sNonce}, 0")
            k.e(f"s_cbranch_scc1 {Ln}")
            k.label(Lnd)
            k.e(f"s_add_u32 s{sT}, s{sXcc}, 1")
            k.e(f"s_lshl_b32 s{sT}, s{sT}, 24")
            k.e(f"s_add_u32 s{sFast}, s{sNonce}, s{sT}")
            k.e(f"s_lshr_b32 s{sT}, s2, 3")
            k.e(f"s_lshr_b32 s{sT2}, s{sT}, 3")
            k.e(f"s_lshl_b32 s{sT3}, s{sU}, 2")
            k.e(f"s_add_u32 s{sT2}, s{sT2}, s{sT3}")
            k.e(f"s_lshl_b32 s{sT2}, s{sT2}, 7")
            k.e(f"s_and_b32 s{sT}, s{sT}, 7")
            k.e(f"s_lshl_b32 s{sT}, s{sT}, 2")
            k.e(f"s_add_u32 s{sT2}, s{sT2}, s{sT}")
            k.e(f"s_add_u32 s{sT2}, s{sT2}, {CEN_OFF}")
            k.e(f"s_cmp_eq_u32 s{sW}, 0")
            k.e(f"s_cselect_b32 s{sT2}, s{sT2}, {WS_BYTES}")
            k.e(f"v_mov_b32 v{vt0}, 0")
            k.e(f"v_mov_b32 v{vt1}, s{sFast}")
            k.e(f"s_mov_b64 exec, 1")
            k.vm(f"buffer_store_dword v{vt1}, v{vt0}, {WS}, s{sT2} offen sc1")
            k.e(f"s_mov_b64 exec, -1")
        if g == 4:
            poll4_issue(k, vFlB, 232, 0xff)
        if g == 6:
            k.e(f"s_mov_b64 exec, 0xffffffff")
            cen_tok = k.vm(f"buffer_load_dword v{vt3}, v{vCen}, {WS}, 0 offen sc1")
            k.e(f"s_mov_b64 exec, -1")
        for ks in range(3):
            tok = interleave(mf_list(g, ks), rd_list(g, ks + 1), tok, ex)
        while ex: ex.pop(0)()
        pend = (g, 3)
        ptok = tok
    k.wait(lg=ptok)
    for m in mf_list(*pend): k.e(m)
    stamp(k, "mfma done")
    def F(hh, nm): return vF + 24 * hh + 8 * "KVQ".index(nm)
    sQs = sMk + 2
    k.e(f"s_mov_b32 s{sQs}, {f2u(QSCALE):#x}")
    k.nop(2)
    k.wait(vm=cen_tok)
    k.e(f"s_mov_b64 exec, 0xffffffff")
    k.e(f"v_cmp_ne_u32 vcc, s{sFast}, v{vt3}")
    k.e(f"s_mov_b64 exec, -1")
    k.e(f"s_cmp_eq_u64 vcc, 0")
    k.e(f"s_cselect_b32 s{sFast}, 1, 0")
    if 'slow' in DBG: k.e(f"s_mov_b32 s{sFast}, 0")
    if STAMP: k.e(f"v_writelane_b32 v{St.v}, s{sFast}, 31")
    for hh in range(2):
        aK, aQ = acc[(hh, "K")], acc[(hh, "Q")]
        fK, fQ = F(hh, "K"), F(hh, "Q")
        for j in range(8): k.e(f"v_cvt_pk_bf16_f32 v{fK+j}, v{aK+2*j}, v{aK+2*j+1}")
        for j in range(0, 16, 2):
            k.e(f"v_pk_mul_f32 v[{aQ+j}:{aQ+j+1}], v[{aQ+j}:{aQ+j+1}], s[{sQs}:{sQs+1}] op_sel_hi:[1,0]")
        for j in range(8): k.e(f"v_cvt_pk_bf16_f32 v{fQ+j}, v{aQ+2*j}, v{aQ+2*j+1}")
        k.e("s_mov_b32 exec_lo, 0")
        k.e(f"v_mov_b32 v{fK+6}, 0x3f803f80")
        k.e(f"v_mov_b32 v{fK+7}, 0x00003f80")
        k.e(f"v_mov_b32 v{fQ+6}, 0")
        k.e(f"v_mov_b32 v{fQ+7}, 0")
        k.e("s_mov_b32 exec_lo, -1")
    k.e(f"s_cmp_eq_u32 s{sBeta}, 1")
    k.e(f"s_cselect_b32 s{sT}, 1.0, 0")
    for i in range(0, 16, 2):
        k.e(f"v_pk_mul_f32 v[{vS1+i}:{vS1+i+1}], v[{vDiag+i}:{vDiag+i+1}], s[{sT}:{sT+1}] op_sel_hi:[1,0]")
    k.nop(2)
    for hh in range(2):
        S = acc[(hh, "K")]
        mfma(k, vr(S, 16), vr(F(hh, "K"), 4), vr(F(hh, "Q"), 4), vr(vS1, 16))
        mfma(k, vr(S, 16), vr(F(hh, "K") + 4, 4), vr(F(hh, "Q") + 4, 4), vr(S, 16))
    for hh in range(2):
        aV = acc[(hh, "V")]; fV = F(hh, "V")
        for j in range(8): k.e(f"v_cvt_pk_bf16_f32 v{fV+j}, v{aV+2*j}, v{aV+2*j+1}")
        for j in range(8): k.e(f"v_cndmask_b32_e64 v{fV+j}, v{fV+j}, v{vVpad}, s[{sVmask}:{sVmask+1}]")
    for hh in range(2):
        S = acc[(hh, "K")]; fQ = F(hh, "Q")
        colmax(k, S, vt3, vt0)
        k.e(f"v_add_f32 v{vt3}, {f2u(MARGIN):#x}, v{vt3}")
        shift_dwords(k, vt3, vt0, vt1, vt2)
        k.e("s_mov_b32 exec_lo, 0")
        k.e(f"v_mov_b32 v{fQ+6}, v{vt0}")
        k.e(f"v_mov_b32 v{fQ+7}, v{vt1}")
        k.e("s_mov_b32 exec_lo, -1")
    stamp(k, "epilogue")
    k.e(f"s_lshl_b32 s{sT}, s{sBeta}, 3")
    k.e(f"s_add_u32 s{sT}, s{sT}, s{sU}")
    k.e(f"s_lshl_b32 s{sT}, s{sT}, 4")
    k.e(f"s_add_u32 s{sT}, s{sT}, s{sR}")
    k.e(f"s_lshl_b32 s{sT}, s{sT}, 7")
    k.e(f"s_lshl_b32 s{sT2}, s{sW}, 2")
    k.e(f"s_add_u32 s{sT}, s{sT}, s{sT2}")
    k.e(f"s_add_u32 s{sFOB}, s{sT}, {FP1_OFF}")
    Lslow = k.newlabel("slow"); Lst = k.newlabel("stored")
    k.e(f"s_cmp_eq_u32 s{sFast}, 0")
    k.e(f"s_cbranch_scc1 {Lslow}")
    def qkv_stores(flag):
        for hh in range(2):
            for nm in "KVQ":
                f = F(hh, nm); d = dsts[3 * hh + "KVQ".index(nm)]
                k.e(f"buffer_store_dwordx4 v[{f}:{f+3}], v{vSt}, {WS}, s{d} offen {flag}")
                k.e(f"buffer_store_dwordx4 v[{f+4}:{f+7}], v{vSt}, {WS}, s{d} offen offset:1024 {flag}")
        k.e(f"v_mov_b32 v{vt0}, 0")
        k.e(f"v_mov_b32 v{vt1}, s{sNonce}")
        k.e(f"s_waitcnt vmcnt(0)")
        k.e(f"s_mov_b64 exec, 1")
        k.e(f"buffer_store_dword v{vt1}, v{vt0}, {WS}, s{sFOB} offen {flag}")
        k.e(f"s_mov_b64 exec, -1")
    if 'ant' in DBG:
        Lnt = k.newlabel("ant")
        k.e(f"s_cmp_eq_u32 s{sBeta}, 1")
        k.e(f"s_cbranch_scc1 {Lnt}")
        qkv_stores("")
        k.e(f"s_branch {Lst}")
        k.label(Lnt)
        qkv_stores("nt")
    else:
        qkv_stores("")
    k.e(f"s_branch {Lst}")
    k.label(Lslow)
    qkv_stores("sc1")
    k.label(Lst)
    k.vm_n += 13; k.vm_done = k.vm_n - 1
    stamp(k, "flag stored")
    k.e("s_barrier")
    vRed, vRedR, vQA, vOf, vO01, vQ, vS, vP, vO23 = 16, 17, 20, 28, 36, 68, 100, 132, 148
    vPR0, vPR1, vPT = 180, 184, 188
    vTmp = vS
    def vOd(d): return (vO01 + 16 * d) if d < 2 else (vO23 + 16 * (d - 2))
    qtok = {}; ktok = {}; vtok = {}
    sTq = [0, 98, 99]
    def tile_items(i):
        def f(j):
            def g_():
                if j == 0 or j == 2:
                    k.e(f"s_add_u32 s{sT}, s{sRot}, {i}")
                    k.e(f"s_and_b32 s{sT}, s{sT}, 15")
                    k.e(f"s_lshl_b32 s{sT}, s{sT}, 12")
                    k.e(f"s_add_u32 s{sTq[1]}, s{sT}, s{sKVB}")
                t = k.vm(f"buffer_load_dwordx4 a[{16*i+4*j}:{16*i+4*j+3}], v{vSt}, {WS}, s{sTq[1]} offen offset:{1024*j} sc1")
                if j == 1: ktok[i] = t
                if j == 3: vtok[i] = t
            return g_
        return [f(j) for j in range(4)]
    def q_items(d):
        def f(j):
            def g_():
                if j == 0:
                    k.e(f"s_add_u32 s{sT}, s{sW}, {d}")
                    k.e(f"s_and_b32 s{sT}, s{sT}, 3")
                    k.e(f"s_lshl_b32 s{sT2}, s{sRA}, 2")
                    k.e(f"s_add_u32 s{sT}, s{sT}, s{sT2}")
                    k.e(f"s_lshl_b32 s{sT2}, s{sHead}, 6")
                    k.e(f"s_add_u32 s{sT}, s{sT}, s{sT2}")
                    k.e(f"s_lshl_b32 s{sTq[1]}, s{sT}, 11")
                    k.e(f"s_add_u32 s{sTq[1]}, s{sTq[1]}, {Q_OFF['B']}")
                t = k.vm(f"buffer_load_dwordx4 v[{vQ+8*d+4*j}:{vQ+8*d+4*j+3}], v{vSt}, {WS}, s{sTq[1]} offen offset:{1024*j} sc1")
                if j == 1: qtok[d] = t
            return g_
        return [f(0), f(1)]
    WOB_L, WOA_L = 0, 57344
    def wo_items(srdn, lbase):
        def one(j):
            def f():
                if j == 0:
                    k.e(f"s_lshl_b32 s{sMk}, s{sCT}, 7")
                    k.e(f"s_mul_i32 s{sMk+1}, s{sW}, {112*896}")
                    k.e(f"s_add_u32 s{sMk}, s{sMk}, s{sMk+1}")
                    k.e(f"s_mul_i32 s{sMk+1}, s{sW}, {112*128}")
                    k.e(f"s_add_u32 s{sMk+1}, s{sMk+1}, {lbase}")
                k.e(f"s_add_u32 m0, s{sMk+1}, {1024*j}")
                k.e(f"s_add_u32 s{sMk+4}, s{sMk}, {8*896*j}")
                return k.vm(f"buffer_load_dwordx4 v{vWoD}, s[{srdn}:{srdn+3}], s{sMk+4} offen lds")
            return f
        return [one(j) for j in range(14)]
    k.e(f"s_add_u32 s{SRD_XB}, s20, s{sKVB}")
    k.e(f"s_addc_u32 s{SRD_XB+1}, s21, 0")
    k.e(f"s_and_b32 s{SRD_XB+1}, s{SRD_XB+1}, 0xffff")
    k.e(f"s_mov_b32 s{sTry}, 0")
    tp = poll4_issue(k, vFlB, vPR0, 0xff)
    poll4_finish(k, tp, vFlB, vPR0, vPR1, vPT, 0xff, "pb")
    stamp(k, "P1 flags")
    k.e(f"s_mov_b32 s{SRD_XB+2}, 0x10000")
    k.e(f"s_mov_b32 s{SRD_XB+3}, 0x20000")
    t0i = tile_items(0)
    for f in q_items(1) + t0i[:2] + q_items(2) + t0i[2:] + q_items(3): f()
    vOA = 224; vEdge = 192
    kt = {}; vt = {}; st = {}
    def bop(i, d):
        return dict(K=(ar(16*i, 4), ar(16*i+4, 4)), V=(ar(16*i+8, 4), ar(16*i+12, 4)),
                    Q=(vr(vQ+8*d, 4), vr(vQ+8*d+4, 4)), O=vr(vOd(d), 16), C="0", first=(i == 0),
                    wK=(lambda i=i, d=d: max(ktok[i], qtok[d])), wV=(lambda i=i: vtok[i]))
    def aslot(j): return j % 3
    lk = {}; lv = {}
    def aop(j):
        a = aslot(j)
        C = vr(vEdge, 16) if j == 0 else vr(vDiag, 16) if j == 8 else "0"
        return dict(K=(ar(16*a, 4), ar(16*a+4, 4)), V=(ar(16*a+8, 4), ar(16*a+12, 4)), Q=(vr(vQA, 4), vr(vQA+4, 4)),
                    O=vr(vOA, 16), C=C, first=(j == 0), lK=(lambda j=j: lk[j]), lV=(lambda j=j: lv[j]))
    A0 = int(os.environ.get('A0', '12'))
    NT1 = A0 // 4
    ops = [bop(i, d) for i in range(NT1) for d in (1, 2, 3, 0)] + [aop(j) for j in range(9)] + [bop(i, d) for i in range(NT1, 16) for d in (1, 2, 3, 0)]
    N = len(ops)
    vKVr = 191
    def rdKa(j):
        a = aslot(j)
        k.lg(f"ds_read_b128 a[{16*a}:{16*a+3}], v{vKVr} offset:{j*4096}")
        lk[j] = k.lg(f"ds_read_b128 a[{16*a+4}:{16*a+7}], v{vKVr} offset:{j*4096+1024}")
    def rdVa(j):
        a = aslot(j)
        k.lg(f"ds_read_b128 a[{16*a+8}:{16*a+11}], v{vKVr} offset:{j*4096+2048}")
        lv[j] = k.lg(f"ds_read_b128 a[{16*a+12}:{16*a+15}], v{vKVr} offset:{j*4096+3072}")
    sPB, sPA, sPW, sPO, sMW = 98, 99, sMk, sMk + 1, sMk + 4
    SRD_KV = SRD_XB
    vWoD2 = 18
    k.e(f"v_add_u32 v{vWoD2}, {8*896-1024}, v{vWoD}")
    KVS = f"s[{SRD_KV}:{SRD_KV+3}]"
    def b_pair(i, h):
        def prep():
            if h == 0: k.e(f"s_mov_b32 s{sPB}, {4096*i}")
        def issue():
            k.vm(f"buffer_load_dwordx4 a[{16*i+8*h}:{16*i+8*h+3}], v{vSt}, {KVS}, s{sPB} offen offset:{2048*h} sc1")
            t = k.vm(f"buffer_load_dwordx4 a[{16*i+8*h+4}:{16*i+8*h+7}], v{vSt}, {KVS}, s{sPB} offen offset:{2048*h+1024} sc1")
            (ktok if h == 0 else vtok)[i] = t
        return prep, issue
    def a_pair(i, h):
        def prep():
            if h == 0:
                k.e(f"s_mul_i32 s{sT}, s{sW}, 3")
                k.e(f"s_lshl_b32 s{sT2}, s{sRA}, 2")
                k.e(f"s_add_u32 s{sT}, s{sT}, s{sT2}")
                k.e(f"s_add_i32 s{sT2}, s{sT}, {i-8}")
                k.e(f"s_lshl_b32 s{sPA}, s{sT2}, 12")
                k.e(f"s_add_u32 s{sPA}, s{sPA}, s{sKV}")
                k.e(f"s_cmp_lt_i32 s{sT2}, 0")
                k.e(f"s_cselect_b32 s{sPA}, {WS_BYTES}, s{sPA}")
            k.e(f"s_mul_i32 s{sT}, s{sW}, {3*4096}")
            k.e(f"s_add_u32 m0, s{sT}, {SCR + i*4096}")
        def issue():
            k.vm(f"buffer_load_dwordx4 v{vSt}, {WS}, s{sPA} offen offset:{2048*h} sc1 lds")
            st["ad"] = k.vm(f"buffer_load_dwordx4 v{vSt}, {WS}, s{sPA} offen offset:{2048*h+1024} sc1 lds")
        return prep, issue
    def qa_pair():
        def prep():
            k.e(f"s_lshl_b32 s{sT2}, s{sHead}, 6")
            k.e(f"s_add_u32 s{sT2}, s{sT2}, s{sTTA}")
            k.e(f"s_lshl_b32 s{sPA}, s{sT2}, 11")
            k.e(f"s_add_u32 s{sPA}, s{sPA}, {Q_OFF['A']}")
        def issue():
            k.vm(f"buffer_load_dwordx4 v[{vQA}:{vQA+3}], v{vSt}, {WS}, s{sPA} offen sc1")
            st["qa"] = k.vm(f"buffer_load_dwordx4 v[{vQA+4}:{vQA+7}], v{vSt}, {WS}, s{sPA} offen offset:1024 sc1")
        return prep, issue
    def wo_pair(srdn, lbase, j):
        def prep():
            if j == 0:
                k.e(f"s_lshl_b32 s{sT}, s{sCT}, 7")
                k.e(f"s_mul_i32 s{sT2}, s{sW}, {112*896}")
                k.e(f"s_add_u32 s{sPW}, s{sT}, s{sT2}")
                k.e(f"s_mul_i32 s{sMW}, s{sW}, {112*128}")
                k.e(f"s_add_u32 s{sMW}, s{sMW}, {lbase}")
            else:
                k.e(f"s_add_u32 s{sPW}, s{sPW}, {16*896}")
            k.e(f"s_add_u32 m0, s{sMW}, {2048*j}")
        def issue():
            k.vm(f"buffer_load_dwordx4 v{vWoD}, s[{srdn}:{srdn+3}], s{sPW} offen lds")
            st["wo"] = k.vm(f"buffer_load_dwordx4 v{vWoD2}, s[{srdn}:{srdn+3}], s{sPW} offen offset:1024 lds")
        return prep, issue
    at = {}
    def oa_pair(p):
        def prep():
            if p == 0:
                k.e(f"s_lshl_b32 s{sT}, s{sP3T}, 1")
                k.e(f"s_lshr_b32 s{sT2}, s{sW}, 1")
                k.e(f"s_add_u32 s{sTT}, s{sT}, s{sT2}")
                k.e(f"s_lshl_b32 s{sPO}, s{sTT}, 15")
                k.e(f"s_add_u32 s{sPO}, s{sPO}, {O_OFF['A']}")
            elif p % 2 == 0:
                k.e(f"s_add_u32 s{sPO}, s{sPO}, 4096")
        def issue():
            o = 2048 * (p % 2)
            at[2*p] = k.vm(f"buffer_load_dwordx4 a[{8*p}:{8*p+3}], v{vSt}, {WS}, s{sPO} offen offset:{o} sc1")
            at[2*p+1] = k.vm(f"buffer_load_dwordx4 a[{8*p+4}:{8*p+7}], v{vSt}, {WS}, s{sPO} offen offset:{o+1024} sc1")
        return prep, issue
    def q_pair(d):
        a, b = q_items(d)
        return (lambda: None), (lambda: (a(), b()))
    strB = []
    strB.append((-1,) + q_pair(0) + (-1,))
    for i in range(1, 16):
        use = 4 * i if i < NT1 else 4 * i + 9
        strB.append((max(use - 14, 0),) + b_pair(i, 0) + (use - 5,)); strB.append((max(use - 13, 0),) + b_pair(i, 1) + (use - 3,))
    strA = [(1,) + qa_pair() + (A0 - 12,)] + [(1,) + a_pair(i, h) + (A0 - 12 + 2 * i + h,) for i in range(3) for h in range(2)]
    strW = [(A0 - 2,) + wo_pair(SRD_WOA, WOA_L, j) + (55 + j,) for j in range(7)] + [(A0 - 2,) + wo_pair(SRD_WOB, WOB_L, j) + (62 + j,) for j in range(7)]
    strO = []
    if 'l1hit' in DBG:
        def b_pair(i, h):
            def prep(): pass
            def issue():
                k.vm(f"buffer_load_dwordx4 a[{16*i+8*h}:{16*i+8*h+3}], v{vSt}, {KVS}, 0 offen offset:0")
                t = k.vm(f"buffer_load_dwordx4 a[{16*i+8*h+4}:{16*i+8*h+7}], v{vSt}, {KVS}, 0 offen offset:1024")
                (ktok if h == 0 else vtok)[i] = t
            return prep, issue
        pass
    if 'nob' in DBG:
        for i in range(1, 16): ktok[i] = 0; vtok[i] = 0
        strB = [(-1, lambda: None, lambda: None, -1)]
    if 'nowo' in DBG:
        strW = []; st["wo"] = 0
    cur = {"item": None}
    def pick(n, g):
        cand = [q for q in (strB, strA, strW, strO) if q and q[0][0] <= n]
        if not cand: return None
        cand.sort(key=lambda q: q[0][3])
        q = cand[0]
        if g == 2 and q[0][3] > n + 2: return None
        return q.pop(0)
    vR1, vR2, vR3 = 189, 190, 191
    def red_addr():
        for d, vv in ((1, vR1), (2, vR2), (3, vR3)):
            k.e(f"s_add_u32 s{sT}, s{sW}, {d}")
            k.e(f"s_and_b32 s{sT}, s{sT}, 3")
            k.e(f"s_mul_i32 s{sT}, s{sT}, {3*4096}")
            k.e(f"s_add_u32 s{sT}, s{sT}, {SCR + (d-1)*4096}")
            k.e(f"v_add_u32 v{vv}, s{sT}, v{vSt}")
        k.e(f"s_mul_i32 s{sT}, s{sW}, {3*4096}")
        k.e(f"s_add_u32 s{sT}, s{sT}, {SCR}")
        k.e(f"v_add_u32 v{vRedR}, s{sT}, v{vSt}")
    def red_write(d, i):
        vv = {1: vR1, 2: vR2, 3: vR3}[d]
        k.lg(f"ds_write_b128 v{vv}, v[{vOd(d)+4*i}:{vOd(d)+4*i+3}] offset:{1024*i}")
    def o_flag_offsets():
        k.e(f"s_lshl_b32 s{sFOA}, s{sTTA}, 2")
        k.e(f"s_lshr_b32 s{sT}, s{sHead}, 2")
        k.e(f"s_add_u32 s{sFOA}, s{sFOA}, s{sT}")
        k.e(f"s_lshl_b32 s{sFOA}, s{sFOA}, 7")
        k.e(f"s_and_b32 s{sT}, s{sHead}, 3")
        k.e(f"s_lshl_b32 s{sT}, s{sT}, 2")
        k.e(f"s_add_u32 s{sFOA}, s{sFOA}, s{sT}")
        k.e(f"s_add_u32 s{sFOB}, s{sFOA}, {FO_OFF}")
        k.e(f"s_add_u32 s{sFOA}, s{sFOA}, {FO_OFF + 64*4*128}")
    SL = eval(os.environ.get("SLOTS", "()"))
    k.e(f"s_lshl_b32 s{sKV}, s{sHead}, 18")
    k.e(f"s_add_u32 s{sKV}, s{sKV}, {KV_OFF['A']}")
    def shadowB(n, g):
        if g % 2 == 0:
            if cur["item"] is not None:
                cur["item"][2](); cur["item"] = None
            if g == 0 and n in SL: stamp(k, f"slot{n}")
        else:
            ng, nn = (g + 1) % 4, n + (1 if g == 3 else 0)
            ok = True
            if ng == 0 and nn + 1 >= N: ok = False
            if ng == 2 and nn < 1: ok = False
            if nn > N: ok = False
            if ok and cur["item"] is None:
                it = pick(nn, ng)
                if it:
                    it[1](); cur["item"] = it
            if n >= 0:
                for j in range(9):
                    if j > 0 and g == 3 and n == A0 + j - 3: rdKa(j)
                    if g == 1 and n == A0 + j: rdVa(j)
                if n == N - 1: pass
    def extraB(n, g):
        if n < 0: return
        if g == 1 and n == A0 - 3:
            assert not strA
            k.wait(vm=max(st["ad"], st["qa"]))
            k.e("s_barrier")
            k.e(f"s_lshl_b32 s{sT}, s{sW}, 12")
            k.e(f"s_add_u32 s{sT}, s{sT}, {SCR}")
            k.e(f"v_add_u32 v{vKVr}, s{sT}, v{vSt}")
            rdKa(0)
            k.e(f"v_mov_b32 v{vt1}, {f2u(NEGBIG):#x}")
            for i in range(16): k.e(f"v_sub_f32 v{vEdge+i}, v{vt1}, v{vDiag+i}")
        if g == 1 and n == A0 + 11:
            finalize_chk(k, vOA, vt0, vt1, vOf, 'A', 0)
            k.e(f"s_lshl_b32 s{sT}, s{sTTA}, 4")
            k.e(f"s_add_u32 s{sT}, s{sT}, s{sHead}")
            k.e(f"s_lshl_b32 s{sOo}, s{sT}, 11")
            k.e(f"s_add_u32 s{sOo}, s{sOo}, {O_OFF['A']}")
            k.vm(f"buffer_store_dwordx4 v[{vOf}:{vOf+3}], v{vSt}, {WS}, s{sOo} offen sc1")
            st["oa"] = k.vm(f"buffer_store_dwordx4 v[{vOf+4}:{vOf+7}], v{vSt}, {WS}, s{sOo} offen offset:1024 sc1")
            o_flag_offsets()
        if g == 1 and n == A0 + 19:
            k.wait(vm=st["oa"])
            store_flag(k, vt0, vt1, sFOA)
            k.e(f"s_lshl_b32 s{sT}, s{sP3T}, 3")
            k.e(f"v_add_u32 v{vFlB}, s{sT}, v{vLane}")
            k.e(f"v_lshlrev_b32 v{vFlB}, 7, v{vFlB}")
            k.e(f"v_add_u32 v{vFlA}, {FO_OFF + 64*4*128}, v{vFlB}")
            k.e(f"v_add_u32 v{vFlB}, {FO_OFF}, v{vFlB}")
        if g == 1 and n == max(42, A0 + 28):
            st["pOA"] = poll4_issue(k, vFlA, vPR0, 0xff)
        if g == 1 and n == max(47, A0 + 33):
            poll4_finish(k, st["pOA"], vFlA, vPR0, vPR1, vPT, 0xff, "poA")
            if 'noo' in DBG:
                for p in range(32): at[p] = 0
                k.e(f"s_mov_b32 s{sTT}, 0")
            else: strO.extend([(n + 1,) + oa_pair(p) + (min(n + 4 + 2 * p, 72),) for p in range(16)])
        if g == 1 and n == N - 8:
            red_addr()
        if n == N - 1: red_write(1, g)
        if n == N and g < 2:
            red_write(2, 2 * g); red_write(2, 2 * g + 1)
    it = pick(-1, 0); it[1](); cur["item"] = it
    attn_pipeline(k, ops, vS, vP, shadowB, extraB)
    assert cur['item'] is None
    assert not strB and not strA and not strW and not strO, (len(strB), len(strA), len(strW), len(strO))
    stamp(k, "attn done")
    k.nop(8)
    for i in range(4): red_write(3, i)
    k.wait_all(vm=False)
    k.e("s_barrier")
    for j in range(3):
        for i in range(4):
            k.lg(f"ds_read_b128 v[{vTmp+16*j+4*i}:{vTmp+16*j+4*i+3}], v{vRedR} offset:{4096*j+1024*i}")
    for j in range(3):
        k.wait(lg=k.lg_n - 4 * (2 - j))
        for i in range(0, 16, 2):
            k.e(f"v_pk_add_f32 v[{vOd(0)+i}:{vOd(0)+i+1}], v[{vOd(0)+i}:{vOd(0)+i+1}], v[{vTmp+16*j+i}:{vTmp+16*j+i+1}]")
    finalize_chk(k, vOd(0), vt0, vt1, vOf, 'B', 1)
    k.e(f"s_lshl_b32 s{sT}, s{sTTA}, 4")
    k.e(f"s_add_u32 s{sT}, s{sT}, s{sHead}")
    k.e(f"s_lshl_b32 s{sOo}, s{sT}, 11")
    k.e(f"s_add_u32 s{sOo}, s{sOo}, {O_OFF['B']}")
    k.vm(f"buffer_store_dwordx4 v[{vOf}:{vOf+3}], v{vSt}, {WS}, s{sOo} offen sc1")
    ob = k.vm(f"buffer_store_dwordx4 v[{vOf+4}:{vOf+7}], v{vSt}, {WS}, s{sOo} offen offset:1024 sc1")
    stamp(k, "O(B) stored")
    def cleanup():
        vC = 100
        for i in range(6):
            k.vm(f"buffer_load_dwordx4 v[{vC+8*i}:{vC+8*i+3}], v{vSt}, {WS}, s{dsts[i]} offen sc1")
            t = k.vm(f"buffer_load_dwordx4 v[{vC+8*i+4}:{vC+8*i+7}], v{vSt}, {WS}, s{dsts[i]} offen offset:1024 sc1")
        return vC, t
    def cleanup_stores(vC, t):
        k.wait(vm=t)
        for i in range(6):
            k.vm(f"buffer_store_dwordx4 v[{vC+8*i}:{vC+8*i+3}], v{vSt}, {WS}, s{dsts[i]} offen sc1")
            k.vm(f"buffer_store_dwordx4 v[{vC+8*i+4}:{vC+8*i+7}], v{vSt}, {WS}, s{dsts[i]} offen offset:1024 sc1")
    Lp3 = k.newlabel("p3")
    k.e(f"s_cmp_lt_u32 s2, 224")
    k.e(f"s_cbranch_scc1 {Lp3}")
    k.e("s_waitcnt vmcnt(0)")
    k.e(f"v_mov_b32 v{vt0}, 0")
    k.e(f"v_mov_b32 v{vt1}, s{sNonce}")
    k.e(f"s_mov_b64 exec, 1")
    k.e(f"buffer_store_dword v{vt1}, v{vt0}, {WS}, s{sFOB} offen sc1")
    k.e(f"s_mov_b64 exec, -1")
    if 'wb' in DBG:
        Lw = k.newlabel("nowb")
        k.e(f"s_lshr_b32 s{sT}, s2, 3")
        k.e(f"s_lshl_b32 s{sT}, s{sT}, 2")
        k.e(f"s_add_u32 s{sT}, s{sT}, s{sW}")
        k.e(f"s_cmp_lg_u32 s{sT}, {28*4}")
        k.e(f"s_cbranch_scc1 {Lw}")
        k.e(f"s_waitcnt vmcnt(0)")
        k.e(f"buffer_wbl2 sc1")
        k.e(f"s_waitcnt vmcnt(0)")
        k.label(Lw)
    k.e(f"s_endpgm")
    k.label(Lp3)
    vWrB, vWrA, vWrBc, vWrAc, vOr, vOut = 16, 17, 18, 19, 189, 190
    k.e(f"v_mov_b32 v{vWrB}, v{vP3a}")
    k.e(f"v_add_u32 v{vWrA}, {WOA_L}, v{vP3a}")
    k.e(f"v_lshrrev_b32 v{vt0}, 5, v{vLane}")
    k.e(f"v_lshlrev_b32 v{vt0}, 9, v{vt0}")
    k.e(f"v_sub_u32 v{vWrBc}, v{vWrB}, v{vt0}")
    k.e(f"v_sub_u32 v{vWrAc}, v{vWrA}, v{vt0}")
    k.e(f"v_and_b32 v{vt0}, 31, v{vLane}")
    k.e(f"v_mul_u32_u24 v{vt0}, 1792, v{vt0}")
    k.e(f"v_lshrrev_b32 v{vt1}, 5, v{vLane}")
    k.e(f"v_lshl_add_u32 v{vOut}, v{vt1}, 4, v{vt0}")
    NB = 4
    vA3, vB3, vD3, vPk = 36, 52, 68, 84
    def rdA(step, vW, vWc):
        hd, kk = step // 2, step % 2
        par = step % NB
        row = 28 * hd + 16 * kk
        a2 = vWc if (hd == 15 and kk == 1) else vW
        k.lg(f"ds_read_b64_tr_b16 v[{vA3+4*par}:{vA3+4*par+1}], v{vW} offset:{row*128}")
        return k.lg(f"ds_read_b64_tr_b16 v[{vA3+4*par+2}:{vA3+4*par+3}], v{a2} offset:{(row+8)*128}")
    def out_store(b):
        k.nop(12)
        for i in range(8): k.e(f"v_cvt_pk_bf16_f32 v{vPk+i}, v{vD3+2*i}, v{vD3+2*i+1}")
        k.e(f"s_lshl_b32 s{sT2}, s{sCT}, 1")
        k.e(f"s_and_b32 s{sT}, s{sW}, 1")
        k.e(f"s_add_u32 s{sT2}, s{sT2}, s{sT}")
        k.e(f"v_permlane32_swap_b32 v{vPk}, v{vPk+2}")
        k.e(f"v_permlane32_swap_b32 v{vPk+1}, v{vPk+3}")
        k.e(f"v_permlane32_swap_b32 v{vPk+4}, v{vPk+6}")
        k.e(f"v_permlane32_swap_b32 v{vPk+5}, v{vPk+7}")
        k.e(f"s_mul_i32 s{sOo}, s{sTT}, {32*1792}")
        k.e(f"s_lshl_b32 s{sT}, s{sT2}, 6")
        k.e(f"s_add_u32 s{sOo}, s{sOo}, s{sT}")
        if b == "B": k.e(f"s_add_u32 s{sOo}, s{sOo}, 896")
        k.vm(f"buffer_store_dwordx4 v[{vPk}:{vPk+3}], v{vOut}, s[{SRD_OUT}:{SRD_OUT+3}], s{sOo} offen nt")
        k.vm(f"buffer_store_dwordx4 v[{vPk+4}:{vPk+7}], v{vOut}, s[{SRD_OUT}:{SRD_OUT+3}], s{sOo} offen offset:32 nt")
    k.c("---- P3 A  (wo(A) was waited for long ago by later counted waits; make it explicit)")
    k.wait(vm=st["wo"])
    k.e("s_barrier")
    toks = {}
    for s_ in range(NB - 1): toks[s_] = rdA(s_, vWrA, vWrAc)
    for step in range(32):
        k.wait(vm=at[step], lg=toks[step])
        par = step % NB
        mfma(k, vr(vD3, 16), vr(vA3 + 4 * par, 4), ar(4 * step, 4), "0" if step == 0 else vr(vD3, 16))
        if step + NB - 1 < 32: toks[step + NB - 1] = rdA(step + NB - 1, vWrA, vWrAc)
    k.wait(vm=ob)
    store_flag(k, vt0, vt1, sFOB)
    tpB = poll4_issue(k, vFlB, vPR0, 0xff)
    out_store("A")
    stamp(k, "P3A done")
    k.e("s_barrier")
    poll4_finish(k, tpB, vFlB, vPR0, vPR1, vPT, 0xff, "poB")
    stamp(k, "P3B flags")
    k.e(f"s_lshl_b32 s{sOo}, s{sP3T}, 16")
    k.e(f"s_add_u32 s{sOo}, s{sOo}, {O_OFF['B']}")
    k.e(f"s_lshl_b32 s{sT}, s{sW}, 14")
    k.e(f"s_add_u32 s{sOo}, s{sOo}, s{sT}")
    k.e(f"s_add_u32 s{sT2}, s{sT}, {WOA_L}")
    for j in range(16):
        if j % 4 == 0:
            k.e(f"s_add_u32 m0, s{sT2}, {1024*j}")
            k.e(f"s_add_u32 s{sT}, s{sOo}, {1024*j}")
        k.vm(f"buffer_load_dwordx4 v{vSt}, {WS}, s{sT} offen offset:{1024*(j%4)} sc1 lds")
    otB = k.vm_n
    if 'clean' in DBG: cleanup_stores(vC, tC)
    k.e(f"s_lshr_b32 s{sT}, s{sW}, 1")
    k.e(f"s_lshl_b32 s{sT}, s{sT}, 15")
    k.e(f"s_add_u32 s{sT}, s{sT}, {WOA_L}")
    k.e(f"v_add_u32 v{vOr}, s{sT}, v{vSt}")
    toks = {}
    for s_ in range(NB - 1): toks[s_] = rdA(s_, vWrB, vWrBc)
    k.wait(vm=otB)
    k.e("s_barrier")
    stamp(k, "P3B data")
    tb = {}
    def rdB(step):
        par = step % NB
        return k.lg(f"ds_read_b128 v[{vB3+4*par}:{vB3+4*par+3}], v{vOr} offset:{step*1024}")
    for s_ in range(NB - 1): tb[s_] = rdB(s_)
    for step in range(32):
        k.wait(lg=max(toks[step], tb[step]))
        par = step % NB
        mfma(k, vr(vD3, 16), vr(vA3 + 4 * par, 4), vr(vB3 + 4 * par, 4), "0" if step == 0 else vr(vD3, 16))
        if step + NB - 1 < 32:
            toks[step + NB - 1] = rdA(step + NB - 1, vWrB, vWrBc)
            tb[step + NB - 1] = rdB(step + NB - 1)
    out_store("B")
    stamp(k, "P3B done")
    stamp(k, "rt", True)
    stamp_flush(k, vt0, vt1)
    if SPAN:
        k.e("s_waitcnt vmcnt(0)")
        k.e(f"s_memrealtime s[{sSp}:{sSp+1}]")
        k.e(f"s_memtime s[{sSp+2}:{sSp+3}]")
        k.e("s_waitcnt lgkmcnt(0)")
        k.e(f"v_readlane_b32 s{sT}, v15, 0")
        k.e(f"v_readlane_b32 s{sT2}, v15, 1")
        k.e(f"s_nop 3")
        k.e(f"s_not_b32 s{sT3}, s{sT}")
        k.e(f"s_sub_u32 s{sT2}, s{sSp+2}, s{sT2}")
        k.e(f"s_sub_u32 s{sT}, s{sSp}, s{sT}")
        k.e(f"v_mov_b32 v{vt0}, 0")
        k.e(f"v_mov_b32 v{vt1}, s{sT3}")
        k.e(f"v_mov_b32 v{vt2}, s{sSp}")
        k.e(f"s_mov_b64 exec, 1")
        k.e(f"global_atomic_umax v{vt0}, v{vt1}, s[18:19] offset:4")
        k.e(f"global_atomic_umax v{vt0}, v{vt2}, s[18:19] offset:8")
        k.e(f"v_mov_b32 v{vt1}, s{sT2}")
        k.e(f"v_mov_b32 v{vt2}, s{sT}")
        k.e(f"global_atomic_umax v{vt0}, v{vt1}, s[18:19] offset:12")
        k.e(f"global_atomic_umax v{vt0}, v{vt2}, s[18:19] offset:16")
    k.label("L_end")
    k.e("s_endpgm")
    vSs, vPs, vQs, vOs, vM = 208, vOf, vQA, vOA, vt3
    k.label("L_slowA")
    k.e(f"s_or_b32 s{sTry}, s{sTry}, 1")
    k.e(f"s_mov_b32 s{sRetSel}, 0")
    k.e(f"s_sub_u32 s{sSlI}, s{sTTA}, 8")
    k.e(f"s_max_i32 s{sSlI}, s{sSlI}, 0")
    k.e(f"s_sub_u32 s{sSlN}, s{sTTA}, s{sSlI}")
    k.e(f"s_add_u32 s{sSlN}, s{sSlN}, 1")
    k.e(f"s_lshl_b32 s{sSlB}, s{sHead}, 6")
    k.e(f"s_add_u32 s{sSlB}, s{sSlB}, s{sSlI}")
    k.e(f"s_lshl_b32 s{sSlB}, s{sSlB}, 12")
    k.e(f"s_add_u32 s{sSlB}, s{sSlB}, {KV_OFF['A']}")
    k.e(f"s_cmp_ge_u32 s{sTTA}, 8")
    k.e(f"s_cselect_b32 s{sSlF}, 3, 2")
    k.e(f"s_branch L_slow")
    k.label("L_slowB")
    k.e(f"s_or_b32 s{sTry}, s{sTry}, 2")
    k.e(f"s_mov_b32 s{sRetSel}, 1")
    k.e(f"s_mov_b32 s{sSlN}, 64")
    k.e(f"s_lshl_b32 s{sSlB}, s{sHead}, 18")
    k.e(f"s_mov_b32 s{sSlF}, 0")
    for i in range(8): k.e(f"v_mov_b32 v{vQs+i}, v{vQ+i}")
    k.label("L_slow")
    k.e("s_waitcnt vmcnt(0) lgkmcnt(0)")
    k.e("s_mov_b32 exec_lo, 0")
    k.e(f"v_mov_b32 v{vQs+6}, 0")
    k.e(f"v_mov_b32 v{vQs+7}, 0")
    k.e("s_mov_b32 exec_lo, -1")
    k.e(f"v_mov_b32 v{vM}, 0xff800000")
    def scores(tag, withV):
        k.e(f"buffer_load_dwordx4 a[240:243], v{vSt}, {WS}, s{sSlO} offen sc1")
        k.e(f"buffer_load_dwordx4 a[244:247], v{vSt}, {WS}, s{sSlO} offen offset:1024 sc1")
        if withV:
            k.e(f"buffer_load_dwordx4 a[248:251], v{vSt}, {WS}, s{sSlO} offen offset:2048 sc1")
            k.e(f"buffer_load_dwordx4 a[252:255], v{vSt}, {WS}, s{sSlO} offen offset:3072 sc1")
        k.e("s_waitcnt vmcnt(0)")
        mfma(k, vr(vSs, 16), ar(240, 4), vr(vQs, 4), "0")
        mfma(k, vr(vSs, 16), ar(244, 4), vr(vQs + 4, 4), vr(vSs, 16))
        k.nop(16)
        k.e(f"s_cmp_eq_u32 s{sSlI}, 0")
        k.e(f"s_cselect_b32 s{sT}, s{sSlF}, 0")
        k.e(f"s_bitcmp1_b32 s{sT}, 0")
        k.e(f"s_cbranch_scc0 L_ne{tag}")
        for i in range(16): k.e(f"v_add_f32 v{vSs+i}, v{vSs+i}, v{vEdge+i}")
        k.label(f"L_ne{tag}")
        k.e(f"s_add_u32 s{sT}, s{sSlI}, 1")
        k.e(f"s_cmp_eq_u32 s{sT}, s{sSlN}")
        k.e(f"s_cselect_b32 s{sT}, s{sSlF}, 0")
        k.e(f"s_bitcmp1_b32 s{sT}, 1")
        k.e(f"s_cbranch_scc0 L_nd{tag}")
        for i in range(16): k.e(f"v_add_f32 v{vSs+i}, v{vSs+i}, v{vDiag+i}")
        k.label(f"L_nd{tag}")
    k.e(f"s_mov_b32 s{sSlI}, 0")
    k.e(f"s_mov_b32 s{sSlO}, s{sSlB}")
    k.label("L_sl1")
    scores("1", False)
    k.e(f"v_max3_f32 v{vM}, v{vM}, v{vSs}, v{vSs+1}")
    for i in range(2, 16, 2): k.e(f"v_max3_f32 v{vM}, v{vM}, v{vSs+i}, v{vSs+i+1}")
    k.e(f"s_add_u32 s{sSlO}, s{sSlO}, 4096")
    k.e(f"s_add_u32 s{sSlI}, s{sSlI}, 1")
    k.e(f"s_cmp_lt_u32 s{sSlI}, s{sSlN}")
    k.e(f"s_cbranch_scc1 L_sl1")
    k.e(f"v_mov_b32 v{vt0}, v{vM}")
    k.nop(2)
    k.e(f"v_permlane32_swap_b32 v{vM}, v{vt0}")
    k.e(f"v_max_f32 v{vM}, v{vM}, v{vt0}")
    shift_dwords(k, vM, vt0, vt1, vt2)
    k.e("s_mov_b32 exec_lo, 0")
    k.e(f"v_mov_b32 v{vQs+6}, v{vt0}")
    k.e(f"v_mov_b32 v{vQs+7}, v{vt1}")
    k.e("s_mov_b32 exec_lo, -1")
    for i in range(16): k.e(f"v_mov_b32 v{vOs+i}, 0")
    k.e(f"s_mov_b32 s{sSlI}, 0")
    k.e(f"s_mov_b32 s{sSlO}, s{sSlB}")
    k.label("L_sl2")
    scores("2", True)
    for i in range(16): k.e(f"v_exp_f32 v{vSs+i}, v{vSs+i}")
    k.nop(1)
    for i in range(8): k.e(f"v_cvt_pk_bf16_f32 v{vPs+i}, v{vSs+2*i}, v{vSs+2*i+1}")
    k.nop(2)
    mfma(k, vr(vOs, 16), ar(248, 4), vr(vPs, 4), vr(vOs, 16))
    mfma(k, vr(vOs, 16), ar(252, 4), vr(vPs + 4, 4), vr(vOs, 16))
    k.nop(16)
    k.e(f"s_add_u32 s{sSlO}, s{sSlO}, 4096")
    k.e(f"s_add_u32 s{sSlI}, s{sSlI}, 1")
    k.e(f"s_cmp_lt_u32 s{sSlI}, s{sSlN}")
    k.e(f"s_cbranch_scc1 L_sl2")
    k.e(f"s_cmp_eq_u32 s{sRetSel}, 0")
    k.e(f"s_cbranch_scc1 L_finA")
    for i in range(16): k.e(f"v_mov_b32 v{vOd(0)+i}, v{vOs+i}")
    k.e(f"s_branch L_finB")
    return k

HEADER = open("cdna_kernels/" + NAME + ".s.ref").read().split("; Override")[0]

def main(out):
    k = gen()
    pr = check(k.L, "fused")
    for p in pr: print(p)
    print("instrs", len(k.L), "stamps", St.n, St.names)
    s = HEADER
    s += "; @launch grid=(256,1,1) block=(256,1,1) lds=163840\n"
    s += '.amdgcn_target "amdgcn-amd-amdhsa--gfx950"\n.text\n'
    s += f".globl {KNAME}\n.p2align 8\n.type {KNAME},@function\n{KNAME}:\n" + k.text()
    s += f""".section .rodata,"a"
.p2align 6
.amdhsa_kernel {KNAME}
  .amdhsa_next_free_vgpr 512
  .amdhsa_next_free_sgpr 102
  .amdhsa_accum_offset 256
  .amdhsa_group_segment_fixed_size 0
  .amdhsa_kernarg_size 72
  .amdhsa_user_sgpr_count 2
  .amdhsa_user_sgpr_kernarg_segment_ptr 1
  .amdhsa_system_sgpr_workgroup_id_x 1
.end_amdhsa_kernel
"""
    open(out, "w").write(s)

if __name__ == "__main__":
    main(sys.argv[1] if len(sys.argv) > 1 else "f3.s")
```
